```python
import torch

def _softmax(x, axis=-1):
    return torch.softmax(x, dim=axis)
def _gelu(x):
    return torch.nn.functional.gelu(x, approximate="tanh")
def _silu(x):
    return torch.nn.functional.silu(x)
def _sigmoid(x):
    return torch.sigmoid(x)
def _layernorm(x, axis=-1, eps=1e-5):
    m = x.mean(dim=axis, keepdim=True)
    v = x.var(dim=axis, keepdim=True, unbiased=False)
    return (x - m) / torch.sqrt(v + eps)
def _scatter_add(tgt, idx, src, axis=0):
    return tgt.clone().index_add_(axis, idx, src)
def _segment_sum(src, seg, n):
    out = torch.zeros((n,) + src.shape[1:], dtype=src.dtype)
    return out.index_add_(0, seg, src)
def _pad(x, pw):
    flat = tuple(v for pair in reversed(pw) for v in pair)
    return torch.nn.functional.pad(x, flat)

kernel_name = 'parallel_sum__gqa_block_cached__dense_activation_relu__decode'

def setup_inputs():

    _w = (lambda a: (lambda t: t.to(torch.bfloat16) if t.is_floating_point() else t)(torch.as_tensor(a)))
    def _A_setup():
        B, Sq, D = 1, 1, 448
        Hq, Hkv, Sk, Dh = 16, 8, 32768, 256
        assert Hq % Hkv == 0, (Hq, Hkv)
        return {
            "x": _w((lambda *s: torch.randn(*s, dtype=torch.bfloat16) * 0.05)(B, Sq, D)),
            "k_cache": _w((lambda *s: torch.randn(*s, dtype=torch.bfloat16) * 3.2)(B, Hkv, Sk, Dh)),
            "v_cache": _w((lambda *s: torch.randn(*s, dtype=torch.bfloat16) * 1.6)(B, Hkv, Sk, Dh)),
            "wq": _w((lambda *s: torch.randn(*s, dtype=torch.bfloat16) * 3.2)(D, Hq * Dh) * (D ** -0.5)),
            "wo": _w((lambda *s: torch.randn(*s, dtype=torch.bfloat16) * 1.6)(Hq * Dh, D) * ((Hq * Dh) ** -0.5)),
        }
    _A_in = _A_setup()

    def _B_setup():
        B, S, D, Dff = 1, 1, 448, 1792
        return {
            "x": _w((lambda *s: torch.randn(*s, dtype=torch.bfloat16) * 0.05)(B, S, D)),
            "w1": _w((lambda *s: torch.randn(*s, dtype=torch.bfloat16) * 0.05)(D, Dff)),
            "w2": _w((lambda *s: torch.randn(*s, dtype=torch.bfloat16) * 0.05)(Dff, D)),
        }
    _B_in = _B_setup()

    return {
        "A_x": _A_in["x"],
        "A_k_cache": _A_in["k_cache"],
        "A_v_cache": _A_in["v_cache"],
        "A_wq": _A_in["wq"],
        "A_wo": _A_in["wo"],
        "B_x": _B_in["x"],
        "B_w1": _B_in["w1"],
        "B_w2": _B_in["w2"],
    }

def reference(A_x, A_k_cache, A_v_cache, A_wq, A_wo, B_x, B_w1, B_w2):
    def _A_ref(x, k_cache, v_cache, wq, wo):
        B, Sq, D = x.shape
        Hq, Dh = 16, 256
        Hkv = k_cache.shape[1]
        rep = Hq // Hkv
        q = (lambda x, *d: x.permute(*d))((x @ wq).reshape(B, Sq, Hq, Dh), 0, 2, 1, 3)
        k = (lambda x, n, axis: torch.repeat_interleave(x, n, dim=axis))(k_cache, rep, axis=1)
        v = (lambda x, n, axis: torch.repeat_interleave(x, n, dim=axis))(v_cache, rep, axis=1)
        scores = torch.einsum("bhqd,bhkd->bhqk", q, k) * (Dh ** -0.5)
        p = _softmax(scores, axis=-1)
        o = torch.einsum("bhqk,bhkd->bhqd", p, v)
        return (lambda x, *d: x.permute(*d))(o, 0, 2, 1, 3).reshape(B, Sq, Hq * Dh) @ wo

    def _B_ref(x, w1, w2):
        h = torch.einsum("bsd,df->bsf", x, w1)
        zero = torch.zeros_like(h)
        h = torch.maximum(h, zero)
        return torch.einsum("bsf,fd->bsd", h, w2)

    x = A_x
    xn = _layernorm(x, axis=-1)
    return x + _A_ref(xn, A_k_cache, A_v_cache, A_wq, A_wo) + _B_ref(xn, B_w1, B_w2)
```

```python
import sys, json, math

NAME = "parallel_sum__gqa_block_cached__dense_activation_relu__decode"
KERN = NAME + "_kernel"

HEADER = """; Kernarg layout for this problem (88 bytes, ptrs only, base s[0:1]):
; @launch grid=(256,1,1) block=(256,1,1) lds={lds}
.amdgcn_target "amdgcn-amd-amdhsa--gfx950"
.text
.globl {k}
.p2align 8
.type {k},@function
{k}:
"""
FOOTER = """
.section .rodata,"a"
.p2align 6
.amdhsa_kernel {k}
  .amdhsa_next_free_vgpr 512
  .amdhsa_next_free_sgpr 102
  .amdhsa_accum_offset 256
  .amdhsa_group_segment_fixed_size 0
  .amdhsa_kernarg_size 88
  .amdhsa_user_sgpr_count 2
  .amdhsa_user_sgpr_kernarg_segment_ptr 1
  .amdhsa_system_sgpr_workgroup_id_x 1
  .amdhsa_float_denorm_mode_32 3
.end_amdhsa_kernel
"""

WS_QG = 0x1000
WS_P1O = 0x10000
WS_P1ML = 0x110000
WS_P2 = 0x120000
WS_CNT = 0x200000
WS_STAMP = 0x300000
WS_SIZE = 0x400000

LOG2E_16 = 1.4426950408889634 / 16.0


def f2u(x):
    import struct
    return struct.unpack("<I", struct.pack("<f", x))[0]


def gen(R=3, S=16, NB=6, NP=2, P=4, stagger=1, xcdadj=False, flags="nt", wflags="nt", stamps=False,
        nq=4, cstride=4352, wlate=True, spin=200000, kern=KERN):
    T = 8
    tb = T * 1024
    nwv = 128
    NG = 16
    hb = 16 << 20
    dyn = S < NG
    RING = 4 * R * tb
    STG0 = RING
    STG1 = STG0 + 14336
    QW = STG1 + 14336
    LDS = QW + 4096
    MRG = STG0
    MRG_ML = MRG + 8192
    FIN = MRG + 8192 + 128
    HB = STG1
    assert LDS <= 163840 and LDS > 81920

    o = []
    A = o.append
    vm = {"n": 0}

    def VM(s):
        A(s)
        vm["n"] += 1
        return vm["n"]

    def wait_vm(idx):
        n = vm["n"] - idx
        assert 0 <= n <= 63, n
        A(f"s_waitcnt vmcnt({n})")

    nstamp = {"n": 0}

    def stamp():
        if stamps:
            k = nstamp["n"]
            assert k < 8
            A(f"s_memrealtime s[{84+2*k}:{85+2*k}]")
            nstamp["n"] += 1

    SRD_K, SRD_V, SRD_W, SRD_WO, SRD_W2, SRD_WS, SRD_X, SRD_OUT = ("s[28:31]", "s[32:35]", "s[36:39]", "s[40:43]",
                                                                     "s[44:47]", "s[48:51]", "s[52:55]", "s[56:59]")
    sW, sH, sP, sTAG, sRING, sBASE, sC, sF = "s3", "s60", "s61", "s62", "s63", "s64", "s65", "s66"
    sISS, sRD, sEND = "s67", "s68", "s69"
    sU0, sU1 = "s70", "s71"
    sT = ["s72", "s73", "s74", "s75", "s76", "s77", "s78", "s79", "s80", "s81"]
    sCNT = "s[82:83]"
    vL = "v1"
    vSRC = [2, 3, 4, 5]
    vKA = [6, 7, 8, 9]
    vVA = list(range(10, 18))
    vMAX, vMS = 18, 19
    vPF, vONE, vS, vLA = 20, 22, 24, 28
    vQ, vTL, vACC, vSC, vT = 32, 64, 96, 160, 224

    A("s_cmp_ge_u32 s2, 256")
    A("s_cbranch_scc1 L_end")
    stamp()
    A("s_load_dwordx16 s[4:19], s[0:1], 0")
    A("s_load_dwordx4 s[20:23], s[0:1], 64")
    A("s_load_dwordx2 s[24:25], s[0:1], 80")
    A("v_lshrrev_b32 v30, 6, v0")
    A(f"v_and_b32 {vL}, 63, v0")
    A("v_readfirstlane_b32 s3, v30")
    A(f"s_lshr_b32 {sH}, s2, 3")
    A(f"s_and_b32 {sH}, {sH}, 7")
    A(f"s_and_b32 {sT[0]}, s2, 7")
    A(f"s_lshr_b32 {sT[1]}, s2, 6")
    A(f"s_lshl_b32 {sP}, {sT[0]}, 2")
    A(f"s_or_b32 {sP}, {sP}, {sT[1]}")
    if xcdadj:
        A(f"s_mov_b32 {sT[2]}, {sP}")
    else:
        A(f"s_lshl_b32 {sT[2]}, {sT[1]}, 3")
        A(f"s_or_b32 {sT[2]}, {sT[2]}, {sT[0]}")
    A(f"s_lshl_b32 {sT[2]}, {sT[2]}, 2")
    A(f"s_add_u32 {sT[2]}, {sT[2]}, {sW}")
    A(f"s_mul_i32 {sT[2]}, {sT[2]}, {P*1024}")
    A(f"s_lshl_b32 {sBASE}, {sH}, 24")
    A(f"s_add_u32 {sBASE}, {sBASE}, {sT[2]}")
    A(f"s_mul_i32 {sU1}, {sH}, {stagger}")
    A(f"s_mul_i32 {sRING}, {sW}, {R*tb}")
    A(f"s_mov_b32 {sC}, 0x{f2u(LOG2E_16):08x}")
    A(f"s_lshr_b32 {sF}, s2, 5")
    A(f"s_lshl_b32 {sF}, {sF}, 3")
    A(f"s_add_u32 {sF}, {sF}, {sT[0]}")
    A(f"s_lshl_b32 {sF}, {sF}, 2")
    A(f"s_and_b32 {sT[3]}, {sH}, 3")
    A(f"s_add_u32 {sF}, {sF}, {sT[3]}")
    A(f"v_lshrrev_b32 v30, 5, {vL}")
    A(f"v_lshlrev_b32 v31, 1, v30")
    A(f"v_and_b32 v29, 31, {vL}")
    A("v_xor_b32 v29, v29, v31")
    A("v_lshlrev_b32 v29, 4, v29")
    A(f"v_lshl_add_u32 v{vSRC[0]}, v30, 9, v29")
    for i in range(1, 4):
        A(f"v_xor_b32 v{vSRC[i]}, {i*64}, v{vSRC[0]}")
    A("s_waitcnt lgkmcnt(0)")
    A(f"s_load_dword {sTAG}, s[24:25], 0")

    def srd(base, lo, size):
        A(f"s_mov_b32 s{base}, s{lo}")
        A(f"s_mov_b32 s{base+1}, s{lo+1}")
        A(f"s_mov_b32 s{base+2}, {size}")
        A(f"s_mov_b32 s{base+3}, 0x20000")
    srd(28, 6, 128 << 20)
    srd(52, 4, 896)
    A(f"s_cmp_eq_u32 {sW}, 0")
    A("s_cselect_b32 s36, s10, s16")
    A("s_cselect_b32 s37, s11, s17")
    A(f"s_mov_b32 s38, {448*1792*2}")
    A(f"s_cmov_b32 s38, {448*4096*2}")
    A("s_mov_b32 s39, 0x20000")
    A(f"s_mov_b32 {sT[4]}, 3584")
    A(f"s_cmov_b32 {sT[4]}, 8192")
    A(f"s_mov_b32 {sT[6]}, {STG1}")
    A(f"s_cmov_b32 {sT[6]}, {STG0}")
    A(f"s_lshl_b32 {sT[5]}, {sH}, 5")
    A(f"s_add_u32 {sT[5]}, {sT[5]}, {sP}")
    A(f"s_cmp_eq_u32 {sW}, 0")
    A(f"s_cselect_b32 {sT[5]}, {sT[5]}, {sF}")
    A(f"s_lshl_b32 {sT[5]}, {sT[5]}, 5")
    A(f"s_cmp_lt_u32 {sF}, 112")
    A(f"s_cselect_b32 {sT[7]}, 2, 1")
    A(f"s_cmp_lt_u32 {sW}, {sT[7]}")
    A(f"s_cselect_b32 {sT[7]}, 1, 0")
    A("s_cbranch_scc0 L_noside0")
    A(f"v_lshlrev_b32 v30, 4, {vL}")
    A(f"buffer_load_dwordx4 v[{vT}:{vT+3}], v30, {SRD_X}, 0 offen")
    A(f"v_lshrrev_b32 v30, 1, {vL}")
    A(f"v_mul_lo_u32 v30, v30, {sT[4]}")
    A(f"v_and_b32 v31, 1, {vL}")
    A("v_lshl_add_u32 v30, v31, 4, v30")
    A(f"s_lshl_b32 {sT[4]}, {sT[4]}, 5")
    for i in range(14):
        A(f"s_add_u32 m0, {sT[6]}, {i*1024}")
        if i:
            A(f"s_add_u32 {sT[5]}, {sT[5]}, {sT[4]}")
        else:
            A("s_nop 0")
        A(f"buffer_load_dwordx4 v30, {SRD_W}, {sT[5]} offen {wflags} lds")
    A("L_noside0:")

    def issue_loads(srd_, soff, ldsbase_s, ldsimm):
        last = None
        idx = None
        for i in range(T):
            if i % 4 == 0:
                A(f"s_add_u32 m0, {ldsbase_s}, {ldsimm + i*1024}")
            g = (i // P) * nwv * P * 1024 + (i % P) * 1024 - (i % 4) * 1024
            if g != last:
                A(f"s_add_u32 {sT[9]}, {soff}, {g}")
                last = g
            elif i % 4 == 0:
                A("s_nop 0")
            idx = VM(f"buffer_load_dwordx4 v{vSRC[i%4]}, {srd_}, {sT[9]} offen offset:{(i%4)*1024} {flags} lds")
        return idx

    seq = [("K", n) for n in range(S)] + [("V", n) for n in range(S)]
    done_idx = {}

    def issue_static(j):
        kind, n = seq[j]
        A(f"s_add_u32 {sU0}, {sU1}, {n}")
        A(f"s_and_b32 {sU0}, {sU0}, {NG-1}")
        A(f"s_lshl_b32 {sU0}, {sU0}, 20")
        A(f"s_add_u32 {sU0}, {sU0}, {sBASE}")
        done_idx[j] = issue_loads(SRD_K if kind == "K" else SRD_V, sU0, sRING, (j % R) * tb)

    npre = min(2, R)
    for j in range(npre):
        issue_static(j)
    srd(32, 8, 128 << 20)
    srd(40, 12, 4096 * 448 * 2)
    srd(44, 18, 1792 * 448 * 2)
    srd(48, 24, WS_SIZE)
    srd(56, 20, 896)
    A(f"v_and_b32 v29, 15, {vL}")
    A(f"v_lshrrev_b32 v30, 4, {vL}")
    A("v_and_b32 v31, 7, v29")
    A("v_lshlrev_b32 v31, 1, v31")
    A("v_xor_b32 v31, v31, v30")
    A("v_lshlrev_b32 v31, 4, v31")
    A("v_lshl_add_u32 v31, v29, 9, v31")
    for j in range(4):
        A(f"v_xor_b32 v{vKA[j]}, {j*64}, v31")
        A(f"v_add_u32 v{vKA[j]}, {sRING}, v{vKA[j]}")
    A(f"v_lshrrev_b32 v29, 2, {vL}")
    A("v_and_b32 v30, 7, v29")
    A("v_lshlrev_b32 v30, 5, v30")
    A(f"v_and_b32 v31, 3, {vL}")
    A("v_lshlrev_b32 v31, 3, v31")
    A("v_or_b32 v31, v31, v30")
    A("v_lshl_add_u32 v31, v29, 9, v31")
    for t in range(8):
        A(f"v_xor_b32 v{vVA[t]}, {t*32}, v31")
        A(f"v_add_u32 v{vVA[t]}, {sRING}, v{vVA[t]}")
    A(f"v_mov_b32 v{vONE}, 0x3f803f80")
    A(f"v_mov_b32 v{vONE+1}, 0x3f803f80")
    A(f"v_mov_b32 v{vMAX}, 0xff800000")
    A("s_waitcnt lgkmcnt(0)")
    A(f"s_mul_i32 {sTAG}, {sTAG}, 1664525")
    A(f"s_add_u32 {sTAG}, {sTAG}, 1013904223")

    def allreduce(op, regs, tmp, steps):
        for st in steps:
            if st <= 8:
                A("s_nop 1")
                for r in regs:
                    A(f"{op}_dpp v{r}, v{r}, v{r} row_ror:{st} row_mask:0xf bank_mask:0xf")
            else:
                for k, r in enumerate(regs):
                    A(f"v_mov_b32 v{tmp+k}, v{r}")
                A("s_nop 1")
                for k, r in enumerate(regs):
                    A(f"v_permlane{st}_swap_b32 v{r}, v{tmp+k}")
                A("s_nop 1")
                for k, r in enumerate(regs):
                    A(f"{op} v{r}, v{r}, v{tmp+k}")

    A(f"s_cmp_eq_u32 {sT[7]}, 0")
    A("s_cbranch_scc1 L_noside1")
    X = vT + 4
    a, b, c_, d_ = vT + 12, vT + 13, vT + 14, vT + 15
    A(f"s_waitcnt vmcnt({14 + npre*T})")
    for i in range(4):
        A(f"v_lshlrev_b32 v{X+2*i}, 16, v{vT+i}")
        A(f"v_and_b32 v{X+2*i+1}, 0xffff0000, v{vT+i}")
    A(f"v_add_f32 v{a}, v{X}, v{X+1}")
    for i in range(2, 8):
        A(f"v_add_f32 v{a}, v{a}, v{X+i}")
    allreduce("v_add_f32", [a], b, [1, 2, 4, 8, 16, 32])
    A(f"v_mul_f32 v{a}, 0x{f2u(1.0/448):08x}, v{a}")
    A(f"v_mov_b32 v{b}, 0")
    for i in range(8):
        A(f"v_sub_f32 v{c_}, v{X+i}, v{a}")
        A(f"v_fmac_f32 v{b}, v{c_}, v{c_}")
    A(f"v_cmp_gt_u32 vcc, 56, {vL}")
    A("s_nop 1")
    A(f"v_cndmask_b32 v{b}, 0, v{b}, vcc")
    allreduce("v_add_f32", [b], c_, [1, 2, 4, 8, 16, 32])
    A(f"v_mul_f32 v{b}, 0x{f2u(1.0/448):08x}, v{b}")
    A(f"v_cvt_pk_bf16_f32 v{c_}, v{a}, v{b}")
    A(f"v_lshlrev_b32 v{a}, 16, v{c_}")
    A(f"v_and_b32 v{b}, 0xffff0000, v{c_}")
    A(f"v_add_f32 v{b}, 0x{f2u(1e-5):08x}, v{b}")
    A(f"v_cvt_pk_bf16_f32 v{b}, v{b}, v{b}")
    A(f"v_and_b32 v{b}, 0xffff0000, v{b}")
    A(f"v_sqrt_f32 v{b}, v{b}")
    A("s_nop 0")
    A(f"v_cvt_pk_bf16_f32 v{b}, v{b}, v{b}")
    A(f"v_and_b32 v{b}, 0xffff0000, v{b}")
    A(f"v_rcp_f32 v{b}, v{b}")
    for i in range(8):
        A(f"v_sub_f32 v{X+i}, v{X+i}, v{a}")
    for i in range(4):
        A(f"v_cvt_pk_bf16_f32 v{vT+i}, v{X+2*i}, v{X+2*i+1}")
    for i in range(4):
        A(f"v_lshlrev_b32 v{X+2*i}, 16, v{vT+i}")
        A(f"v_and_b32 v{X+2*i+1}, 0xffff0000, v{vT+i}")
    for i in range(8):
        A(f"v_mul_f32 v{X+i}, v{X+i}, v{b}")
    for i in range(4):
        A(f"v_cvt_pk_bf16_f32 v{vT+i}, v{X+2*i}, v{X+2*i+1}")
    A(f"s_lshl_b32 {sT[0]}, {sW}, 10")
    A(f"s_add_u32 {sT[0]}, {sT[0]}, {QW}")
    A(f"v_lshlrev_b32 v{a}, 4, {vL}")
    A(f"v_add_u32 v{a}, {sT[0]}, v{a}")
    A(f"ds_write_b128 v{a}, v[{vT}:{vT+3}]")
    A(f"v_lshrrev_b32 v{b}, 4, {vL}")
    A(f"v_lshlrev_b32 v{c_}, 4, v{b}")
    A(f"v_add_u32 v{c_}, {sT[0]}, v{c_}")
    XF, WF = 96, 152
    A("s_waitcnt lgkmcnt(0)")
    for i in range(14):
        A(f"ds_read_b128 v[{XF+4*i}:{XF+4*i+3}], v{c_} offset:{i*64}")
    A(f"v_lshlrev_b32 v{b}, 8, v{b}")
    A(f"v_and_b32 v{d_}, 15, {vL}")
    A(f"v_lshl_add_u32 v{b}, v{d_}, 3, v{b}")
    A(f"v_add_u32 v{b}, {sT[6]}, v{b}")
    A(f"s_waitcnt vmcnt({npre*T}) lgkmcnt(0)")
    for i in range(14):
        A(f"ds_read_b64_tr_b16 v[{WF+4*i}:{WF+4*i+1}], v{b} offset:{i*1024}")
        A(f"ds_read_b64_tr_b16 v[{WF+4*i+2}:{WF+4*i+3}], v{b} offset:{i*1024+128}")
        if i == 6:
            A("s_waitcnt lgkmcnt(0)")
    A("s_waitcnt lgkmcnt(0)")
    for i in range(14):
        A(f"v_mfma_f32_16x16x32_bf16 v[{vS}:{vS+3}], v[{WF+4*i}:{WF+4*i+3}], v[{XF+4*i}:{XF+4*i+3}], " +
          ("0" if i == 0 else f"v[{vS}:{vS+3}]"))
    A(f"v_cmp_eq_u32 vcc, 0, v{d_}")
    A(f"v_lshrrev_b32 v{b}, 4, {vL}")
    A(f"s_cmp_eq_u32 {sW}, 0")
    A("s_cbranch_scc0 L_side_ffn")
    A(f"s_lshl_b32 {sT[0]}, {sH}, 11")
    A(f"s_lshl_b32 {sT[1]}, {sP}, 6")
    A(f"s_add_u32 {sT[0]}, {sT[0]}, {sT[1]}")
    A(f"s_add_u32 {sT[0]}, {sT[0]}, {WS_QG}")
    A(f"v_lshlrev_b32 v{b}, 4, v{b}")
    A(f"v_mov_b32 v{vT+1}, {sTAG}")
    A(f"v_mov_b32 v{vT+3}, {sTAG}")
    A("s_nop 3")
    A(f"v_cvt_pk_bf16_f32 v{vT}, v{vS}, v{vS+1}")
    A(f"v_cvt_pk_bf16_f32 v{vT+2}, v{vS+2}, v{vS+3}")
    if dyn:
        A(f"s_cmp_lt_u32 {sP}, {nq}")
        A("s_cbranch_scc0 L_noclear")
        A(f"s_mul_i32 {sT[1]}, {sH}, {nq}")
        A(f"s_add_u32 {sT[1]}, {sT[1]}, {sP}")
        A(f"s_mul_i32 {sT[1]}, {sT[1]}, {cstride}")
        A(f"s_add_u32 {sT[1]}, {sT[1]}, {WS_CNT}")
        A(f"v_mov_b32 v{a}, 0")
        A("s_mov_b64 exec, 1")
        A(f"buffer_store_dword v{a}, v{a}, {SRD_WS}, {sT[1]} offen sc0 sc1")
        A("s_mov_b64 exec, -1")
        A("s_waitcnt vmcnt(0)")
        A("L_noclear:")
    A("s_mov_b64 exec, vcc")
    A(f"buffer_store_dwordx4 v[{vT}:{vT+3}], v{b}, {SRD_WS}, {sT[0]} offen sc1")
    A("s_mov_b64 exec, -1")
    A("s_branch L_noside1")
    A("L_side_ffn:")
    A(f"v_lshlrev_b32 v{b}, 3, v{b}")
    A(f"v_add_u32 v{b}, {HB}, v{b}")
    A("s_nop 5")
    for i in range(4):
        A(f"v_max_f32 v{vS+i}, 0, v{vS+i}")
    A(f"v_cvt_pk_bf16_f32 v{vT}, v{vS}, v{vS+1}")
    A(f"v_cvt_pk_bf16_f32 v{vT+1}, v{vS+2}, v{vS+3}")
    A("s_mov_b64 exec, vcc")
    A(f"ds_write_b64 v{b}, v[{vT}:{vT+1}]")
    A("s_mov_b64 exec, -1")
    A("L_noside1:")
    stamp()
    for j in range(npre, R):
        issue_static(j)

    def read_k(dst, slot_imm, acc=False, addr=vKA):
        p = "a" if acc else "v"
        for j in range(8):
            A(f"ds_read_b128 {p}[{dst+4*j}:{dst+4*j+3}], v{addr[j%4]} offset:{slot_imm + (j//4)*256}")

    def qk(src, acc, sc):
        p = "a" if acc else "v"
        for j in range(8):
            A(f"v_mfma_f32_16x16x32_bf16 v[{vS}:{vS+3}], {p}[{src+4*j}:{src+4*j+3}], v[{vQ+4*j}:{vQ+4*j+3}], " +
              ("0" if j == 0 else f"v[{vS}:{vS+3}]"))
        A("s_nop 7")
        A(f"v_cvt_pk_bf16_f32 v{sc+1}, v{vS}, v{vS+1}")
        A(f"v_cvt_pk_bf16_f32 v{sc+3}, v{vS+2}, v{vS+3}")
        A(f"v_lshlrev_b32 v{sc}, 16, v{sc+1}")
        A(f"v_and_b32 v{sc+1}, 0xffff0000, v{sc+1}")
        A(f"v_lshlrev_b32 v{sc+2}, 16, v{sc+3}")
        A(f"v_and_b32 v{sc+3}, 0xffff0000, v{sc+3}")

    def runmax(sc):
        A(f"v_max3_f32 v{vMAX}, v{sc}, v{sc+1}, v{vMAX}")
        A(f"v_max3_f32 v{vMAX}, v{sc+2}, v{sc+3}, v{vMAX}")

    def q_poll_issue():
        VM(f"buffer_load_dwordx4 v[{vT}:{vT+3}], v{vT+8}, {SRD_WS}, {sT[8]} offen sc1")
        return VM(f"buffer_load_dwordx4 v[{vT+4}:{vT+7}], v{vT+8}, {SRD_WS}, {sT[8]} offen offset:1024 sc1")

    def next_issue(j):
        if j + R < len(seq):
            issue_static(j + R)

    assert NP < NB <= 8 and NB <= S
    qidx = None
    for n in range(NB):
        wait_vm(done_idx[n])
        read_k(32 * n, (n % R) * tb, acc=True)
        A("s_waitcnt lgkmcnt(0)")
        if n == NP:
            A(f"s_lshl_b32 {sT[8]}, {sH}, 11")
            A(f"s_add_u32 {sT[8]}, {sT[8]}, {WS_QG}")
            A(f"v_lshlrev_b32 v{vT+8}, 4, {vL}")
            qidx = q_poll_issue()
        next_issue(n)
    wait_vm(qidx)
    A(f"s_mov_b32 {sT[0]}, {spin}")
    A("L_qchk:")
    A(f"v_xor_b32 v{vT+9}, {sTAG}, v{vT+1}")
    for r in (3, 5, 7):
        A(f"v_xor_b32 v{vT+10}, {sTAG}, v{vT+r}")
        A(f"v_or_b32 v{vT+9}, v{vT+9}, v{vT+10}")
    A(f"v_cmp_ne_u32 vcc, 0, v{vT+9}")
    A("s_cbranch_vccz L_qok")
    A(f"s_sub_u32 {sT[0]}, {sT[0]}, 1")
    A("s_cbranch_scc1 L_qok")
    A(f"buffer_load_dwordx4 v[{vT}:{vT+3}], v{vT+8}, {SRD_WS}, {sT[8]} offen sc1")
    A(f"buffer_load_dwordx4 v[{vT+4}:{vT+7}], v{vT+8}, {SRD_WS}, {sT[8]} offen offset:1024 sc1")
    A("s_waitcnt vmcnt(0)")
    A("s_branch L_qchk")
    A("L_qok:")
    stamp()
    A(f"s_lshl_b32 {sT[0]}, {sW}, 10")
    A(f"s_add_u32 {sT[0]}, {sT[0]}, {QW}")
    A(f"v_lshlrev_b32 v{vT+9}, 3, {vL}")
    A(f"v_add_u32 v{vT+9}, {sT[0]}, v{vT+9}")
    A(f"ds_write2_b32 v{vT+9}, v{vT}, v{vT+2} offset0:0 offset1:1")
    A(f"ds_write2_b32 v{vT+9}, v{vT+4}, v{vT+6} offset0:128 offset1:129")
    A(f"v_and_b32 v{vT+10}, 1, {vL}")
    A(f"v_lshlrev_b32 v{vT+10}, 9, v{vT+10}")
    A(f"v_lshrrev_b32 v{vT+11}, 4, {vL}")
    A(f"v_lshl_add_u32 v{vT+10}, v{vT+11}, 4, v{vT+10}")
    A(f"v_add_u32 v{vT+10}, {sT[0]}, v{vT+10}")
    A("s_waitcnt lgkmcnt(0)")
    for j in range(8):
        A(f"ds_read_b128 v[{vQ+4*j}:{vQ+4*j+3}], v{vT+10} offset:{j*64}")
    A("s_waitcnt lgkmcnt(0)")
    backlog = list(range(NB))

    def do_backlog(k):
        for _ in range(k):
            if backlog:
                n = backlog.pop(0)
                qk(32 * n, True, vSC + 4 * n)
                runmax(vSC + 4 * n)

    do_backlog(2)
    for n in range(NB, S):
        wait_vm(done_idx[n])
        read_k(vTL, (n % R) * tb)
        A("s_waitcnt lgkmcnt(0)")
        next_issue(n)
        qk(vTL, False, vSC + 4 * n)
        runmax(vSC + 4 * n)
        do_backlog(2)
    do_backlog(8)
    allreduce("v_max_f32", [vMAX], vT, [16, 32])
    A(f"v_mul_f32 v{vMS}, {sC}, v{vMAX}")
    stamp()

    def read_v(slot_imm, addr=vVA):
        for t in range(16):
            A(f"ds_read_b64_tr_b16 v[{vTL+2*t}:{vTL+2*t+1}], v{addr[t%8]} offset:{slot_imm + (t//8)*256}")

    def make_p(sc):
        for r in range(4):
            A(f"v_fma_f32 v{sc+r}, v{sc+r}, {sC}, -v{vMS}")
        for r in range(4):
            A(f"v_exp_f32 v{sc+r}, v{sc+r}")
        A("s_nop 0")
        A(f"v_cvt_pk_bf16_f32 v{vPF}, v{sc}, v{sc+1}")
        A(f"v_cvt_pk_bf16_f32 v{vPF+1}, v{sc+2}, v{sc+3}")

    def pv(first):
        A(f"v_mfma_f32_16x16x16_bf16 v[{vLA}:{vLA+3}], v[{vPF}:{vPF+1}], v[{vONE}:{vONE+1}], " +
          ("0" if first else f"v[{vLA}:{vLA+3}]"))
        for t in range(16):
            A(f"v_mfma_f32_16x16x16_bf16 v[{vACC+4*t}:{vACC+4*t+3}], v[{vPF}:{vPF+1}], v[{vTL+2*t}:{vTL+2*t+1}], " +
              ("0" if first else f"v[{vACC+4*t}:{vACC+4*t+3}]"))

    vWO, vW2 = vSC, vSC + 16

    def issue_weights(lbl="a"):
        A(f"v_lshlrev_b32 v{vT+8}, 2, v0")
        A(f"s_lshl_b32 {sT[0]}, {sH}, 5")
        A(f"s_add_u32 {sT[0]}, {sT[0]}, {sP}")
        A(f"s_mul_i32 {sT[0]}, {sT[0]}, {16*896}")
        A(f"s_mul_i32 {sT[1]}, {sF}, {16*896}")
        last = None
        for i in range(16):
            if i % 4 == 0 and i:
                A(f"s_add_u32 {sT[0]}, {sT[0]}, {4*896}")
            last = VM(f"buffer_load_dword v{vWO+i}, v{vT+8}, {SRD_WO}, {sT[0]} offen offset:{(i%4)*896} {wflags}")
        A(f"s_cmp_lt_u32 {sF}, 112")
        A(f"s_cbranch_scc0 L_now2_{lbl}")
        for i in range(16):
            if i % 4 == 0 and i:
                A(f"s_add_u32 {sT[1]}, {sT[1]}, {4*896}")
            A(f"buffer_load_dword v{vW2+i}, v{vT+8}, {SRD_W2}, {sT[1]} offen offset:{(i%4)*896} {wflags}")
        A(f"L_now2_{lbl}:")
        return last

    widx = None
    assert not dyn, "dynamic tail not generated yet"
    for n in range(S):
        j = S + n
        make_p(vSC + 4 * n)
        wait_vm(done_idx[j])
        read_v((j % R) * tb)
        A("s_waitcnt lgkmcnt(0)")
        next_issue(j)
        if (wlate and j + R == len(seq) - 1) or (not wlate and n == 8):
            widx = issue_weights()
        pv(n == 0)
    stamp()

    A(f"s_lshl_b32 {sT[0]}, {sW}, 11")
    A(f"s_add_u32 {sT[0]}, {sT[0]}, {MRG}")
    A(f"v_lshlrev_b32 v{vT}, 2, {vL}")
    A(f"v_add_u32 v{vT}, {sT[0]}, v{vT}")
    A(f"v_add_u32 v{vT+1}, 1024, v{vT}")
    A(f"v_and_b32 v{vT+2}, 1, {vL}")
    A(f"v_cmp_eq_u32 vcc, 1, v{vT+2}")
    A(f"v_lshlrev_b32 v{vT+2}, 4, v{vT+2}")
    A(f"s_lshl_b32 {sT[1]}, {sW}, 2")
    A(f"s_add_u32 {sT[1]}, {sT[1]}, {MRG_ML}")
    A(f"v_add_u32 v{vT+2}, {sT[1]}, v{vT+2}")
    A(f"v_cndmask_b32 v{vT+3}, v{vLA}, v{vLA+1}, vcc")
    A("s_mov_b64 exec, 0xffff")
    A(f"ds_write2_b32 v{vT+2}, v{vMS}, v{vT+3} offset0:0 offset1:8")
    for t in range(16):
        A(f"ds_write2_b32 v{vT + t//8}, v{vACC+4*t}, v{vACC+4*t+1} offset0:{(t%8)*16} offset1:{(t%8)*16+128}")
    A("s_mov_b64 exec, -1")
    A(f"s_and_b32 {sT[0]}, {sW}, 1")
    A(f"s_lshl_b32 {sT[0]}, {sT[0]}, 10")
    A(f"s_lshr_b32 {sT[1]}, {sW}, 1")
    A(f"s_lshl_b32 {sT[2]}, {sT[1]}, 9")
    A(f"s_add_u32 {sT[0]}, {sT[0]}, {sT[2]}")
    A(f"s_add_u32 {sT[0]}, {sT[0]}, {MRG}")
    A(f"v_lshlrev_b32 v{vT+4}, 3, {vL}")
    A(f"v_add_u32 v{vT+4}, {sT[0]}, v{vT+4}")
    A(f"s_lshl_b32 {sT[2]}, {sT[1]}, 4")
    A(f"s_add_u32 {sT[2]}, {sT[2]}, {MRG_ML}")
    A(f"v_mov_b32 v{vT+5}, {sT[2]}")
    A(f"v_mov_b32 v{vT+6}, {HB}")
    A(f"s_lshl_b32 {sT[3]}, {sH}, 5")
    A(f"s_add_u32 {sT[3]}, {sT[3]}, {sP}")
    A(f"s_lshl_b32 {sT[3]}, {sT[3]}, 12")
    A(f"s_add_u32 {sT[3]}, {sT[3]}, {WS_P1O}")
    A(f"s_lshl_b32 {sT[4]}, {sH}, 1")
    A(f"s_add_u32 {sT[4]}, {sT[4]}, {sT[1]}")
    A(f"s_lshl_b32 {sT[4]}, {sT[4]}, 9")
    A(f"s_lshl_b32 {sT[5]}, {sP}, 4")
    A(f"s_add_u32 {sT[4]}, {sT[4]}, {sT[5]}")
    A(f"s_add_u32 {sT[4]}, {sT[4]}, {WS_P1ML}")
    A(f"v_lshlrev_b32 v{vT+7}, 4, v0")
    A("s_waitcnt lgkmcnt(0)")
    A("s_barrier")
    M4, L4, O4, H8 = 64, 68, 72, 80
    A(f"ds_read_b128 v[{M4}:{M4+3}], v{vT+5}")
    A(f"ds_read_b128 v[{L4}:{L4+3}], v{vT+5} offset:32")
    for w in range(4):
        A(f"ds_read_b64 v[{O4+2*w}:{O4+2*w+1}], v{vT+4} offset:{w*2048}")
    A(f"ds_read_b128 v[{H8}:{H8+3}], v{vT+6}")
    A(f"ds_read_b128 v[{H8+4}:{H8+7}], v{vT+6} offset:16")
    G = 88
    A(f"v_mov_b32 v{G+1}, {sTAG}")
    A(f"v_mov_b32 v{G+3}, {sTAG}")
    A(f"v_mov_b32 v{G+5}, {sTAG}")
    A(f"v_mov_b32 v{G+7}, {sTAG}")
    A("s_waitcnt lgkmcnt(7)")
    A(f"v_max3_f32 v{G+4}, v{M4}, v{M4+1}, v{M4+2}")
    A(f"v_max_f32 v{G+4}, v{G+4}, v{M4+3}")
    for w in range(4):
        A(f"v_sub_f32 v{M4+w}, v{M4+w}, v{G+4}")
    for w in range(4):
        A(f"v_exp_f32 v{M4+w}, v{M4+w}")
    A("s_waitcnt lgkmcnt(2)")
    A(f"v_mul_f32 v{G}, v{M4}, v{O4}")
    A(f"v_mul_f32 v{G+2}, v{M4}, v{O4+1}")
    for w in range(1, 4):
        A(f"v_fmac_f32 v{G}, v{M4+w}, v{O4+2*w}")
        A(f"v_fmac_f32 v{G+2}, v{M4+w}, v{O4+2*w+1}")
    VM(f"buffer_store_dwordx4 v[{G}:{G+3}], v{vT+7}, {SRD_WS}, {sT[3]} offen sc1")
    A(f"v_mul_f32 v{G+6}, v{M4}, v{L4}")
    for w in range(1, 4):
        A(f"v_fmac_f32 v{G+6}, v{M4+w}, v{L4+w}")
    A(f"s_bitcmp1_b32 {sW}, 0")
    A("s_cbranch_scc1 L_noml")
    A(f"v_mov_b32 v{vT+8}, 0")
    A("s_mov_b64 exec, 1")
    A(f"buffer_store_dwordx4 v[{G+4}:{G+7}], v{vT+8}, {SRD_WS}, {sT[4]} offen sc1")
    A("s_mov_b64 exec, -1")
    A("L_noml:")
    stamp()

    A(f"v_lshrrev_b32 v{vT}, 3, {vL}")
    A(f"v_and_b32 v{vT+1}, 7, {vL}")
    A(f"v_lshlrev_b32 v{vT+1}, 4, v{vT+1}")
    A(f"v_lshl_add_u32 v{vT+2}, v{vT}, 12, v{vT+1}")
    A(f"v_lshlrev_b32 v{vT+3}, 4, v{vT}")
    A(f"s_lshl_b32 {sT[0]}, {sH}, 17")
    A(f"s_lshl_b32 {sT[1]}, {sP}, 7")
    A(f"s_add_u32 {sT[0]}, {sT[0]}, {sT[1]}")
    A(f"s_add_u32 {sT[0]}, {sT[0]}, {WS_P1O}")
    for k in range(1, 4):
        A(f"s_add_u32 {sT[k]}, {sT[0]}, {k*32768}")
    A(f"s_lshl_b32 {sT[4]}, {sH}, 1")
    A(f"s_lshr_b32 {sT[5]}, {sP}, 4")
    A(f"s_add_u32 {sT[4]}, {sT[4]}, {sT[5]}")
    A(f"s_lshl_b32 {sT[4]}, {sT[4]}, 9")
    A(f"s_add_u32 {sT[4]}, {sT[4]}, {WS_P1ML}")
    OG, MG = 96, 112

    def hop1_loads():
        for k in range(4):
            A(f"buffer_load_dwordx4 v[{MG+4*k}:{MG+4*k+3}], v{vT+3}, {SRD_WS}, {sT[4]} offen offset:{k*128} sc1")
        for k in range(4):
            A(f"buffer_load_dwordx4 v[{OG+4*k}:{OG+4*k+3}], v{vT+2}, {SRD_WS}, {sT[k]} offen sc1")
    hop1_loads()
    A("s_waitcnt vmcnt(8) lgkmcnt(0)")
    PW = 128
    PW2 = 144
    A(f"s_mov_b32 {sT[6]}, 0x05040100")
    A(f"s_mov_b32 {sT[7]}, 0x07060302")
    for (dst, w) in ((PW, vWO), (PW2, vW2)):
        for k in range(8):
            A(f"v_perm_b32 v{dst+k}, v{w+2*k+1}, v{w+2*k}, {sT[6]}")
            A(f"v_perm_b32 v{dst+8+k}, v{w+2*k+1}, v{w+2*k}, {sT[7]}")
    Y = 92
    A(f"v_mov_b32 v{Y}, 0")
    A(f"v_mov_b32 v{Y+2}, 0")
    A(f"s_cmp_lt_u32 {sF}, 112")
    A("s_cbranch_scc0 L_noffn2")
    for k in range(8):
        A(f"v_dot2_f32_bf16 v{Y}, v{H8+k}, v{PW2+k}, v{Y}")
        A(f"v_dot2_f32_bf16 v{Y+2}, v{H8+k}, v{PW2+8+k}, v{Y+2}")
    A("L_noffn2:")
    A(f"s_mul_i32 {sT[8]}, s2, 3584")
    A(f"s_add_u32 {sT[8]}, {sT[8]}, {WS_P2}")
    A(f"s_mov_b32 {sT[9]}, {spin}")
    A("L_h1chk:")
    A("s_waitcnt vmcnt(0)")

    def tagcheck(regs, acc0, acc1):
        A(f"v_xor_b32 v{acc0}, {sTAG}, v{regs[0]}")
        A(f"v_xor_b32 v{acc1}, {sTAG}, v{regs[1]}")
        for i, r in enumerate(regs[2:]):
            acc = acc0 if i % 2 == 0 else acc1
            A(f"v_bitop3_b32 v{acc}, v{acc}, v{r}, {sTAG} bitop3:0xf6")
        A(f"v_or_b32 v{acc0}, v{acc0}, v{acc1}")
        A(f"v_cmp_ne_u32 vcc, 0, v{acc0}")
    tagcheck([OG + 1 + 2 * i for i in range(16)], vT + 4, vT + 5)
    A("s_cbranch_vccz L_h1ok")
    A(f"s_sub_u32 {sT[9]}, {sT[9]}, 1")
    A("s_cbranch_scc1 L_h1ok")
    hop1_loads()
    A("s_branch L_h1chk")
    A("L_h1ok:")
    stamp()
    mx, la, oa, ob = vT + 4, vT + 5, vT + 6, vT + 7
    A(f"v_max3_f32 v{mx}, v{MG}, v{MG+4}, v{MG+8}")
    A(f"v_max_f32 v{mx}, v{mx}, v{MG+12}")
    allreduce("v_max_f32", [mx], vT + 8, [8, 16, 32])
    for k in range(4):
        A(f"v_sub_f32 v{MG+4*k}, v{MG+4*k}, v{mx}")
    for k in range(4):
        A(f"v_exp_f32 v{MG+4*k}, v{MG+4*k}")
    A("s_nop 0")
    A(f"v_mul_f32 v{la}, v{MG}, v{MG+2}")
    A(f"v_mul_f32 v{oa}, v{MG}, v{OG}")
    A(f"v_mul_f32 v{ob}, v{MG}, v{OG+2}")
    for k in range(1, 4):
        A(f"v_fmac_f32 v{la}, v{MG+4*k}, v{MG+4*k+2}")
        A(f"v_fmac_f32 v{oa}, v{MG+4*k}, v{OG+4*k}")
        A(f"v_fmac_f32 v{ob}, v{MG+4*k}, v{OG+4*k+2}")
    allreduce("v_add_f32", [la, oa, ob], vT + 8, [8, 16, 32])
    A(f"v_rcp_f32 v{la}, v{la}")
    A("s_nop 0")
    A(f"v_mul_f32 v{oa}, v{oa}, v{la}")
    A(f"v_mul_f32 v{ob}, v{ob}, v{la}")
    A(f"v_cvt_pk_bf16_f32 v{oa}, v{oa}, v{ob}")
    A(f"v_cmp_gt_u32 vcc, 224, v0")
    for k in range(8):
        A(f"v_readlane_b32 {sT[k]}, v{oa}, {k}")
    A(f"v_lshlrev_b32 v{vT+8}, 4, v0")
    for k in range(8):
        A(f"v_dot2_f32_bf16 v{Y}, {sT[k]}, v{PW+k}, v{Y}")
        A(f"v_dot2_f32_bf16 v{Y+2}, {sT[k]}, v{PW+8+k}, v{Y+2}")
    A("s_mov_b64 exec, vcc")
    A("s_nop 2")
    A(f"buffer_store_dwordx4 v[{Y}:{Y+3}], v{vT+8}, {SRD_WS}, {sT[8]} offen sc1")
    A("s_mov_b64 exec, -1")
    stamp()
    A("s_cmp_lt_u32 s2, 28")
    A("s_cbranch_scc0 L_done")

    A(f"s_lshl_b32 {sT[8]}, {sW}, 6")
    A(f"v_add_u32 v{vT}, {sT[8]}, v{vT}")
    A(f"v_mul_u32_u24 v{vT}, 3584, v{vT}")
    A(f"v_add_u32 v{vT}, v{vT}, v{vT+1}")
    A(f"s_lshl_b32 {sT[0]}, s2, 7")
    A(f"s_add_u32 {sT[0]}, {sT[0]}, {WS_P2}")
    for k in range(1, 8):
        A(f"s_add_u32 {sT[k]}, {sT[0]}, {k*8*3584}")
    YG = 96

    def hop2_loads():
        for k in range(8):
            A(f"buffer_load_dwordx4 v[{YG+4*k}:{YG+4*k+3}], v{vT}, {SRD_WS}, {sT[k]} offen sc1")
    A(f"s_lshl_b32 {sT[8]}, s2, 5")
    A(f"v_lshlrev_b32 v{vT+2}, 2, {vL}")
    A(f"buffer_load_dword v{vT+3}, v{vT+2}, {SRD_X}, {sT[8]} offen")
    hop2_loads()
    A(f"s_lshl_b32 {sT[9]}, {sW}, 6")
    A(f"s_add_u32 {sT[9]}, {sT[9]}, {FIN}")
    A(f"v_lshlrev_b32 v{vT+10}, 3, {vL}")
    A(f"v_add_u32 v{vT+11}, {FIN}, v{vT+10}")
    A(f"v_add_u32 v{vT+10}, {sT[9]}, v{vT+10}")
    A(f"s_mov_b32 {sT[9]}, {spin}")
    A("L_h2chk:")
    A("s_waitcnt vmcnt(0)")
    tagcheck([YG + 1 + 2 * i for i in range(16)], vT + 4, vT + 5)
    A("s_cbranch_vccz L_h2ok")
    A(f"s_sub_u32 {sT[9]}, {sT[9]}, 1")
    A("s_cbranch_scc1 L_h2ok")
    hop2_loads()
    A("s_branch L_h2chk")
    A("L_h2ok:")
    ya, yb = vT + 6, vT + 7
    A(f"v_add_f32 v{ya}, v{YG}, v{YG+4}")
    A(f"v_add_f32 v{yb}, v{YG+2}, v{YG+6}")
    for k in range(2, 8):
        A(f"v_add_f32 v{ya}, v{ya}, v{YG+4*k}")
        A(f"v_add_f32 v{yb}, v{yb}, v{YG+4*k+2}")
    allreduce("v_add_f32", [ya, yb], vT + 8, [8, 16, 32])
    A("s_mov_b64 exec, 0xff")
    A(f"ds_write_b64 v{vT+10}, v[{ya}:{yb}]")
    A("s_waitcnt lgkmcnt(0)")
    A("s_barrier")
    A(f"s_cmp_eq_u32 {sW}, 0")
    A("s_cbranch_scc0 L_done")
    for w in range(4):
        A(f"ds_read_b64 v[{YG+2*w}:{YG+2*w+1}], v{vT+11} offset:{w*64}")
    A(f"v_lshlrev_b32 v{ya}, 16, v{vT+3}")
    A(f"v_and_b32 v{yb}, 0xffff0000, v{vT+3}")
    A("s_waitcnt lgkmcnt(0)")
    A(f"v_add_f32 v{YG}, v{YG}, v{YG+2}")
    A(f"v_add_f32 v{YG+1}, v{YG+1}, v{YG+3}")
    A(f"v_add_f32 v{YG+4}, v{YG+4}, v{YG+6}")
    A(f"v_add_f32 v{YG+5}, v{YG+5}, v{YG+7}")
    A(f"v_add_f32 v{YG}, v{YG}, v{YG+4}")
    A(f"v_add_f32 v{YG+1}, v{YG+1}, v{YG+5}")
    A(f"v_add_f32 v{ya}, v{ya}, v{YG}")
    A(f"v_add_f32 v{yb}, v{yb}, v{YG+1}")
    A(f"v_cvt_pk_bf16_f32 v{ya}, v{ya}, v{yb}")
    A(f"buffer_store_dword v{ya}, v{vT+2}, {SRD_OUT}, {sT[8]} offen")
    A("s_cmp_eq_u32 s2, 0")
    A("s_cbranch_scc0 L_done")
    A(f"v_mov_b32 v{yb}, {sTAG}")
    A("s_mov_b64 exec, 1")
    A(f"buffer_store_dword v{yb}, v{vT+2}, {SRD_WS}, 0 offen sc1")
    A("L_done:")
    if stamps:
        A("s_mov_b64 exec, -1")
        A("s_waitcnt vmcnt(0)")
        A("s_memrealtime s[100:101]")
        A("s_waitcnt lgkmcnt(0)")
        A(f"s_lshl_b32 {sT[0]}, s2, 2")
        A(f"s_add_u32 {sT[0]}, {sT[0]}, {sW}")
        A(f"s_lshl_b32 {sT[0]}, {sT[0]}, 6")
        A(f"s_add_u32 {sT[0]}, {sT[0]}, {WS_STAMP}")
        A("v_mov_b32 v2, 0")
        A("s_mov_b64 exec, 1")
        for k in range(9):
            A(f"v_mov_b32 v3, s{84+2*k}")
            A(f"buffer_store_dword v3, v2, {SRD_WS}, {sT[0]} offen offset:{4*k}")
        A("s_getreg_b32 s84, hwreg(HW_REG_XCC_ID)")
        A("v_mov_b32 v3, s84")
        A(f"buffer_store_dword v3, v2, {SRD_WS}, {sT[0]} offen offset:36")
    A("L_end:")
    A("s_endpgm")
    body = "\n".join(("" if l.endswith(":") else "    ") + l for l in o)
    return HEADER.format(lds=LDS, k=kern) + body + FOOTER.format(k=kern)


if __name__ == "__main__":
    out = sys.argv[1]
    kw = json.loads(sys.argv[2]) if len(sys.argv) > 2 else {}
    open(out, "w").write(gen(**kw))
```

```python
import sys, json, math

NAME = "parallel_sum__gqa_block_cached__dense_activation_relu__decode"
KERN = NAME + "_kernel"

HEADER = """; Kernarg layout for this problem (88 bytes, ptrs only, base s[0:1]):
; @launch grid=(256,1,1) block=(256,1,1) lds={lds}
.amdgcn_target "amdgcn-amd-amdhsa--gfx950"
.text
.globl {k}
.p2align 8
.type {k},@function
{k}:
"""
FOOTER = """
.section .rodata,"a"
.p2align 6
.amdhsa_kernel {k}
  .amdhsa_next_free_vgpr 512
  .amdhsa_next_free_sgpr 102
  .amdhsa_accum_offset 256
  .amdhsa_group_segment_fixed_size 0
  .amdhsa_kernarg_size 88
  .amdhsa_user_sgpr_count 2
  .amdhsa_user_sgpr_kernarg_segment_ptr 1
  .amdhsa_system_sgpr_workgroup_id_x 1
  .amdhsa_float_denorm_mode_32 3
.end_amdhsa_kernel
"""

WS_QG = 0x1000
WS_P1O = 0x10000
WS_P1ML = 0x110000
WS_P2 = 0x120000
WS_CNT = 0x200000
WS_STAMP = 0x300000
WS_SIZE = 0x400000

LOG2E_16 = 1.4426950408889634 / 16.0


def f2u(x):
    import struct
    return struct.unpack("<I", struct.pack("<f", x))[0]


def gen(R=3, S=16, NB=6, NP=2, P=4, stagger=1, xcdadj=False, kflags="nt", vflags="nt", wflags="nt", stamps=False,
        nq=4, cstride=4352, wlate=True, qmap="own", noffn=False, spin=200000, kern=KERN):
    T = 8
    tb = T * 1024
    nwv = 128
    NG = 16
    hb = 16 << 20
    dyn = S < NG
    RING = 4 * R * tb
    STG0 = RING
    STG1 = STG0 + 14336
    QW = STG1 + 14336
    LDS = QW + 4096
    MRG = STG0
    MRG_ML = MRG + 8192
    FIN = MRG + 8192 + 128
    HB = STG1
    assert LDS <= 163840 and LDS > 81920

    o = []
    A = o.append
    vm = {"n": 0}

    def VM(s):
        A(s)
        vm["n"] += 1
        return vm["n"]

    def wait_vm(idx):
        n = vm["n"] - idx
        assert 0 <= n <= 63, n
        A(f"s_waitcnt vmcnt({n})")

    nstamp = {"n": 0}

    def stamp(mode=1):
        if stamps and (int(stamps) & mode):
            k = nstamp["n"]
            assert k < 8
            A(f"s_memrealtime s[{84+2*k}:{85+2*k}]")
            nstamp["n"] += 1

    SRD_K, SRD_V, SRD_W, SRD_WO, SRD_W2, SRD_WS, SRD_X, SRD_OUT = ("s[28:31]", "s[32:35]", "s[36:39]", "s[40:43]",
                                                                     "s[44:47]", "s[48:51]", "s[52:55]", "s[56:59]")
    sW, sH, sP, sTAG, sRING, sBASE, sC, sF = "s3", "s60", "s61", "s62", "s63", "s64", "s65", "s66"
    sISS, sRD, sEND = "s67", "s68", "s69"
    sU0, sU1 = "s70", "s71"
    sT = ["s72", "s73", "s74", "s75", "s76", "s77", "s78", "s79", "s80", "s81"]
    sCNT = "s[82:83]"
    sQS = "s26"
    vL = "v1"
    vSRC = [2, 3, 4, 5]
    vKA = [6, 7, 8, 9]
    vVA = list(range(10, 18))
    vMAX, vMS = 18, 19
    vPF, vONE, vS, vLA = 20, 22, 24, 28
    vQ, vTL, vACC, vSC, vT = 32, 64, 96, 160, 224

    A("s_cmp_ge_u32 s2, 256")
    A("s_cbranch_scc1 L_end")
    stamp(3)
    A("s_load_dwordx16 s[4:19], s[0:1], 0")
    A("s_load_dwordx4 s[20:23], s[0:1], 64")
    A("s_load_dwordx2 s[24:25], s[0:1], 80")
    A("v_lshrrev_b32 v30, 6, v0")
    A(f"v_and_b32 {vL}, 63, v0")
    A("v_readfirstlane_b32 s3, v30")
    A(f"s_lshr_b32 {sH}, s2, 3")
    A(f"s_and_b32 {sH}, {sH}, 7")
    A(f"s_and_b32 {sT[0]}, s2, 7")
    A(f"s_lshr_b32 {sT[1]}, s2, 6")
    A(f"s_lshl_b32 {sP}, {sT[0]}, 2")
    A(f"s_or_b32 {sP}, {sP}, {sT[1]}")
    if xcdadj:
        A(f"s_mov_b32 {sT[2]}, {sP}")
    else:
        A(f"s_lshl_b32 {sT[2]}, {sT[1]}, 3")
        A(f"s_or_b32 {sT[2]}, {sT[2]}, {sT[0]}")
    A(f"s_lshl_b32 {sT[2]}, {sT[2]}, 2")
    A(f"s_add_u32 {sT[2]}, {sT[2]}, {sW}")
    A(f"s_mul_i32 {sT[2]}, {sT[2]}, {P*1024}")
    A(f"s_lshl_b32 {sBASE}, {sH}, 24")
    A(f"s_add_u32 {sBASE}, {sBASE}, {sT[2]}")
    A(f"s_mul_i32 {sU1}, {sH}, {stagger}")
    A(f"s_mul_i32 {sRING}, {sW}, {R*tb}")
    A(f"s_mov_b32 {sC}, 0x{f2u(LOG2E_16):08x}")
    A(f"s_lshr_b32 {sF}, s2, 5")
    A(f"s_lshl_b32 {sF}, {sF}, 3")
    A(f"s_add_u32 {sF}, {sF}, {sT[0]}")
    A(f"s_lshl_b32 {sF}, {sF}, 2")
    A(f"s_and_b32 {sT[3]}, {sH}, 3")
    A(f"s_add_u32 {sF}, {sF}, {sT[3]}")
    if noffn:
        A(f"s_mov_b32 {sF}, 200")
    A(f"v_lshrrev_b32 v30, 5, {vL}")
    A(f"v_lshlrev_b32 v31, 1, v30")
    A(f"v_and_b32 v29, 31, {vL}")
    A("v_xor_b32 v29, v29, v31")
    A("v_lshlrev_b32 v29, 4, v29")
    A(f"v_lshl_add_u32 v{vSRC[0]}, v30, 9, v29")
    for i in range(1, 4):
        A(f"v_xor_b32 v{vSRC[i]}, {i*64}, v{vSRC[0]}")
    A("s_waitcnt lgkmcnt(0)")
    stamp(2)
    A(f"s_load_dword {sTAG}, s[24:25], 0")

    def srd(base, lo, size):
        A(f"s_mov_b32 s{base}, s{lo}")
        A(f"s_mov_b32 s{base+1}, s{lo+1}")
        A(f"s_mov_b32 s{base+2}, {size}")
        A(f"s_mov_b32 s{base+3}, 0x20000")
    srd(28, 6, 128 << 20)
    srd(52, 4, 896)
    A(f"s_cmp_eq_u32 {sW}, 0")
    A("s_cselect_b32 s36, s10, s16")
    A("s_cselect_b32 s37, s11, s17")
    A(f"s_mov_b32 s38, {448*1792*2}")
    A(f"s_cmov_b32 s38, {448*4096*2}")
    A("s_mov_b32 s39, 0x20000")
    A(f"s_mov_b32 {sT[4]}, 3584")
    A(f"s_cmov_b32 {sT[4]}, 8192")
    A(f"s_mov_b32 {sT[6]}, {STG1}")
    A(f"s_cmov_b32 {sT[6]}, {STG0}")
    if qmap == "own":
        A(f"s_lshl_b32 {sQS}, {sH}, 5")
        A(f"s_add_u32 {sQS}, {sQS}, {sP}")
    else:
        A(f"s_and_b32 {sQS}, s2, 7")
        A(f"s_lshl_b32 {sQS}, {sQS}, 5")
        A(f"s_lshr_b32 {sT[5]}, s2, 3")
        A(f"s_add_u32 {sQS}, {sQS}, {sT[5]}")
    A(f"s_cmp_eq_u32 {sW}, 0")
    A(f"s_cselect_b32 {sT[5]}, {sQS}, {sF}")
    A(f"s_lshl_b32 {sT[5]}, {sT[5]}, 5")
    A(f"s_cmp_lt_u32 {sF}, 112")
    A(f"s_cselect_b32 {sT[7]}, 2, 1")
    A(f"s_cmp_lt_u32 {sW}, {sT[7]}")
    A(f"s_cselect_b32 {sT[7]}, 1, 0")
    A("s_cbranch_scc0 L_noside0")
    A(f"v_lshlrev_b32 v30, 4, {vL}")
    A(f"buffer_load_dwordx4 v[{vT}:{vT+3}], v30, {SRD_X}, 0 offen")
    A(f"v_lshrrev_b32 v30, 1, {vL}")
    A(f"v_mul_lo_u32 v30, v30, {sT[4]}")
    A(f"v_and_b32 v31, 1, {vL}")
    A("v_lshl_add_u32 v30, v31, 4, v30")
    A(f"s_lshl_b32 {sT[4]}, {sT[4]}, 5")
    for i in range(14):
        A(f"s_add_u32 m0, {sT[6]}, {i*1024}")
        if i:
            A(f"s_add_u32 {sT[5]}, {sT[5]}, {sT[4]}")
        else:
            A("s_nop 0")
        A(f"buffer_load_dwordx4 v30, {SRD_W}, {sT[5]} offen {wflags} lds")
    A("L_noside0:")

    def issue_loads(srd_, soff, ldsbase_s, ldsimm):
        last = None
        idx = None
        for i in range(T):
            if i % 4 == 0:
                A(f"s_add_u32 m0, {ldsbase_s}, {ldsimm + i*1024}")
            g = (i // P) * nwv * P * 1024 + (i % P) * 1024 - (i % 4) * 1024
            if g != last:
                A(f"s_add_u32 {sT[9]}, {soff}, {g}")
                last = g
            elif i % 4 == 0:
                A("s_nop 0")
            idx = VM(f"buffer_load_dwordx4 v{vSRC[i%4]}, {srd_}, {sT[9]} offen offset:{(i%4)*1024} {kflags if srd_ == SRD_K else vflags} lds")
        return idx

    seq = [("K", n) for n in range(S)] + [("V", n) for n in range(S)]
    done_idx = {}

    def issue_static(j):
        kind, n = seq[j]
        A(f"s_add_u32 {sU0}, {sU1}, {n}")
        A(f"s_and_b32 {sU0}, {sU0}, {NG-1}")
        A(f"s_lshl_b32 {sU0}, {sU0}, 20")
        A(f"s_add_u32 {sU0}, {sU0}, {sBASE}")
        done_idx[j] = issue_loads(SRD_K if kind == "K" else SRD_V, sU0, sRING, (j % R) * tb)

    npre = min(2, R)
    for j in range(npre):
        issue_static(j)
    stamp(2)
    srd(32, 8, 128 << 20)
    srd(40, 12, 4096 * 448 * 2)
    srd(44, 18, 1792 * 448 * 2)
    srd(48, 24, WS_SIZE)
    srd(56, 20, 896)
    A(f"v_and_b32 v29, 15, {vL}")
    A(f"v_lshrrev_b32 v30, 4, {vL}")
    A("v_and_b32 v31, 7, v29")
    A("v_lshlrev_b32 v31, 1, v31")
    A("v_xor_b32 v31, v31, v30")
    A("v_lshlrev_b32 v31, 4, v31")
    A("v_lshl_add_u32 v31, v29, 9, v31")
    for j in range(4):
        A(f"v_xor_b32 v{vKA[j]}, {j*64}, v31")
        A(f"v_add_u32 v{vKA[j]}, {sRING}, v{vKA[j]}")
    A(f"v_lshrrev_b32 v29, 2, {vL}")
    A("v_and_b32 v30, 7, v29")
    A("v_lshlrev_b32 v30, 5, v30")
    A(f"v_and_b32 v31, 3, {vL}")
    A("v_lshlrev_b32 v31, 3, v31")
    A("v_or_b32 v31, v31, v30")
    A("v_lshl_add_u32 v31, v29, 9, v31")
    for t in range(8):
        A(f"v_xor_b32 v{vVA[t]}, {t*32}, v31")
        A(f"v_add_u32 v{vVA[t]}, {sRING}, v{vVA[t]}")
    A(f"v_mov_b32 v{vONE}, 0x3f803f80")
    A(f"v_mov_b32 v{vONE+1}, 0x3f803f80")
    A(f"v_mov_b32 v{vMAX}, 0xff800000")
    A("s_waitcnt lgkmcnt(0)")
    stamp(2)
    A(f"s_mul_i32 {sTAG}, {sTAG}, 1664525")
    A(f"s_add_u32 {sTAG}, {sTAG}, 1013904223")

    def allreduce(op, regs, tmp, steps):
        for st in steps:
            if st <= 8:
                A("s_nop 1")
                for r in regs:
                    A(f"{op}_dpp v{r}, v{r}, v{r} row_ror:{st} row_mask:0xf bank_mask:0xf")
            else:
                for k, r in enumerate(regs):
                    A(f"v_mov_b32 v{tmp+k}, v{r}")
                A("s_nop 1")
                for k, r in enumerate(regs):
                    A(f"v_permlane{st}_swap_b32 v{r}, v{tmp+k}")
                A("s_nop 1")
                for k, r in enumerate(regs):
                    A(f"{op} v{r}, v{r}, v{tmp+k}")

    A(f"s_cmp_eq_u32 {sT[7]}, 0")
    A("s_cbranch_scc1 L_noside1")
    X = vT + 4
    a, b, c_, d_ = vT + 12, vT + 13, vT + 14, vT + 15
    A(f"s_waitcnt vmcnt({14 + npre*T})")
    stamp(2)
    for i in range(4):
        A(f"v_lshlrev_b32 v{X+2*i}, 16, v{vT+i}")
        A(f"v_and_b32 v{X+2*i+1}, 0xffff0000, v{vT+i}")
    A(f"v_add_f32 v{a}, v{X}, v{X+1}")
    for i in range(2, 8):
        A(f"v_add_f32 v{a}, v{a}, v{X+i}")
    allreduce("v_add_f32", [a], b, [1, 2, 4, 8, 16, 32])
    A(f"v_mul_f32 v{a}, 0x{f2u(1.0/448):08x}, v{a}")
    A(f"v_mov_b32 v{b}, 0")
    for i in range(8):
        A(f"v_sub_f32 v{c_}, v{X+i}, v{a}")
        A(f"v_fmac_f32 v{b}, v{c_}, v{c_}")
    A(f"v_cmp_gt_u32 vcc, 56, {vL}")
    A("s_nop 1")
    A(f"v_cndmask_b32 v{b}, 0, v{b}, vcc")
    allreduce("v_add_f32", [b], c_, [1, 2, 4, 8, 16, 32])
    A(f"v_mul_f32 v{b}, 0x{f2u(1.0/448):08x}, v{b}")
    A(f"v_cvt_pk_bf16_f32 v{c_}, v{a}, v{b}")
    A(f"v_lshlrev_b32 v{a}, 16, v{c_}")
    A(f"v_and_b32 v{b}, 0xffff0000, v{c_}")
    A(f"v_add_f32 v{b}, 0x{f2u(1e-5):08x}, v{b}")
    A(f"v_cvt_pk_bf16_f32 v{b}, v{b}, v{b}")
    A(f"v_and_b32 v{b}, 0xffff0000, v{b}")
    A(f"v_sqrt_f32 v{b}, v{b}")
    A("s_nop 0")
    A(f"v_cvt_pk_bf16_f32 v{b}, v{b}, v{b}")
    A(f"v_and_b32 v{b}, 0xffff0000, v{b}")
    A(f"v_rcp_f32 v{b}, v{b}")
    for i in range(8):
        A(f"v_sub_f32 v{X+i}, v{X+i}, v{a}")
    for i in range(4):
        A(f"v_cvt_pk_bf16_f32 v{vT+i}, v{X+2*i}, v{X+2*i+1}")
    for i in range(4):
        A(f"v_lshlrev_b32 v{X+2*i}, 16, v{vT+i}")
        A(f"v_and_b32 v{X+2*i+1}, 0xffff0000, v{vT+i}")
    for i in range(8):
        A(f"v_mul_f32 v{X+i}, v{X+i}, v{b}")
    for i in range(4):
        A(f"v_cvt_pk_bf16_f32 v{vT+i}, v{X+2*i}, v{X+2*i+1}")
    A(f"s_lshl_b32 {sT[0]}, {sW}, 10")
    A(f"s_add_u32 {sT[0]}, {sT[0]}, {QW}")
    A(f"v_lshlrev_b32 v{a}, 4, {vL}")
    A(f"v_add_u32 v{a}, {sT[0]}, v{a}")
    A(f"ds_write_b128 v{a}, v[{vT}:{vT+3}]")
    A(f"v_lshrrev_b32 v{b}, 4, {vL}")
    A(f"v_lshlrev_b32 v{c_}, 4, v{b}")
    A(f"v_add_u32 v{c_}, {sT[0]}, v{c_}")
    XF, WF = 96, 152
    A("s_waitcnt lgkmcnt(0)")
    for i in range(14):
        A(f"ds_read_b128 v[{XF+4*i}:{XF+4*i+3}], v{c_} offset:{i*64}")
    A(f"v_lshlrev_b32 v{b}, 8, v{b}")
    A(f"v_and_b32 v{d_}, 15, {vL}")
    A(f"v_lshl_add_u32 v{b}, v{d_}, 3, v{b}")
    A(f"v_add_u32 v{b}, {sT[6]}, v{b}")
    stamp(2)
    A(f"s_waitcnt vmcnt({npre*T}) lgkmcnt(0)")
    stamp(2)
    for i in range(14):
        A(f"ds_read_b64_tr_b16 v[{WF+4*i}:{WF+4*i+1}], v{b} offset:{i*1024}")
        A(f"ds_read_b64_tr_b16 v[{WF+4*i+2}:{WF+4*i+3}], v{b} offset:{i*1024+128}")
        if i == 6:
            A("s_waitcnt lgkmcnt(0)")
    A("s_waitcnt lgkmcnt(0)")
    for i in range(14):
        A(f"v_mfma_f32_16x16x32_bf16 v[{vS}:{vS+3}], v[{WF+4*i}:{WF+4*i+3}], v[{XF+4*i}:{XF+4*i+3}], " +
          ("0" if i == 0 else f"v[{vS}:{vS+3}]"))
    A(f"v_cmp_eq_u32 vcc, 0, v{d_}")
    A(f"v_lshrrev_b32 v{b}, 4, {vL}")
    A(f"s_cmp_eq_u32 {sW}, 0")
    A("s_cbranch_scc0 L_side_ffn")
    A(f"s_lshl_b32 {sT[0]}, {sQS}, 6")
    A(f"s_add_u32 {sT[0]}, {sT[0]}, {WS_QG}")
    A(f"v_lshlrev_b32 v{b}, 4, v{b}")
    A(f"v_mov_b32 v{vT+1}, {sTAG}")
    A(f"v_mov_b32 v{vT+3}, {sTAG}")
    A("s_nop 3")
    A(f"v_cvt_pk_bf16_f32 v{vT}, v{vS}, v{vS+1}")
    A(f"v_cvt_pk_bf16_f32 v{vT+2}, v{vS+2}, v{vS+3}")
    if dyn:
        A(f"s_cmp_lt_u32 {sP}, {nq}")
        A("s_cbranch_scc0 L_noclear")
        A(f"s_mul_i32 {sT[1]}, {sH}, {nq}")
        A(f"s_add_u32 {sT[1]}, {sT[1]}, {sP}")
        A(f"s_mul_i32 {sT[1]}, {sT[1]}, {cstride}")
        A(f"s_add_u32 {sT[1]}, {sT[1]}, {WS_CNT}")
        A(f"v_mov_b32 v{a}, 0")
        A("s_mov_b64 exec, 1")
        A(f"buffer_store_dword v{a}, v{a}, {SRD_WS}, {sT[1]} offen sc0 sc1")
        A("s_mov_b64 exec, -1")
        A("s_waitcnt vmcnt(0)")
        A("L_noclear:")
    A("s_mov_b64 exec, vcc")
    A(f"buffer_store_dwordx4 v[{vT}:{vT+3}], v{b}, {SRD_WS}, {sT[0]} offen sc1")
    A("s_mov_b64 exec, -1")
    A("s_branch L_noside1")
    A("L_side_ffn:")
    A(f"v_lshlrev_b32 v{b}, 3, v{b}")
    A(f"v_add_u32 v{b}, {HB}, v{b}")
    A("s_nop 5")
    for i in range(4):
        A(f"v_max_f32 v{vS+i}, 0, v{vS+i}")
    A(f"v_cvt_pk_bf16_f32 v{vT}, v{vS}, v{vS+1}")
    A(f"v_cvt_pk_bf16_f32 v{vT+1}, v{vS+2}, v{vS+3}")
    A("s_mov_b64 exec, vcc")
    A(f"ds_write_b64 v{b}, v[{vT}:{vT+1}]")
    A("s_mov_b64 exec, -1")
    A("L_noside1:")
    stamp(3)
    for j in range(npre, R):
        issue_static(j)

    def read_k(dst, slot_imm, acc=False, addr=vKA):
        p = "a" if acc else "v"
        for j in range(8):
            A(f"ds_read_b128 {p}[{dst+4*j}:{dst+4*j+3}], v{addr[j%4]} offset:{slot_imm + (j//4)*256}")

    def qk(src, acc, sc):
        p = "a" if acc else "v"
        for j in range(8):
            A(f"v_mfma_f32_16x16x32_bf16 v[{vS}:{vS+3}], {p}[{src+4*j}:{src+4*j+3}], v[{vQ+4*j}:{vQ+4*j+3}], " +
              ("0" if j == 0 else f"v[{vS}:{vS+3}]"))
        A("s_nop 7")
        A(f"v_cvt_pk_bf16_f32 v{sc+1}, v{vS}, v{vS+1}")
        A(f"v_cvt_pk_bf16_f32 v{sc+3}, v{vS+2}, v{vS+3}")
        A(f"v_lshlrev_b32 v{sc}, 16, v{sc+1}")
        A(f"v_and_b32 v{sc+1}, 0xffff0000, v{sc+1}")
        A(f"v_lshlrev_b32 v{sc+2}, 16, v{sc+3}")
        A(f"v_and_b32 v{sc+3}, 0xffff0000, v{sc+3}")

    def runmax(sc):
        A(f"v_max3_f32 v{vMAX}, v{sc}, v{sc+1}, v{vMAX}")
        A(f"v_max3_f32 v{vMAX}, v{sc+2}, v{sc+3}, v{vMAX}")

    def q_poll_issue():
        VM(f"buffer_load_dwordx4 v[{vT}:{vT+3}], v{vT+8}, {SRD_WS}, {sT[8]} offen sc1")
        return VM(f"buffer_load_dwordx4 v[{vT+4}:{vT+7}], v{vT+8}, {SRD_WS}, {sT[8]} offen offset:1024 sc1")

    def next_issue(j):
        if j + R < len(seq):
            issue_static(j + R)

    assert NP < NB <= 8 and NB <= S
    qidx = None
    for n in range(NB):
        wait_vm(done_idx[n])
        read_k(32 * n, (n % R) * tb, acc=True)
        A("s_waitcnt lgkmcnt(0)")
        if n == NP:
            A(f"s_lshl_b32 {sT[8]}, {sH}, 11")
            A(f"s_add_u32 {sT[8]}, {sT[8]}, {WS_QG}")
            A(f"v_lshlrev_b32 v{vT+8}, 4, {vL}")
            qidx = q_poll_issue()
        next_issue(n)
    wait_vm(qidx)
    A(f"s_mov_b32 {sT[0]}, {spin}")
    A("L_qchk:")
    A(f"v_xor_b32 v{vT+9}, {sTAG}, v{vT+1}")
    for r in (3, 5, 7):
        A(f"v_xor_b32 v{vT+10}, {sTAG}, v{vT+r}")
        A(f"v_or_b32 v{vT+9}, v{vT+9}, v{vT+10}")
    A(f"v_cmp_ne_u32 vcc, 0, v{vT+9}")
    A("s_cbranch_vccz L_qok")
    A(f"s_sub_u32 {sT[0]}, {sT[0]}, 1")
    A("s_cbranch_scc1 L_qok")
    A(f"buffer_load_dwordx4 v[{vT}:{vT+3}], v{vT+8}, {SRD_WS}, {sT[8]} offen sc1")
    A(f"buffer_load_dwordx4 v[{vT+4}:{vT+7}], v{vT+8}, {SRD_WS}, {sT[8]} offen offset:1024 sc1")
    A("s_waitcnt vmcnt(0)")
    A("s_branch L_qchk")
    A("L_qok:")
    stamp()
    A(f"s_lshl_b32 {sT[0]}, {sW}, 10")
    A(f"s_add_u32 {sT[0]}, {sT[0]}, {QW}")
    A(f"v_lshlrev_b32 v{vT+9}, 3, {vL}")
    A(f"v_add_u32 v{vT+9}, {sT[0]}, v{vT+9}")
    A(f"ds_write2_b32 v{vT+9}, v{vT}, v{vT+2} offset0:0 offset1:1")
    A(f"ds_write2_b32 v{vT+9}, v{vT+4}, v{vT+6} offset0:128 offset1:129")
    A(f"v_and_b32 v{vT+10}, 1, {vL}")
    A(f"v_lshlrev_b32 v{vT+10}, 9, v{vT+10}")
    A(f"v_lshrrev_b32 v{vT+11}, 4, {vL}")
    A(f"v_lshl_add_u32 v{vT+10}, v{vT+11}, 4, v{vT+10}")
    A(f"v_add_u32 v{vT+10}, {sT[0]}, v{vT+10}")
    A("s_waitcnt lgkmcnt(0)")
    for j in range(8):
        A(f"ds_read_b128 v[{vQ+4*j}:{vQ+4*j+3}], v{vT+10} offset:{j*64}")
    A("s_waitcnt lgkmcnt(0)")
    backlog = list(range(NB))

    def do_backlog(k):
        for _ in range(k):
            if backlog:
                n = backlog.pop(0)
                qk(32 * n, True, vSC + 4 * n)
                runmax(vSC + 4 * n)

    do_backlog(2)
    for n in range(NB, S):
        wait_vm(done_idx[n])
        read_k(vTL, (n % R) * tb)
        A("s_waitcnt lgkmcnt(0)")
        next_issue(n)
        qk(vTL, False, vSC + 4 * n)
        runmax(vSC + 4 * n)
        do_backlog(2)
    do_backlog(8)
    allreduce("v_max_f32", [vMAX], vT, [16, 32])
    A(f"v_mul_f32 v{vMS}, {sC}, v{vMAX}")
    stamp()

    def read_v(slot_imm, addr=vVA):
        for t in range(16):
            A(f"ds_read_b64_tr_b16 v[{vTL+2*t}:{vTL+2*t+1}], v{addr[t%8]} offset:{slot_imm + (t//8)*256}")

    def make_p(sc):
        for r in range(4):
            A(f"v_fma_f32 v{sc+r}, v{sc+r}, {sC}, -v{vMS}")
        for r in range(4):
            A(f"v_exp_f32 v{sc+r}, v{sc+r}")
        A("s_nop 0")
        A(f"v_cvt_pk_bf16_f32 v{vPF}, v{sc}, v{sc+1}")
        A(f"v_cvt_pk_bf16_f32 v{vPF+1}, v{sc+2}, v{sc+3}")

    def pv(first):
        A(f"v_mfma_f32_16x16x16_bf16 v[{vLA}:{vLA+3}], v[{vPF}:{vPF+1}], v[{vONE}:{vONE+1}], " +
          ("0" if first else f"v[{vLA}:{vLA+3}]"))
        for t in range(16):
            A(f"v_mfma_f32_16x16x16_bf16 v[{vACC+4*t}:{vACC+4*t+3}], v[{vPF}:{vPF+1}], v[{vTL+2*t}:{vTL+2*t+1}], " +
              ("0" if first else f"v[{vACC+4*t}:{vACC+4*t+3}]"))

    vWO, vW2 = vSC, vSC + 16

    def issue_weights(lbl="a"):
        A(f"v_lshlrev_b32 v{vT+8}, 2, v0")
        A(f"s_lshl_b32 {sT[0]}, {sH}, 5")
        A(f"s_add_u32 {sT[0]}, {sT[0]}, {sP}")
        A(f"s_mul_i32 {sT[0]}, {sT[0]}, {16*896}")
        A(f"s_mul_i32 {sT[1]}, {sF}, {16*896}")
        last = None
        for i in range(16):
            if i % 4 == 0 and i:
                A(f"s_add_u32 {sT[0]}, {sT[0]}, {4*896}")
            last = VM(f"buffer_load_dword v{vWO+i}, v{vT+8}, {SRD_WO}, {sT[0]} offen offset:{(i%4)*896} {wflags}")
        A(f"s_cmp_lt_u32 {sF}, 112")
        A(f"s_cbranch_scc0 L_now2_{lbl}")
        for i in range(16):
            if i % 4 == 0 and i:
                A(f"s_add_u32 {sT[1]}, {sT[1]}, {4*896}")
            A(f"buffer_load_dword v{vW2+i}, v{vT+8}, {SRD_W2}, {sT[1]} offen offset:{(i%4)*896} {wflags}")
        A(f"L_now2_{lbl}:")
        return last

    widx = None
    assert not dyn, "dynamic tail not generated yet"
    for n in range(S):
        j = S + n
        make_p(vSC + 4 * n)
        wait_vm(done_idx[j])
        read_v((j % R) * tb)
        A("s_waitcnt lgkmcnt(0)")
        next_issue(j)
        if (wlate and j + R == len(seq) - 1) or (not wlate and n == 8):
            widx = issue_weights()
        pv(n == 0)
    stamp()

    A(f"s_lshl_b32 {sT[0]}, {sW}, 11")
    A(f"s_add_u32 {sT[0]}, {sT[0]}, {MRG}")
    A(f"v_lshlrev_b32 v{vT}, 2, {vL}")
    A(f"v_add_u32 v{vT}, {sT[0]}, v{vT}")
    A(f"v_add_u32 v{vT+1}, 1024, v{vT}")
    A(f"v_and_b32 v{vT+2}, 1, {vL}")
    A(f"v_cmp_eq_u32 vcc, 1, v{vT+2}")
    A(f"v_lshlrev_b32 v{vT+2}, 4, v{vT+2}")
    A(f"s_lshl_b32 {sT[1]}, {sW}, 2")
    A(f"s_add_u32 {sT[1]}, {sT[1]}, {MRG_ML}")
    A(f"v_add_u32 v{vT+2}, {sT[1]}, v{vT+2}")
    A(f"v_cndmask_b32 v{vT+3}, v{vLA}, v{vLA+1}, vcc")
    A("s_mov_b64 exec, 0xffff")
    A(f"ds_write2_b32 v{vT+2}, v{vMS}, v{vT+3} offset0:0 offset1:8")
    for t in range(16):
        A(f"ds_write2_b32 v{vT + t//8}, v{vACC+4*t}, v{vACC+4*t+1} offset0:{(t%8)*16} offset1:{(t%8)*16+128}")
    A("s_mov_b64 exec, -1")
    A(f"s_and_b32 {sT[0]}, {sW}, 1")
    A(f"s_lshl_b32 {sT[0]}, {sT[0]}, 10")
    A(f"s_lshr_b32 {sT[1]}, {sW}, 1")
    A(f"s_lshl_b32 {sT[2]}, {sT[1]}, 9")
    A(f"s_add_u32 {sT[0]}, {sT[0]}, {sT[2]}")
    A(f"s_add_u32 {sT[0]}, {sT[0]}, {MRG}")
    A(f"v_lshlrev_b32 v{vT+4}, 3, {vL}")
    A(f"v_add_u32 v{vT+4}, {sT[0]}, v{vT+4}")
    A(f"s_lshl_b32 {sT[2]}, {sT[1]}, 4")
    A(f"s_add_u32 {sT[2]}, {sT[2]}, {MRG_ML}")
    A(f"v_mov_b32 v{vT+5}, {sT[2]}")
    A(f"v_mov_b32 v{vT+6}, {HB}")
    A(f"s_lshl_b32 {sT[3]}, {sH}, 5")
    A(f"s_add_u32 {sT[3]}, {sT[3]}, {sP}")
    A(f"s_lshl_b32 {sT[3]}, {sT[3]}, 12")
    A(f"s_add_u32 {sT[3]}, {sT[3]}, {WS_P1O}")
    A(f"s_lshl_b32 {sT[4]}, {sH}, 1")
    A(f"s_add_u32 {sT[4]}, {sT[4]}, {sT[1]}")
    A(f"s_lshl_b32 {sT[4]}, {sT[4]}, 9")
    A(f"s_lshl_b32 {sT[5]}, {sP}, 4")
    A(f"s_add_u32 {sT[4]}, {sT[4]}, {sT[5]}")
    A(f"s_add_u32 {sT[4]}, {sT[4]}, {WS_P1ML}")
    A(f"v_lshlrev_b32 v{vT+7}, 4, v0")
    A("s_waitcnt lgkmcnt(0)")
    A("s_barrier")
    M4, L4, O4, H8 = 64, 68, 72, 80
    A(f"ds_read_b128 v[{M4}:{M4+3}], v{vT+5}")
    A(f"ds_read_b128 v[{L4}:{L4+3}], v{vT+5} offset:32")
    for w in range(4):
        A(f"ds_read_b64 v[{O4+2*w}:{O4+2*w+1}], v{vT+4} offset:{w*2048}")
    A(f"ds_read_b128 v[{H8}:{H8+3}], v{vT+6}")
    A(f"ds_read_b128 v[{H8+4}:{H8+7}], v{vT+6} offset:16")
    G = 88
    A(f"v_mov_b32 v{G+1}, {sTAG}")
    A(f"v_mov_b32 v{G+3}, {sTAG}")
    A(f"v_mov_b32 v{G+5}, {sTAG}")
    A(f"v_mov_b32 v{G+7}, {sTAG}")
    A("s_waitcnt lgkmcnt(7)")
    A(f"v_max3_f32 v{G+4}, v{M4}, v{M4+1}, v{M4+2}")
    A(f"v_max_f32 v{G+4}, v{G+4}, v{M4+3}")
    for w in range(4):
        A(f"v_sub_f32 v{M4+w}, v{M4+w}, v{G+4}")
    for w in range(4):
        A(f"v_exp_f32 v{M4+w}, v{M4+w}")
    A("s_waitcnt lgkmcnt(2)")
    A(f"v_mul_f32 v{G}, v{M4}, v{O4}")
    A(f"v_mul_f32 v{G+2}, v{M4}, v{O4+1}")
    for w in range(1, 4):
        A(f"v_fmac_f32 v{G}, v{M4+w}, v{O4+2*w}")
        A(f"v_fmac_f32 v{G+2}, v{M4+w}, v{O4+2*w+1}")
    VM(f"buffer_store_dwordx4 v[{G}:{G+3}], v{vT+7}, {SRD_WS}, {sT[3]} offen sc1")
    A(f"v_mul_f32 v{G+6}, v{M4}, v{L4}")
    for w in range(1, 4):
        A(f"v_fmac_f32 v{G+6}, v{M4+w}, v{L4+w}")
    A(f"s_bitcmp1_b32 {sW}, 0")
    A("s_cbranch_scc1 L_noml")
    A(f"v_mov_b32 v{vT+8}, 0")
    A("s_mov_b64 exec, 1")
    A(f"buffer_store_dwordx4 v[{G+4}:{G+7}], v{vT+8}, {SRD_WS}, {sT[4]} offen sc1")
    A("s_mov_b64 exec, -1")
    A("L_noml:")
    stamp()

    A(f"v_lshrrev_b32 v{vT}, 3, {vL}")
    A(f"v_and_b32 v{vT+1}, 7, {vL}")
    A(f"v_lshlrev_b32 v{vT+1}, 4, v{vT+1}")
    A(f"v_lshl_add_u32 v{vT+2}, v{vT}, 12, v{vT+1}")
    A(f"v_lshlrev_b32 v{vT+3}, 4, v{vT}")
    A(f"s_lshl_b32 {sT[0]}, {sH}, 17")
    A(f"s_lshl_b32 {sT[1]}, {sP}, 7")
    A(f"s_add_u32 {sT[0]}, {sT[0]}, {sT[1]}")
    A(f"s_add_u32 {sT[0]}, {sT[0]}, {WS_P1O}")
    for k in range(1, 4):
        A(f"s_add_u32 {sT[k]}, {sT[0]}, {k*32768}")
    A(f"s_lshl_b32 {sT[4]}, {sH}, 1")
    A(f"s_lshr_b32 {sT[5]}, {sP}, 4")
    A(f"s_add_u32 {sT[4]}, {sT[4]}, {sT[5]}")
    A(f"s_lshl_b32 {sT[4]}, {sT[4]}, 9")
    A(f"s_add_u32 {sT[4]}, {sT[4]}, {WS_P1ML}")
    OG, MG = 96, 112

    def hop1_loads():
        for k in range(4):
            A(f"buffer_load_dwordx4 v[{MG+4*k}:{MG+4*k+3}], v{vT+3}, {SRD_WS}, {sT[4]} offen offset:{k*128} sc1")
        for k in range(4):
            A(f"buffer_load_dwordx4 v[{OG+4*k}:{OG+4*k+3}], v{vT+2}, {SRD_WS}, {sT[k]} offen sc1")
    hop1_loads()
    A("s_waitcnt vmcnt(8) lgkmcnt(0)")
    PW = 128
    PW2 = 144
    A(f"s_mov_b32 {sT[6]}, 0x05040100")
    A(f"s_mov_b32 {sT[7]}, 0x07060302")
    for (dst, w) in ((PW, vWO), (PW2, vW2)):
        for k in range(8):
            A(f"v_perm_b32 v{dst+k}, v{w+2*k+1}, v{w+2*k}, {sT[6]}")
            A(f"v_perm_b32 v{dst+8+k}, v{w+2*k+1}, v{w+2*k}, {sT[7]}")
    Y = 92
    A(f"v_mov_b32 v{Y}, 0")
    A(f"v_mov_b32 v{Y+2}, 0")
    A(f"s_cmp_lt_u32 {sF}, 112")
    A("s_cbranch_scc0 L_noffn2")
    for k in range(8):
        A(f"v_dot2_f32_bf16 v{Y}, v{H8+k}, v{PW2+k}, v{Y}")
        A(f"v_dot2_f32_bf16 v{Y+2}, v{H8+k}, v{PW2+8+k}, v{Y+2}")
    A("L_noffn2:")
    A(f"s_mul_i32 {sT[8]}, s2, 3584")
    A(f"s_add_u32 {sT[8]}, {sT[8]}, {WS_P2}")
    A(f"s_mov_b32 {sT[9]}, {spin}")
    A("L_h1chk:")
    A("s_waitcnt vmcnt(0)")

    def tagcheck(regs, acc0, acc1):
        A(f"v_xor_b32 v{acc0}, {sTAG}, v{regs[0]}")
        A(f"v_xor_b32 v{acc1}, {sTAG}, v{regs[1]}")
        for i, r in enumerate(regs[2:]):
            acc = acc0 if i % 2 == 0 else acc1
            A(f"v_bitop3_b32 v{acc}, v{acc}, v{r}, {sTAG} bitop3:0xf6")
        A(f"v_or_b32 v{acc0}, v{acc0}, v{acc1}")
        A(f"v_cmp_ne_u32 vcc, 0, v{acc0}")
    tagcheck([OG + 1 + 2 * i for i in range(16)], vT + 4, vT + 5)
    A("s_cbranch_vccz L_h1ok")
    A(f"s_sub_u32 {sT[9]}, {sT[9]}, 1")
    A("s_cbranch_scc1 L_h1ok")
    hop1_loads()
    A("s_branch L_h1chk")
    A("L_h1ok:")
    stamp()
    mx, la, oa, ob = vT + 4, vT + 5, vT + 6, vT + 7
    A(f"v_max3_f32 v{mx}, v{MG}, v{MG+4}, v{MG+8}")
    A(f"v_max_f32 v{mx}, v{mx}, v{MG+12}")
    allreduce("v_max_f32", [mx], vT + 8, [8, 16, 32])
    for k in range(4):
        A(f"v_sub_f32 v{MG+4*k}, v{MG+4*k}, v{mx}")
    for k in range(4):
        A(f"v_exp_f32 v{MG+4*k}, v{MG+4*k}")
    A("s_nop 0")
    A(f"v_mul_f32 v{la}, v{MG}, v{MG+2}")
    A(f"v_mul_f32 v{oa}, v{MG}, v{OG}")
    A(f"v_mul_f32 v{ob}, v{MG}, v{OG+2}")
    for k in range(1, 4):
        A(f"v_fmac_f32 v{la}, v{MG+4*k}, v{MG+4*k+2}")
        A(f"v_fmac_f32 v{oa}, v{MG+4*k}, v{OG+4*k}")
        A(f"v_fmac_f32 v{ob}, v{MG+4*k}, v{OG+4*k+2}")
    allreduce("v_add_f32", [la, oa, ob], vT + 8, [8, 16, 32])
    A(f"v_rcp_f32 v{la}, v{la}")
    A("s_nop 0")
    A(f"v_mul_f32 v{oa}, v{oa}, v{la}")
    A(f"v_mul_f32 v{ob}, v{ob}, v{la}")
    A(f"v_cvt_pk_bf16_f32 v{oa}, v{oa}, v{ob}")
    A(f"v_cmp_gt_u32 vcc, 224, v0")
    for k in range(8):
        A(f"v_readlane_b32 {sT[k]}, v{oa}, {k}")
    A(f"v_lshlrev_b32 v{vT+8}, 4, v0")
    for k in range(8):
        A(f"v_dot2_f32_bf16 v{Y}, {sT[k]}, v{PW+k}, v{Y}")
        A(f"v_dot2_f32_bf16 v{Y+2}, {sT[k]}, v{PW+8+k}, v{Y+2}")
    A("s_mov_b64 exec, vcc")
    A("s_nop 2")
    A(f"buffer_store_dwordx4 v[{Y}:{Y+3}], v{vT+8}, {SRD_WS}, {sT[8]} offen sc1")
    A("s_mov_b64 exec, -1")
    stamp()
    A("s_cmp_lt_u32 s2, 28")
    A("s_cbranch_scc0 L_done")

    A(f"s_lshl_b32 {sT[8]}, {sW}, 6")
    A(f"v_add_u32 v{vT}, {sT[8]}, v{vT}")
    A(f"v_mul_u32_u24 v{vT}, 3584, v{vT}")
    A(f"v_add_u32 v{vT}, v{vT}, v{vT+1}")
    A(f"s_lshl_b32 {sT[0]}, s2, 7")
    A(f"s_add_u32 {sT[0]}, {sT[0]}, {WS_P2}")
    for k in range(1, 8):
        A(f"s_add_u32 {sT[k]}, {sT[0]}, {k*8*3584}")
    YG = 96

    def hop2_loads():
        for k in range(8):
            A(f"buffer_load_dwordx4 v[{YG+4*k}:{YG+4*k+3}], v{vT}, {SRD_WS}, {sT[k]} offen sc1")
    A(f"s_lshl_b32 {sT[8]}, s2, 5")
    A(f"v_lshlrev_b32 v{vT+2}, 2, {vL}")
    A(f"buffer_load_dword v{vT+3}, v{vT+2}, {SRD_X}, {sT[8]} offen")
    hop2_loads()
    A(f"s_lshl_b32 {sT[9]}, {sW}, 6")
    A(f"s_add_u32 {sT[9]}, {sT[9]}, {FIN}")
    A(f"v_lshlrev_b32 v{vT+10}, 3, {vL}")
    A(f"v_add_u32 v{vT+11}, {FIN}, v{vT+10}")
    A(f"v_add_u32 v{vT+10}, {sT[9]}, v{vT+10}")
    A(f"s_mov_b32 {sT[9]}, {spin}")
    A("L_h2chk:")
    A("s_waitcnt vmcnt(0)")
    tagcheck([YG + 1 + 2 * i for i in range(16)], vT + 4, vT + 5)
    A("s_cbranch_vccz L_h2ok")
    A(f"s_sub_u32 {sT[9]}, {sT[9]}, 1")
    A("s_cbranch_scc1 L_h2ok")
    hop2_loads()
    A("s_branch L_h2chk")
    A("L_h2ok:")
    ya, yb = vT + 6, vT + 7
    A(f"v_add_f32 v{ya}, v{YG}, v{YG+4}")
    A(f"v_add_f32 v{yb}, v{YG+2}, v{YG+6}")
    for k in range(2, 8):
        A(f"v_add_f32 v{ya}, v{ya}, v{YG+4*k}")
        A(f"v_add_f32 v{yb}, v{yb}, v{YG+4*k+2}")
    allreduce("v_add_f32", [ya, yb], vT + 8, [8, 16, 32])
    A("s_mov_b64 exec, 0xff")
    A(f"ds_write_b64 v{vT+10}, v[{ya}:{yb}]")
    A("s_waitcnt lgkmcnt(0)")
    A("s_barrier")
    A(f"s_cmp_eq_u32 {sW}, 0")
    A("s_cbranch_scc0 L_done")
    for w in range(4):
        A(f"ds_read_b64 v[{YG+2*w}:{YG+2*w+1}], v{vT+11} offset:{w*64}")
    A(f"v_lshlrev_b32 v{ya}, 16, v{vT+3}")
    A(f"v_and_b32 v{yb}, 0xffff0000, v{vT+3}")
    A("s_waitcnt lgkmcnt(0)")
    A(f"v_add_f32 v{YG}, v{YG}, v{YG+2}")
    A(f"v_add_f32 v{YG+1}, v{YG+1}, v{YG+3}")
    A(f"v_add_f32 v{YG+4}, v{YG+4}, v{YG+6}")
    A(f"v_add_f32 v{YG+5}, v{YG+5}, v{YG+7}")
    A(f"v_add_f32 v{YG}, v{YG}, v{YG+4}")
    A(f"v_add_f32 v{YG+1}, v{YG+1}, v{YG+5}")
    A(f"v_add_f32 v{ya}, v{ya}, v{YG}")
    A(f"v_add_f32 v{yb}, v{yb}, v{YG+1}")
    A(f"v_cvt_pk_bf16_f32 v{ya}, v{ya}, v{yb}")
    A(f"buffer_store_dword v{ya}, v{vT+2}, {SRD_OUT}, {sT[8]} offen")
    A("s_cmp_eq_u32 s2, 0")
    A("s_cbranch_scc0 L_done")
    A(f"v_mov_b32 v{yb}, {sTAG}")
    A("s_mov_b64 exec, 1")
    A(f"buffer_store_dword v{yb}, v{vT+2}, {SRD_WS}, 0 offen sc1")
    A("L_done:")
    if stamps:
        A("s_mov_b64 exec, -1")
        A("s_waitcnt vmcnt(0)")
        A("s_memrealtime s[100:101]")
        A("s_waitcnt lgkmcnt(0)")
        A(f"s_lshl_b32 {sT[0]}, s2, 2")
        A(f"s_add_u32 {sT[0]}, {sT[0]}, {sW}")
        A(f"s_lshl_b32 {sT[0]}, {sT[0]}, 6")
        A(f"s_add_u32 {sT[0]}, {sT[0]}, {WS_STAMP}")
        A("v_mov_b32 v2, 0")
        A("s_mov_b64 exec, 1")
        for k in range(9):
            A(f"v_mov_b32 v3, s{84+2*k}")
            A(f"buffer_store_dword v3, v2, {SRD_WS}, {sT[0]} offen offset:{4*k}")
        A("s_getreg_b32 s84, hwreg(HW_REG_XCC_ID)")
        A("v_mov_b32 v3, s84")
        A(f"buffer_store_dword v3, v2, {SRD_WS}, {sT[0]} offen offset:36")
    A("L_end:")
    A("s_endpgm")
    body = "\n".join(("" if l.endswith(":") else "    ") + l for l in o)
    return HEADER.format(lds=LDS, k=kern) + body + FOOTER.format(k=kern)


if __name__ == "__main__":
    out = sys.argv[1]
    kw = json.loads(sys.argv[2]) if len(sys.argv) > 2 else {}
    open(out, "w").write(gen(**kw))
```

```python
import sys, json, math, struct
from gen import HEADER, FOOTER, KERN, f2u, LOG2E_16

WS_QG = 0x1000
WS_HG = WS_QG + 0x4000
WS_ML = 0x8000
WS_P1O = 0x10000
WS_P2 = 0x120000
WS_STAMP = 0x300000
WS_SIZE = 0x400000


def gen(R=3, N=5, N0=16, Nend=16, tail=11, NB=8, NP=6, bits="i0 i1 w0 w1 i2 g3 g4 t2 t3 x0 x1 x2 t0 t1",
        kflags="nt", vflags="nt", wflags="nt", stamps=0, spin=200000, vpub=6, vgat=11, wpos=0, sleep1=0, sleep2=0,
        alt=None, X=6, Np=7, B0=5, Xp=None, il=0, Np2=None, zmap="head", rot=False, now=False, noend=False, noml=False, kern=KERN):
    T = 8
    tb = T * 1024
    S = 16
    pos = {n: 10 + k for k, n in enumerate(bits.split())}
    assert pos["i0"] == 10 and pos["i1"] == 11
    RING = 4 * R * tb
    STG = RING
    QW = STG + 57344
    LML = QW + 4096
    FIN = LML + 128
    LDS = FIN + 256
    assert LDS <= 163840 and LDS > 81920
    if Xp is None:
        Xp = X * T

    o = []
    A = o.append
    vm = {"n": 0, "known": 0}

    def VM(s):
        A(s)
        vm["n"] += 1
        return vm["n"]

    def wait_vm(idx, force=False):
        if idx <= vm["known"] and not force:
            return
        n = vm["n"] - idx
        assert 0 <= n <= 63, n
        A(f"s_waitcnt vmcnt({n})")
        vm["known"] = max(vm["known"], idx)

    nstamp = {"n": 0}

    def stamp(mode=1):
        if stamps and (int(stamps) & mode):
            k = nstamp["n"]
            assert k < 8
            A(f"s_memrealtime s[{84+2*k}:{85+2*k}]")
            nstamp["n"] += 1

    SRD_K, SRD_V, SRD_W, SRD_WO, SRD_W2, SRD_WS, SRD_X, SRD_OUT = ("s[28:31]", "s[32:35]", "s[36:39]", "s[40:43]",
                                                                     "s[44:47]", "s[48:51]", "s[52:55]", "s[56:59]")
    sW, sH, sP, sTAG, sRING, sBASE, sC, sF = "s3", "s60", "s61", "s62", "s63", "s64", "s65", "s66"
    sOFF = "s67"
    sZ = "s27"
    sT = ["s72", "s73", "s74", "s75", "s76", "s77", "s78", "s79", "s80", "s81"]
    vL = "v1"
    vSRC = [2, 3, 4, 5]
    vKA = [6, 7, 8, 9]
    vVA = list(range(10, 18))
    vMAX, vMS = 18, 19
    vPF, vLS, vS, vE = 20, 22, 24, 28
    vQ, vTL, vACC, vSC, vT = 32, 64, 96, 160, 224
    vH = 244

    def srd(base, lo, size):
        A(f"s_mov_b32 s{base}, s{lo}")
        A(f"s_mov_b32 s{base+1}, s{lo+1}")
        A(f"s_mov_b32 s{base+2}, {size}")
        A(f"s_mov_b32 s{base+3}, 0x20000")

    A("s_cmp_ge_u32 s2, 256")
    A("s_cbranch_scc1 L_end")
    stamp(3)
    A("s_load_dwordx16 s[4:19], s[0:1], 0")
    A("s_load_dwordx4 s[20:23], s[0:1], 64")
    A("s_load_dwordx2 s[24:25], s[0:1], 80")
    A("v_lshrrev_b32 v30, 6, v0")
    A(f"v_and_b32 {vL}, 63, v0")
    A("v_readfirstlane_b32 s3, v30")
    A(f"s_lshr_b32 {sH}, s2, 3")
    A(f"s_and_b32 {sH}, {sH}, 7")
    A(f"s_and_b32 {sT[0]}, s2, 7")
    A(f"s_lshr_b32 {sT[1]}, s2, 6")
    A(f"s_lshl_b32 {sP}, {sT[1]}, 3")
    A(f"s_or_b32 {sP}, {sP}, {sT[0]}")
    A(f"s_lshl_b32 {sBASE}, {sH}, 24")
    if zmap == "head":
        A(f"s_lshl_b32 {sZ}, {sH}, 5")
        A(f"s_or_b32 {sZ}, {sZ}, {sP}")
    else:
        A(f"s_mov_b32 {sZ}, s2")

    def put(src, names):
        k = 0
        while k < len(names):
            e = k
            while e + 1 < len(names) and pos[names[e + 1]] == pos[names[e]] + 1:
                e += 1
            if k == 0 and e == len(names) - 1:
                A(f"s_lshl_b32 {sT[2]}, {src}, {pos[names[0]]}")
            else:
                A(f"s_bfe_u32 {sT[2]}, {src}, {((e - k + 1) << 16) | k}")
                A(f"s_lshl_b32 {sT[2]}, {sT[2]}, {pos[names[k]]}")
            A(f"s_or_b32 {sBASE}, {sBASE}, {sT[2]}")
            k = e + 1
    put(sW, ["w0", "w1"])
    put(sT[0], ["x0", "x1", "x2"])
    put(sT[1], ["g3", "g4"])
    A(f"s_mul_i32 {sRING}, {sW}, {R*tb}")
    A(f"s_mov_b32 {sC}, 0x{f2u(LOG2E_16):08x}")
    A(f"s_min_u32 {sF}, s2, 223")
    A(f"s_mov_b32 s30, {128 << 20}")
    A("s_mov_b32 s31, 0x20000")
    A("s_mov_b32 s54, 896")
    A("s_mov_b32 s55, 0x20000")
    A("s_mov_b32 s39, 0x20000")
    A(f"v_lshrrev_b32 v30, 5, {vL}")
    A(f"v_lshlrev_b32 v31, 1, v30")
    A(f"v_and_b32 v29, 31, {vL}")
    A("v_xor_b32 v29, v29, v31")
    A("v_lshlrev_b32 v29, 4, v29")
    A(f"v_lshl_add_u32 v{vSRC[0]}, v30, 9, v29")
    for i in range(1, 4):
        A(f"v_xor_b32 v{vSRC[i]}, {i*64}, v{vSRC[0]}")
    A(f"s_cmp_lt_u32 {sZ}, 64")
    A(f"s_mov_b32 s38, {448*1792*2}")
    A(f"s_cmov_b32 s38, {448*4096*2}")
    A(f"s_mov_b32 {sT[4]}, 3584")
    A(f"s_cmov_b32 {sT[4]}, 8192")
    A(f"s_and_b32 {sT[5]}, {sZ}, 63")
    A(f"s_lshl_b32 {sT[5]}, {sT[5]}, 7")
    A(f"s_mul_i32 {sT[6]}, {sW}, 112")
    A(f"s_mul_i32 {sT[6]}, {sT[6]}, {sT[4]}")
    A(f"s_add_u32 {sT[5]}, {sT[5]}, {sT[6]}")
    A(f"v_lshrrev_b32 v30, 3, {vL}")
    A(f"v_mul_lo_u32 v30, v30, {sT[4]}")
    A(f"v_and_b32 v31, 7, {vL}")
    A("v_lshl_add_u32 v21, v31, 4, v30")
    A(f"v_lshlrev_b32 v31, 4, {vL}")
    A(f"s_lshl_b32 {sT[4]}, {sT[4]}, 3")
    A(f"s_mul_i32 {sT[6]}, {sW}, 14336")
    A(f"s_add_u32 {sT[6]}, {sT[6]}, {STG}")
    A("s_waitcnt lgkmcnt(0)")
    stamp(2)
    A("s_mov_b32 s28, s6")
    A("s_mov_b32 s29, s7")
    A("s_mov_b32 s52, s4")
    A("s_mov_b32 s53, s5")
    A(f"s_cmp_lt_u32 {sZ}, 64")
    A("s_cselect_b32 s36, s10, s16")
    A("s_cselect_b32 s37, s11, s17")
    seq = [("K", n) for n in range(S)] + [("V", n) for n in range(S)]
    NL = len(seq) * T
    lidx = {}

    m0bad = {"v": False}

    def issue_load(L):
        j, i = divmod(L, T)
        kind, n = seq[j]
        if i % 4 and m0bad["v"]:
            A(f"s_add_u32 m0, {sRING}, {(j % R)*tb + (i // 4)*4096}")
            A("s_nop 0")
        m0bad["v"] = False
        if i % 4 == 0:
            g = sum(((n >> k) & 1) << pos[f"t{k}"] for k in range(4)) + ((i >> 2) << pos["i2"])
            A(f"s_add_u32 m0, {sRING}, {(j % R)*tb + i*1024}")
            A(f"s_add_u32 {sOFF}, {sBASE}, {g}")
        srd_, fl = (SRD_K, kflags) if kind == "K" else (SRD_V, vflags)
        lidx[L] = VM(f"buffer_load_dwordx4 v{vSRC[i%4]}, {srd_}, {sOFF} offen offset:{(i%4)*1024} {fl} lds")

    def setup():
        srd(32, 8, 128 << 20)
        srd(40, 12, 4096 * 448 * 2)
        srd(44, 18, 1792 * 448 * 2)
        srd(48, 24, WS_SIZE)
        srd(56, 20, 896)
        if stamps:
            A("s_mov_b32 s26, 0")
            A("v_mov_b32 v252, 0")
        A(f"v_and_b32 v29, 15, {vL}")
        A(f"v_lshrrev_b32 v30, 4, {vL}")
        A("v_and_b32 v31, 7, v29")
        A("v_lshlrev_b32 v31, 1, v31")
        A("v_xor_b32 v31, v31, v30")
        A("v_lshlrev_b32 v31, 4, v31")
        A("v_lshl_add_u32 v31, v29, 9, v31")
        for j in range(4):
            A(f"v_xor_b32 v{vKA[j]}, {j*64}, v31")
            A(f"v_add_u32 v{vKA[j]}, {sRING}, v{vKA[j]}")
        A(f"v_lshrrev_b32 v29, 2, {vL}")
        A("v_and_b32 v30, 7, v29")
        A("v_lshlrev_b32 v30, 5, v30")
        A(f"v_and_b32 v31, 3, {vL}")
        A("v_lshlrev_b32 v31, 3, v31")
        A("v_or_b32 v31, v31, v30")
        A("v_lshl_add_u32 v31, v29, 9, v31")
        for t in range(8):
            A(f"v_xor_b32 v{vVA[t]}, {t*32}, v31")
            A(f"v_add_u32 v{vVA[t]}, {sRING}, v{vVA[t]}")
        A(f"v_mov_b32 v{vMAX}, 0xff800000")
        A(f"v_mov_b32 v{vLS}, 0")
        A(f"v_mov_b32 v{vLS+1}, 0")

    def allreduce(op, regs, tmp, steps):
        for st in steps:
            if st <= 8:
                if len(regs) < 3:
                    A(f"s_nop {2-len(regs)}")
                for r in regs:
                    A(f"{op}_dpp v{r}, v{r}, v{r} row_ror:{st} row_mask:0xf bank_mask:0xf")
            else:
                for k, r in enumerate(regs):
                    A(f"v_mov_b32 v{tmp+k}, v{r}")
                if len(regs) < 3:
                    A(f"s_nop {2-len(regs)}")
                for k, r in enumerate(regs):
                    A(f"v_permlane{st}_swap_b32 v{r}, v{tmp+k}")
                if len(regs) < 2:
                    A("s_nop 0")
                for k, r in enumerate(regs):
                    A(f"{op} v{r}, v{r}, v{tmp+k}")

    XU = vT + 4
    a, b, c_, d_ = vT + 12, vT + 13, vT + 14, vT + 15
    XF, WF = 96, 152
    st = {}

    def side0():
        wait_vm(st["x"])
        stamp(2)
        for i in range(4):
            A(f"v_lshlrev_b32 v{XU+2*i}, 16, v{vT+i}")
            A(f"v_and_b32 v{XU+2*i+1}, 0xffff0000, v{vT+i}")
        A(f"v_add_f32 v{a}, v{XU}, v{XU+1}")
        for i in range(2, 8):
            A(f"v_add_f32 v{a}, v{a}, v{XU+i}")
        allreduce("v_add_f32", [a], b, [1, 2, 4, 8, 16, 32])

    def side1():
        A(f"v_mul_f32 v{a}, 0x{f2u(1.0/448):08x}, v{a}")
        A(f"v_mov_b32 v{b}, 0")
        for i in range(8):
            A(f"v_sub_f32 v{c_}, v{XU+i}, v{a}")
            A(f"v_fmac_f32 v{b}, v{c_}, v{c_}")
        A(f"v_cmp_gt_u32 vcc, 56, {vL}")
        A("s_nop 1")
        A(f"v_cndmask_b32 v{b}, 0, v{b}, vcc")
        allreduce("v_add_f32", [b], c_, [1, 2, 4, 8, 16, 32])

    def side2():
        A(f"v_mul_f32 v{b}, 0x{f2u(1.0/448):08x}, v{b}")
        A(f"v_cvt_pk_bf16_f32 v{c_}, v{a}, v{b}")
        A(f"v_lshlrev_b32 v{a}, 16, v{c_}")
        A(f"v_and_b32 v{b}, 0xffff0000, v{c_}")
        A(f"v_add_f32 v{b}, 0x{f2u(1e-5):08x}, v{b}")
        A(f"v_cvt_pk_bf16_f32 v{b}, v{b}, v{b}")
        A(f"v_and_b32 v{b}, 0xffff0000, v{b}")
        A(f"v_sqrt_f32 v{b}, v{b}")
        A("s_nop 0")
        A(f"v_cvt_pk_bf16_f32 v{b}, v{b}, v{b}")
        A(f"v_and_b32 v{b}, 0xffff0000, v{b}")
        A(f"v_rcp_f32 v{b}, v{b}")

    def side3():
        for i in range(8):
            A(f"v_sub_f32 v{XU+i}, v{XU+i}, v{a}")
        for i in range(4):
            A(f"v_cvt_pk_bf16_f32 v{vT+i}, v{XU+2*i}, v{XU+2*i+1}")
        for i in range(4):
            A(f"v_lshlrev_b32 v{XU+2*i}, 16, v{vT+i}")
            A(f"v_and_b32 v{XU+2*i+1}, 0xffff0000, v{vT+i}")
        for i in range(8):
            A(f"v_mul_f32 v{XU+i}, v{XU+i}, v{b}")
        for i in range(4):
            A(f"v_cvt_pk_bf16_f32 v{vT+i}, v{XU+2*i}, v{XU+2*i+1}")
        A(f"s_lshl_b32 {sT[0]}, {sW}, 10")
        A(f"s_add_u32 {sT[0]}, {sT[0]}, {QW}")
        A(f"v_lshlrev_b32 v{a}, 4, {vL}")
        A(f"v_add_u32 v{a}, {sT[0]}, v{a}")
        A(f"ds_write_b128 v{a}, v[{vT}:{vT+3}]")
        A(f"v_lshrrev_b32 v{b}, 4, {vL}")
        A(f"v_lshlrev_b32 v{c_}, 4, v{b}")
        A(f"v_add_u32 v{c_}, {sT[0]}, v{c_}")

    def side4():
        A("s_waitcnt lgkmcnt(0)")
        for i in range(14):
            A(f"ds_read_b128 v[{XF+4*i}:{XF+4*i+3}], v{c_} offset:{i*64}")
        A(f"v_lshlrev_b32 v{b}, 10, v{b}")
        A(f"v_bfe_u32 v{d_}, {vL}, 2, 2")
        A(f"v_lshl_add_u32 v{b}, v{d_}, 7, v{b}")
        A(f"v_and_b32 v{d_}, 3, {vL}")
        A(f"v_lshl_add_u32 v{b}, v{d_}, 3, v{b}")
        A(f"s_lshl_b32 {sT[1]}, {sW}, 5")
        A(f"s_add_u32 {sT[1]}, {sT[1]}, {STG}")
        A(f"v_add_u32 v{b}, {sT[1]}, v{b}")
        A(f"s_mul_i32 {sT[2]}, {sTAG}, 1664525")
        A(f"s_add_u32 {sT[2]}, {sT[2]}, 1013904223")

    def side5():
        stamp(2)
        wait_vm(st["stg"])
        A("s_waitcnt lgkmcnt(0)")
        A("s_barrier")
        stamp(2)
        for i in range(14):
            A(f"ds_read_b64_tr_b16 v[{WF+4*i}:{WF+4*i+1}], v{b} offset:{i*4096}")
            A(f"ds_read_b64_tr_b16 v[{WF+4*i+2}:{WF+4*i+3}], v{b} offset:{i*4096+512}")

    def side6():
        A(f"v_and_b32 v{d_}, 15, {vL}")
        A(f"v_cmp_eq_u32 s[70:71], 0, v{d_}")
        A(f"v_lshrrev_b32 v{a}, 4, {vL}")
        A(f"v_lshlrev_b32 v{a}, 4, v{a}")
        A(f"v_mov_b32 v{vT+1}, {sT[2]}")
        A(f"v_mov_b32 v{vT+3}, {sT[2]}")
        A(f"s_lshl_b32 {sT[0]}, {sZ}, 2")
        A(f"s_add_u32 {sT[0]}, {sT[0]}, {sW}")
        A(f"s_lshl_b32 {sT[0]}, {sT[0]}, 6")
        A(f"s_add_u32 {sT[0]}, {sT[0]}, {WS_QG}")
        A(f"s_cmp_lt_u32 {sZ}, 64")
        A(f"s_cselect_b32 {sT[1]}, 0xff800000, 0")

    def side7():
        A("s_waitcnt lgkmcnt(0)")
        for i in range(14):
            A(f"v_mfma_f32_16x16x32_bf16 v[{vS}:{vS+3}], v[{WF+4*i}:{WF+4*i+3}], v[{XF+4*i}:{XF+4*i+3}], " +
              ("0" if i == 0 else f"v[{vS}:{vS+3}]"))

    def side8():
        A("s_nop 7")
        for i in range(4):
            A(f"v_max_f32 v{vS+i}, {sT[1]}, v{vS+i}")
        A(f"v_cvt_pk_bf16_f32 v{vT}, v{vS}, v{vS+1}")
        A(f"v_cvt_pk_bf16_f32 v{vT+2}, v{vS+2}, v{vS+3}")
        A("s_mov_b64 exec, s[70:71]")
        A(f"buffer_store_dwordx4 v[{vT}:{vT+3}], v{a}, {SRD_WS}, {sT[0]} offen sc1")
        A("s_mov_b64 exec, -1")

    side_chunks = [side0, side1, side2, side3, side4, side5, side6, side7, side8]

    def tile_stamp_a():
        if stamps:
            A("s_memrealtime s[22:23]")

    def lds_wait(tile=False):
        A("s_waitcnt lgkmcnt(0)")
        if stamps and tile:
            A("v_mov_b32 v253, s22")
            A(f"v_cmp_eq_u32 vcc, s26, {vL}")
            A("s_add_u32 s26, s26, 1")
            A("s_nop 0")
            A("v_cndmask_b32 v252, v252, v253, vcc")

    def read_k(dst, slot_imm, acc=False):
        tile_stamp_a()
        p = "a" if acc else "v"
        for j in range(8):
            A(f"ds_read_b128 {p}[{dst+4*j}:{dst+4*j+3}], v{vKA[j%4]} offset:{slot_imm + (j//4)*256}")

    def qk_mfma(src, acc):
        p = "a" if acc else "v"
        for j in range(8):
            A(f"v_mfma_f32_16x16x32_bf16 v[{vS}:{vS+3}], {p}[{src+4*j}:{src+4*j+3}], v[{vQ+4*j}:{vQ+4*j+3}], " +
              ("0" if j == 0 else f"v[{vS}:{vS+3}]"))

    def qk_post(sc):
        A("s_nop 7")
        A(f"v_cvt_pk_bf16_f32 v{sc+1}, v{vS}, v{vS+1}")
        A(f"v_cvt_pk_bf16_f32 v{sc+3}, v{vS+2}, v{vS+3}")
        A(f"v_lshlrev_b32 v{sc}, 16, v{sc+1}")
        A(f"v_and_b32 v{sc+1}, 0xffff0000, v{sc+1}")
        A(f"v_lshlrev_b32 v{sc+2}, 16, v{sc+3}")
        A(f"v_and_b32 v{sc+3}, 0xffff0000, v{sc+3}")
        A(f"v_max3_f32 v{vMAX}, v{sc}, v{sc+1}, v{vMAX}")
        A(f"v_max3_f32 v{vMAX}, v{sc+2}, v{sc+3}, v{vMAX}")

    def q_poll(emit):
        emit(f"buffer_load_dwordx4 v[{vT}:{vT+3}], v{vT+8}, {SRD_WS}, {sT[8]} offen sc1")
        emit(f"buffer_load_dwordx4 v[{vT+4}:{vT+7}], v{vT+8}, {SRD_WS}, {sT[8]} offen offset:1024 sc1")
        emit(f"buffer_load_dwordx4 v[{vH}:{vH+3}], off, {SRD_WS}, {sT[7]} sc1")
        return emit(f"buffer_load_dwordx4 v[{vH+4}:{vH+7}], off, {SRD_WS}, {sT[7]} offset:16 sc1")

    def tagcheck(regs, acc0, acc1):
        A(f"v_xor_b32 v{acc0}, {sTAG}, v{regs[0]}")
        A(f"v_xor_b32 v{acc1}, {sTAG}, v{regs[1]}")
        for i, r in enumerate(regs[2:]):
            acc = acc0 if i % 2 == 0 else acc1
            A(f"v_bitop3_b32 v{acc}, v{acc}, v{r}, {sTAG} bitop3:0xf6")
        A(f"v_or_b32 v{acc0}, v{acc0}, v{acc1}")
        A(f"v_cmp_ne_u32 vcc, 0, v{acc0}")

    def c_qpoll():
        A(f"s_lshl_b32 {sT[8]}, {sH}, 11")
        A(f"s_add_u32 {sT[8]}, {sT[8]}, {WS_QG}")
        A(f"s_lshl_b32 {sT[7]}, {sF}, 5")
        A(f"s_add_u32 {sT[7]}, {sT[7]}, {WS_HG}")
        A(f"v_lshlrev_b32 v{vT+8}, 4, {vL}")
        st["q"] = q_poll(VM)

    def c_qcheck():
        wait_vm(st["q"])
        A(f"s_mov_b32 {sT[0]}, {spin}")
        A("L_qchk:")
        tagcheck([vT + 1, vT + 3, vT + 5, vT + 7, vH + 1, vH + 3, vH + 5, vH + 7], vT + 9, vT + 10)
        A("s_cbranch_vccz L_qok")
        A(f"s_sub_u32 {sT[0]}, {sT[0]}, 1")
        A("s_cbranch_scc1 L_qok")
        q_poll(A)
        A("s_waitcnt vmcnt(0)")
        A("s_branch L_qchk")
        A("L_qok:")
        stamp()
        A(f"s_lshl_b32 {sT[0]}, {sW}, 10")
        A(f"s_add_u32 {sT[0]}, {sT[0]}, {QW}")
        A(f"v_lshlrev_b32 v{vT+9}, 3, {vL}")
        A(f"v_add_u32 v{vT+9}, {sT[0]}, v{vT+9}")
        A(f"ds_write2_b32 v{vT+9}, v{vT}, v{vT+2} offset0:0 offset1:1")
        A(f"ds_write2_b32 v{vT+9}, v{vT+4}, v{vT+6} offset0:128 offset1:129")
        A(f"v_and_b32 v{vT+10}, 1, {vL}")
        A(f"v_lshlrev_b32 v{vT+10}, 9, v{vT+10}")
        A(f"v_lshrrev_b32 v{vT+11}, 4, {vL}")
        A(f"v_lshl_add_u32 v{vT+10}, v{vT+11}, 4, v{vT+10}")
        A(f"v_add_u32 v{vT+10}, {sT[0]}, v{vT+10}")

    def c_qread():
        A("s_waitcnt lgkmcnt(0)")
        for j in range(8):
            A(f"ds_read_b128 v[{vQ+4*j}:{vQ+4*j+3}], v{vT+10} offset:{j*64}")

    def c_kmax():
        allreduce("v_max_f32", [vMAX], vT, [16, 32])
        A(f"v_mul_f32 v{vMS}, {sC}, v{vMAX}")
        stamp()

    def read_v(slot_imm):
        tile_stamp_a()
        for t in range(16):
            A(f"ds_read_b64_tr_b16 v[{vTL+2*t}:{vTL+2*t+1}], v{vVA[t%8]} offset:{slot_imm + (t//8)*256}")

    def exps(sc):
        for r in range(4):
            A(f"v_fma_f32 v{vE+r}, v{sc+r}, {sC}, -v{vMS}")
        for r in range(4):
            A(f"v_exp_f32 v{vE+r}, v{vE+r}")
        A("s_nop 0")

    def make_p(sc):
        exps(sc)
        A(f"v_cvt_pk_bf16_f32 v{vPF}, v{vE}, v{vE+1}")
        A(f"v_cvt_pk_bf16_f32 v{vPF+1}, v{vE+2}, v{vE+3}")

    def lsum(sc):
        exps(sc)
        A(f"v_add_f32 v{vLS}, v{vLS}, v{vE}")
        A(f"v_add_f32 v{vLS+1}, v{vLS+1}, v{vE+1}")
        A(f"v_add_f32 v{vLS}, v{vLS}, v{vE+2}")
        A(f"v_add_f32 v{vLS+1}, v{vLS+1}, v{vE+3}")

    def pv(first, lo, hi):
        for t in range(lo, hi):
            A(f"v_mfma_f32_16x16x16_bf16 v[{vACC+4*t}:{vACC+4*t+3}], v[{vPF}:{vPF+1}], v[{vTL+2*t}:{vTL+2*t+1}], " +
              ("0" if first else f"v[{vACC+4*t}:{vACC+4*t+3}]"))

    def c_lwrite():
        A(f"v_add_f32 v{vT+2}, v{vLS}, v{vLS+1}")
        allreduce("v_add_f32", [vT + 2], vT + 4, [16, 32])
        A(f"v_mov_b32 v{vT}, v{vMS}")
        A(f"v_mov_b32 v{vT+1}, {sTAG}")
        A(f"v_mov_b32 v{vT+3}, {sTAG}")
        A(f"s_lshl_b32 {sT[0]}, {sW}, 5")
        A(f"s_add_u32 {sT[0]}, {sT[0]}, {LML}")
        A(f"v_lshlrev_b32 v{vT+4}, 4, {vL}")
        A(f"v_add_u32 v{vT+4}, {sT[0]}, v{vT+4}")
        A("s_mov_b64 exec, 3")
        A(f"ds_write_b128 v{vT+4}, v[{vT}:{vT+3}]")
        A("s_mov_b64 exec, -1")

    def c_mlpub():
        A(f"s_cmp_eq_u32 {sW}, 0")
        A("s_cbranch_scc0 L_nopub")
        A(f"v_and_b32 v{vT+4}, 7, {vL}")
        A(f"v_lshlrev_b32 v{vT+4}, 4, v{vT+4}")
        A(f"v_add_u32 v{vT+4}, {LML}, v{vT+4}")
        A(f"s_mov_b32 {sT[0]}, {spin*4}")
        A("L_lml:")
        A(f"ds_read_b128 v[{vT}:{vT+3}], v{vT+4}")
        A("s_waitcnt lgkmcnt(0)")
        tagcheck([vT + 1, vT + 3], vT + 5, vT + 6)
        A("s_cbranch_vccz L_lmlok")
        A(f"s_sub_u32 {sT[0]}, {sT[0]}, 1")
        A("s_cbranch_scc0 L_lml")
        A("L_lmlok:")
        A(f"v_mov_b32 v{vT+5}, v{vT}")
        allreduce("v_max_f32", [vT + 5], vT + 6, [2, 4])
        A(f"v_sub_f32 v{vT}, v{vT}, v{vT+5}")
        A(f"v_exp_f32 v{vT}, v{vT}")
        A("s_nop 0")
        A(f"v_mul_f32 v{vT+2}, v{vT+2}, v{vT}")
        allreduce("v_add_f32", [vT + 2], vT + 6, [2, 4])
        A(f"v_mov_b32 v{vT}, v{vT+5}")
        A(f"s_lshl_b32 {sT[0]}, {sH}, 10")
        A(f"s_lshl_b32 {sT[1]}, {sP}, 5")
        A(f"s_add_u32 {sT[0]}, {sT[0]}, {sT[1]}")
        A(f"s_add_u32 {sT[0]}, {sT[0]}, {WS_ML}")
        A(f"v_lshlrev_b32 v{vT+4}, 4, {vL}")
        A("s_mov_b64 exec, 3")
        A(f"buffer_store_dwordx4 v[{vT}:{vT+3}], v{vT+4}, {SRD_WS}, {sT[0]} offen sc1")
        A("s_mov_b64 exec, -1")
        A("L_nopub:")

    def c_mlpoll():
        A(f"s_lshl_b32 {sT[8]}, {sH}, 10")
        A(f"s_add_u32 {sT[8]}, {sT[8]}, {WS_ML}")
        A(f"v_lshlrev_b32 v{vT+8}, 4, {vL}")
        st["ml"] = VM(f"buffer_load_dwordx4 v[{vT+12}:{vT+15}], v{vT+8}, {SRD_WS}, {sT[8]} offen sc1")

    def c_mlcheck():
        G = vT + 12
        wait_vm(st["ml"])
        A(f"s_mov_b32 {sT[0]}, {spin}")
        A("L_mlchk:")
        tagcheck([G + 1, G + 3], vT + 9, vT + 10)
        A("s_cbranch_vccz L_mlok")
        A(f"s_sub_u32 {sT[0]}, {sT[0]}, 1")
        A("s_cbranch_scc1 L_mlok")
        A(f"buffer_load_dwordx4 v[{G}:{G+3}], v{vT+8}, {SRD_WS}, {sT[8]} offen sc1")
        A("s_waitcnt vmcnt(0)")
        A("s_branch L_mlchk")
        A("L_mlok:")
        A(f"v_mov_b32 v{vT+9}, v{G}")
        allreduce("v_max_f32", [vT + 9], vT + 10, [2, 4, 8, 16, 32])

    def c_mlscale():
        G = vT + 12
        A(f"v_sub_f32 v{G}, v{G}, v{vT+9}")
        A(f"v_exp_f32 v{G}, v{G}")
        A("s_nop 0")
        A(f"v_mul_f32 v{G+2}, v{G+2}, v{G}")
        allreduce("v_add_f32", [G + 2], vT + 10, [2, 4, 8, 16, 32])
        A(f"v_log_f32 v{G+2}, v{G+2}")
        A("s_nop 0")
        A(f"v_add_f32 v{vT+9}, v{vT+9}, v{G+2}")
        A(f"v_sub_f32 v{vT+10}, v{vMS}, v{vT+9}")
        A(f"v_exp_f32 v{vT+10}, v{vT+10}")

    def c_rescale():
        A(f"v_mov_b32 v{vMS}, v{vT+9}")
        A("s_nop 0")
        A(f"v_mov_b32_dpp v{vT+2}, v{vT+10} quad_perm:[0,0,0,0] row_mask:0xf bank_mask:0xf")
        A(f"v_mov_b32_dpp v{vT+3}, v{vT+10} quad_perm:[1,1,1,1] row_mask:0xf bank_mask:0xf")
        A("s_nop 4")
        for t in range(16):
            A(f"v_pk_mul_f32 v[{vACC+4*t}:{vACC+4*t+1}], v[{vACC+4*t}:{vACC+4*t+1}], v[{vT+2}:{vT+3}]")

    vWO, vW2 = vQ, vQ + 16

    def issue_weights():
        A(f"v_lshlrev_b32 v{vT+16}, 2, v0")
        A(f"s_lshl_b32 {sT[0]}, {sH}, 5")
        A(f"s_add_u32 {sT[0]}, {sT[0]}, {sP}")
        A(f"s_mul_i32 {sT[0]}, {sT[0]}, {16*896}")
        A(f"s_mul_i32 {sT[1]}, {sF}, {8*896}")
        for i in range(16):
            if i % 4 == 0 and i:
                A(f"s_add_u32 {sT[0]}, {sT[0]}, {4*896}")
            VM(f"buffer_load_dword v{vWO+i}, v{vT+16}, {SRD_WO}, {sT[0]} offen offset:{(i%4)*896} {wflags}")
        for i in range(8):
            if i % 4 == 0 and i:
                A(f"s_add_u32 {sT[1]}, {sT[1]}, {4*896}")
            st["w"] = VM(f"buffer_load_dword v{vW2+i}, v{vT+16}, {SRD_W2}, {sT[1]} offen offset:{(i%4)*896} {wflags}")

    chunks = []
    C = lambda fn, need=None, free=None: chunks.append((need, free, fn))
    backlog = list(range(NB))
    for n in range(S):
        slot = (n % R) * tb
        if n < NB:
            C(lambda n=n, slot=slot: read_k(32 * n, slot, True), need=n)
            C(lambda: lds_wait(True), free=n)
            if n == NP:
                C(c_qpoll)
            if n == NB - 1:
                C(c_qcheck)
                C(c_qread)
        else:
            C(lambda slot=slot: read_k(vTL, slot), need=n)
            C(lambda: (lds_wait(True), qk_mfma(vTL, False)), free=n)
            C(lambda n=n: qk_post(vSC + 4 * n))
            for _ in range(2):
                if backlog:
                    m = backlog.pop(0)
                    C(lambda m=m: qk_mfma(32 * m, True))
                    C(lambda m=m: qk_post(vSC + 4 * m))
    assert not backlog
    C(c_kmax)
    lq = list(range(S))
    for n in range(S):
        j = S + n
        slot = (j % R) * tb
        if n == vgat + 2:
            C(c_rescale)
        C(lambda n=n: make_p(vSC + 4 * n))
        C(lambda slot=slot: read_v(slot), need=j)
        C(lambda n=n: (lds_wait(True), pv(n == 0, 0, 8)), free=j)
        C(lambda n=n: pv(n == 0, 8, 16))
        for _ in range(2):
            if lq:
                m0, m1 = lq.pop(0), lq.pop(0)
                C(lambda m0=m0, m1=m1: (lsum(vSC + 4 * m0), lsum(vSC + 4 * m1)))
                if not lq:
                    C(c_lwrite)
        if n == vpub and not noml:
            assert not lq
            C(c_mlpub)
        if n == vgat and not noml:
            C(c_mlpoll)
        if n == vgat + 1 and not noml:
            C(c_mlcheck)
            C(c_mlscale)

    freed = set()

    def emit_chunk(q, block):
        need, free, fn = q[0]
        if need is not None:
            last = need * T + T - 1
            if last not in lidx:
                assert not block
                return False
            if lidx[last] > vm["known"]:
                if not block:
                    return False
                wait_vm(lidx[last])
        q.pop(0)
        fn()
        if free is not None:
            freed.add(free)
        return True

    def tagfix():
        A("s_waitcnt lgkmcnt(0)")
        A(f"s_mul_i32 {sTAG}, {sTAG}, 1664525")
        A(f"s_add_u32 {sTAG}, {sTAG}, 1013904223")

    def stream(L0, L1, win, q, paced):
        for L in range(L0, L1):
            j, i = divmod(L, T)
            Nw = win(L)
            if len(paced) >= Nw:
                wait_vm(paced[-Nw])
            if i == 0 and j >= R:
                while (j - R) not in freed:
                    emit_chunk(q, True)
            issue_load(L)
            paced.append(lidx[L])
            if L == NL - 1 - wpos and not now:
                issue_weights()
            if q and (L < NL - tail or Nend <= N + 2):
                emit_chunk(q, False)

    def win_main(L):
        Nw = Nend if L >= NL - tail else N
        if alt and Nw == N and (L // alt[1]) % alt[2] == 0:
            Nw = alt[0]
        return Nw

    split = next(k for k, ch in enumerate(chunks) if ch[0] == X - 1)
    head_chunks, rest = chunks[:split], chunks[split:]
    assert X - 1 <= NP
    ends = []
    A(f"s_cmp_lt_u32 {sZ}, 92")
    A("s_cbranch_scc1 L_producer")
    for path in ("n", "p"):
        vm.update(n=0, known=0)
        lidx.clear()
        freed.clear()
        paced = []
        stg = {"i": 0}

        def issue_stg():
            i = stg["i"]
            if rot:
                if i == 0:
                    A(f"s_mul_i32 {sT[3]}, {sZ}, 4682")
                    A(f"s_lshr_b32 {sT[3]}, {sT[3]}, 16")
                    A(f"s_mul_i32 {sT[3]}, {sT[3]}, 14")
                    A(f"s_sub_u32 {sT[3]}, {sZ}, {sT[3]}")
                else:
                    A(f"s_add_u32 {sT[3]}, {sT[3]}, 1")
                    A(f"s_cmp_eq_u32 {sT[3]}, 14")
                    A(f"s_cselect_b32 {sT[3]}, 0, {sT[3]}")
                A(f"s_lshl_b32 {sT[9]}, {sT[3]}, 10")
                A(f"s_add_u32 m0, {sT[6]}, {sT[9]}")
                A(f"s_mul_i32 {sT[9]}, {sT[3]}, {sT[4]}")
                A(f"s_add_u32 {sT[9]}, {sT[9]}, {sT[5]}")
                st["stg"] = VM(f"buffer_load_dwordx4 v21, {SRD_W}, {sT[9]} offen {wflags} lds")
            else:
                A(f"s_add_u32 m0, {sT[6]}, {i*1024}")
                if i:
                    A(f"s_add_u32 {sT[5]}, {sT[5]}, {sT[4]}")
                else:
                    A("s_nop 0")
                st["stg"] = VM(f"buffer_load_dwordx4 v21, {SRD_W}, {sT[5]} offen {wflags} lds")
            paced.append(st["stg"])
            stg["i"] += 1
            m0bad["v"] = True
        if path == "n":
            for L in range(N0):
                issue_load(L)
                paced.append(lidx[L])
            A(f"s_load_dword {sTAG}, s[24:25], 0")
            setup()
            q = list(head_chunks) + [(None, None, tagfix)]
            stream(N0, X * T, win_main, q, paced)
        else:
            A("L_producer:")
            st["x"] = VM(f"buffer_load_dwordx4 v[{vT}:{vT+3}], v31, {SRD_X}, 0 offen")
            if not il:
                while stg["i"] < 14:
                    issue_stg()
            for L in range(B0):
                issue_load(L)
                paced.append(lidx[L])
                if il and L % il == il - 1:
                    issue_stg()
            A(f"s_load_dword {sTAG}, s[24:25], 0")
            setup()
            if not il:
                for fn in side_chunks[:4]:
                    fn()
                q = [(None, None, fn) for fn in side_chunks[4:]] + list(head_chunks) + [(None, None, tagfix)]
                stream(B0, X * T, lambda L: Np if L < Xp else N, q, paced)
            else:
                Ls = 14 * il
                q = [(None, None, fn) for fn in side_chunks[:5]] + list(head_chunks)
                for L in range(B0, Ls):
                    stream(L, L + 1, lambda L: Np, q, paced)
                    if L % il == il - 1:
                        wait_vm(paced[-Np])
                        issue_stg()
                w2 = Np2 or N
                L = Ls
                while st["stg"] > vm["known"]:
                    stream(L, L + 1, lambda L: w2, q, paced)
                    L += 1
                assert all(ch[2] not in side_chunks for ch in q)
                if q and q[0][1] is not None:
                    emit_chunk(q, True)
                q = [(None, None, fn) for fn in side_chunks[5:]] + q + [(None, None, tagfix)]
                stream(L, X * T, lambda L: w2 if L < Xp else N, q, paced)
        while q:
            emit_chunk(q, True)
        known_L = max([L for L in lidx if lidx[L] <= vm["known"]] + [-1])
        ends.append(({L: vm["n"] - lidx[L] for L in range(X * T - 16, X * T)}, known_L, set(freed)))
        if path == "n":
            A("s_branch L_join")
    A("L_join:")
    stamp(1)
    assert ends[0][0] == ends[1][0] and ends[0][2] == ends[1][2], ends
    vm["known"] = lidx[min(ends[0][1], ends[1][1])]
    stream(X * T, NL, win_main, rest, [lidx[L] for L in range(X * T - 16, X * T)])
    while rest:
        emit_chunk(rest, True)
    stamp()

    if noend:
        A("s_branch L_done")
    A(f"v_lshlrev_b32 v{vT}, 2, {vL}")
    A(f"v_add_u32 v{vT}, {sRING}, v{vT}")
    A(f"v_add_u32 v{vT+1}, 1024, v{vT}")
    A("s_mov_b64 exec, 0xffff")
    for t in range(16):
        A(f"ds_write2_b32 v{vT + t//8}, v{vACC+4*t}, v{vACC+4*t+1} offset0:{(t%8)*16} offset1:{(t%8)*16+128}")
    A("s_mov_b64 exec, -1")
    A(f"s_and_b32 {sT[0]}, {sW}, 1")
    A(f"s_lshl_b32 {sT[0]}, {sT[0]}, 10")
    A(f"s_lshr_b32 {sT[1]}, {sW}, 1")
    A(f"s_lshl_b32 {sT[2]}, {sT[1]}, 9")
    A(f"s_add_u32 {sT[0]}, {sT[0]}, {sT[2]}")
    A(f"v_lshlrev_b32 v{vT+4}, 3, {vL}")
    A(f"v_add_u32 v{vT+4}, {sT[0]}, v{vT+4}")
    A(f"v_add_u32 v{vT+6}, {2*R*tb}, v{vT+4}")
    A(f"s_lshl_b32 {sT[4]}, {sH}, 5")
    A(f"s_add_u32 {sT[4]}, {sT[4]}, {sP}")
    A(f"s_lshl_b32 {sT[4]}, {sT[4]}, 12")
    A(f"s_add_u32 {sT[4]}, {sT[4]}, {WS_P1O}")
    A(f"v_lshlrev_b32 v{vT+7}, 4, v0")
    O4, G = 72, 88
    A(f"v_mov_b32 v{G+1}, {sTAG}")
    A(f"v_mov_b32 v{G+3}, {sTAG}")
    A(f"v_lshrrev_b32 v{vT+8}, 3, {vL}")
    A(f"v_and_b32 v{vT+9}, 7, {vL}")
    A(f"v_lshlrev_b32 v{vT+9}, 4, v{vT+9}")
    A(f"v_lshl_add_u32 v{vT+2}, v{vT+8}, 12, v{vT+9}")
    A(f"s_lshl_b32 {sT[0]}, {sH}, 17")
    A(f"s_lshl_b32 {sT[1]}, {sP}, 7")
    A(f"s_add_u32 {sT[0]}, {sT[0]}, {sT[1]}")
    A(f"s_add_u32 {sT[0]}, {sT[0]}, {WS_P1O}")
    for k in range(1, 4):
        A(f"s_add_u32 {sT[k]}, {sT[0]}, {k*32768}")
    A("s_waitcnt lgkmcnt(0)")
    A("s_barrier")
    for w in range(4):
        A(f"ds_read_b64 v[{O4+2*w}:{O4+2*w+1}], v{vT+4+(w//2)*2} offset:{(w%2)*R*tb}")
    A("s_waitcnt lgkmcnt(2)")
    A(f"v_add_f32 v{G}, v{O4}, v{O4+2}")
    A(f"v_add_f32 v{G+2}, v{O4+1}, v{O4+3}")
    A("s_waitcnt lgkmcnt(0)")
    A(f"v_add_f32 v{O4+4}, v{O4+4}, v{O4+6}")
    A(f"v_add_f32 v{O4+5}, v{O4+5}, v{O4+7}")
    A(f"v_add_f32 v{G}, v{G}, v{O4+4}")
    A(f"v_add_f32 v{G+2}, v{G+2}, v{O4+5}")
    A(f"buffer_store_dwordx4 v[{G}:{G+3}], v{vT+7}, {SRD_WS}, {sT[4]} offen sc1")
    stamp()

    OG = 96

    def hop1_loads():
        for k in range(4):
            A(f"buffer_load_dwordx4 v[{OG+4*k}:{OG+4*k+3}], v{vT+2}, {SRD_WS}, {sT[k]} offen sc1")
    hop1_loads()
    A("s_waitcnt vmcnt(5)")
    PW, PW2 = 128, 144
    A(f"s_mov_b32 {sT[6]}, 0x05040100")
    A(f"s_mov_b32 {sT[7]}, 0x07060302")
    for k in range(8):
        A(f"v_perm_b32 v{PW+k}, v{vWO+2*k+1}, v{vWO+2*k}, {sT[6]}")
        A(f"v_perm_b32 v{PW+8+k}, v{vWO+2*k+1}, v{vWO+2*k}, {sT[7]}")
    for k in range(4):
        A(f"v_perm_b32 v{PW2+k}, v{vW2+2*k+1}, v{vW2+2*k}, {sT[6]}")
        A(f"v_perm_b32 v{PW2+4+k}, v{vW2+2*k+1}, v{vW2+2*k}, {sT[7]}")
    Y = 84
    A(f"v_mov_b32 v{Y}, 0")
    A(f"v_mov_b32 v{Y+1}, {sTAG}")
    A(f"v_mov_b32 v{Y+2}, 0")
    A(f"v_mov_b32 v{Y+3}, {sTAG}")
    A("s_cmp_lt_u32 s2, 224")
    A("s_cbranch_scc0 L_noffn2")
    for k in range(4):
        A(f"v_dot2_f32_bf16 v{Y}, v{vH+2*k}, v{PW2+k}, v{Y}")
        A(f"v_dot2_f32_bf16 v{Y+2}, v{vH+2*k}, v{PW2+4+k}, v{Y+2}")
    A("L_noffn2:")
    A(f"s_mul_i32 {sT[8]}, s2, 3584")
    A(f"s_add_u32 {sT[8]}, {sT[8]}, {WS_P2}")
    A(f"s_mov_b32 {sT[9]}, {spin}")
    A(f"v_cmp_gt_u32 vcc, 224, v0")
    A("s_mov_b64 s[68:69], vcc")
    A("L_h1chk:")
    A("s_waitcnt vmcnt(0)")
    tagcheck([OG + 1 + 2 * i for i in range(8)], vT + 4, vT + 5)
    A("s_cbranch_vccz L_h1ok")
    A(f"s_sub_u32 {sT[9]}, {sT[9]}, 1")
    A("s_cbranch_scc1 L_h1ok")
    if sleep1:
        A(f"s_sleep {sleep1}")
    hop1_loads()
    A("s_branch L_h1chk")
    A("L_h1ok:")
    stamp()
    oa, ob = vT + 4, vT + 5
    A(f"v_add_f32 v{oa}, v{OG}, v{OG+4}")
    A(f"v_add_f32 v{ob}, v{OG+2}, v{OG+6}")
    A(f"v_add_f32 v{OG+8}, v{OG+8}, v{OG+12}")
    A(f"v_add_f32 v{OG+10}, v{OG+10}, v{OG+14}")
    A(f"v_add_f32 v{oa}, v{oa}, v{OG+8}")
    A(f"v_add_f32 v{ob}, v{ob}, v{OG+10}")
    allreduce("v_add_f32", [oa, ob], vT + 10, [8, 16, 32])
    A(f"v_cvt_pk_bf16_f32 v{oa}, v{oa}, v{ob}")
    A("s_nop 0")
    for k in range(8):
        A(f"v_readlane_b32 {sT[k]}, v{oa}, {k}")
    for k in range(8):
        A(f"v_dot2_f32_bf16 v{Y}, {sT[k]}, v{PW+k}, v{Y}")
        A(f"v_dot2_f32_bf16 v{Y+2}, {sT[k]}, v{PW+8+k}, v{Y+2}")
    A("s_mov_b64 exec, s[68:69]")
    A("s_nop 1")
    A(f"buffer_store_dwordx4 v[{Y}:{Y+3}], v{vT+7}, {SRD_WS}, {sT[8]} offen sc1")
    A("s_mov_b64 exec, -1")
    stamp()
    A("s_cmp_lt_u32 s2, 28")
    A("s_cbranch_scc0 L_done")

    A(f"s_lshl_b32 {sT[8]}, {sW}, 6")
    A(f"v_add_u32 v{vT}, {sT[8]}, v{vT+8}")
    A(f"v_mul_u32_u24 v{vT}, 3584, v{vT}")
    A(f"v_add_u32 v{vT}, v{vT}, v{vT+9}")
    A(f"s_lshl_b32 {sT[0]}, s2, 7")
    A(f"s_add_u32 {sT[0]}, {sT[0]}, {WS_P2}")
    for k in range(1, 8):
        A(f"s_add_u32 {sT[k]}, {sT[0]}, {k*8*3584}")
    YG = 96

    def hop2_loads():
        for k in range(8):
            A(f"buffer_load_dwordx4 v[{YG+4*k}:{YG+4*k+3}], v{vT}, {SRD_WS}, {sT[k]} offen sc1")
    A(f"s_lshl_b32 {sT[8]}, s2, 5")
    A(f"v_lshlrev_b32 v{vT+2}, 2, {vL}")
    A(f"buffer_load_dword v{vT+3}, v{vT+2}, {SRD_X}, {sT[8]} offen")
    hop2_loads()
    A(f"s_lshl_b32 {sT[9]}, {sW}, 6")
    A(f"s_add_u32 {sT[9]}, {sT[9]}, {FIN}")
    A(f"v_lshlrev_b32 v{vT+10}, 3, {vL}")
    A(f"v_add_u32 v{vT+11}, {FIN}, v{vT+10}")
    A(f"v_add_u32 v{vT+10}, {sT[9]}, v{vT+10}")
    A(f"s_mov_b32 {sT[9]}, {spin}")
    A("L_h2chk:")
    A("s_waitcnt vmcnt(0)")
    tagcheck([YG + 1 + 2 * i for i in range(16)], vT + 4, vT + 5)
    A("s_cbranch_vccz L_h2ok")
    A(f"s_sub_u32 {sT[9]}, {sT[9]}, 1")
    A("s_cbranch_scc1 L_h2ok")
    if sleep2:
        A(f"s_sleep {sleep2}")
    hop2_loads()
    A("s_branch L_h2chk")
    A("L_h2ok:")
    ya, yb = vT + 6, vT + 7
    A(f"v_add_f32 v{ya}, v{YG}, v{YG+4}")
    A(f"v_add_f32 v{yb}, v{YG+2}, v{YG+6}")
    for k in range(2, 8):
        A(f"v_add_f32 v{ya}, v{ya}, v{YG+4*k}")
        A(f"v_add_f32 v{yb}, v{yb}, v{YG+4*k+2}")
    allreduce("v_add_f32", [ya, yb], vT + 8, [8, 16, 32])
    A("s_mov_b64 exec, 0xff")
    A(f"ds_write_b64 v{vT+10}, v[{ya}:{yb}]")
    A("s_waitcnt lgkmcnt(0)")
    A("s_barrier")
    A(f"s_cmp_eq_u32 {sW}, 0")
    A("s_cbranch_scc0 L_done")
    for w in range(4):
        A(f"ds_read_b64 v[{YG+2*w}:{YG+2*w+1}], v{vT+11} offset:{w*64}")
    A(f"v_lshlrev_b32 v{ya}, 16, v{vT+3}")
    A(f"v_and_b32 v{yb}, 0xffff0000, v{vT+3}")
    A("s_waitcnt lgkmcnt(0)")
    A(f"v_add_f32 v{YG}, v{YG}, v{YG+2}")
    A(f"v_add_f32 v{YG+1}, v{YG+1}, v{YG+3}")
    A(f"v_add_f32 v{YG+4}, v{YG+4}, v{YG+6}")
    A(f"v_add_f32 v{YG+5}, v{YG+5}, v{YG+7}")
    A(f"v_add_f32 v{YG}, v{YG}, v{YG+4}")
    A(f"v_add_f32 v{YG+1}, v{YG+1}, v{YG+5}")
    A(f"v_add_f32 v{ya}, v{ya}, v{YG}")
    A(f"v_add_f32 v{yb}, v{yb}, v{YG+1}")
    A(f"v_cvt_pk_bf16_f32 v{ya}, v{ya}, v{yb}")
    A(f"buffer_store_dword v{ya}, v{vT+2}, {SRD_OUT}, {sT[8]} offen")
    A("s_cmp_eq_u32 s2, 0")
    A("s_cbranch_scc0 L_done")
    A(f"v_mov_b32 v{yb}, {sTAG}")
    A("s_mov_b64 exec, 1")
    A(f"buffer_store_dword v{yb}, off, {SRD_WS}, 0 sc1")
    A("L_done:")
    if noend:
        A("s_cmp_eq_u32 s2, 0")
        A("s_cbranch_scc0 L_done2")
        A(f"v_mov_b32 v3, {sTAG}")
        A("s_mov_b64 exec, 1")
        A(f"buffer_store_dword v3, off, {SRD_WS}, 0 sc1")
        A("L_done2:")
    if stamps:
        A("s_mov_b64 exec, -1")
        A("s_memrealtime s[100:101]")
        A("s_waitcnt lgkmcnt(0)")
        A(f"s_lshl_b32 {sT[0]}, s2, 2")
        A(f"s_add_u32 {sT[0]}, {sT[0]}, {sW}")
        A(f"s_lshl_b32 {sT[1]}, {sT[0]}, 8")
        A(f"s_lshl_b32 {sT[0]}, {sT[0]}, 6")
        A(f"s_add_u32 {sT[0]}, {sT[0]}, {WS_STAMP}")
        A(f"s_add_u32 {sT[1]}, {sT[1]}, {WS_STAMP + 0x10000}")
        A(f"v_lshlrev_b32 v2, 2, {vL}")
        A(f"buffer_store_dword v252, v2, {SRD_WS}, {sT[1]} offen")
        A("v_mov_b32 v2, 0")
        A("s_mov_b64 exec, 1")
        A("v_mov_b32 v3, s26")
        A(f"buffer_store_dword v3, v2, {SRD_WS}, {sT[0]} offen offset:44")
        for k in range(9):
            A(f"v_mov_b32 v3, s{84+2*k}")
            A(f"buffer_store_dword v3, v2, {SRD_WS}, {sT[0]} offen offset:{4*k}")
        A("s_getreg_b32 s84, hwreg(HW_REG_XCC_ID)")
        A("v_mov_b32 v3, s84")
        A(f"buffer_store_dword v3, v2, {SRD_WS}, {sT[0]} offen offset:36")
        A("v_mov_b32 v3, 0")
        A(f"buffer_store_dword v3, v2, {SRD_WS}, {sT[0]} offen offset:40")
    A("L_end:")
    A("s_endpgm")
    body = "\n".join(("" if l.endswith(":") else "    ") + l for l in o)
    return HEADER.format(lds=LDS, k=kern) + body + FOOTER.format(k=kern)


if __name__ == "__main__":
    out = sys.argv[1]
    kw = json.loads(sys.argv[2]) if len(sys.argv) > 2 else {}
    open(out, "w").write(gen(**kw))
```

```python
import sys, json, math, struct
from gen import HEADER, FOOTER, KERN, f2u, LOG2E_16

WS_QG = 0x1000
WS_HG = WS_QG + 0x4000
WS_ML = 0x8000
WS_P1O = 0x10000
WS_P2 = 0x120000
WS_STAMP = 0x300000
WS_SIZE = 0x400000


def gen(R=3, N=5, N0=5, Nend=16, tail=11, NB=8, NP=6, bits="i0 i1 w0 w1 i2 g3 g4 t2 t3 x0 x1 x2 t0 t1",
        kflags="nt", vflags="nt", wflags="nt", stamps=0, spin=200000, vpub=5, vgat=9, wpos=0, flat2=False, gate2=False, kopen=(24, 8), lateprep=True, pre1=None, pre2=None, plain1=False, touch="sc1", tpos=0, codepf=True, sleep1=0, sleep2=0,
        alt=None, X=6, Np=16, B0=8, Xp=None, il=1, Np2=9, zmap="wg", rot=True, hmap="mod8", local=True,
        kern=KERN):
    now = noend = noml = False
    wearly = 0
    T = 8
    tb = T * 1024
    S = 16
    pos = {n: 10 + k for k, n in enumerate(bits.split())}
    assert pos["i0"] == 10 and pos["i1"] == 11
    RING = 4 * R * tb
    STG = RING
    QW = STG + 57344
    LML = QW + 4096
    FIN = LML + 128
    LDS = FIN + 256
    assert LDS <= 163840 and LDS > 81920
    if Xp is None:
        Xp = X * T

    o = []
    A = o.append
    vm = {"n": 0, "known": 0}

    def VM(s):
        A(s)
        vm["n"] += 1
        return vm["n"]

    def wait_vm(idx, force=False):
        if idx <= vm["known"] and not force:
            return
        n = vm["n"] - idx
        assert 0 <= n <= 63, n
        A(f"s_waitcnt vmcnt({n})")
        vm["known"] = max(vm["known"], idx)

    nstamp = {"n": 0}

    def stamp(mode=1):
        if stamps and (int(stamps) & mode):
            k = nstamp["n"]
            assert k < 8
            A(f"s_memrealtime s[{84+2*k}:{85+2*k}]")
            nstamp["n"] += 1

    SRD_K, SRD_V, SRD_W, SRD_WO, SRD_W2, SRD_WS, SRD_X, SRD_OUT = ("s[28:31]", "s[32:35]", "s[36:39]", "s[40:43]",
                                                                     "s[44:47]", "s[48:51]", "s[52:55]", "s[56:59]")
    sW, sH, sP, sTAG, sRING, sBASE, sC, sF = "s3", "s60", "s61", "s62", "s63", "s64", "s65", "s66"
    sOFF = "s67"
    sZ = "s27"
    sT = ["s72", "s73", "s74", "s75", "s76", "s77", "s78", "s79", "s80", "s81"]
    vL = "v1"
    vSRC = [2, 3, 4, 5]
    vKA = [6, 7, 8, 9]
    vVA = list(range(10, 18))
    vMAX, vMS = 18, 19
    vPF, vLS, vS, vE = 20, 24, 24, 28
    vVT = 32
    sLOC, sXCC = "s82", "s83"
    vQ, vTL, vACC, vSC, vT = 32, 64, 96, 160, 224
    vH = 244

    def srd(base, lo, size):
        A(f"s_mov_b32 s{base}, s{lo}")
        A(f"s_mov_b32 s{base+1}, s{lo+1}")
        A(f"s_mov_b32 s{base+2}, {size}")
        A(f"s_mov_b32 s{base+3}, 0x20000")

    A("s_cmp_ge_u32 s2, 256")
    A("s_cbranch_scc1 L_end")
    stamp(3)
    A("s_load_dwordx16 s[4:19], s[0:1], 0")
    A("s_load_dwordx4 s[20:23], s[0:1], 64")
    A("s_load_dwordx2 s[24:25], s[0:1], 80")
    A("v_lshrrev_b32 v30, 6, v0")
    A(f"v_and_b32 {vL}, 63, v0")
    A("v_readfirstlane_b32 s3, v30")
    if hmap == "blk":
        A(f"s_lshr_b32 {sH}, s2, 3")
        A(f"s_and_b32 {sH}, {sH}, 7")
        A(f"s_and_b32 {sT[0]}, s2, 7")
    else:
        A(f"s_and_b32 {sH}, s2, 7")
        A(f"s_lshr_b32 {sT[0]}, s2, 3")
        A(f"s_and_b32 {sT[0]}, {sT[0]}, 7")
    A(f"s_lshr_b32 {sT[1]}, s2, 6")
    A(f"s_lshl_b32 {sP}, {sT[1]}, 3")
    A(f"s_or_b32 {sP}, {sP}, {sT[0]}")
    A(f"s_lshl_b32 {sBASE}, {sH}, 24")
    if zmap == "head":
        A(f"s_lshl_b32 {sZ}, {sH}, 5")
        A(f"s_or_b32 {sZ}, {sZ}, {sP}")
    elif zmap == "x":
        A(f"s_lshl_b32 {sZ}, {sT[0]}, 5")
        A(f"s_lshl_b32 {sT[2]}, {sT[1]}, 3")
        A(f"s_or_b32 {sZ}, {sZ}, {sT[2]}")
        A(f"s_or_b32 {sZ}, {sZ}, {sH}")
    else:
        A(f"s_mov_b32 {sZ}, s2")

    def put(src, names):
        k = 0
        while k < len(names):
            e = k
            while e + 1 < len(names) and pos[names[e + 1]] == pos[names[e]] + 1:
                e += 1
            if k == 0 and e == len(names) - 1:
                A(f"s_lshl_b32 {sT[2]}, {src}, {pos[names[0]]}")
            else:
                A(f"s_bfe_u32 {sT[2]}, {src}, {((e - k + 1) << 16) | k}")
                A(f"s_lshl_b32 {sT[2]}, {sT[2]}, {pos[names[k]]}")
            A(f"s_or_b32 {sBASE}, {sBASE}, {sT[2]}")
            k = e + 1
    put(sW, ["w0", "w1"])
    put(sT[0], ["x0", "x1", "x2"])
    put(sT[1], ["g3", "g4"])
    A(f"s_mul_i32 {sRING}, {sW}, {R*tb}")
    A(f"s_mov_b32 {sC}, 0x{f2u(LOG2E_16):08x}")
    A(f"s_min_u32 {sF}, s2, 223")
    A(f"s_mov_b32 s30, {128 << 20}")
    A("s_mov_b32 s31, 0x20000")
    A("s_mov_b32 s54, 896")
    A("s_mov_b32 s55, 0x20000")
    A("s_mov_b32 s39, 0x20000")
    A(f"v_lshrrev_b32 v30, 5, {vL}")
    A(f"v_lshlrev_b32 v31, 1, v30")
    A(f"v_and_b32 v29, 31, {vL}")
    A("v_xor_b32 v29, v29, v31")
    A("v_lshlrev_b32 v29, 4, v29")
    A(f"v_lshl_add_u32 v{vSRC[0]}, v30, 9, v29")
    for i in range(1, 4):
        A(f"v_xor_b32 v{vSRC[i]}, {i*64}, v{vSRC[0]}")
    A(f"s_cmp_lt_u32 {sZ}, 64")
    A(f"s_mov_b32 s38, {448*1792*2}")
    A(f"s_cmov_b32 s38, {448*4096*2}")
    A(f"s_mov_b32 {sT[4]}, 3584")
    A(f"s_cmov_b32 {sT[4]}, 8192")
    A(f"s_and_b32 {sT[5]}, {sZ}, 63")
    A(f"s_lshl_b32 {sT[5]}, {sT[5]}, 7")
    A(f"s_mul_i32 {sT[6]}, {sW}, 112")
    A(f"s_mul_i32 {sT[6]}, {sT[6]}, {sT[4]}")
    A(f"s_add_u32 {sT[5]}, {sT[5]}, {sT[6]}")
    A(f"v_lshrrev_b32 v30, 3, {vL}")
    A(f"v_mul_lo_u32 v30, v30, {sT[4]}")
    A(f"v_and_b32 v31, 7, {vL}")
    A("v_lshl_add_u32 v21, v31, 4, v30")
    A(f"v_lshlrev_b32 v31, 4, {vL}")
    A(f"s_lshl_b32 {sT[4]}, {sT[4]}, 3")
    A(f"s_mul_i32 {sT[6]}, {sW}, 14336")
    A(f"s_add_u32 {sT[6]}, {sT[6]}, {STG}")
    A("s_waitcnt lgkmcnt(0)")
    stamp(2)
    A("s_mov_b32 s28, s6")
    A("s_mov_b32 s29, s7")
    A("s_mov_b32 s52, s4")
    A("s_mov_b32 s53, s5")
    A(f"s_cmp_lt_u32 {sZ}, 64")
    A("s_cselect_b32 s36, s10, s16")
    A("s_cselect_b32 s37, s11, s17")
    seq = [("K", n) for n in range(S)] + [("V", n) for n in range(S)]
    NL = len(seq) * T
    lidx = {}

    m0bad = {"v": False}

    def issue_load(L):
        j, i = divmod(L, T)
        kind, n = seq[j]
        if i % 4 and m0bad["v"]:
            A(f"s_add_u32 m0, {sRING}, {(j % R)*tb + (i // 4)*4096}")
            A("s_nop 0")
        m0bad["v"] = False
        if i % 4 == 0:
            g = sum(((n >> k) & 1) << pos[f"t{k}"] for k in range(4)) + ((i >> 2) << pos["i2"])
            A(f"s_add_u32 m0, {sRING}, {(j % R)*tb + i*1024}")
            A(f"s_add_u32 {sOFF}, {sBASE}, {g}")
        srd_, fl = (SRD_K, kflags) if kind == "K" else (SRD_V, vflags)
        lidx[L] = VM(f"buffer_load_dwordx4 v{vSRC[i%4]}, {srd_}, {sOFF} offen offset:{(i%4)*1024} {fl} lds")

    npf = {"n": 0}

    def setup():
        if codepf:
            k = npf["n"]
            npf["n"] += 1
            A(f"s_getpc_b64 s[68:69]")
            A(f"L_pf{k}:")
            A(f"s_lshr_b32 {sT[2]}, s2, 3")
            A(f"s_lshl_b32 {sT[2]}, {sT[2]}, 2")
            A(f"s_add_u32 {sT[2]}, {sT[2]}, {sW}")
            A(f"s_lshl_b32 {sT[2]}, {sT[2]}, 8")
            A(f"s_min_u32 {sT[2]}, {sT[2]}, L_end-L_join-128")
            A(f"s_add_u32 {sT[2]}, {sT[2]}, L_join-L_pf{k}")
            A(f"s_add_u32 s68, s68, {sT[2]}")
            A("s_addc_u32 s69, s69, 0")
            A("s_load_dword s22, s[68:69], 0x0")
            A("s_load_dword s23, s[68:69], 0x80")
        srd(32, 8, 128 << 20)
        srd(40, 12, 4096 * 448 * 2)
        srd(44, 18, 1792 * 448 * 2)
        srd(48, 24, WS_SIZE)
        srd(56, 20, 896)
        if stamps:
            A("s_mov_b32 s26, 0")
            A("v_mov_b32 v252, 0")
            for k in (5, 6, 7):
                A(f"s_mov_b32 s{84+2*k}, s84")
        A(f"v_and_b32 v29, 15, {vL}")
        A(f"v_lshrrev_b32 v30, 4, {vL}")
        A("v_and_b32 v31, 7, v29")
        A("v_lshlrev_b32 v31, 1, v31")
        A("v_xor_b32 v31, v31, v30")
        A("v_lshlrev_b32 v31, 4, v31")
        A("v_lshl_add_u32 v31, v29, 9, v31")
        for j in range(4):
            A(f"v_xor_b32 v{vKA[j]}, {j*64}, v31")
            A(f"v_add_u32 v{vKA[j]}, {sRING}, v{vKA[j]}")
        A(f"v_lshrrev_b32 v29, 2, {vL}")
        A("v_and_b32 v30, 7, v29")
        A("v_lshlrev_b32 v30, 5, v30")
        A(f"v_and_b32 v31, 3, {vL}")
        A("v_lshlrev_b32 v31, 3, v31")
        A("v_or_b32 v31, v31, v30")
        A("v_lshl_add_u32 v31, v29, 9, v31")
        for t in range(8):
            A(f"v_xor_b32 v{vVA[t]}, {t*32}, v31")
            A(f"v_add_u32 v{vVA[t]}, {sRING}, v{vVA[t]}")
        A(f"v_mov_b32 v{vMAX}, 0xff800000")
        A(f"s_getreg_b32 {sXCC}, hwreg(HW_REG_XCC_ID, 0, 4)")

    def allreduce(op, regs, tmp, steps):
        for st in steps:
            if st <= 8:
                if len(regs) < 3:
                    A(f"s_nop {2-len(regs)}")
                for r in regs:
                    A(f"{op}_dpp v{r}, v{r}, v{r} row_ror:{st} row_mask:0xf bank_mask:0xf")
            else:
                for k, r in enumerate(regs):
                    A(f"v_mov_b32 v{tmp+k}, v{r}")
                if len(regs) < 3:
                    A(f"s_nop {2-len(regs)}")
                for k, r in enumerate(regs):
                    A(f"v_permlane{st}_swap_b32 v{r}, v{tmp+k}")
                if len(regs) < 2:
                    A("s_nop 0")
                for k, r in enumerate(regs):
                    A(f"{op} v{r}, v{r}, v{tmp+k}")

    XU = vT + 4
    a, b, c_, d_ = vT + 12, vT + 13, vT + 14, vT + 15
    XF, WF = 96, 152
    st = {}

    def side0():
        wait_vm(st["x"])
        stamp(2)
        for i in range(4):
            A(f"v_lshlrev_b32 v{XU+2*i}, 16, v{vT+i}")
            A(f"v_and_b32 v{XU+2*i+1}, 0xffff0000, v{vT+i}")
        A(f"v_add_f32 v{a}, v{XU}, v{XU+1}")
        for i in range(2, 8):
            A(f"v_add_f32 v{a}, v{a}, v{XU+i}")
        allreduce("v_add_f32", [a], b, [1, 2, 4, 8, 16, 32])

    def side1():
        A(f"v_mul_f32 v{a}, 0x{f2u(1.0/448):08x}, v{a}")
        A(f"v_mov_b32 v{b}, 0")
        for i in range(8):
            A(f"v_sub_f32 v{c_}, v{XU+i}, v{a}")
            A(f"v_fmac_f32 v{b}, v{c_}, v{c_}")
        A(f"v_cmp_gt_u32 vcc, 56, {vL}")
        A("s_nop 1")
        A(f"v_cndmask_b32 v{b}, 0, v{b}, vcc")
        allreduce("v_add_f32", [b], c_, [1, 2, 4, 8, 16, 32])

    def side2():
        A(f"v_mul_f32 v{b}, 0x{f2u(1.0/448):08x}, v{b}")
        A(f"v_cvt_pk_bf16_f32 v{c_}, v{a}, v{b}")
        A(f"v_lshlrev_b32 v{a}, 16, v{c_}")
        A(f"v_and_b32 v{b}, 0xffff0000, v{c_}")
        A(f"v_add_f32 v{b}, 0x{f2u(1e-5):08x}, v{b}")
        A(f"v_cvt_pk_bf16_f32 v{b}, v{b}, v{b}")
        A(f"v_and_b32 v{b}, 0xffff0000, v{b}")
        A(f"v_sqrt_f32 v{b}, v{b}")
        A("s_nop 0")
        A(f"v_cvt_pk_bf16_f32 v{b}, v{b}, v{b}")
        A(f"v_and_b32 v{b}, 0xffff0000, v{b}")
        A(f"v_rcp_f32 v{b}, v{b}")

    def side3():
        for i in range(8):
            A(f"v_sub_f32 v{XU+i}, v{XU+i}, v{a}")
        for i in range(4):
            A(f"v_cvt_pk_bf16_f32 v{vT+i}, v{XU+2*i}, v{XU+2*i+1}")
        for i in range(4):
            A(f"v_lshlrev_b32 v{XU+2*i}, 16, v{vT+i}")
            A(f"v_and_b32 v{XU+2*i+1}, 0xffff0000, v{vT+i}")
        for i in range(8):
            A(f"v_mul_f32 v{XU+i}, v{XU+i}, v{b}")
        for i in range(4):
            A(f"v_cvt_pk_bf16_f32 v{vT+i}, v{XU+2*i}, v{XU+2*i+1}")
        A(f"s_lshl_b32 {sT[0]}, {sW}, 10")
        A(f"s_add_u32 {sT[0]}, {sT[0]}, {QW}")
        A(f"v_lshlrev_b32 v{a}, 4, {vL}")
        A(f"v_add_u32 v{a}, {sT[0]}, v{a}")
        A(f"ds_write_b128 v{a}, v[{vT}:{vT+3}]")
        A(f"v_lshrrev_b32 v{b}, 4, {vL}")
        A(f"v_lshlrev_b32 v{c_}, 4, v{b}")
        A(f"v_add_u32 v{c_}, {sT[0]}, v{c_}")

    def side4():
        A("s_waitcnt lgkmcnt(0)")
        for i in range(14):
            A(f"ds_read_b128 v[{XF+4*i}:{XF+4*i+3}], v{c_} offset:{i*64}")
        A(f"v_lshlrev_b32 v{b}, 10, v{b}")
        A(f"v_bfe_u32 v{d_}, {vL}, 2, 2")
        A(f"v_lshl_add_u32 v{b}, v{d_}, 7, v{b}")
        A(f"v_and_b32 v{d_}, 3, {vL}")
        A(f"v_lshl_add_u32 v{b}, v{d_}, 3, v{b}")
        A(f"s_lshl_b32 {sT[1]}, {sW}, 5")
        A(f"s_add_u32 {sT[1]}, {sT[1]}, {STG}")
        A(f"v_add_u32 v{b}, {sT[1]}, v{b}")
        A(f"s_mul_i32 {sT[2]}, {sTAG}, 1664525")
        A(f"s_add_u32 {sT[2]}, {sT[2]}, 1013904223")

    def side5():
        stamp(2)
        wait_vm(st["stg"])
        A("s_waitcnt lgkmcnt(0)")
        A("s_barrier")
        stamp(2)
        for i in range(14):
            A(f"ds_read_b64_tr_b16 v[{WF+4*i}:{WF+4*i+1}], v{b} offset:{i*4096}")
            A(f"ds_read_b64_tr_b16 v[{WF+4*i+2}:{WF+4*i+3}], v{b} offset:{i*4096+512}")

    def side6():
        A(f"v_and_b32 v{d_}, 15, {vL}")
        A(f"v_cmp_eq_u32 s[70:71], 0, v{d_}")
        A(f"v_lshrrev_b32 v{a}, 4, {vL}")
        A(f"v_lshlrev_b32 v{a}, 4, v{a}")
        A(f"v_mov_b32 v{vT+1}, {sT[2]}")
        A(f"v_mov_b32 v{vT+3}, {sT[2]}")
        A(f"s_lshl_b32 {sT[0]}, {sZ}, 2")
        A(f"s_add_u32 {sT[0]}, {sT[0]}, {sW}")
        A(f"s_lshl_b32 {sT[0]}, {sT[0]}, 6")
        A(f"s_add_u32 {sT[0]}, {sT[0]}, {WS_QG}")
        A(f"s_cmp_lt_u32 {sZ}, 64")
        A(f"s_cselect_b32 {sT[1]}, 0xff800000, 0")

    def side7():
        A("s_waitcnt lgkmcnt(0)")
        for i in range(14):
            A(f"v_mfma_f32_16x16x32_bf16 v[{vS}:{vS+3}], v[{WF+4*i}:{WF+4*i+3}], v[{XF+4*i}:{XF+4*i+3}], " +
              ("0" if i == 0 else f"v[{vS}:{vS+3}]"))

    def side8():
        A("s_nop 7")
        for i in range(4):
            A(f"v_max_f32 v{vS+i}, {sT[1]}, v{vS+i}")
        A(f"v_cvt_pk_bf16_f32 v{vT}, v{vS}, v{vS+1}")
        A(f"v_cvt_pk_bf16_f32 v{vT+2}, v{vS+2}, v{vS+3}")
        A("s_mov_b64 exec, s[70:71]")
        A(f"buffer_store_dwordx4 v[{vT}:{vT+3}], v{a}, {SRD_WS}, {sT[0]} offen sc1")
        A("s_mov_b64 exec, -1")

    side_chunks = [side0, side1, side2, side3, side4, side5, side6, side7, side8]

    def tile_stamp_a():
        if stamps:
            A("s_memrealtime s[100:101]")

    def lds_wait(tile=False):
        A("s_waitcnt lgkmcnt(0)")
        if stamps and tile:
            A("v_mov_b32 v253, s100")
            A(f"v_cmp_eq_u32 vcc, s26, {vL}")
            A("s_add_u32 s26, s26, 1")
            A("s_nop 0")
            A("v_cndmask_b32 v252, v252, v253, vcc")

    def read_k(dst, slot_imm, acc=False):
        tile_stamp_a()
        p = "a" if acc else "v"
        for j in range(8):
            A(f"ds_read_b128 {p}[{dst+4*j}:{dst+4*j+3}], v{vKA[j%4]} offset:{slot_imm + (j//4)*256}")

    def qk_mfma(src, acc):
        p = "a" if acc else "v"
        for j in range(8):
            A(f"v_mfma_f32_16x16x32_bf16 v[{vS}:{vS+3}], {p}[{src+4*j}:{src+4*j+3}], v[{vQ+4*j}:{vQ+4*j+3}], " +
              ("0" if j == 0 else f"v[{vS}:{vS+3}]"))

    def qk_post(sc):
        A("s_nop 7")
        A(f"v_cvt_pk_bf16_f32 v{sc+1}, v{vS}, v{vS+1}")
        A(f"v_cvt_pk_bf16_f32 v{sc+3}, v{vS+2}, v{vS+3}")
        A(f"v_lshlrev_b32 v{sc}, 16, v{sc+1}")
        A(f"v_and_b32 v{sc+1}, 0xffff0000, v{sc+1}")
        A(f"v_lshlrev_b32 v{sc+2}, 16, v{sc+3}")
        A(f"v_and_b32 v{sc+3}, 0xffff0000, v{sc+3}")
        A(f"v_max3_f32 v{vMAX}, v{sc}, v{sc+1}, v{vMAX}")
        A(f"v_max3_f32 v{vMAX}, v{sc+2}, v{sc+3}, v{vMAX}")

    def q_poll(emit):
        emit(f"buffer_load_dwordx4 v[{vT}:{vT+3}], v{vT+8}, {SRD_WS}, {sT[8]} offen sc1")
        emit(f"buffer_load_dwordx4 v[{vT+4}:{vT+7}], v{vT+8}, {SRD_WS}, {sT[8]} offen offset:1024 sc1")
        emit(f"buffer_load_dwordx4 v[{vH}:{vH+3}], off, {SRD_WS}, {sT[7]} sc1")
        return emit(f"buffer_load_dwordx4 v[{vH+4}:{vH+7}], off, {SRD_WS}, {sT[7]} offset:16 sc1")

    def tagcheck(regs, acc0, acc1):
        A(f"v_xor_b32 v{acc0}, {sTAG}, v{regs[0]}")
        A(f"v_xor_b32 v{acc1}, {sTAG}, v{regs[1]}")
        for i, r in enumerate(regs[2:]):
            acc = acc0 if i % 2 == 0 else acc1
            A(f"v_bitop3_b32 v{acc}, v{acc}, v{r}, {sTAG} bitop3:0xf6")
        A(f"v_or_b32 v{acc0}, v{acc0}, v{acc1}")
        A(f"v_cmp_ne_u32 vcc, 0, v{acc0}")

    def c_qpoll():
        A(f"s_lshl_b32 {sT[8]}, {sH}, 11")
        A(f"s_add_u32 {sT[8]}, {sT[8]}, {WS_QG}")
        A(f"s_lshl_b32 {sT[7]}, {sF}, 5")
        A(f"s_add_u32 {sT[7]}, {sT[7]}, {WS_HG}")
        A(f"v_lshlrev_b32 v{vT+8}, 4, {vL}")
        st["q"] = q_poll(VM)

    def c_qcheck():
        wait_vm(st["q"])
        A(f"s_mov_b32 {sT[0]}, {spin}")
        A("L_qchk:")
        tagcheck([vT + 1, vT + 3, vT + 5, vT + 7, vH + 1, vH + 3, vH + 5, vH + 7], vT + 9, vT + 10)
        A("s_cbranch_vccz L_qok")
        A(f"s_sub_u32 {sT[0]}, {sT[0]}, 1")
        A("s_cbranch_scc1 L_qok")
        q_poll(A)
        A("s_waitcnt vmcnt(0)")
        A("s_branch L_qchk")
        A("L_qok:")
        stamp()
        A(f"s_lshl_b32 {sT[0]}, {sW}, 10")
        A(f"s_add_u32 {sT[0]}, {sT[0]}, {QW}")
        A(f"v_lshlrev_b32 v{vT+9}, 3, {vL}")
        A(f"v_add_u32 v{vT+9}, {sT[0]}, v{vT+9}")
        A(f"ds_write2_b32 v{vT+9}, v{vT}, v{vT+2} offset0:0 offset1:1")
        A(f"ds_write2_b32 v{vT+9}, v{vT+4}, v{vT+6} offset0:128 offset1:129")
        A(f"v_and_b32 v{vT+10}, 1, {vL}")
        A(f"v_lshlrev_b32 v{vT+10}, 9, v{vT+10}")
        A(f"v_lshrrev_b32 v{vT+11}, 4, {vL}")
        A(f"v_lshl_add_u32 v{vT+10}, v{vT+11}, 4, v{vT+10}")
        A(f"v_add_u32 v{vT+10}, {sT[0]}, v{vT+10}")

    def c_qread():
        A("s_waitcnt lgkmcnt(0)")
        for j in range(8):
            A(f"ds_read_b128 v[{vQ+4*j}:{vQ+4*j+3}], v{vT+10} offset:{j*64}")

    def c_kmax():
        allreduce("v_max_f32", [vMAX], vT, [16, 32])
        A(f"v_mul_f32 v{vMS}, {sC}, v{vMAX}")
        A(f"v_mov_b32 v{vLS}, 0")
        A(f"v_mov_b32 v{vLS+1}, 0")
        stamp()

    def read_v(slot_imm, half):
        tile_stamp_a()
        for t in range(16):
            r = vVT + 4 * t + 2 * half
            A(f"ds_read_b64_tr_b16 v[{r}:{r+1}], v{vVA[t%8]} offset:{slot_imm + (t//8)*256}")

    def exps(sc):
        for r in range(4):
            A(f"v_fma_f32 v{vE+r}, v{sc+r}, {sC}, -v{vMS}")
        for r in range(4):
            A(f"v_exp_f32 v{vE+r}, v{vE+r}")
        A("s_nop 0")

    def make_p(n):
        exps(vSC + 4 * n)
        A(f"v_cvt_pk_bf16_f32 v{vPF+2*(n&1)}, v{vE}, v{vE+1}")
        A(f"v_cvt_pk_bf16_f32 v{vPF+2*(n&1)+1}, v{vE+2}, v{vE+3}")
        st["pdone"] = n

    def lsum(sc):
        exps(sc)
        A(f"v_add_f32 v{vLS}, v{vLS}, v{vE}")
        A(f"v_add_f32 v{vLS+1}, v{vLS+1}, v{vE+1}")
        A(f"v_add_f32 v{vLS}, v{vLS}, v{vE+2}")
        A(f"v_add_f32 v{vLS+1}, v{vLS+1}, v{vE+3}")

    def pv(first, lo, hi):
        for t in range(lo, hi):
            A(f"v_mfma_f32_16x16x32_bf16 v[{vACC+4*t}:{vACC+4*t+3}], v[{vPF}:{vPF+3}], v[{vVT+4*t}:{vVT+4*t+3}], " +
              ("0" if first else f"v[{vACC+4*t}:{vACC+4*t+3}]"))

    def c_lwrite():
        A(f"v_add_f32 v{vT+2}, v{vLS}, v{vLS+1}")
        allreduce("v_add_f32", [vT + 2], vT + 4, [16, 32])
        A(f"v_mov_b32 v{vT}, v{vMS}")
        A(f"v_mov_b32 v{vT+1}, {sTAG}")
        A(f"v_mov_b32 v{vT+3}, {sTAG}")
        A(f"s_lshl_b32 {sT[0]}, {sW}, 5")
        A(f"s_add_u32 {sT[0]}, {sT[0]}, {LML}")
        A(f"v_lshlrev_b32 v{vT+4}, 4, {vL}")
        A(f"v_add_u32 v{vT+4}, {sT[0]}, v{vT+4}")
        A("s_mov_b64 exec, 3")
        A(f"ds_write_b128 v{vT+4}, v[{vT}:{vT+3}]")
        A("s_mov_b64 exec, -1")

    def c_mlpub():
        A(f"s_cmp_eq_u32 {sW}, 0")
        A("s_cbranch_scc0 L_nopub")
        A(f"v_and_b32 v{vT+4}, 7, {vL}")
        A(f"v_lshlrev_b32 v{vT+4}, 4, v{vT+4}")
        A(f"v_add_u32 v{vT+4}, {LML}, v{vT+4}")
        A(f"s_mov_b32 {sT[0]}, {spin*4}")
        A("L_lml:")
        A(f"ds_read_b128 v[{vT}:{vT+3}], v{vT+4}")
        A("s_waitcnt lgkmcnt(0)")
        tagcheck([vT + 1, vT + 3], vT + 5, vT + 6)
        A("s_cbranch_vccz L_lmlok")
        A(f"s_sub_u32 {sT[0]}, {sT[0]}, 1")
        A("s_cbranch_scc0 L_lml")
        A("L_lmlok:")
        A(f"v_mov_b32 v{vT+5}, v{vT}")
        allreduce("v_max_f32", [vT + 5], vT + 6, [2, 4])
        A(f"v_sub_f32 v{vT}, v{vT}, v{vT+5}")
        A(f"v_exp_f32 v{vT}, v{vT}")
        A("s_nop 0")
        A(f"v_mul_f32 v{vT+2}, v{vT+2}, v{vT}")
        allreduce("v_add_f32", [vT + 2], vT + 6, [2, 4])
        A(f"v_mov_b32 v{vT}, v{vT+5}")
        A(f"v_xor_b32 v{vT+3}, {sXCC}, v{vT+3}")
        A(f"s_lshl_b32 {sT[0]}, {sH}, 10")
        A(f"s_lshl_b32 {sT[1]}, {sP}, 5")
        A(f"s_add_u32 {sT[0]}, {sT[0]}, {sT[1]}")
        A(f"s_add_u32 {sT[0]}, {sT[0]}, {WS_ML}")
        A(f"v_lshlrev_b32 v{vT+4}, 4, {vL}")
        A("s_mov_b64 exec, 3")
        A(f"buffer_store_dwordx4 v[{vT}:{vT+3}], v{vT+4}, {SRD_WS}, {sT[0]} offen sc1")
        A("s_mov_b64 exec, -1")
        A("L_nopub:")

    def c_mlpoll():
        A(f"s_lshl_b32 {sT[8]}, {sH}, 10")
        A(f"s_add_u32 {sT[8]}, {sT[8]}, {WS_ML}")
        A(f"v_lshlrev_b32 v{vT+8}, 4, {vL}")
        st["ml"] = VM(f"buffer_load_dwordx4 v[{vT+12}:{vT+15}], v{vT+8}, {SRD_WS}, {sT[8]} offen sc1")

    def c_mlcheck():
        G = vT + 12
        wait_vm(st["ml"])
        A(f"s_mov_b32 {sT[0]}, {spin}")
        A("L_mlchk:")
        A(f"v_xor_b32 v{vT+9}, {sTAG}, v{G+1}")
        A(f"v_xor_b32 v{vT+10}, {sTAG}, v{G+3}")
        A(f"v_and_or_b32 v{vT+9}, v{vT+10}, -16, v{vT+9}")
        A(f"v_cmp_ne_u32 vcc, 0, v{vT+9}")
        A("s_cbranch_vccz L_mlok")
        A(f"s_sub_u32 {sT[0]}, {sT[0]}, 1")
        A("s_cbranch_scc1 L_mlok")
        A(f"buffer_load_dwordx4 v[{G}:{G+3}], v{vT+8}, {SRD_WS}, {sT[8]} offen sc1")
        A("s_waitcnt vmcnt(0)")
        A("s_branch L_mlchk")
        A("L_mlok:")
        A(f"v_cmp_ne_u32 vcc, {sXCC}, v{vT+10}")
        A("s_cmp_eq_u64 vcc, 0")
        A(f"s_cselect_b32 {sLOC}, {1 if local else 0}, 0")
        A(f"v_mov_b32 v{vT+9}, v{G}")
        allreduce("v_max_f32", [vT + 9], vT + 10, [2, 4, 8, 16, 32])

    def c_mlscale():
        G = vT + 12
        A(f"v_sub_f32 v{G}, v{G}, v{vT+9}")
        A(f"v_exp_f32 v{G}, v{G}")
        A("s_nop 0")
        A(f"v_mul_f32 v{G+2}, v{G+2}, v{G}")
        allreduce("v_add_f32", [G + 2], vT + 10, [2, 4, 8, 16, 32])
        A(f"v_log_f32 v{G+2}, v{G+2}")
        A("s_nop 0")
        A(f"v_add_f32 v{vT+9}, v{vT+9}, v{G+2}")
        A(f"v_sub_f32 v{vT+10}, v{vMS}, v{vT+9}")
        A(f"v_exp_f32 v{vT+10}, v{vT+10}")

    def c_rescale():
        A(f"v_mov_b32 v{vMS}, v{vT+9}")
        A("s_nop 0")
        A(f"v_mov_b32_dpp v{vT+2}, v{vT+10} quad_perm:[0,0,0,0] row_mask:0xf bank_mask:0xf")
        A(f"v_mov_b32_dpp v{vT+3}, v{vT+10} quad_perm:[1,1,1,1] row_mask:0xf bank_mask:0xf")
        A("s_nop 4")
        for t in range(16):
            A(f"v_pk_mul_f32 v[{vACC+4*t}:{vACC+4*t+1}], v[{vACC+4*t}:{vACC+4*t+1}], v[{vT+2}:{vT+3}]")

    vWO, vW2 = vSC + 4, vSC + 36

    def issue_weights():
        assert st["pdone"] >= 12 and st.get("tail1")
        for i in range(16):
            if i % 4 == 0 and i:
                A(f"s_add_u32 {sT[0]}, {sT[0]}, {4*896}")
            VM(f"buffer_load_dwordx2 v[{vWO+2*i}:{vWO+2*i+1}], v{vT+16}, {SRD_WO}, {sT[0]} offen offset:{(i%4)*896} {wflags}")
        for i in range(8):
            if i % 4 == 0 and i:
                A(f"s_add_u32 {sT[1]}, {sT[1]}, {4*896}")
            st["w"] = VM(f"buffer_load_dwordx2 v[{vW2+2*i}:{vW2+2*i+1}], v{vT+16}, {SRD_W2}, {sT[1]} offen offset:{(i%4)*896} {wflags}")

    MO = ((2 * S) % R) * tb
    vMW, vMR, vO1, vH1, vH2, vXR, vOO = 6, 8, vT + 4, vT + 5, vT + 6, vT + 7, vT + 11
    sH2 = [f"s{4+k}" for k in range(16)]
    sP1, sP2, sCONS = "s68", "s69", "s70"

    def c_tail1():
        st["tail1"] = True
        A(f"v_and_b32 v{vT}, 15, {vL}")
        A(f"v_lshlrev_b32 v{vT}, 2, v{vT}")
        A(f"v_bfe_u32 v{vT+1}, {vL}, 4, 1")
        A(f"v_lshl_add_u32 v{vT}, v{vT+1}, 6, v{vT}")
        A(f"v_cmp_lt_u32 vcc, 15, {vL}")
        A(f"v_add_u32 v{vT+1}, 2048, v{vT}")
        A(f"s_add_u32 {sT[2]}, {sRING}, {MO}")
        A(f"v_cndmask_b32 v{vT}, v{vT}, v{vT+1}, vcc")
        A(f"v_add_u32 v{vMW}, {sT[2]}, v{vT}")
        A(f"v_add_u32 v{vMW+1}, 1024, v{vMW}")
        A(f"s_lshl_b32 {sT[2]}, {sW}, 9")
        A(f"s_add_u32 {sT[2]}, {sT[2]}, {MO}")
        A(f"v_lshlrev_b32 v{vMR}, 3, {vL}")
        A(f"v_add_u32 v{vMR}, {sT[2]}, v{vMR}")
        A(f"v_add_u32 v{vMR+1}, {2*R*tb}, v{vMR}")
        A(f"s_lshl_b32 {sP1}, {sH}, 5")
        A(f"s_add_u32 {sP1}, {sP1}, {sP}")
        A(f"s_mul_i32 {sT[0]}, {sP1}, {16*896}")
        A(f"s_mul_i32 {sT[1]}, {sF}, {8*896}")
        A(f"s_lshl_b32 {sP1}, {sP1}, 12")
        A(f"s_lshl_b32 {sT[2]}, {sW}, 11")
        A(f"s_add_u32 {sP1}, {sP1}, {sT[2]}")
        A(f"s_add_u32 {sP1}, {sP1}, {WS_P1O}")
        A(f"v_lshlrev_b32 v{vO1}, 4, {vL}")
        A(f"v_subrev_u32 v{vT}, 128, v0")
        A(f"v_cmp_gt_u32 vcc, 112, v{vT}")
        A(f"v_lshlrev_b32 v{vT+1}, 3, v{vT}")
        A(f"v_lshlrev_b32 v{vOO}, 4, v{vT}")
        A(f"v_bfrev_b32 v{vT+2}, 2")
        A(f"v_cndmask_b32 v{vT+16}, v{vT+2}, v{vT+1}, vcc")
        A(f"v_cndmask_b32 v{vOO}, v{vT+2}, v{vOO}, vcc")

    def c_tail2():
        A(f"v_lshrrev_b32 v{vT}, 3, {vL}")
        A(f"v_and_b32 v{vT+1}, 7, {vL}")
        A(f"v_lshlrev_b32 v{vT+1}, 4, v{vT+1}")
        A(f"v_lshl_add_u32 v{vH1}, v{vT}, 12, v{vT+1}")
        A(f"s_lshl_b32 {sT[2]}, {sH}, 17")
        A(f"s_lshl_b32 {sT[3]}, {sP}, 7")
        A(f"s_add_u32 {sT[2]}, {sT[2]}, {sT[3]}")
        A(f"s_add_u32 {sT[2]}, {sT[2]}, {WS_P1O}")
        for k in range(1, 4):
            A(f"s_add_u32 {sT[2+k]}, {sT[2]}, {k*32768}")
        A(f"s_lshl_b32 {sP2}, {sH}, 5")
        A(f"s_add_u32 {sP2}, {sP2}, {sP}")
        A(f"s_mul_i32 {sP2}, {sP2}, 3584")
        A(f"s_add_u32 {sP2}, {sP2}, {WS_P2}")
        A(f"s_lshr_b32 {sT[6]}, s2, 4")
        A(f"s_lshl_b32 {sT[6]}, {sT[6]}, 3")
        A(f"s_and_b32 {sT[7]}, s2, 7")
        A(f"s_add_u32 {sT[6]}, {sT[6]}, {sT[7]}")
        A(f"s_cmp_lt_u32 {sT[6]}, 28")
        A(f"s_cselect_b32 {sCONS}, 1, 0")
        A(f"s_bfe_u32 {sT[7]}, s2, 0x10003")
        A(f"s_lshl_b32 {sH2[0]}, {sT[6]}, 1")
        A(f"s_add_u32 {sH2[0]}, {sH2[0]}, {sT[7]}")
        A(f"s_lshl_b32 {sH2[0]}, {sH2[0]}, 6")
        A(f"s_add_u32 {sH2[0]}, {sH2[0]}, {WS_P2}")
        for k in range(1, 16):
            A(f"s_add_u32 {sH2[k]}, {sH2[0]}, {k*16*3584}")
        A(f"v_lshrrev_b32 v{vT}, 2, {vL}")
        A(f"v_mul_u32_u24 v{vT}, 3584, v{vT}")
        A(f"v_and_b32 v{vT+1}, 3, {vL}")
        A(f"v_lshl_add_u32 v{vH2}, v{vT+1}, 4, v{vT}")
        A(f"s_cmp_ge_u32 {sT[6]}, 14")
        A(f"s_cselect_b32 {sT[8]}, {4 - 14*64}, 0")
        A(f"s_lshl_b32 {sT[6]}, {sT[6]}, 6")
        A(f"s_add_u32 {sT[6]}, {sT[6]}, {sT[8]}")
        A(f"s_lshl_b32 {sT[7]}, {sT[7]}, 5")
        A(f"s_add_u32 {sT[6]}, {sT[6]}, {sT[7]}")
        A(f"v_lshlrev_b32 v{vT+1}, 3, v{vT+1}")
        A(f"v_add_u32 v{vT+17}, {sT[6]}, v{vT+1}")
        VM(f"buffer_load_dword v{vXR}, v{vT+17}, {SRD_X}, 0 offen")
        if pre1 is not None or pre2 is not None:
            A(f"s_lshl_b32 {sT[8]}, {sW}, 10")
            A(f"v_lshlrev_b32 v{vT}, 4, v0")
        if pre1 is not None:
            A(f"s_lshl_b32 {sT[7]}, {sW}, 11")
            A(f"s_sub_u32 {sT[7]}, {sP1}, {sT[7]}")
            if pre1.startswith("ld"):
                VM(f"buffer_load_dwordx4 v[{vT+12}:{vT+15}], v{vT}, {SRD_WS}, {sT[7]} offen {pre1[2:]}")
            else:
                for k in range(4):
                    A(f"v_mov_b32 v{vT+12+k}, 0")
                A(f"v_not_b32 v{vT+13}, {sTAG}")
                A(f"v_not_b32 v{vT+15}, {sTAG}")
                VM(f"buffer_store_dwordx4 v[{vT+12}:{vT+15}], v{vT}, {SRD_WS}, {sT[7]} offen {pre1[2:]}")
        if pre2 is not None:
            VM(f"buffer_load_dwordx4 v[{vT+12}:{vT+15}], v{vT}, {SRD_WS}, {sP2} offen {pre2[2:]}")

    PW, PW2, Y = vSC, vSC + 32, vSC + 48

    def c_wprep():
        assert st["pdone"] >= 13
        if lateprep:
            A("s_waitcnt vmcnt(4)")
        else:
            wait_vm(st["w"])
            A(f"s_cmp_lt_u32 {sW}, 2")
            A("s_cbranch_scc1 L_noprep")
        A(f"s_mov_b32 {sT[6]}, 0x05040100")
        A(f"s_mov_b32 {sT[7]}, 0x07060302")
        for k in range(12):
            for cp in range(2):
                A(f"v_perm_b32 v{PW+4*k+2*cp}, v{vWO+4*k+2+cp}, v{vWO+4*k+cp}, {sT[6]}")
                A(f"v_perm_b32 v{PW+4*k+2*cp+1}, v{vWO+4*k+2+cp}, v{vWO+4*k+cp}, {sT[7]}")
        for c in range(4):
            A(f"v_mov_b32 v{Y+2*c}, 0")
            A(f"v_mov_b32 v{Y+2*c+1}, {sTAG}")
        A("s_cmp_lt_u32 s2, 224")
        A("s_cbranch_scc0 L_noprep")
        for k in range(4):
            for c in range(4):
                A(f"v_dot2_f32_bf16 v{Y+2*c}, v{vH+2*k}, v{PW2+4*k+c}, v{Y+2*c}")
        A("L_noprep:")

    def c_last():
        for t in range(16):
            if t in (0, 4, 8):
                A(f"s_waitcnt lgkmcnt({ {0: 12, 4: 8, 8: 0}[t] })")
            if t >= 8:
                u = t - 8
                A(f"ds_write2_b32 v{vMW}, v{vACC+4*u}, v{vACC+4*u+1} offset0:{u*16} offset1:{u*16+128}")
            pv(False, t, t + 1)
        if stamps:
            lds_wait(True)
        stamp()
        A("s_nop 0")
        for u in range(8, 16):
            A(f"ds_write2_b32 v{vMW+1}, v{vACC+4*u}, v{vACC+4*u+1} offset0:{(u%8)*16} offset1:{(u%8)*16+128}")

    chunks = []
    C = lambda fn, need=None, free=None: chunks.append((need, free, fn))
    backlog = list(range(NB))
    for n in range(S):
        slot = (n % R) * tb
        if n < NB:
            C(lambda n=n, slot=slot: read_k(32 * n, slot, True), need=n)
            C(lambda: lds_wait(True), free=n)
            if n == NP:
                C(c_qpoll)
            if n == NB - 1:
                C(c_qcheck)
                C(c_qread)
        else:
            C(lambda slot=slot: read_k(vTL, slot), need=n)
            C(lambda: (lds_wait(True), qk_mfma(vTL, False)), free=n)
            C(lambda n=n: qk_post(vSC + 4 * n))
            for _ in range(2):
                if backlog:
                    m = backlog.pop(0)
                    C(lambda m=m: qk_mfma(32 * m, True))
                    C(lambda m=m: qk_post(vSC + 4 * m))
    assert not backlog
    C(c_kmax)
    lq = list(range(S))
    assert vgat % 2 == 1 and vpub % 2 == 1
    for n in range(S):
        j = S + n
        slot = (j % R) * tb
        if n == vgat + 3:
            C(c_rescale)
        if n == S - 2:
            C(lambda: make_p(S - 2))
            C(lambda: make_p(S - 1))
            if not lateprep:
                C(c_wprep)
        elif n < S - 2:
            C(lambda n=n: make_p(n))
        C(lambda slot=slot, n=n: read_v(slot, n & 1), need=j)
        if n % 2 == 0:
            C(lambda: lds_wait(True), free=j)
        elif n == S - 1:
            C(c_last)
        else:
            C(lambda n=n: (lds_wait(True), pv(n == 1, 0, 8)), free=j)
            C(lambda n=n: pv(n == 1, 8, 16))
        for _ in range(3 if n % 2 == 0 else 2):
            if lq:
                m0, m1 = lq.pop(0), lq.pop(0)
                C(lambda m0=m0, m1=m1: (lsum(vSC + 4 * m0), lsum(vSC + 4 * m1)))
                if not lq:
                    C(c_lwrite)
        if n == vpub:
            assert not lq
            C(c_mlpub)
        if n == vgat:
            C(c_mlpoll)
        if n == vgat + 1:
            C(c_mlcheck)
            C(c_mlscale)
        if n == vgat + 3:
            C(c_tail1)
            C(c_tail2)

    freed = set()

    def emit_chunk(q, block):
        need, free, fn = q[0]
        if need is not None:
            last = need * T + T - 1
            if last not in lidx:
                assert not block
                return False
            if lidx[last] > vm["known"]:
                if not block:
                    return False
                wait_vm(lidx[last])
        q.pop(0)
        fn()
        if free is not None:
            freed.add(free)
        return True

    def tagfix():
        A("s_waitcnt lgkmcnt(0)")
        A(f"s_mul_i32 {sTAG}, {sTAG}, 1664525")
        A(f"s_add_u32 {sTAG}, {sTAG}, 1013904223")

    def stream(L0, L1, win, q, paced):
        for L in range(L0, L1):
            j, i = divmod(L, T)
            Nw = win(L)
            if len(paced) >= Nw:
                wait_vm(paced[-Nw])
            if i == 0 and j >= R:
                while (j - R) not in freed:
                    emit_chunk(q, True)
            issue_load(L)
            paced.append(lidx[L])
            if L == NL - 1 - tpos and touch is not None:
                A(f"s_lshl_b32 {sT[8]}, {sW}, 15")
                A(f"s_add_u32 {sT[8]}, {sT[8]}, {sT[2]}")
                if touch == "sc1":
                    VM(f"buffer_load_dword v{vT+12}, v{vH1}, {SRD_WS}, {sT[8]} offen sc1")
                else:
                    A(f"s_cmp_eq_u32 {sLOC}, 1")
                    A("s_cbranch_scc0 L_tfar")
                    A(f"buffer_load_dword v{vT+12}, v{vH1}, {SRD_WS}, {sT[8]} offen")
                    A("s_branch L_tdone")
                    A("L_tfar:")
                    VM(f"buffer_load_dword v{vT+12}, v{vH1}, {SRD_WS}, {sT[8]} offen sc1")
                    A("L_tdone:")
            if L == NL - 1 - wpos and not now and not wearly:
                issue_weights()
            if q and (L < NL - tail or Nend <= N + 2):
                emit_chunk(q, False)

    def win_main(L):
        Nw = Nend if L >= NL - tail else N
        if kopen and NL // 2 - kopen[0] <= L < NL // 2:
            Nw = kopen[1]
        if alt and Nw == N and (L // alt[1]) % alt[2] == 0:
            Nw = alt[0]
        return Nw

    split = next(k for k, ch in enumerate(chunks) if ch[0] == X - 1)
    head_chunks, rest = chunks[:split], chunks[split:]
    assert X - 1 <= NP
    ends = []
    A(f"s_cmp_lt_u32 {sZ}, 92")
    A("s_cbranch_scc1 L_producer")
    for path in ("n", "p"):
        vm.update(n=0, known=0)
        lidx.clear()
        freed.clear()
        paced = []
        stg = {"i": 0}

        def issue_stg():
            i = stg["i"]
            if rot:
                if i == 0:
                    A(f"s_mul_i32 {sT[3]}, {sZ}, 4682")
                    A(f"s_lshr_b32 {sT[3]}, {sT[3]}, 16")
                    A(f"s_mul_i32 {sT[3]}, {sT[3]}, 14")
                    A(f"s_sub_u32 {sT[3]}, {sZ}, {sT[3]}")
                else:
                    A(f"s_add_u32 {sT[3]}, {sT[3]}, 1")
                    A(f"s_cmp_eq_u32 {sT[3]}, 14")
                    A(f"s_cselect_b32 {sT[3]}, 0, {sT[3]}")
                A(f"s_lshl_b32 {sT[9]}, {sT[3]}, 10")
                A(f"s_add_u32 m0, {sT[6]}, {sT[9]}")
                A(f"s_mul_i32 {sT[9]}, {sT[3]}, {sT[4]}")
                A(f"s_add_u32 {sT[9]}, {sT[9]}, {sT[5]}")
                st["stg"] = VM(f"buffer_load_dwordx4 v21, {SRD_W}, {sT[9]} offen {wflags} lds")
            else:
                A(f"s_add_u32 m0, {sT[6]}, {i*1024}")
                if i:
                    A(f"s_add_u32 {sT[5]}, {sT[5]}, {sT[4]}")
                else:
                    A("s_nop 0")
                st["stg"] = VM(f"buffer_load_dwordx4 v21, {SRD_W}, {sT[5]} offen {wflags} lds")
            paced.append(st["stg"])
            stg["i"] += 1
            m0bad["v"] = True
        if path == "n":
            for L in range(N0):
                issue_load(L)
                paced.append(lidx[L])
            A(f"s_load_dword {sTAG}, s[24:25], 0")
            setup()
            if wearly:
                issue_weights()
            q = list(head_chunks) + [(None, None, tagfix)]
            stream(N0, X * T, win_main, q, paced)
        else:
            A("L_producer:")
            st["x"] = VM(f"buffer_load_dwordx4 v[{vT}:{vT+3}], v31, {SRD_X}, 0 offen")
            if not il:
                while stg["i"] < 14:
                    issue_stg()
            for L in range(B0):
                issue_load(L)
                paced.append(lidx[L])
                if il and L % il == il - 1:
                    issue_stg()
            A(f"s_load_dword {sTAG}, s[24:25], 0")
            setup()
            if wearly == 1:
                issue_weights()
            if not il:
                for fn in side_chunks[:4]:
                    fn()
                q = [(None, None, fn) for fn in side_chunks[4:]] + list(head_chunks) + [(None, None, tagfix)]
                stream(B0, X * T, lambda L: Np if L < Xp else N, q, paced)
            else:
                Ls = 14 * il
                q = [(None, None, fn) for fn in side_chunks[:5]] + list(head_chunks)
                for L in range(B0, Ls):
                    stream(L, L + 1, lambda L: Np, q, paced)
                    if L % il == il - 1:
                        if len(paced) >= Np:
                            wait_vm(paced[-Np])
                        issue_stg()
                w2 = Np2 or N
                L = Ls
                while st["stg"] > vm["known"]:
                    stream(L, L + 1, lambda L: w2, q, paced)
                    L += 1
                assert all(ch[2] not in side_chunks for ch in q)
                if q and q[0][1] is not None:
                    emit_chunk(q, True)
                q = [(None, None, fn) for fn in side_chunks[5:]] + ([(None, None, issue_weights)] if wearly == 2 else []) + q + [(None, None, tagfix)]
                stream(L, X * T, lambda L: w2 if L < Xp else N, q, paced)
        while q:
            emit_chunk(q, True)
        known_L = max([L for L in lidx if lidx[L] <= vm["known"]] + [-1])
        ends.append(({L: vm["n"] - lidx[L] for L in range(X * T - 16, X * T)}, known_L, set(freed)))
        if path == "n":
            A("s_branch L_join")
    A("L_join:")
    stamp(1)
    assert ends[0][0] == ends[1][0] and ends[0][2] == ends[1][2], ends
    vm["known"] = lidx[min(ends[0][1], ends[1][1])]
    stream(X * T, NL, win_main, rest, [lidx[L] for L in range(X * T - 16, X * T)])
    while rest:
        emit_chunk(rest, True)

    O4, G = 32, 48
    for k in (1, 3, 5, 7):
        A(f"v_mov_b32 v{G+k}, {sTAG}")
    A(f"s_cmp_ge_u32 {sW}, 2")
    A("s_waitcnt lgkmcnt(0)")
    A("s_barrier")
    A("s_cbranch_scc1 L_bwave")
    for hf in range(2):
        for w in range(4):
            r = O4 + 8 * hf + 2 * w
            A(f"ds_read_b64 v[{r}:{r+1}], v{vMR+w//2} offset:{(w%2)*R*tb + hf*1024}")
    A(f"s_cmp_eq_u32 {sLOC}, 1")
    for hf in range(2):
        r = O4 + 8 * hf
        A(f"s_waitcnt lgkmcnt({4 - 4*hf})")
        A(f"v_pk_add_f32 v[{r}:{r+1}], v[{r}:{r+1}], v[{r+2}:{r+3}]")
        A(f"v_pk_add_f32 v[{r+4}:{r+5}], v[{r+4}:{r+5}], v[{r+6}:{r+7}]")
        A(f"v_add_f32 v{G+4*hf}, v{r}, v{r+4}")
        A(f"v_add_f32 v{G+4*hf+2}, v{r+1}, v{r+5}")
    A("s_cbranch_scc0 L_far1")
    for hf in range(2):
        A(f"buffer_store_dwordx4 v[{G+4*hf}:{G+4*hf+3}], v{vO1}, {SRD_WS}, {sP1} offen offset:{hf*1024}")
    A("s_branch L_sent1")
    A("L_far1:")
    for hf in range(2):
        A(f"buffer_store_dwordx4 v[{G+4*hf}:{G+4*hf+3}], v{vO1}, {SRD_WS}, {sP1} offen offset:{hf*1024} sc1")
    A("L_sent1:")
    stamp()
    A(f"s_cmp_eq_u32 {sCONS}, 1")
    A("s_cbranch_scc0 L_done")

    YG, YS = 96, 160
    sPEND = sT[0]
    A(f"s_mov_b32 {sPEND}, 0xff")
    A(f"s_mov_b32 {sT[9]}, {spin}")
    A(f"s_cmp_eq_u32 {sW}, 0")
    if gate2:
        A("s_barrier")
    A("s_cbranch_scc0 L_done")
    if stamps:
        A("s_memrealtime s[96:97]")
    A("L_h2:")
    for hh in range(8):
        A(f"s_bitcmp1_b32 {sPEND}, {hh}")
        A(f"s_cbranch_scc0 L_h2i{hh}")
        for k in (2 * hh, 2 * hh + 1):
            A(f"buffer_load_dwordx4 v[{YG+4*k}:{YG+4*k+3}], v{vH2}, {SRD_WS}, {sH2[k]} offen sc1")
        A(f"L_h2i{hh}:")
    A("s_waitcnt vmcnt(0)")
    for hh in range(8):
        r = YG + 8 * hh
        A(f"s_bitcmp1_b32 {sPEND}, {hh}")
        A(f"s_cbranch_scc0 L_h2c{hh}")
        tagcheck([r + 1, r + 3, r + 5, r + 7], vT, vT + 1)
        A(f"v_add_f32 v{YS+2*hh}, v{r}, v{r+4}")
        A(f"v_add_f32 v{YS+2*hh+1}, v{r+2}, v{r+6}")
        A(f"s_cbranch_vccnz L_h2c{hh}")
        A(f"s_bitset0_b32 {sPEND}, {hh}")
        A(f"L_h2c{hh}:")
    A(f"s_cmp_eq_u32 {sPEND}, 0")
    A("s_cbranch_scc1 L_h2ok")
    if sleep2:
        A(f"s_sleep {sleep2}")
    if flat2:
        A(f"s_mov_b32 {sPEND}, 0xff")
    A(f"s_sub_u32 {sT[9]}, {sT[9]}, 1")
    A("s_cbranch_scc0 L_h2")
    A("L_h2ok:")
    if stamps:
        A("s_memrealtime s[98:99]")
    for st_ in (1, 2, 4):
        for hh in range(0, 8, 2 * st_):
            A(f"v_pk_add_f32 v[{YS+2*hh}:{YS+2*hh+1}], v[{YS+2*hh}:{YS+2*hh+1}], v[{YS+2*(hh+st_)}:{YS+2*(hh+st_)+1}]")
    A(f"v_lshlrev_b32 v{vT+2}, 16, v{vXR}")
    A(f"v_and_b32 v{vT+3}, 0xffff0000, v{vXR}")
    allreduce("v_add_f32", [YS, YS + 1], vT, [4, 8, 16, 32])
    A(f"v_pk_add_f32 v[{YS}:{YS+1}], v[{YS}:{YS+1}], v[{vT+2}:{vT+3}]")
    A("s_mov_b64 exec, 15")
    A(f"v_cvt_pk_bf16_f32 v{YS}, v{YS}, v{YS+1}")
    A(f"buffer_store_dword v{YS}, v{vT+17}, {SRD_OUT}, 0 offen")
    A("s_cmp_eq_u32 s2, 0")
    A("s_cbranch_scc0 L_done")
    A("s_mov_b64 exec, 1")
    A(f"buffer_store_dword v{G+1}, off, {SRD_WS}, 0 sc1")
    A("s_branch L_done")

    A("L_bwave:")
    OG = 144

    def hop1_loads(fl="sc1"):
        for k in range(4):
            A(f"buffer_load_dwordx4 v[{OG+4*k}:{OG+4*k+3}], v{vH1}, {SRD_WS}, {sT[2+k]} offen {fl}")
    if plain1:
        A(f"s_cmp_eq_u32 {sLOC}, 1")
        A("s_cbranch_scc0 L_h1far")
        hop1_loads("")
        A("s_branch L_h1first")
        A("L_h1far:")
    hop1_loads()
    A("L_h1first:")
    if lateprep:
        c_wprep()
    A(f"s_mov_b32 {sT[9]}, {spin}")
    A("L_h1chk:")
    A("s_waitcnt vmcnt(0)")
    tagcheck([OG + 1 + 2 * i for i in range(8)], vT, vT + 1)
    A("s_cbranch_vccz L_h1ok")
    A(f"s_sub_u32 {sT[9]}, {sT[9]}, 1")
    A("s_cbranch_scc1 L_h1ok")
    if sleep1:
        A(f"s_sleep {sleep1}")
    hop1_loads()
    A("s_branch L_h1chk")
    A("L_h1ok:")
    stamp()
    oa, ob = vT, vT + 1
    A(f"v_add_f32 v{oa}, v{OG}, v{OG+4}")
    A(f"v_add_f32 v{ob}, v{OG+2}, v{OG+6}")
    A(f"v_add_f32 v{OG+8}, v{OG+8}, v{OG+12}")
    A(f"v_add_f32 v{OG+10}, v{OG+10}, v{OG+14}")
    A(f"v_add_f32 v{oa}, v{oa}, v{OG+8}")
    A(f"v_add_f32 v{ob}, v{ob}, v{OG+10}")
    allreduce("v_add_f32", [oa, ob], vT + 2, [8, 16, 32])
    A(f"v_cvt_pk_bf16_f32 v{oa}, v{oa}, v{ob}")
    A("s_nop 0")
    for k in range(8):
        A(f"v_readlane_b32 {sT[k]}, v{oa}, {k}")
    for cp in range(2):
        for k in range(8):
            for c in (2 * cp, 2 * cp + 1):
                A(f"v_dot2_f32_bf16 v{Y+2*c}, {sT[k]}, v{PW+4*k+c}, v{Y+2*c}")
        if cp == 1:
            A(f"buffer_store_dwordx4 v[{Y}:{Y+3}], v{vOO}, {SRD_WS}, {sP2} offen sc1")
            A("s_nop 1")
            A(f"buffer_store_dwordx4 v[{Y+4}:{Y+7}], v{vOO}, {SRD_WS}, {sP2} offen offset:1792 sc1")
    stamp()
    if gate2:
        A(f"s_cmp_eq_u32 {sCONS}, 1")
        A("s_cbranch_scc0 L_done")
        A("s_barrier")
    A("L_done:")
    if stamps:
        A("s_mov_b64 exec, -1")
        A("s_memrealtime s[100:101]")
        A("s_waitcnt lgkmcnt(0)")
        A(f"s_lshl_b32 {sT[0]}, s2, 2")
        A(f"s_add_u32 {sT[0]}, {sT[0]}, {sW}")
        A(f"s_lshl_b32 {sT[1]}, {sT[0]}, 8")
        A(f"s_lshl_b32 {sT[0]}, {sT[0]}, 6")
        A(f"s_add_u32 {sT[0]}, {sT[0]}, {WS_STAMP}")
        A(f"s_add_u32 {sT[1]}, {sT[1]}, {WS_STAMP + 0x10000}")
        A(f"v_lshlrev_b32 v2, 2, {vL}")
        A(f"buffer_store_dword v252, v2, {SRD_WS}, {sT[1]} offen")
        A("v_mov_b32 v2, 0")
        A("s_mov_b64 exec, 1")
        A("v_mov_b32 v3, s26")
        A(f"buffer_store_dword v3, v2, {SRD_WS}, {sT[0]} offen offset:44")
        for k in range(9):
            A(f"v_mov_b32 v3, s{84+2*k}")
            A(f"buffer_store_dword v3, v2, {SRD_WS}, {sT[0]} offen offset:{4*k}")
        A("s_getreg_b32 s84, hwreg(HW_REG_XCC_ID)")
        A("v_mov_b32 v3, s84")
        A(f"buffer_store_dword v3, v2, {SRD_WS}, {sT[0]} offen offset:36")
        A(f"v_mov_b32 v3, {sT[9]}")
        A(f"buffer_store_dword v3, v2, {SRD_WS}, {sT[0]} offen offset:40")
    A("L_end:")
    A("s_endpgm")
    body = "\n".join(("" if l.endswith(":") else "    ") + l for l in o)
    return HEADER.format(lds=LDS, k=kern) + body + FOOTER.format(k=kern)


if __name__ == "__main__":
    out = sys.argv[1]
    kw = json.loads(sys.argv[2]) if len(sys.argv) > 2 else {}
    open(out, "w").write(gen(**kw))
```

```python
import sys, json, math, struct
from gen import HEADER, FOOTER, KERN, f2u, LOG2E_16

WS_QG = 0x1000
WS_HG = WS_QG + 0x4000
WS_ML = 0x8000
WS_P1O = 0x10000
WS_P2 = 0x120000
WS_STAMP = 0x300000
WS_SIZE = 0x400000


def gen(R=3, N=5, N0=5, Nend=16, tail=11, NB=8, NP=6, bits="i0 i1 w0 w1 i2 g3 g4 t2 t3 x0 x1 x2 t0 t1",
        kflags="nt", vflags="nt", wflags="nt", stamps=0, spin=200000, vpub=5, vgat=9, wpos=0, flat2=False, gate2=False, kopen=(24, 8), lateprep=True, pre1=None, pre2=None, plain1=False, touch="sc1", tpos=0, codepf=True, tlbpf=True, outpf=True, sleep1=0, sleep2=0,
        alt=None, X=7, Np=12, B0=6, Xp=None, il=0, Np2=9, zmap="wg", rot=True, hmap="mod8", local=True,
        kern=KERN):
    now = noend = noml = False
    wearly = 0
    T = 8
    tb = T * 1024
    S = 16
    pos = {n: 10 + k for k, n in enumerate(bits.split())}
    assert pos["i0"] == 10 and pos["i1"] == 11
    RING = 4 * R * tb
    STG = RING
    QW = STG + 57344
    LML = QW + 4096
    FIN = LML + 128
    LDS = FIN + 256
    assert LDS <= 163840 and LDS > 81920
    if Xp is None:
        Xp = X * T

    o = []
    A = o.append
    vm = {"n": 0, "known": 0}

    def VM(s):
        A(s)
        vm["n"] += 1
        return vm["n"]

    def wait_vm(idx, force=False):
        if idx <= vm["known"] and not force:
            return
        n = vm["n"] - idx
        assert 0 <= n <= 63, n
        A(f"s_waitcnt vmcnt({n})")
        vm["known"] = max(vm["known"], idx)

    nstamp = {"n": 0}

    def stamp(mode=1):
        if stamps and (int(stamps) & mode):
            k = nstamp["n"]
            assert k < 8
            A(f"s_memrealtime s[{84+2*k}:{85+2*k}]")
            nstamp["n"] += 1

    SRD_K, SRD_V, SRD_W, SRD_WO, SRD_W2, SRD_WS, SRD_X, SRD_OUT = ("s[28:31]", "s[32:35]", "s[36:39]", "s[40:43]",
                                                                     "s[44:47]", "s[48:51]", "s[52:55]", "s[56:59]")
    sW, sH, sP, sTAG, sRING, sBASE, sC, sF = "s3", "s60", "s61", "s62", "s63", "s64", "s65", "s66"
    sOFF = "s67"
    sZ = "s27"
    sT = ["s72", "s73", "s74", "s75", "s76", "s77", "s78", "s79", "s80", "s81"]
    vL = "v1"
    vSRC = [2, 3, 4, 5]
    vKA = [6, 7, 8, 9]
    vVA = list(range(10, 18))
    vMAX, vMS = 18, 19
    vPF, vLS, vS, vE = 20, 24, 24, 28
    vVT = 32
    sLOC, sXCC = "s82", "s83"
    vQ, vTL, vACC, vSC, vT = 32, 64, 96, 160, 224
    vH = 244

    def srd(base, lo, size):
        A(f"s_mov_b32 s{base}, s{lo}")
        A(f"s_mov_b32 s{base+1}, s{lo+1}")
        A(f"s_mov_b32 s{base+2}, {size}")
        A(f"s_mov_b32 s{base+3}, 0x20000")

    A("s_cmp_ge_u32 s2, 256")
    A("s_cbranch_scc1 L_end")
    stamp(3)
    A("s_load_dwordx16 s[4:19], s[0:1], 0")
    A("s_load_dwordx4 s[20:23], s[0:1], 64")
    A("s_load_dwordx2 s[24:25], s[0:1], 80")
    A("v_lshrrev_b32 v30, 6, v0")
    A(f"v_and_b32 {vL}, 63, v0")
    A("v_readfirstlane_b32 s3, v30")
    if hmap == "blk":
        A(f"s_lshr_b32 {sH}, s2, 3")
        A(f"s_and_b32 {sH}, {sH}, 7")
        A(f"s_and_b32 {sT[0]}, s2, 7")
    else:
        A(f"s_and_b32 {sH}, s2, 7")
        A(f"s_lshr_b32 {sT[0]}, s2, 3")
        A(f"s_and_b32 {sT[0]}, {sT[0]}, 7")
    A(f"s_lshr_b32 {sT[1]}, s2, 6")
    A(f"s_lshl_b32 {sP}, {sT[1]}, 3")
    A(f"s_or_b32 {sP}, {sP}, {sT[0]}")
    A(f"s_lshl_b32 {sBASE}, {sH}, 24")
    if zmap == "head":
        A(f"s_lshl_b32 {sZ}, {sH}, 5")
        A(f"s_or_b32 {sZ}, {sZ}, {sP}")
    elif zmap == "x":
        A(f"s_lshl_b32 {sZ}, {sT[0]}, 5")
        A(f"s_lshl_b32 {sT[2]}, {sT[1]}, 3")
        A(f"s_or_b32 {sZ}, {sZ}, {sT[2]}")
        A(f"s_or_b32 {sZ}, {sZ}, {sH}")
    else:
        A(f"s_mov_b32 {sZ}, s2")

    def put(src, names):
        k = 0
        while k < len(names):
            e = k
            while e + 1 < len(names) and pos[names[e + 1]] == pos[names[e]] + 1:
                e += 1
            if k == 0 and e == len(names) - 1:
                A(f"s_lshl_b32 {sT[2]}, {src}, {pos[names[0]]}")
            else:
                A(f"s_bfe_u32 {sT[2]}, {src}, {((e - k + 1) << 16) | k}")
                A(f"s_lshl_b32 {sT[2]}, {sT[2]}, {pos[names[k]]}")
            A(f"s_or_b32 {sBASE}, {sBASE}, {sT[2]}")
            k = e + 1
    put(sW, ["w0", "w1"])
    put(sT[0], ["x0", "x1", "x2"])
    put(sT[1], ["g3", "g4"])
    A(f"s_mul_i32 {sRING}, {sW}, {R*tb}")
    A(f"s_mov_b32 {sC}, 0x{f2u(LOG2E_16):08x}")
    A(f"s_min_u32 {sF}, s2, 223")
    A(f"s_mov_b32 s30, {128 << 20}")
    A("s_mov_b32 s31, 0x20000")
    A("s_mov_b32 s54, 896")
    A("s_mov_b32 s55, 0x20000")
    A("s_mov_b32 s39, 0x20000")
    A(f"v_lshrrev_b32 v30, 5, {vL}")
    A(f"v_lshlrev_b32 v31, 1, v30")
    A(f"v_and_b32 v29, 31, {vL}")
    A("v_xor_b32 v29, v29, v31")
    A("v_lshlrev_b32 v29, 4, v29")
    A(f"v_lshl_add_u32 v{vSRC[0]}, v30, 9, v29")
    for i in range(1, 4):
        A(f"v_xor_b32 v{vSRC[i]}, {i*64}, v{vSRC[0]}")
    A(f"s_cmp_lt_u32 {sZ}, 64")
    A(f"s_mov_b32 s38, {448*1792*2}")
    A(f"s_cmov_b32 s38, {448*4096*2}")
    A(f"s_mov_b32 {sT[4]}, 3584")
    A(f"s_cmov_b32 {sT[4]}, 8192")
    A(f"s_and_b32 {sT[5]}, {sZ}, 63")
    A(f"s_lshl_b32 {sT[5]}, {sT[5]}, 7")
    A(f"s_mul_i32 {sT[6]}, {sW}, 112")
    A(f"s_mul_i32 {sT[6]}, {sT[6]}, {sT[4]}")
    A(f"s_add_u32 {sT[5]}, {sT[5]}, {sT[6]}")
    A(f"v_lshrrev_b32 v30, 3, {vL}")
    A(f"v_mul_lo_u32 v30, v30, {sT[4]}")
    A(f"v_and_b32 v31, 7, {vL}")
    A("v_lshl_add_u32 v21, v31, 4, v30")
    A(f"v_lshlrev_b32 v31, 4, {vL}")
    A(f"s_lshl_b32 {sT[4]}, {sT[4]}, 3")
    A(f"s_mul_i32 {sT[6]}, {sW}, 14336")
    A(f"s_add_u32 {sT[6]}, {sT[6]}, {STG}")
    A("s_waitcnt lgkmcnt(0)")
    stamp(2)
    A("s_mov_b32 s28, s6")
    A("s_mov_b32 s29, s7")
    A("s_mov_b32 s52, s4")
    A("s_mov_b32 s53, s5")
    A(f"s_cmp_lt_u32 {sZ}, 64")
    A("s_cselect_b32 s36, s10, s16")
    A("s_cselect_b32 s37, s11, s17")
    seq = [("K", n) for n in range(S)] + [("V", n) for n in range(S)]
    NL = len(seq) * T
    lidx = {}

    m0bad = {"v": False}

    def issue_load(L):
        j, i = divmod(L, T)
        kind, n = seq[j]
        if i % 4 and m0bad["v"]:
            A(f"s_add_u32 m0, {sRING}, {(j % R)*tb + (i // 4)*4096}")
            A("s_nop 0")
        m0bad["v"] = False
        if i % 4 == 0:
            g = sum(((n >> k) & 1) << pos[f"t{k}"] for k in range(4)) + ((i >> 2) << pos["i2"])
            A(f"s_add_u32 m0, {sRING}, {(j % R)*tb + i*1024}")
            A(f"s_add_u32 {sOFF}, {sBASE}, {g}")
        srd_, fl = (SRD_K, kflags) if kind == "K" else (SRD_V, vflags)
        lidx[L] = VM(f"buffer_load_dwordx4 v{vSRC[i%4]}, {srd_}, {sOFF} offen offset:{(i%4)*1024} {fl} lds")

    npf = {"n": 0}

    LFLAG = 0x600DF1A6

    def setup():
        A(f"s_lshl_b32 {sT[2]}, {sW}, 5")
        A(f"s_add_u32 {sT[2]}, {sT[2]}, {LML}")
        A(f"v_lshlrev_b32 v29, 2, {vL}")
        A(f"v_add_u32 v29, {sT[2]}, v29")
        A("v_mov_b32 v30, 0")
        A("s_mov_b64 exec, 0xff")
        A("ds_write_b32 v29, v30")
        A("s_mov_b64 exec, -1")
        A("s_waitcnt lgkmcnt(0)")
        A("s_barrier")
        A(f"s_load_dword {sTAG}, s[24:25], 0")
        if tlbpf:
            A(f"s_lshr_b32 {sT[2]}, s2, 3")
            A(f"s_lshl_b32 {sT[2]}, {sT[2]}, 2")
            A(f"s_add_u32 {sT[2]}, {sT[2]}, {sW}")
            A(f"s_bitcmp1_b32 {sT[2]}, 3")
            A("s_cselect_b32 s70, s8, s6")
            A("s_cselect_b32 s71, s9, s7")
            A(f"s_and_b32 {sT[7]}, {sT[2]}, 7")
            A(f"s_lshl_b32 {sT[7]}, {sT[7]}, 21")
            A(f"s_lshl_b32 {sT[8]}, {sH}, 24")
            A(f"s_add_u32 {sT[7]}, {sT[7]}, {sT[8]}")
            A(f"s_lshl_b32 {sT[8]}, {sT[2]}, 7")
            A(f"s_add_u32 {sT[7]}, {sT[7]}, {sT[8]}")
            A(f"s_add_u32 s70, s70, {sT[7]}")
            A("s_addc_u32 s71, s71, 0")
            A(f"s_load_dword {sLOC}, s[70:71], 0x0")
            A(f"s_bitcmp1_b32 {sW}, 0")
            A("s_cselect_b32 s70, s12, s18")
            A("s_cselect_b32 s71, s13, s19")
            A(f"s_mov_b32 {sT[7]}, 6272")
            A(f"s_cmov_b32 {sT[7]}, 14336")
            A(f"s_mul_i32 {sT[7]}, {sT[7]}, s2")
            A(f"s_add_u32 s70, s70, {sT[7]}")
            A("s_addc_u32 s71, s71, 0")
            A(f"s_load_dword s21, s[70:71], 0x0" if False else f"s_load_dword {sXCC}, s[70:71], 0x0")
        if codepf:
            k = npf["n"]
            npf["n"] += 1
            A(f"s_getpc_b64 s[68:69]")
            A(f"L_pf{k}:")
            A(f"s_lshr_b32 {sT[2]}, s2, 3")
            A(f"s_lshl_b32 {sT[2]}, {sT[2]}, 2")
            A(f"s_add_u32 {sT[2]}, {sT[2]}, {sW}")
            A(f"s_lshl_b32 {sT[2]}, {sT[2]}, 8")
            A(f"s_min_u32 {sT[2]}, {sT[2]}, L_end-L_join-128")
            A(f"s_add_u32 {sT[2]}, {sT[2]}, L_join-L_pf{k}")
            A(f"s_add_u32 s68, s68, {sT[2]}")
            A("s_addc_u32 s69, s69, 0")
            A("s_load_dword s22, s[68:69], 0x0")
            A("s_load_dword s23, s[68:69], 0x80")
        srd(32, 8, 128 << 20)
        srd(40, 12, 4096 * 448 * 2)
        srd(44, 18, 1792 * 448 * 2)
        srd(48, 24, WS_SIZE)
        srd(56, 20, 896)
        if stamps:
            A("s_mov_b32 s26, 0")
            A("v_mov_b32 v252, 0")
            for k in (5, 6, 7):
                A(f"s_mov_b32 s{84+2*k}, s84")
        A(f"v_and_b32 v29, 15, {vL}")
        A(f"v_lshrrev_b32 v30, 4, {vL}")
        A("v_and_b32 v31, 7, v29")
        A("v_lshlrev_b32 v31, 1, v31")
        A("v_xor_b32 v31, v31, v30")
        A("v_lshlrev_b32 v31, 4, v31")
        A("v_lshl_add_u32 v31, v29, 9, v31")
        for j in range(4):
            A(f"v_xor_b32 v{vKA[j]}, {j*64}, v31")
            A(f"v_add_u32 v{vKA[j]}, {sRING}, v{vKA[j]}")
        A(f"v_lshrrev_b32 v29, 2, {vL}")
        A("v_and_b32 v30, 7, v29")
        A("v_lshlrev_b32 v30, 5, v30")
        A(f"v_and_b32 v31, 3, {vL}")
        A("v_lshlrev_b32 v31, 3, v31")
        A("v_or_b32 v31, v31, v30")
        A("v_lshl_add_u32 v31, v29, 9, v31")
        for t in range(8):
            A(f"v_xor_b32 v{vVA[t]}, {t*32}, v31")
            A(f"v_add_u32 v{vVA[t]}, {sRING}, v{vVA[t]}")
        A(f"v_mov_b32 v{vMAX}, 0xff800000")

    def allreduce(op, regs, tmp, steps):
        for st in steps:
            if st <= 8:
                if len(regs) < 3:
                    A(f"s_nop {2-len(regs)}")
                for r in regs:
                    A(f"{op}_dpp v{r}, v{r}, v{r} row_ror:{st} row_mask:0xf bank_mask:0xf")
            else:
                for k, r in enumerate(regs):
                    A(f"v_mov_b32 v{tmp+k}, v{r}")
                if len(regs) < 3:
                    A(f"s_nop {2-len(regs)}")
                for k, r in enumerate(regs):
                    A(f"v_permlane{st}_swap_b32 v{r}, v{tmp+k}")
                if len(regs) < 2:
                    A("s_nop 0")
                for k, r in enumerate(regs):
                    A(f"{op} v{r}, v{r}, v{tmp+k}")

    XU = vT + 4
    a, b, c_, d_ = vT + 12, vT + 13, vT + 14, vT + 15
    XF, WF = 96, 152
    st = {}

    def side0():
        wait_vm(st["x"])
        stamp(2)
        for i in range(4):
            A(f"v_lshlrev_b32 v{XU+2*i}, 16, v{vT+i}")
            A(f"v_and_b32 v{XU+2*i+1}, 0xffff0000, v{vT+i}")
        A(f"v_add_f32 v{a}, v{XU}, v{XU+1}")
        for i in range(2, 8):
            A(f"v_add_f32 v{a}, v{a}, v{XU+i}")
        allreduce("v_add_f32", [a], b, [1, 2, 4, 8, 16, 32])

    def side1():
        A(f"v_mul_f32 v{a}, 0x{f2u(1.0/448):08x}, v{a}")
        A(f"v_mov_b32 v{b}, 0")
        for i in range(8):
            A(f"v_sub_f32 v{c_}, v{XU+i}, v{a}")
            A(f"v_fmac_f32 v{b}, v{c_}, v{c_}")
        A(f"v_cmp_gt_u32 vcc, 56, {vL}")
        A("s_nop 1")
        A(f"v_cndmask_b32 v{b}, 0, v{b}, vcc")
        allreduce("v_add_f32", [b], c_, [1, 2, 4, 8, 16, 32])

    def side2():
        A(f"v_mul_f32 v{b}, 0x{f2u(1.0/448):08x}, v{b}")
        A(f"v_cvt_pk_bf16_f32 v{c_}, v{a}, v{b}")
        A(f"v_lshlrev_b32 v{a}, 16, v{c_}")
        A(f"v_and_b32 v{b}, 0xffff0000, v{c_}")
        A(f"v_add_f32 v{b}, 0x{f2u(1e-5):08x}, v{b}")
        A(f"v_cvt_pk_bf16_f32 v{b}, v{b}, v{b}")
        A(f"v_and_b32 v{b}, 0xffff0000, v{b}")
        A(f"v_sqrt_f32 v{b}, v{b}")
        A("s_nop 0")
        A(f"v_cvt_pk_bf16_f32 v{b}, v{b}, v{b}")
        A(f"v_and_b32 v{b}, 0xffff0000, v{b}")
        A(f"v_rcp_f32 v{b}, v{b}")

    def side3():
        for i in range(8):
            A(f"v_sub_f32 v{XU+i}, v{XU+i}, v{a}")
        for i in range(4):
            A(f"v_cvt_pk_bf16_f32 v{vT+i}, v{XU+2*i}, v{XU+2*i+1}")
        for i in range(4):
            A(f"v_lshlrev_b32 v{XU+2*i}, 16, v{vT+i}")
            A(f"v_and_b32 v{XU+2*i+1}, 0xffff0000, v{vT+i}")
        for i in range(8):
            A(f"v_mul_f32 v{XU+i}, v{XU+i}, v{b}")
        for i in range(4):
            A(f"v_cvt_pk_bf16_f32 v{vT+i}, v{XU+2*i}, v{XU+2*i+1}")
        A(f"s_lshl_b32 {sT[0]}, {sW}, 10")
        A(f"s_add_u32 {sT[0]}, {sT[0]}, {QW}")
        A(f"v_lshlrev_b32 v{a}, 4, {vL}")
        A(f"v_add_u32 v{a}, {sT[0]}, v{a}")
        A(f"ds_write_b128 v{a}, v[{vT}:{vT+3}]")
        A(f"v_lshrrev_b32 v{b}, 4, {vL}")
        A(f"v_lshlrev_b32 v{c_}, 4, v{b}")
        A(f"v_add_u32 v{c_}, {sT[0]}, v{c_}")

    def side4():
        A("s_waitcnt lgkmcnt(0)")
        for i in range(14):
            A(f"ds_read_b128 v[{XF+4*i}:{XF+4*i+3}], v{c_} offset:{i*64}")
        A(f"v_lshlrev_b32 v{b}, 10, v{b}")
        A(f"v_bfe_u32 v{d_}, {vL}, 2, 2")
        A(f"v_lshl_add_u32 v{b}, v{d_}, 7, v{b}")
        A(f"v_and_b32 v{d_}, 3, {vL}")
        A(f"v_lshl_add_u32 v{b}, v{d_}, 3, v{b}")
        A(f"s_lshl_b32 {sT[1]}, {sW}, 5")
        A(f"s_add_u32 {sT[1]}, {sT[1]}, {STG}")
        A(f"v_add_u32 v{b}, {sT[1]}, v{b}")
        A(f"s_mul_i32 {sT[2]}, {sTAG}, 1664525")
        A(f"s_add_u32 {sT[2]}, {sT[2]}, 1013904223")

    def side5():
        stamp(2)
        wait_vm(st["stg"])
        A("s_waitcnt lgkmcnt(0)")
        A("s_barrier")
        stamp(2)
        for i in range(14):
            A(f"ds_read_b64_tr_b16 v[{WF+4*i}:{WF+4*i+1}], v{b} offset:{i*4096}")
            A(f"ds_read_b64_tr_b16 v[{WF+4*i+2}:{WF+4*i+3}], v{b} offset:{i*4096+512}")

    def side6():
        A(f"v_and_b32 v{d_}, 15, {vL}")
        A(f"v_cmp_eq_u32 s[70:71], 0, v{d_}")
        A(f"v_lshrrev_b32 v{a}, 4, {vL}")
        A(f"v_lshlrev_b32 v{a}, 4, v{a}")
        A(f"v_mov_b32 v{vT+1}, {sT[2]}")
        A(f"v_mov_b32 v{vT+3}, {sT[2]}")
        A(f"s_lshl_b32 {sT[0]}, {sZ}, 2")
        A(f"s_add_u32 {sT[0]}, {sT[0]}, {sW}")
        A(f"s_lshl_b32 {sT[0]}, {sT[0]}, 6")
        A(f"s_add_u32 {sT[0]}, {sT[0]}, {WS_QG}")
        A(f"s_cmp_lt_u32 {sZ}, 64")
        A(f"s_cselect_b32 {sT[1]}, 0xff800000, 0")

    def side7():
        A("s_waitcnt lgkmcnt(0)")
        for i in range(14):
            A(f"v_mfma_f32_16x16x32_bf16 v[{vS}:{vS+3}], v[{WF+4*i}:{WF+4*i+3}], v[{XF+4*i}:{XF+4*i+3}], " +
              ("0" if i == 0 else f"v[{vS}:{vS+3}]"))

    def side8():
        A("s_nop 7")
        for i in range(4):
            A(f"v_max_f32 v{vS+i}, {sT[1]}, v{vS+i}")
        A(f"v_cvt_pk_bf16_f32 v{vT}, v{vS}, v{vS+1}")
        A(f"v_cvt_pk_bf16_f32 v{vT+2}, v{vS+2}, v{vS+3}")
        A("s_mov_b64 exec, s[70:71]")
        A(f"buffer_store_dwordx4 v[{vT}:{vT+3}], v{a}, {SRD_WS}, {sT[0]} offen sc1")
        A("s_mov_b64 exec, -1")

    side_chunks = [side0, side1, side2, side3, side4, side5, side6, side7, side8]

    def tile_stamp_a():
        if stamps:
            A("s_memrealtime s[100:101]")

    def lds_wait(tile=False):
        A("s_waitcnt lgkmcnt(0)")
        if stamps and tile:
            A("v_mov_b32 v253, s100")
            A(f"v_cmp_eq_u32 vcc, s26, {vL}")
            A("s_add_u32 s26, s26, 1")
            A("s_nop 0")
            A("v_cndmask_b32 v252, v252, v253, vcc")

    def read_k(dst, slot_imm, acc=False):
        tile_stamp_a()
        p = "a" if acc else "v"
        for j in range(8):
            A(f"ds_read_b128 {p}[{dst+4*j}:{dst+4*j+3}], v{vKA[j%4]} offset:{slot_imm + (j//4)*256}")

    def qk_mfma(src, acc):
        p = "a" if acc else "v"
        for j in range(8):
            A(f"v_mfma_f32_16x16x32_bf16 v[{vS}:{vS+3}], {p}[{src+4*j}:{src+4*j+3}], v[{vQ+4*j}:{vQ+4*j+3}], " +
              ("0" if j == 0 else f"v[{vS}:{vS+3}]"))

    def qk_post(sc):
        A("s_nop 7")
        A(f"v_cvt_pk_bf16_f32 v{sc+1}, v{vS}, v{vS+1}")
        A(f"v_cvt_pk_bf16_f32 v{sc+3}, v{vS+2}, v{vS+3}")
        A(f"v_lshlrev_b32 v{sc}, 16, v{sc+1}")
        A(f"v_and_b32 v{sc+1}, 0xffff0000, v{sc+1}")
        A(f"v_lshlrev_b32 v{sc+2}, 16, v{sc+3}")
        A(f"v_and_b32 v{sc+3}, 0xffff0000, v{sc+3}")
        A(f"v_max3_f32 v{vMAX}, v{sc}, v{sc+1}, v{vMAX}")
        A(f"v_max3_f32 v{vMAX}, v{sc+2}, v{sc+3}, v{vMAX}")

    def q_poll(emit):
        emit(f"buffer_load_dwordx4 v[{vT}:{vT+3}], v{vT+8}, {SRD_WS}, {sT[8]} offen sc1")
        emit(f"buffer_load_dwordx4 v[{vT+4}:{vT+7}], v{vT+8}, {SRD_WS}, {sT[8]} offen offset:1024 sc1")
        emit(f"buffer_load_dwordx4 v[{vH}:{vH+3}], off, {SRD_WS}, {sT[7]} sc1")
        return emit(f"buffer_load_dwordx4 v[{vH+4}:{vH+7}], off, {SRD_WS}, {sT[7]} offset:16 sc1")

    def tagcheck(regs, acc0, acc1):
        A(f"v_xor_b32 v{acc0}, {sTAG}, v{regs[0]}")
        A(f"v_xor_b32 v{acc1}, {sTAG}, v{regs[1]}")
        for i, r in enumerate(regs[2:]):
            acc = acc0 if i % 2 == 0 else acc1
            A(f"v_bitop3_b32 v{acc}, v{acc}, v{r}, {sTAG} bitop3:0xf6")
        A(f"v_or_b32 v{acc0}, v{acc0}, v{acc1}")
        A(f"v_cmp_ne_u32 vcc, 0, v{acc0}")

    def c_qpoll():
        A(f"s_lshl_b32 {sT[8]}, {sH}, 11")
        A(f"s_add_u32 {sT[8]}, {sT[8]}, {WS_QG}")
        A(f"s_lshl_b32 {sT[7]}, {sF}, 5")
        A(f"s_add_u32 {sT[7]}, {sT[7]}, {WS_HG}")
        A(f"v_lshlrev_b32 v{vT+8}, 4, {vL}")
        st["q"] = q_poll(VM)

    def c_qcheck():
        wait_vm(st["q"])
        A(f"s_mov_b32 {sT[0]}, {spin}")
        A("L_qchk:")
        tagcheck([vT + 1, vT + 3, vT + 5, vT + 7, vH + 1, vH + 3, vH + 5, vH + 7], vT + 9, vT + 10)
        A("s_cbranch_vccz L_qok")
        A(f"s_sub_u32 {sT[0]}, {sT[0]}, 1")
        A("s_cbranch_scc1 L_qok")
        q_poll(A)
        A("s_waitcnt vmcnt(0)")
        A("s_branch L_qchk")
        A("L_qok:")
        stamp()
        A(f"s_lshl_b32 {sT[0]}, {sW}, 10")
        A(f"s_add_u32 {sT[0]}, {sT[0]}, {QW}")
        A(f"v_lshlrev_b32 v{vT+9}, 3, {vL}")
        A(f"v_add_u32 v{vT+9}, {sT[0]}, v{vT+9}")
        A(f"ds_write2_b32 v{vT+9}, v{vT}, v{vT+2} offset0:0 offset1:1")
        A(f"ds_write2_b32 v{vT+9}, v{vT+4}, v{vT+6} offset0:128 offset1:129")
        A(f"v_and_b32 v{vT+10}, 1, {vL}")
        A(f"v_lshlrev_b32 v{vT+10}, 9, v{vT+10}")
        A(f"v_lshrrev_b32 v{vT+11}, 4, {vL}")
        A(f"v_lshl_add_u32 v{vT+10}, v{vT+11}, 4, v{vT+10}")
        A(f"v_add_u32 v{vT+10}, {sT[0]}, v{vT+10}")

    def c_qread():
        A("s_waitcnt lgkmcnt(0)")
        for j in range(8):
            A(f"ds_read_b128 v[{vQ+4*j}:{vQ+4*j+3}], v{vT+10} offset:{j*64}")

    def c_kmax():
        A(f"s_getreg_b32 {sXCC}, hwreg(HW_REG_XCC_ID, 0, 4)")
        allreduce("v_max_f32", [vMAX], vT, [16, 32])
        A(f"v_mul_f32 v{vMS}, {sC}, v{vMAX}")
        A(f"v_mov_b32 v{vLS}, 0")
        A(f"v_mov_b32 v{vLS+1}, 0")
        stamp()

    def read_v(slot_imm, half):
        tile_stamp_a()
        for t in range(16):
            r = vVT + 4 * t + 2 * half
            A(f"ds_read_b64_tr_b16 v[{r}:{r+1}], v{vVA[t%8]} offset:{slot_imm + (t//8)*256}")

    def exps(sc):
        for r in range(4):
            A(f"v_fma_f32 v{vE+r}, v{sc+r}, {sC}, -v{vMS}")
        for r in range(4):
            A(f"v_exp_f32 v{vE+r}, v{vE+r}")
        A("s_nop 0")

    def make_p(n):
        exps(vSC + 4 * n)
        A(f"v_cvt_pk_bf16_f32 v{vPF+2*(n&1)}, v{vE}, v{vE+1}")
        A(f"v_cvt_pk_bf16_f32 v{vPF+2*(n&1)+1}, v{vE+2}, v{vE+3}")
        st["pdone"] = n

    def lsum(sc):
        exps(sc)
        A(f"v_add_f32 v{vLS}, v{vLS}, v{vE}")
        A(f"v_add_f32 v{vLS+1}, v{vLS+1}, v{vE+1}")
        A(f"v_add_f32 v{vLS}, v{vLS}, v{vE+2}")
        A(f"v_add_f32 v{vLS+1}, v{vLS+1}, v{vE+3}")

    def pv(first, lo, hi):
        for t in range(lo, hi):
            A(f"v_mfma_f32_16x16x32_bf16 v[{vACC+4*t}:{vACC+4*t+3}], v[{vPF}:{vPF+3}], v[{vVT+4*t}:{vVT+4*t+3}], " +
              ("0" if first else f"v[{vACC+4*t}:{vACC+4*t+3}]"))

    def c_lwrite():
        A(f"v_add_f32 v{vT+2}, v{vLS}, v{vLS+1}")
        allreduce("v_add_f32", [vT + 2], vT + 4, [16, 32])
        A(f"v_mov_b32 v{vT}, v{vMS}")
        A(f"v_mov_b32 v{vT+1}, 0x{LFLAG:x}")
        A(f"v_mov_b32 v{vT+3}, 0x{LFLAG:x}")
        A(f"s_lshl_b32 {sT[0]}, {sW}, 5")
        A(f"s_add_u32 {sT[0]}, {sT[0]}, {LML}")
        A(f"v_lshlrev_b32 v{vT+4}, 4, {vL}")
        A(f"v_add_u32 v{vT+4}, {sT[0]}, v{vT+4}")
        A("s_mov_b64 exec, 3")
        A(f"ds_write_b128 v{vT+4}, v[{vT}:{vT+3}]")
        A("s_mov_b64 exec, -1")

    def c_mlpub():
        A(f"s_cmp_eq_u32 {sW}, 0")
        A("s_cbranch_scc0 L_nopub")
        A(f"v_and_b32 v{vT+4}, 7, {vL}")
        A(f"v_lshlrev_b32 v{vT+4}, 4, v{vT+4}")
        A(f"v_add_u32 v{vT+4}, {LML}, v{vT+4}")
        A(f"s_mov_b32 {sT[0]}, {spin*4}")
        A("L_lml:")
        A(f"ds_read_b128 v[{vT}:{vT+3}], v{vT+4}")
        A("s_waitcnt lgkmcnt(0)")
        A(f"v_and_b32 v{vT+5}, v{vT+1}, v{vT+3}")
        A(f"v_cmp_ne_u32 vcc, 0x{LFLAG:x}, v{vT+5}")
        A("s_cbranch_vccz L_lmlok")
        A(f"s_sub_u32 {sT[0]}, {sT[0]}, 1")
        A("s_cbranch_scc0 L_lml")
        A("L_lmlok:")
        A(f"v_mov_b32 v{vT+5}, v{vT}")
        allreduce("v_max_f32", [vT + 5], vT + 6, [2, 4])
        A(f"v_sub_f32 v{vT}, v{vT}, v{vT+5}")
        A(f"v_exp_f32 v{vT}, v{vT}")
        A("s_nop 0")
        A(f"v_mul_f32 v{vT+2}, v{vT+2}, v{vT}")
        allreduce("v_add_f32", [vT + 2], vT + 6, [2, 4])
        A(f"v_mov_b32 v{vT}, v{vT+5}")
        A(f"v_mov_b32 v{vT+1}, {sTAG}")
        A(f"v_xor_b32 v{vT+3}, {sXCC}, v{vT+1}")
        A(f"s_lshl_b32 {sT[0]}, {sH}, 10")
        A(f"s_lshl_b32 {sT[1]}, {sP}, 5")
        A(f"s_add_u32 {sT[0]}, {sT[0]}, {sT[1]}")
        A(f"s_add_u32 {sT[0]}, {sT[0]}, {WS_ML}")
        A(f"v_lshlrev_b32 v{vT+4}, 4, {vL}")
        A("s_mov_b64 exec, 3")
        A(f"buffer_store_dwordx4 v[{vT}:{vT+3}], v{vT+4}, {SRD_WS}, {sT[0]} offen sc1")
        A("s_mov_b64 exec, -1")
        A("L_nopub:")

    def c_mlpoll():
        A(f"s_lshl_b32 {sT[8]}, {sH}, 10")
        A(f"s_add_u32 {sT[8]}, {sT[8]}, {WS_ML}")
        A(f"v_lshlrev_b32 v{vT+8}, 4, {vL}")
        st["ml"] = VM(f"buffer_load_dwordx4 v[{vT+12}:{vT+15}], v{vT+8}, {SRD_WS}, {sT[8]} offen sc1")

    def c_mlcheck():
        G = vT + 12
        wait_vm(st["ml"])
        A(f"s_mov_b32 {sT[0]}, {spin}")
        A("L_mlchk:")
        A(f"v_xor_b32 v{vT+9}, {sTAG}, v{G+1}")
        A(f"v_xor_b32 v{vT+10}, {sTAG}, v{G+3}")
        A(f"v_and_or_b32 v{vT+9}, v{vT+10}, -16, v{vT+9}")
        A(f"v_cmp_ne_u32 vcc, 0, v{vT+9}")
        A("s_cbranch_vccz L_mlok")
        A(f"s_sub_u32 {sT[0]}, {sT[0]}, 1")
        A("s_cbranch_scc1 L_mlok")
        A(f"buffer_load_dwordx4 v[{G}:{G+3}], v{vT+8}, {SRD_WS}, {sT[8]} offen sc1")
        A("s_waitcnt vmcnt(0)")
        A("s_branch L_mlchk")
        A("L_mlok:")
        A(f"v_cmp_ne_u32 vcc, {sXCC}, v{vT+10}")
        A("s_cmp_eq_u64 vcc, 0")
        A(f"s_cselect_b32 {sLOC}, {1 if local else 0}, 0")
        A(f"v_mov_b32 v{vT+9}, v{G}")
        allreduce("v_max_f32", [vT + 9], vT + 10, [2, 4, 8, 16, 32])

    def c_mlscale():
        G = vT + 12
        A(f"v_sub_f32 v{G}, v{G}, v{vT+9}")
        A(f"v_exp_f32 v{G}, v{G}")
        A("s_nop 0")
        A(f"v_mul_f32 v{G+2}, v{G+2}, v{G}")
        allreduce("v_add_f32", [G + 2], vT + 10, [2, 4, 8, 16, 32])
        A(f"v_log_f32 v{G+2}, v{G+2}")
        A("s_nop 0")
        A(f"v_add_f32 v{vT+9}, v{vT+9}, v{G+2}")
        A(f"v_sub_f32 v{vT+10}, v{vMS}, v{vT+9}")
        A(f"v_exp_f32 v{vT+10}, v{vT+10}")

    def c_rescale():
        A(f"v_mov_b32 v{vMS}, v{vT+9}")
        A("s_nop 0")
        A(f"v_mov_b32_dpp v{vT+2}, v{vT+10} quad_perm:[0,0,0,0] row_mask:0xf bank_mask:0xf")
        A(f"v_mov_b32_dpp v{vT+3}, v{vT+10} quad_perm:[1,1,1,1] row_mask:0xf bank_mask:0xf")
        A("s_nop 4")
        for t in range(16):
            A(f"v_pk_mul_f32 v[{vACC+4*t}:{vACC+4*t+1}], v[{vACC+4*t}:{vACC+4*t+1}], v[{vT+2}:{vT+3}]")

    vWO, vW2 = vSC + 4, vSC + 36

    def issue_weights():
        assert st["pdone"] >= 12 and st.get("tail1")
        for i in range(16):
            if i % 4 == 0 and i:
                A(f"s_add_u32 {sT[0]}, {sT[0]}, {4*896}")
            VM(f"buffer_load_dwordx2 v[{vWO+2*i}:{vWO+2*i+1}], v{vT+16}, {SRD_WO}, {sT[0]} offen offset:{(i%4)*896} {wflags}")
        for i in range(8):
            if i % 4 == 0 and i:
                A(f"s_add_u32 {sT[1]}, {sT[1]}, {4*896}")
            st["w"] = VM(f"buffer_load_dwordx2 v[{vW2+2*i}:{vW2+2*i+1}], v{vT+16}, {SRD_W2}, {sT[1]} offen offset:{(i%4)*896} {wflags}")

    MO = ((2 * S) % R) * tb
    vMW, vMR, vO1, vH1, vH2, vXR, vOO = 6, 8, vT + 4, vT + 5, vT + 6, vT + 7, vT + 11
    sH2 = [f"s{4+k}" for k in range(16)]
    sP1, sP2, sCONS = "s68", "s69", "s70"

    def c_tail1():
        st["tail1"] = True
        A(f"v_and_b32 v{vT}, 15, {vL}")
        A(f"v_lshlrev_b32 v{vT}, 2, v{vT}")
        A(f"v_bfe_u32 v{vT+1}, {vL}, 4, 1")
        A(f"v_lshl_add_u32 v{vT}, v{vT+1}, 6, v{vT}")
        A(f"v_cmp_lt_u32 vcc, 15, {vL}")
        A(f"v_add_u32 v{vT+1}, 2048, v{vT}")
        A(f"s_add_u32 {sT[2]}, {sRING}, {MO}")
        A(f"v_cndmask_b32 v{vT}, v{vT}, v{vT+1}, vcc")
        A(f"v_add_u32 v{vMW}, {sT[2]}, v{vT}")
        A(f"v_add_u32 v{vMW+1}, 1024, v{vMW}")
        A(f"s_lshl_b32 {sT[2]}, {sW}, 9")
        A(f"s_add_u32 {sT[2]}, {sT[2]}, {MO}")
        A(f"v_lshlrev_b32 v{vMR}, 3, {vL}")
        A(f"v_add_u32 v{vMR}, {sT[2]}, v{vMR}")
        A(f"v_add_u32 v{vMR+1}, {2*R*tb}, v{vMR}")
        A(f"s_lshl_b32 {sP1}, {sH}, 5")
        A(f"s_add_u32 {sP1}, {sP1}, {sP}")
        A(f"s_mul_i32 {sT[0]}, {sP1}, {16*896}")
        A(f"s_mul_i32 {sT[1]}, {sF}, {8*896}")
        A(f"s_lshl_b32 {sP1}, {sP1}, 12")
        A(f"s_lshl_b32 {sT[2]}, {sW}, 11")
        A(f"s_add_u32 {sP1}, {sP1}, {sT[2]}")
        A(f"s_add_u32 {sP1}, {sP1}, {WS_P1O}")
        A(f"v_lshlrev_b32 v{vO1}, 4, {vL}")
        A(f"v_subrev_u32 v{vT}, 128, v0")
        A(f"v_cmp_gt_u32 vcc, 112, v{vT}")
        A(f"v_lshlrev_b32 v{vT+1}, 3, v{vT}")
        A(f"v_lshlrev_b32 v{vOO}, 4, v{vT}")
        A(f"v_bfrev_b32 v{vT+2}, 2")
        A(f"v_cndmask_b32 v{vT+16}, v{vT+2}, v{vT+1}, vcc")
        A(f"v_cndmask_b32 v{vOO}, v{vT+2}, v{vOO}, vcc")

    def c_tail2():
        A(f"v_lshrrev_b32 v{vT}, 3, {vL}")
        A(f"v_and_b32 v{vT+1}, 7, {vL}")
        A(f"v_lshlrev_b32 v{vT+1}, 4, v{vT+1}")
        A(f"v_lshl_add_u32 v{vH1}, v{vT}, 12, v{vT+1}")
        A(f"s_lshl_b32 {sT[2]}, {sH}, 17")
        A(f"s_lshl_b32 {sT[3]}, {sP}, 7")
        A(f"s_add_u32 {sT[2]}, {sT[2]}, {sT[3]}")
        A(f"s_add_u32 {sT[2]}, {sT[2]}, {WS_P1O}")
        for k in range(1, 4):
            A(f"s_add_u32 {sT[2+k]}, {sT[2]}, {k*32768}")
        A(f"s_lshl_b32 {sP2}, {sH}, 5")
        A(f"s_add_u32 {sP2}, {sP2}, {sP}")
        A(f"s_mul_i32 {sP2}, {sP2}, 3584")
        A(f"s_add_u32 {sP2}, {sP2}, {WS_P2}")
        A(f"s_lshr_b32 {sT[6]}, s2, 4")
        A(f"s_lshl_b32 {sT[6]}, {sT[6]}, 3")
        A(f"s_and_b32 {sT[7]}, s2, 7")
        A(f"s_add_u32 {sT[6]}, {sT[6]}, {sT[7]}")
        A(f"s_cmp_lt_u32 {sT[6]}, 28")
        A(f"s_cselect_b32 {sCONS}, 1, 0")
        A(f"s_bfe_u32 {sT[7]}, s2, 0x10003")
        A(f"s_lshl_b32 {sH2[0]}, {sT[6]}, 1")
        A(f"s_add_u32 {sH2[0]}, {sH2[0]}, {sT[7]}")
        A(f"s_lshl_b32 {sH2[0]}, {sH2[0]}, 6")
        A(f"s_add_u32 {sH2[0]}, {sH2[0]}, {WS_P2}")
        for k in range(1, 16):
            A(f"s_add_u32 {sH2[k]}, {sH2[0]}, {k*16*3584}")
        A(f"v_lshrrev_b32 v{vT}, 2, {vL}")
        A(f"v_mul_u32_u24 v{vT}, 3584, v{vT}")
        A(f"v_and_b32 v{vT+1}, 3, {vL}")
        A(f"v_lshl_add_u32 v{vH2}, v{vT+1}, 4, v{vT}")
        A(f"s_cmp_ge_u32 {sT[6]}, 14")
        A(f"s_cselect_b32 {sT[8]}, {4 - 14*64}, 0")
        A(f"s_lshl_b32 {sT[6]}, {sT[6]}, 6")
        A(f"s_add_u32 {sT[6]}, {sT[6]}, {sT[8]}")
        A(f"s_lshl_b32 {sT[7]}, {sT[7]}, 5")
        A(f"s_add_u32 {sT[6]}, {sT[6]}, {sT[7]}")
        A(f"v_lshlrev_b32 v{vT+1}, 3, v{vT+1}")
        A(f"v_add_u32 v{vT+17}, {sT[6]}, v{vT+1}")
        VM(f"buffer_load_dword v{vXR}, v{vT+17}, {SRD_X}, 0 offen")
        if pre1 is not None or pre2 is not None:
            A(f"s_lshl_b32 {sT[8]}, {sW}, 10")
            A(f"v_lshlrev_b32 v{vT}, 4, v0")
        if pre1 is not None:
            A(f"s_lshl_b32 {sT[7]}, {sW}, 11")
            A(f"s_sub_u32 {sT[7]}, {sP1}, {sT[7]}")
            if pre1.startswith("ld"):
                VM(f"buffer_load_dwordx4 v[{vT+12}:{vT+15}], v{vT}, {SRD_WS}, {sT[7]} offen {pre1[2:]}")
            else:
                for k in range(4):
                    A(f"v_mov_b32 v{vT+12+k}, 0")
                A(f"v_not_b32 v{vT+13}, {sTAG}")
                A(f"v_not_b32 v{vT+15}, {sTAG}")
                VM(f"buffer_store_dwordx4 v[{vT+12}:{vT+15}], v{vT}, {SRD_WS}, {sT[7]} offen {pre1[2:]}")
        if pre2 is not None:
            VM(f"buffer_load_dwordx4 v[{vT+12}:{vT+15}], v{vT}, {SRD_WS}, {sP2} offen {pre2[2:]}")

    PW, PW2, Y = vSC, vSC + 32, vSC + 48

    def c_wprep():
        assert st["pdone"] >= 13
        if lateprep:
            A("s_waitcnt vmcnt(4)")
        else:
            wait_vm(st["w"])
            A(f"s_cmp_lt_u32 {sW}, 2")
            A("s_cbranch_scc1 L_noprep")
        A(f"s_mov_b32 {sT[6]}, 0x05040100")
        A(f"s_mov_b32 {sT[7]}, 0x07060302")
        for k in range(12):
            for cp in range(2):
                A(f"v_perm_b32 v{PW+4*k+2*cp}, v{vWO+4*k+2+cp}, v{vWO+4*k+cp}, {sT[6]}")
                A(f"v_perm_b32 v{PW+4*k+2*cp+1}, v{vWO+4*k+2+cp}, v{vWO+4*k+cp}, {sT[7]}")
        for c in range(4):
            A(f"v_mov_b32 v{Y+2*c}, 0")
            A(f"v_mov_b32 v{Y+2*c+1}, {sTAG}")
        A("s_cmp_lt_u32 s2, 224")
        A("s_cbranch_scc0 L_noprep")
        for k in range(4):
            for c in range(4):
                A(f"v_dot2_f32_bf16 v{Y+2*c}, v{vH+2*k}, v{PW2+4*k+c}, v{Y+2*c}")
        A("L_noprep:")

    def c_last():
        for t in range(16):
            if t in (0, 4, 8):
                A(f"s_waitcnt lgkmcnt({ {0: 12, 4: 8, 8: 0}[t] })")
            if t >= 8:
                u = t - 8
                A(f"ds_write2_b32 v{vMW}, v{vACC+4*u}, v{vACC+4*u+1} offset0:{u*16} offset1:{u*16+128}")
            pv(False, t, t + 1)
        if stamps:
            lds_wait(True)
        stamp()
        A("s_nop 0")
        for u in range(8, 16):
            A(f"ds_write2_b32 v{vMW+1}, v{vACC+4*u}, v{vACC+4*u+1} offset0:{(u%8)*16} offset1:{(u%8)*16+128}")

    chunks = []
    C = lambda fn, need=None, free=None: chunks.append((need, free, fn))
    backlog = list(range(NB))
    for n in range(S):
        slot = (n % R) * tb
        if n < NB:
            C(lambda n=n, slot=slot: read_k(32 * n, slot, True), need=n)
            C(lambda: lds_wait(True), free=n)
            if n == NP:
                C(c_qpoll)
            if n == NB - 1:
                C(c_qcheck)
                C(c_qread)
        else:
            C(lambda slot=slot: read_k(vTL, slot), need=n)
            C(lambda: (lds_wait(True), qk_mfma(vTL, False)), free=n)
            C(lambda n=n: qk_post(vSC + 4 * n))
            for _ in range(2):
                if backlog:
                    m = backlog.pop(0)
                    C(lambda m=m: qk_mfma(32 * m, True))
                    C(lambda m=m: qk_post(vSC + 4 * m))
    assert not backlog
    C(c_kmax)
    lq = list(range(S))
    assert vgat % 2 == 1 and vpub % 2 == 1
    for n in range(S):
        j = S + n
        slot = (j % R) * tb
        if n == vgat + 3:
            C(c_rescale)
        if n == S - 2:
            C(lambda: make_p(S - 2))
            C(lambda: make_p(S - 1))
            if not lateprep:
                C(c_wprep)
        elif n < S - 2:
            C(lambda n=n: make_p(n))
        C(lambda slot=slot, n=n: read_v(slot, n & 1), need=j)
        if n % 2 == 0:
            C(lambda: lds_wait(True), free=j)
        elif n == S - 1:
            C(c_last)
        else:
            C(lambda n=n: (lds_wait(True), pv(n == 1, 0, 8)), free=j)
            C(lambda n=n: pv(n == 1, 8, 16))
        for _ in range(3 if n % 2 == 0 else 2):
            if lq:
                m0, m1 = lq.pop(0), lq.pop(0)
                C(lambda m0=m0, m1=m1: (lsum(vSC + 4 * m0), lsum(vSC + 4 * m1)))
                if not lq:
                    C(c_lwrite)
        if n == vpub:
            assert not lq
            C(c_mlpub)
        if n == vgat:
            C(c_mlpoll)
        if n == vgat + 1:
            C(c_mlcheck)
            C(c_mlscale)
        if n == vgat + 3:
            C(c_tail1)
            C(c_tail2)

    freed = set()

    def emit_chunk(q, block):
        need, free, fn = q[0]
        if need is not None:
            last = need * T + T - 1
            if last not in lidx:
                assert not block
                return False
            if lidx[last] > vm["known"]:
                if not block:
                    return False
                wait_vm(lidx[last])
        q.pop(0)
        fn()
        if free is not None:
            freed.add(free)
        return True

    def tagfix():
        A("s_waitcnt lgkmcnt(0)")
        A(f"s_mul_i32 {sTAG}, {sTAG}, 1664525")
        A(f"s_add_u32 {sTAG}, {sTAG}, 1013904223")

    def stream(L0, L1, win, q, paced):
        for L in range(L0, L1):
            j, i = divmod(L, T)
            Nw = win(L)
            if len(paced) >= Nw:
                wait_vm(paced[-Nw])
            if i == 0 and j >= R:
                while (j - R) not in freed:
                    emit_chunk(q, True)
            issue_load(L)
            paced.append(lidx[L])
            if L == NL - 1 - tpos and touch is not None:
                A(f"s_lshl_b32 {sT[8]}, {sW}, 15")
                A(f"s_add_u32 {sT[8]}, {sT[8]}, {sT[2]}")
                if touch == "sc1":
                    VM(f"buffer_load_dword v{vT+12}, v{vH1}, {SRD_WS}, {sT[8]} offen sc1")
                else:
                    A(f"s_cmp_eq_u32 {sLOC}, 1")
                    A("s_cbranch_scc0 L_tfar")
                    A(f"buffer_load_dword v{vT+12}, v{vH1}, {SRD_WS}, {sT[8]} offen")
                    A("s_branch L_tdone")
                    A("L_tfar:")
                    VM(f"buffer_load_dword v{vT+12}, v{vH1}, {SRD_WS}, {sT[8]} offen sc1")
                    A("L_tdone:")
            if L == NL - 1 - wpos and not now and not wearly:
                issue_weights()
            if q and (L < NL - tail or Nend <= N + 2):
                emit_chunk(q, False)

    def win_main(L):
        Nw = Nend if L >= NL - tail else N
        if kopen and NL // 2 - kopen[0] <= L < NL // 2:
            Nw = kopen[1]
        if alt and Nw == N and (L // alt[1]) % alt[2] == 0:
            Nw = alt[0]
        return Nw

    split = next(k for k, ch in enumerate(chunks) if ch[0] == X - 1)
    head_chunks, rest = chunks[:split], chunks[split:]
    assert X - 1 <= NP
    ends = []
    A(f"s_cmp_lt_u32 {sZ}, 92")
    A("s_cbranch_scc1 L_producer")
    for path in ("n", "p"):
        vm.update(n=0, known=0)
        lidx.clear()
        freed.clear()
        paced = []
        stg = {"i": 0}

        def issue_stg():
            i = stg["i"]
            if rot:
                if i == 0:
                    A(f"s_mul_i32 {sT[3]}, {sZ}, 4682")
                    A(f"s_lshr_b32 {sT[3]}, {sT[3]}, 16")
                    A(f"s_mul_i32 {sT[3]}, {sT[3]}, 14")
                    A(f"s_sub_u32 {sT[3]}, {sZ}, {sT[3]}")
                else:
                    A(f"s_add_u32 {sT[3]}, {sT[3]}, 1")
                    A(f"s_cmp_eq_u32 {sT[3]}, 14")
                    A(f"s_cselect_b32 {sT[3]}, 0, {sT[3]}")
                A(f"s_lshl_b32 {sT[9]}, {sT[3]}, 10")
                A(f"s_add_u32 m0, {sT[6]}, {sT[9]}")
                A(f"s_mul_i32 {sT[9]}, {sT[3]}, {sT[4]}")
                A(f"s_add_u32 {sT[9]}, {sT[9]}, {sT[5]}")
                st["stg"] = VM(f"buffer_load_dwordx4 v21, {SRD_W}, {sT[9]} offen {wflags} lds")
            else:
                A(f"s_add_u32 m0, {sT[6]}, {i*1024}")
                if i:
                    A(f"s_add_u32 {sT[5]}, {sT[5]}, {sT[4]}")
                else:
                    A("s_nop 0")
                st["stg"] = VM(f"buffer_load_dwordx4 v21, {SRD_W}, {sT[5]} offen {wflags} lds")
            paced.append(st["stg"])
            stg["i"] += 1
            m0bad["v"] = True
        if path == "n":
            for L in range(N0):
                issue_load(L)
                paced.append(lidx[L])
            setup()
            if wearly:
                issue_weights()
            q = list(head_chunks) + [(None, None, tagfix)]
            stream(N0, X * T, win_main, q, paced)
        else:
            A("L_producer:")
            st["x"] = VM(f"buffer_load_dwordx4 v[{vT}:{vT+3}], v31, {SRD_X}, 0 offen")
            if not il:
                while stg["i"] < 14:
                    issue_stg()
            for L in range(B0):
                issue_load(L)
                paced.append(lidx[L])
                if il and L % il == il - 1:
                    issue_stg()
            setup()
            if wearly == 1:
                issue_weights()
            if not il:
                for fn in side_chunks[:4]:
                    fn()
                q = [(None, None, fn) for fn in side_chunks[4:]] + list(head_chunks) + [(None, None, tagfix)]
                stream(B0, X * T, lambda L: Np if L < Xp else N, q, paced)
            else:
                Ls = 14 * il
                q = [(None, None, fn) for fn in side_chunks[:5]] + list(head_chunks)
                for L in range(B0, Ls):
                    stream(L, L + 1, lambda L: Np, q, paced)
                    if L % il == il - 1:
                        if len(paced) >= Np:
                            wait_vm(paced[-Np])
                        issue_stg()
                w2 = Np2 or N
                L = Ls
                while st["stg"] > vm["known"]:
                    stream(L, L + 1, lambda L: w2, q, paced)
                    L += 1
                assert all(ch[2] not in side_chunks for ch in q)
                if q and q[0][1] is not None:
                    emit_chunk(q, True)
                q = [(None, None, fn) for fn in side_chunks[5:]] + ([(None, None, issue_weights)] if wearly == 2 else []) + q + [(None, None, tagfix)]
                stream(L, X * T, lambda L: w2 if L < Xp else N, q, paced)
        while q:
            emit_chunk(q, True)
        known_L = max([L for L in lidx if lidx[L] <= vm["known"]] + [-1])
        ends.append(({L: vm["n"] - lidx[L] for L in range(X * T - 16, X * T)}, known_L, set(freed)))
        if path == "n":
            A("s_branch L_join")
    A("L_join:")
    stamp(1)
    assert ends[0][0] == ends[1][0] and ends[0][2] == ends[1][2], ends
    vm["known"] = lidx[min(ends[0][1], ends[1][1])]
    stream(X * T, NL, win_main, rest, [lidx[L] for L in range(X * T - 16, X * T)])
    while rest:
        emit_chunk(rest, True)

    O4, G = 32, 48
    for k in (1, 3, 5, 7):
        A(f"v_mov_b32 v{G+k}, {sTAG}")
    A(f"s_cmp_ge_u32 {sW}, 2")
    A("s_waitcnt lgkmcnt(0)")
    A("s_barrier")
    A("s_cbranch_scc1 L_bwave")
    for hf in range(2):
        for w in range(4):
            r = O4 + 8 * hf + 2 * w
            A(f"ds_read_b64 v[{r}:{r+1}], v{vMR+w//2} offset:{(w%2)*R*tb + hf*1024}")
    A(f"s_cmp_eq_u32 {sLOC}, 1")
    for hf in range(2):
        r = O4 + 8 * hf
        A(f"s_waitcnt lgkmcnt({4 - 4*hf})")
        A(f"v_pk_add_f32 v[{r}:{r+1}], v[{r}:{r+1}], v[{r+2}:{r+3}]")
        A(f"v_pk_add_f32 v[{r+4}:{r+5}], v[{r+4}:{r+5}], v[{r+6}:{r+7}]")
        A(f"v_add_f32 v{G+4*hf}, v{r}, v{r+4}")
        A(f"v_add_f32 v{G+4*hf+2}, v{r+1}, v{r+5}")
    A("s_cbranch_scc0 L_far1")
    for hf in range(2):
        A(f"buffer_store_dwordx4 v[{G+4*hf}:{G+4*hf+3}], v{vO1}, {SRD_WS}, {sP1} offen offset:{hf*1024}")
    A("s_branch L_sent1")
    A("L_far1:")
    for hf in range(2):
        A(f"buffer_store_dwordx4 v[{G+4*hf}:{G+4*hf+3}], v{vO1}, {SRD_WS}, {sP1} offen offset:{hf*1024} sc1")
    A("L_sent1:")
    stamp()
    A(f"s_cmp_eq_u32 {sCONS}, 1")
    A("s_cbranch_scc0 L_done")

    YG, YS = 96, 160
    sPEND = sT[0]
    A(f"s_mov_b32 {sPEND}, 0xff")
    A(f"s_mov_b32 {sT[9]}, {spin}")
    A(f"s_cmp_eq_u32 {sW}, 0")
    if gate2:
        A("s_barrier")
    A("s_cbranch_scc0 L_done")
    if stamps:
        A("s_memrealtime s[96:97]")
    if outpf:
        A(f"buffer_load_dword v{vT+12}, v{vT+17}, {SRD_OUT}, 0 offen")
    A("L_h2:")
    for hh in range(8):
        A(f"s_bitcmp1_b32 {sPEND}, {hh}")
        A(f"s_cbranch_scc0 L_h2i{hh}")
        for k in (2 * hh, 2 * hh + 1):
            A(f"buffer_load_dwordx4 v[{YG+4*k}:{YG+4*k+3}], v{vH2}, {SRD_WS}, {sH2[k]} offen sc1")
        A(f"L_h2i{hh}:")
    A("s_waitcnt vmcnt(0)")
    for hh in range(8):
        r = YG + 8 * hh
        A(f"s_bitcmp1_b32 {sPEND}, {hh}")
        A(f"s_cbranch_scc0 L_h2c{hh}")
        tagcheck([r + 1, r + 3, r + 5, r + 7], vT, vT + 1)
        A(f"v_add_f32 v{YS+2*hh}, v{r}, v{r+4}")
        A(f"v_add_f32 v{YS+2*hh+1}, v{r+2}, v{r+6}")
        A(f"s_cbranch_vccnz L_h2c{hh}")
        A(f"s_bitset0_b32 {sPEND}, {hh}")
        A(f"L_h2c{hh}:")
    A(f"s_cmp_eq_u32 {sPEND}, 0")
    A("s_cbranch_scc1 L_h2ok")
    if sleep2:
        A(f"s_sleep {sleep2}")
    if flat2:
        A(f"s_mov_b32 {sPEND}, 0xff")
    A(f"s_sub_u32 {sT[9]}, {sT[9]}, 1")
    A("s_cbranch_scc0 L_h2")
    A("L_h2ok:")
    if stamps:
        A("s_memrealtime s[98:99]")
    for st_ in (1, 2, 4):
        for hh in range(0, 8, 2 * st_):
            A(f"v_pk_add_f32 v[{YS+2*hh}:{YS+2*hh+1}], v[{YS+2*hh}:{YS+2*hh+1}], v[{YS+2*(hh+st_)}:{YS+2*(hh+st_)+1}]")
    A(f"v_lshlrev_b32 v{vT+2}, 16, v{vXR}")
    A(f"v_and_b32 v{vT+3}, 0xffff0000, v{vXR}")
    allreduce("v_add_f32", [YS, YS + 1], vT, [4, 8, 16, 32])
    A(f"v_pk_add_f32 v[{YS}:{YS+1}], v[{YS}:{YS+1}], v[{vT+2}:{vT+3}]")
    A("s_mov_b64 exec, 15")
    A(f"v_cvt_pk_bf16_f32 v{YS}, v{YS}, v{YS+1}")
    A(f"buffer_store_dword v{YS}, v{vT+17}, {SRD_OUT}, 0 offen")
    A("s_cmp_eq_u32 s2, 0")
    A("s_cbranch_scc0 L_done")
    A("s_mov_b64 exec, 1")
    A(f"buffer_store_dword v{G+1}, off, {SRD_WS}, 0 sc1")
    A("s_branch L_done")

    A("L_bwave:")
    OG = 144

    def hop1_loads(fl="sc1"):
        for k in range(4):
            A(f"buffer_load_dwordx4 v[{OG+4*k}:{OG+4*k+3}], v{vH1}, {SRD_WS}, {sT[2+k]} offen {fl}")
    if plain1:
        A(f"s_cmp_eq_u32 {sLOC}, 1")
        A("s_cbranch_scc0 L_h1far")
        hop1_loads("")
        A("s_branch L_h1first")
        A("L_h1far:")
    hop1_loads()
    A("L_h1first:")
    if lateprep:
        c_wprep()
    A(f"s_mov_b32 {sT[9]}, {spin}")
    A("L_h1chk:")
    A("s_waitcnt vmcnt(0)")
    tagcheck([OG + 1 + 2 * i for i in range(8)], vT, vT + 1)
    A("s_cbranch_vccz L_h1ok")
    A(f"s_sub_u32 {sT[9]}, {sT[9]}, 1")
    A("s_cbranch_scc1 L_h1ok")
    if sleep1:
        A(f"s_sleep {sleep1}")
    hop1_loads()
    A("s_branch L_h1chk")
    A("L_h1ok:")
    stamp()
    oa, ob = vT, vT + 1
    A(f"v_add_f32 v{oa}, v{OG}, v{OG+4}")
    A(f"v_add_f32 v{ob}, v{OG+2}, v{OG+6}")
    A(f"v_add_f32 v{OG+8}, v{OG+8}, v{OG+12}")
    A(f"v_add_f32 v{OG+10}, v{OG+10}, v{OG+14}")
    A(f"v_add_f32 v{oa}, v{oa}, v{OG+8}")
    A(f"v_add_f32 v{ob}, v{ob}, v{OG+10}")
    allreduce("v_add_f32", [oa, ob], vT + 2, [8, 16, 32])
    A(f"v_cvt_pk_bf16_f32 v{oa}, v{oa}, v{ob}")
    A("s_nop 0")
    for k in range(8):
        A(f"v_readlane_b32 {sT[k]}, v{oa}, {k}")
    for cp in range(2):
        for k in range(8):
            for c in (2 * cp, 2 * cp + 1):
                A(f"v_dot2_f32_bf16 v{Y+2*c}, {sT[k]}, v{PW+4*k+c}, v{Y+2*c}")
        if cp == 1:
            A(f"buffer_store_dwordx4 v[{Y}:{Y+3}], v{vOO}, {SRD_WS}, {sP2} offen sc1")
            A("s_nop 1")
            A(f"buffer_store_dwordx4 v[{Y+4}:{Y+7}], v{vOO}, {SRD_WS}, {sP2} offen offset:1792 sc1")
    stamp()
    if gate2:
        A(f"s_cmp_eq_u32 {sCONS}, 1")
        A("s_cbranch_scc0 L_done")
        A("s_barrier")
    A("L_done:")
    if stamps:
        A("s_mov_b64 exec, -1")
        A("s_memrealtime s[100:101]")
        A("s_waitcnt lgkmcnt(0)")
        A(f"s_lshl_b32 {sT[0]}, s2, 2")
        A(f"s_add_u32 {sT[0]}, {sT[0]}, {sW}")
        A(f"s_lshl_b32 {sT[1]}, {sT[0]}, 8")
        A(f"s_lshl_b32 {sT[0]}, {sT[0]}, 6")
        A(f"s_add_u32 {sT[0]}, {sT[0]}, {WS_STAMP}")
        A(f"s_add_u32 {sT[1]}, {sT[1]}, {WS_STAMP + 0x10000}")
        A(f"v_lshlrev_b32 v2, 2, {vL}")
        A(f"buffer_store_dword v252, v2, {SRD_WS}, {sT[1]} offen")
        A("v_mov_b32 v2, 0")
        A("s_mov_b64 exec, 1")
        A("v_mov_b32 v3, s26")
        A(f"buffer_store_dword v3, v2, {SRD_WS}, {sT[0]} offen offset:44")
        for k in range(9):
            A(f"v_mov_b32 v3, s{84+2*k}")
            A(f"buffer_store_dword v3, v2, {SRD_WS}, {sT[0]} offen offset:{4*k}")
        A("s_getreg_b32 s84, hwreg(HW_REG_XCC_ID)")
        A("v_mov_b32 v3, s84")
        A(f"buffer_store_dword v3, v2, {SRD_WS}, {sT[0]} offen offset:36")
        A(f"v_mov_b32 v3, {sT[9]}")
        A(f"buffer_store_dword v3, v2, {SRD_WS}, {sT[0]} offen offset:40")
    A("L_end:")
    A("s_endpgm")
    body = "\n".join(("" if l.endswith(":") else "    ") + l for l in o)
    return HEADER.format(lds=LDS, k=kern) + body + FOOTER.format(k=kern)


if __name__ == "__main__":
    out = sys.argv[1]
    kw = json.loads(sys.argv[2]) if len(sys.argv) > 2 else {}
    open(out, "w").write(gen(**kw))
```

```python
import sys, json, math, struct
from gen import HEADER, FOOTER, KERN, f2u, LOG2E_16

WS_QG = 0x1000
WS_HG = WS_QG + 0x4000
WS_ML = 0x8000
WS_RK = 0xA000
WS_P1O = 0x10000
WS_P2 = 0x110000
WS_P3 = 0x1F0000
WS_STAMP = 0x300000
WS_SIZE = 0x400000


def gen(R=3, N=5, N0=5, Nend=8, tail=3, NB=8, NP=6, bits="i0 i1 w0 w1 i2 g3 g4 t2 t3 x0 x1 x2 t0 t1",
        kflags="nt", vflags="nt", wflags="nt", stamps=0, spin=200000, vpub=5, vgat=9, wpos=0, flat2=False, gate2=False, kopen=(24, 8), lateprep=True, pre1=None, pre2=None, plain1=False, touch="sc1", tpos=0, codepf=True, tlbpf=True, outpf=True, nn=(24, 4), ext=None, depth3=2, touch2=True, now=False, wafter=False, wat=None, tat=None, bump=(), wdma=None, rk=((64, 20, 4, 0, 0), (186, 18, 5, 0, 0)), rkw=1, Nhi=6, Nlo=4, sleep1=0, sleep2=0,
        alt=None, X=7, Np=12, B0=6, Xp=None, il=0, Np2=9, zmap="wg", rot=True, hmap="mod8", local=True,
        kern=KERN):
    noend = noml = False
    wearly = 0
    T = 8
    tb = T * 1024
    S = 16
    pos = {n: 10 + k for k, n in enumerate(bits.split())}
    assert pos["i0"] == 10 and pos["i1"] == 11
    RING = 4 * R * tb
    STG = RING
    QW = STG + 57344
    LML = QW + 4096
    FIN = LML + 128
    LDS = FIN + 256
    assert LDS <= 163840 and LDS > 81920
    if Xp is None:
        Xp = X * T

    o = []
    A = o.append
    vm = {"n": 0, "known": 0}

    def VM(s):
        A(s)
        vm["n"] += 1
        return vm["n"]

    def wait_vm(idx, force=False):
        if idx <= vm["known"] and not force:
            return
        n = vm["n"] - idx
        assert 0 <= n <= 63, n
        A(f"s_waitcnt vmcnt({n})")
        vm["known"] = max(vm["known"], idx)

    nstamp = {"n": 0}

    def stamp(mode=1):
        if stamps and (int(stamps) & mode):
            k = nstamp["n"]
            assert k < 8
            A(f"s_memrealtime s[{84+2*k}:{85+2*k}]")
            nstamp["n"] += 1

    SRD_K, SRD_V, SRD_W, SRD_WO, SRD_W2, SRD_WS, SRD_X, SRD_OUT = ("s[28:31]", "s[32:35]", "s[36:39]", "s[40:43]",
                                                                     "s[44:47]", "s[48:51]", "s[52:55]", "s[56:59]")
    sW, sH, sP, sTAG, sRING, sBASE, sC, sF = "s3", "s60", "s61", "s62", "s63", "s64", "s65", "s66"
    sOFF = "s67"
    sZ = "s27"
    sT = ["s72", "s73", "s74", "s75", "s76", "s77", "s78", "s79", "s80", "s81"]
    vL = "v1"
    vSRC = [2, 3, 4, 5]
    vKA = [6, 7, 8, 9]
    vVA = list(range(10, 18))
    vMAX, vMS = 18, 19
    vPF, vLS, vS, vE = 20, 24, 24, 28
    vVT = 32
    sLOC, sXCC = "s82", "s83"
    sWE, sNE = "s16", "s17"
    vQ, vTL, vACC, vSC, vT = 32, 64, 96, 160, 224
    vH = 244

    def srd(base, lo, size):
        A(f"s_mov_b32 s{base}, s{lo}")
        A(f"s_mov_b32 s{base+1}, s{lo+1}")
        A(f"s_mov_b32 s{base+2}, {size}")
        A(f"s_mov_b32 s{base+3}, 0x20000")

    A("s_cmp_ge_u32 s2, 256")
    A("s_cbranch_scc1 L_end")
    stamp(3)
    A("s_load_dwordx16 s[4:19], s[0:1], 0")
    A("s_load_dwordx4 s[20:23], s[0:1], 64")
    A("s_load_dwordx2 s[24:25], s[0:1], 80")
    A("v_lshrrev_b32 v30, 6, v0")
    A(f"v_and_b32 {vL}, 63, v0")
    A("v_readfirstlane_b32 s3, v30")
    if hmap == "blk":
        A(f"s_lshr_b32 {sH}, s2, 3")
        A(f"s_and_b32 {sH}, {sH}, 7")
        A(f"s_and_b32 {sT[0]}, s2, 7")
    else:
        A(f"s_and_b32 {sH}, s2, 7")
        A(f"s_lshr_b32 {sT[0]}, s2, 3")
        A(f"s_and_b32 {sT[0]}, {sT[0]}, 7")
    A(f"s_lshr_b32 {sT[1]}, s2, 6")
    A(f"s_lshl_b32 {sP}, {sT[1]}, 3")
    A(f"s_or_b32 {sP}, {sP}, {sT[0]}")
    A(f"s_lshl_b32 {sBASE}, {sH}, 24")
    if zmap == "head":
        A(f"s_lshl_b32 {sZ}, {sH}, 5")
        A(f"s_or_b32 {sZ}, {sZ}, {sP}")
    elif zmap == "x":
        A(f"s_lshl_b32 {sZ}, {sT[0]}, 5")
        A(f"s_lshl_b32 {sT[2]}, {sT[1]}, 3")
        A(f"s_or_b32 {sZ}, {sZ}, {sT[2]}")
        A(f"s_or_b32 {sZ}, {sZ}, {sH}")
    else:
        A(f"s_mov_b32 {sZ}, s2")

    def put(src, names):
        k = 0
        while k < len(names):
            e = k
            while e + 1 < len(names) and pos[names[e + 1]] == pos[names[e]] + 1:
                e += 1
            if k == 0 and e == len(names) - 1:
                A(f"s_lshl_b32 {sT[2]}, {src}, {pos[names[0]]}")
            else:
                A(f"s_bfe_u32 {sT[2]}, {src}, {((e - k + 1) << 16) | k}")
                A(f"s_lshl_b32 {sT[2]}, {sT[2]}, {pos[names[k]]}")
            A(f"s_or_b32 {sBASE}, {sBASE}, {sT[2]}")
            k = e + 1
    put(sW, ["w0", "w1"])
    put(sT[0], ["x0", "x1", "x2"])
    put(sT[1], ["g3", "g4"])
    A(f"s_mul_i32 {sRING}, {sW}, {R*tb}")
    A(f"s_mov_b32 {sC}, 0x{f2u(LOG2E_16):08x}")
    A(f"s_min_u32 {sF}, s2, 223")
    A(f"s_mov_b32 s30, {128 << 20}")
    A("s_mov_b32 s31, 0x20000")
    A("s_mov_b32 s54, 896")
    A("s_mov_b32 s55, 0x20000")
    A("s_mov_b32 s39, 0x20000")
    A(f"v_lshrrev_b32 v30, 5, {vL}")
    A(f"v_lshlrev_b32 v31, 1, v30")
    A(f"v_and_b32 v29, 31, {vL}")
    A("v_xor_b32 v29, v29, v31")
    A("v_lshlrev_b32 v29, 4, v29")
    A(f"v_lshl_add_u32 v{vSRC[0]}, v30, 9, v29")
    for i in range(1, 4):
        A(f"v_xor_b32 v{vSRC[i]}, {i*64}, v{vSRC[0]}")
    A(f"s_cmp_lt_u32 {sZ}, 64")
    A(f"s_mov_b32 s38, {448*1792*2}")
    A(f"s_cmov_b32 s38, {448*4096*2}")
    A(f"s_mov_b32 {sT[4]}, 3584")
    A(f"s_cmov_b32 {sT[4]}, 8192")
    A(f"s_and_b32 {sT[5]}, {sZ}, 63")
    A(f"s_lshl_b32 {sT[5]}, {sT[5]}, 7")
    A(f"s_mul_i32 {sT[6]}, {sW}, 112")
    A(f"s_mul_i32 {sT[6]}, {sT[6]}, {sT[4]}")
    A(f"s_add_u32 {sT[5]}, {sT[5]}, {sT[6]}")
    A(f"v_lshrrev_b32 v30, 3, {vL}")
    A(f"v_mul_lo_u32 v30, v30, {sT[4]}")
    A(f"v_and_b32 v31, 7, {vL}")
    A("v_lshl_add_u32 v21, v31, 4, v30")
    A(f"v_lshlrev_b32 v31, 4, {vL}")
    A(f"s_lshl_b32 {sT[4]}, {sT[4]}, 3")
    A(f"s_mul_i32 {sT[6]}, {sW}, 14336")
    A(f"s_add_u32 {sT[6]}, {sT[6]}, {STG}")
    A("s_waitcnt lgkmcnt(0)")
    stamp(2)
    A("s_mov_b32 s28, s6")
    A("s_mov_b32 s29, s7")
    A("s_mov_b32 s52, s4")
    A("s_mov_b32 s53, s5")
    A(f"s_cmp_lt_u32 {sZ}, 64")
    A("s_cselect_b32 s36, s10, s16")
    A("s_cselect_b32 s37, s11, s17")
    seq = [("K", n) for n in range(S)] + [("V", n) for n in range(S)]
    NL = len(seq) * T
    lidx = {}

    m0bad = {"v": False}

    def issue_load(L):
        j, i = divmod(L, T)
        kind, n = seq[j]
        if i % 4 and m0bad["v"]:
            A(f"s_add_u32 m0, {sRING}, {(j % R)*tb + (i // 4)*4096}")
            A("s_nop 0")
        m0bad["v"] = False
        if i % 4 == 0:
            g = sum(((n >> k) & 1) << pos[f"t{k}"] for k in range(4)) + ((i >> 2) << pos["i2"])
            A(f"s_add_u32 m0, {sRING}, {(j % R)*tb + i*1024}")
            A(f"s_add_u32 {sOFF}, {sBASE}, {g}")
        srd_, fl = (SRD_K, kflags) if kind == "K" else (SRD_V, vflags)
        lidx[L] = VM(f"buffer_load_dwordx4 v{vSRC[i%4]}, {srd_}, {sOFF} offen offset:{(i%4)*1024} {fl} lds")

    npf = {"n": 0}

    LFLAG = 0x600DF1A6

    def setup():
        A(f"s_lshl_b32 {sT[2]}, {sW}, 5")
        A(f"s_add_u32 {sT[2]}, {sT[2]}, {LML}")
        A(f"v_lshlrev_b32 v29, 2, {vL}")
        A(f"v_add_u32 v29, {sT[2]}, v29")
        A("v_mov_b32 v30, 0")
        A("s_mov_b64 exec, 0xff")
        A("ds_write_b32 v29, v30")
        if rk:
            A("ds_write_b32 v29, v30 offset:128")
        A("s_mov_b64 exec, -1")
        A("s_waitcnt lgkmcnt(0)")
        A("s_barrier")
        A(f"s_load_dword {sTAG}, s[24:25], 0")
        if tlbpf:
            A(f"s_lshr_b32 {sT[2]}, s2, 3")
            A(f"s_lshl_b32 {sT[2]}, {sT[2]}, 2")
            A(f"s_add_u32 {sT[2]}, {sT[2]}, {sW}")
            A(f"s_bitcmp1_b32 {sT[2]}, 3")
            A("s_cselect_b32 s70, s8, s6")
            A("s_cselect_b32 s71, s9, s7")
            A(f"s_and_b32 {sT[7]}, {sT[2]}, 7")
            A(f"s_lshl_b32 {sT[7]}, {sT[7]}, 21")
            A(f"s_lshl_b32 {sT[8]}, {sH}, 24")
            A(f"s_add_u32 {sT[7]}, {sT[7]}, {sT[8]}")
            A(f"s_lshl_b32 {sT[8]}, {sT[2]}, 7")
            A(f"s_add_u32 {sT[7]}, {sT[7]}, {sT[8]}")
            A(f"s_add_u32 s70, s70, {sT[7]}")
            A("s_addc_u32 s71, s71, 0")
            A(f"s_load_dword {sLOC}, s[70:71], 0x0")
            A(f"s_bitcmp1_b32 {sW}, 0")
            A("s_cselect_b32 s70, s12, s18")
            A("s_cselect_b32 s71, s13, s19")
            A(f"s_mov_b32 {sT[7]}, 6272")
            A(f"s_cmov_b32 {sT[7]}, 14336")
            A(f"s_mul_i32 {sT[7]}, {sT[7]}, s2")
            A(f"s_add_u32 s70, s70, {sT[7]}")
            A("s_addc_u32 s71, s71, 0")
            A(f"s_load_dword s21, s[70:71], 0x0" if False else f"s_load_dword {sXCC}, s[70:71], 0x0")
        if codepf:
            k = npf["n"]
            npf["n"] += 1
            A(f"s_getpc_b64 s[68:69]")
            A(f"L_pf{k}:")
            A(f"s_lshr_b32 {sT[2]}, s2, 3")
            A(f"s_lshl_b32 {sT[2]}, {sT[2]}, 2")
            A(f"s_add_u32 {sT[2]}, {sT[2]}, {sW}")
            A(f"s_lshl_b32 {sT[2]}, {sT[2]}, 8")
            A(f"s_min_u32 {sT[2]}, {sT[2]}, L_end-L_join-128")
            A(f"s_add_u32 {sT[2]}, {sT[2]}, L_join-L_pf{k}")
            A(f"s_add_u32 s68, s68, {sT[2]}")
            A("s_addc_u32 s69, s69, 0")
            A("s_load_dword s22, s[68:69], 0x0")
            A("s_load_dword s23, s[68:69], 0x80")
        srd(32, 8, 128 << 20)
        srd(40, 12, 4096 * 448 * 2)
        srd(44, 18, 1792 * 448 * 2)
        srd(48, 24, WS_SIZE)
        srd(56, 20, 896)
        if stamps:
            A("s_mov_b32 s26, 0")
            A("v_mov_b32 v252, 0")
            for k in (5, 6, 7):
                A(f"s_mov_b32 s{84+2*k}, s84")
        A(f"v_and_b32 v29, 15, {vL}")
        A(f"v_lshrrev_b32 v30, 4, {vL}")
        A("v_and_b32 v31, 7, v29")
        A("v_lshlrev_b32 v31, 1, v31")
        A("v_xor_b32 v31, v31, v30")
        A("v_lshlrev_b32 v31, 4, v31")
        A("v_lshl_add_u32 v31, v29, 9, v31")
        for j in range(4):
            A(f"v_xor_b32 v{vKA[j]}, {j*64}, v31")
            A(f"v_add_u32 v{vKA[j]}, {sRING}, v{vKA[j]}")
        A(f"v_lshrrev_b32 v29, 2, {vL}")
        A("v_and_b32 v30, 7, v29")
        A("v_lshlrev_b32 v30, 5, v30")
        A(f"v_and_b32 v31, 3, {vL}")
        A("v_lshlrev_b32 v31, 3, v31")
        A("v_or_b32 v31, v31, v30")
        A("v_lshl_add_u32 v31, v29, 9, v31")
        for t in range(8):
            A(f"v_xor_b32 v{vVA[t]}, {t*32}, v31")
            A(f"v_add_u32 v{vVA[t]}, {sRING}, v{vVA[t]}")
        A(f"v_mov_b32 v{vMAX}, 0xff800000")
        if rk:
            A(f"s_mov_b32 {sWE}, 0")
            A(f"s_mov_b32 {sNE}, 0")
            A(f"v_mov_b32 v254, {FIN}")

    def allreduce(op, regs, tmp, steps):
        for st in steps:
            if st <= 8:
                if len(regs) < 3:
                    A(f"s_nop {2-len(regs)}")
                for r in regs:
                    A(f"{op}_dpp v{r}, v{r}, v{r} row_ror:{st} row_mask:0xf bank_mask:0xf")
            else:
                for k, r in enumerate(regs):
                    A(f"v_mov_b32 v{tmp+k}, v{r}")
                if len(regs) < 3:
                    A(f"s_nop {2-len(regs)}")
                for k, r in enumerate(regs):
                    A(f"v_permlane{st}_swap_b32 v{r}, v{tmp+k}")
                if len(regs) < 2:
                    A("s_nop 0")
                for k, r in enumerate(regs):
                    A(f"{op} v{r}, v{r}, v{tmp+k}")

    XU = vT + 4
    a, b, c_, d_ = vT + 12, vT + 13, vT + 14, vT + 15
    XF, WF = 96, 152
    st = {}

    def side0():
        wait_vm(st["x"])
        stamp(2)
        for i in range(4):
            A(f"v_lshlrev_b32 v{XU+2*i}, 16, v{vT+i}")
            A(f"v_and_b32 v{XU+2*i+1}, 0xffff0000, v{vT+i}")
        A(f"v_add_f32 v{a}, v{XU}, v{XU+1}")
        for i in range(2, 8):
            A(f"v_add_f32 v{a}, v{a}, v{XU+i}")
        allreduce("v_add_f32", [a], b, [1, 2, 4, 8, 16, 32])

    def side1():
        A(f"v_mul_f32 v{a}, 0x{f2u(1.0/448):08x}, v{a}")
        A(f"v_mov_b32 v{b}, 0")
        for i in range(8):
            A(f"v_sub_f32 v{c_}, v{XU+i}, v{a}")
            A(f"v_fmac_f32 v{b}, v{c_}, v{c_}")
        A(f"v_cmp_gt_u32 vcc, 56, {vL}")
        A("s_nop 1")
        A(f"v_cndmask_b32 v{b}, 0, v{b}, vcc")
        allreduce("v_add_f32", [b], c_, [1, 2, 4, 8, 16, 32])

    def side2():
        A(f"v_mul_f32 v{b}, 0x{f2u(1.0/448):08x}, v{b}")
        A(f"v_cvt_pk_bf16_f32 v{c_}, v{a}, v{b}")
        A(f"v_lshlrev_b32 v{a}, 16, v{c_}")
        A(f"v_and_b32 v{b}, 0xffff0000, v{c_}")
        A(f"v_add_f32 v{b}, 0x{f2u(1e-5):08x}, v{b}")
        A(f"v_cvt_pk_bf16_f32 v{b}, v{b}, v{b}")
        A(f"v_and_b32 v{b}, 0xffff0000, v{b}")
        A(f"v_sqrt_f32 v{b}, v{b}")
        A("s_nop 0")
        A(f"v_cvt_pk_bf16_f32 v{b}, v{b}, v{b}")
        A(f"v_and_b32 v{b}, 0xffff0000, v{b}")
        A(f"v_rcp_f32 v{b}, v{b}")

    def side3():
        for i in range(8):
            A(f"v_sub_f32 v{XU+i}, v{XU+i}, v{a}")
        for i in range(4):
            A(f"v_cvt_pk_bf16_f32 v{vT+i}, v{XU+2*i}, v{XU+2*i+1}")
        for i in range(4):
            A(f"v_lshlrev_b32 v{XU+2*i}, 16, v{vT+i}")
            A(f"v_and_b32 v{XU+2*i+1}, 0xffff0000, v{vT+i}")
        for i in range(8):
            A(f"v_mul_f32 v{XU+i}, v{XU+i}, v{b}")
        for i in range(4):
            A(f"v_cvt_pk_bf16_f32 v{vT+i}, v{XU+2*i}, v{XU+2*i+1}")
        A(f"s_lshl_b32 {sT[0]}, {sW}, 10")
        A(f"s_add_u32 {sT[0]}, {sT[0]}, {QW}")
        A(f"v_lshlrev_b32 v{a}, 4, {vL}")
        A(f"v_add_u32 v{a}, {sT[0]}, v{a}")
        A(f"ds_write_b128 v{a}, v[{vT}:{vT+3}]")
        A(f"v_lshrrev_b32 v{b}, 4, {vL}")
        A(f"v_lshlrev_b32 v{c_}, 4, v{b}")
        A(f"v_add_u32 v{c_}, {sT[0]}, v{c_}")

    def side4():
        A("s_waitcnt lgkmcnt(0)")
        for i in range(14):
            A(f"ds_read_b128 v[{XF+4*i}:{XF+4*i+3}], v{c_} offset:{i*64}")
        A(f"v_lshlrev_b32 v{b}, 10, v{b}")
        A(f"v_bfe_u32 v{d_}, {vL}, 2, 2")
        A(f"v_lshl_add_u32 v{b}, v{d_}, 7, v{b}")
        A(f"v_and_b32 v{d_}, 3, {vL}")
        A(f"v_lshl_add_u32 v{b}, v{d_}, 3, v{b}")
        A(f"s_lshl_b32 {sT[1]}, {sW}, 5")
        A(f"s_add_u32 {sT[1]}, {sT[1]}, {STG}")
        A(f"v_add_u32 v{b}, {sT[1]}, v{b}")
        A(f"s_mul_i32 {sT[2]}, {sTAG}, 1664525")
        A(f"s_add_u32 {sT[2]}, {sT[2]}, 1013904223")

    def side5():
        stamp(2)
        wait_vm(st["stg"])
        A("s_waitcnt lgkmcnt(0)")
        A("s_barrier")
        stamp(2)
        for i in range(14):
            A(f"ds_read_b64_tr_b16 v[{WF+4*i}:{WF+4*i+1}], v{b} offset:{i*4096}")
            A(f"ds_read_b64_tr_b16 v[{WF+4*i+2}:{WF+4*i+3}], v{b} offset:{i*4096+512}")

    def side6():
        A(f"v_and_b32 v{d_}, 15, {vL}")
        A(f"v_cmp_eq_u32 s[70:71], 0, v{d_}")
        A(f"v_lshrrev_b32 v{a}, 4, {vL}")
        A(f"v_lshlrev_b32 v{a}, 4, v{a}")
        A(f"v_mov_b32 v{vT+1}, {sT[2]}")
        A(f"v_mov_b32 v{vT+3}, {sT[2]}")
        A(f"s_lshl_b32 {sT[0]}, {sZ}, 2")
        A(f"s_add_u32 {sT[0]}, {sT[0]}, {sW}")
        A(f"s_lshl_b32 {sT[0]}, {sT[0]}, 6")
        A(f"s_add_u32 {sT[0]}, {sT[0]}, {WS_QG}")
        A(f"s_cmp_lt_u32 {sZ}, 64")
        A(f"s_cselect_b32 {sT[1]}, 0xff800000, 0")

    def side7():
        A("s_waitcnt lgkmcnt(0)")
        for i in range(14):
            A(f"v_mfma_f32_16x16x32_bf16 v[{vS}:{vS+3}], v[{WF+4*i}:{WF+4*i+3}], v[{XF+4*i}:{XF+4*i+3}], " +
              ("0" if i == 0 else f"v[{vS}:{vS+3}]"))

    def side8():
        A("s_nop 7")
        for i in range(4):
            A(f"v_max_f32 v{vS+i}, {sT[1]}, v{vS+i}")
        A(f"v_cvt_pk_bf16_f32 v{vT}, v{vS}, v{vS+1}")
        A(f"v_cvt_pk_bf16_f32 v{vT+2}, v{vS+2}, v{vS+3}")
        A("s_mov_b64 exec, s[70:71]")
        A(f"buffer_store_dwordx4 v[{vT}:{vT+3}], v{a}, {SRD_WS}, {sT[0]} offen sc1")
        A("s_mov_b64 exec, -1")

    side_chunks = [side0, side1, side2, side3, side4, side5, side6, side7, side8]

    def tile_stamp_a():
        if stamps:
            A("s_memrealtime s[100:101]")
        if st.get("rk_on") and not st.get("rk_off"):
            A(f"ds_read_b64 v[{vT+18}:{vT+19}], v254")
            st["rk_rd"] = True

    def lds_wait(tile=False):
        A("s_waitcnt lgkmcnt(0)")
        if st.get("rk_rd"):
            A(f"v_readfirstlane_b32 {sWE}, v{vT+18}")
            A(f"v_readfirstlane_b32 {sNE}, v{vT+19}")
            st["rk_rd"] = False
        if stamps and tile:
            A("v_mov_b32 v253, s100")
            A(f"v_cmp_eq_u32 vcc, s26, {vL}")
            A("s_add_u32 s26, s26, 1")
            A("s_nop 0")
            A("v_cndmask_b32 v252, v252, v253, vcc")

    def read_k(dst, slot_imm, acc=False):
        tile_stamp_a()
        p = "a" if acc else "v"
        for j in range(8):
            A(f"ds_read_b128 {p}[{dst+4*j}:{dst+4*j+3}], v{vKA[j%4]} offset:{slot_imm + (j//4)*256}")

    def qk_mfma(src, acc):
        p = "a" if acc else "v"
        for j in range(8):
            A(f"v_mfma_f32_16x16x32_bf16 v[{vS}:{vS+3}], {p}[{src+4*j}:{src+4*j+3}], v[{vQ+4*j}:{vQ+4*j+3}], " +
              ("0" if j == 0 else f"v[{vS}:{vS+3}]"))

    def qk_post(sc):
        A("s_nop 7")
        A(f"v_cvt_pk_bf16_f32 v{sc+1}, v{vS}, v{vS+1}")
        A(f"v_cvt_pk_bf16_f32 v{sc+3}, v{vS+2}, v{vS+3}")
        A(f"v_lshlrev_b32 v{sc}, 16, v{sc+1}")
        A(f"v_and_b32 v{sc+1}, 0xffff0000, v{sc+1}")
        A(f"v_lshlrev_b32 v{sc+2}, 16, v{sc+3}")
        A(f"v_and_b32 v{sc+3}, 0xffff0000, v{sc+3}")
        A(f"v_max3_f32 v{vMAX}, v{sc}, v{sc+1}, v{vMAX}")
        A(f"v_max3_f32 v{vMAX}, v{sc+2}, v{sc+3}, v{vMAX}")

    def q_poll(emit):
        emit(f"buffer_load_dwordx4 v[{vT}:{vT+3}], v{vT+8}, {SRD_WS}, {sT[8]} offen sc1")
        emit(f"buffer_load_dwordx4 v[{vT+4}:{vT+7}], v{vT+8}, {SRD_WS}, {sT[8]} offen offset:1024 sc1")
        emit(f"buffer_load_dwordx4 v[{vH}:{vH+3}], off, {SRD_WS}, {sT[7]} sc1")
        return emit(f"buffer_load_dwordx4 v[{vH+4}:{vH+7}], off, {SRD_WS}, {sT[7]} offset:16 sc1")

    def tagcheck(regs, acc0, acc1):
        A(f"v_xor_b32 v{acc0}, {sTAG}, v{regs[0]}")
        A(f"v_xor_b32 v{acc1}, {sTAG}, v{regs[1]}")
        for i, r in enumerate(regs[2:]):
            acc = acc0 if i % 2 == 0 else acc1
            A(f"v_bitop3_b32 v{acc}, v{acc}, v{r}, {sTAG} bitop3:0xf6")
        A(f"v_or_b32 v{acc0}, v{acc0}, v{acc1}")
        A(f"v_cmp_ne_u32 vcc, 0, v{acc0}")

    def c_qpoll():
        A(f"s_lshl_b32 {sT[8]}, {sH}, 11")
        A(f"s_add_u32 {sT[8]}, {sT[8]}, {WS_QG}")
        A(f"s_lshl_b32 {sT[7]}, {sF}, 5")
        A(f"s_add_u32 {sT[7]}, {sT[7]}, {WS_HG}")
        A(f"v_lshlrev_b32 v{vT+8}, 4, {vL}")
        st["q"] = q_poll(VM)

    def c_qcheck():
        wait_vm(st["q"])
        A(f"s_mov_b32 {sT[0]}, {spin}")
        A("L_qchk:")
        tagcheck([vT + 1, vT + 3, vT + 5, vT + 7, vH + 1, vH + 3, vH + 5, vH + 7], vT + 9, vT + 10)
        A("s_cbranch_vccz L_qok")
        A(f"s_sub_u32 {sT[0]}, {sT[0]}, 1")
        A("s_cbranch_scc1 L_qok")
        q_poll(A)
        A("s_waitcnt vmcnt(0)")
        A("s_branch L_qchk")
        A("L_qok:")
        stamp()
        A(f"s_lshl_b32 {sT[0]}, {sW}, 10")
        A(f"s_add_u32 {sT[0]}, {sT[0]}, {QW}")
        A(f"v_lshlrev_b32 v{vT+9}, 3, {vL}")
        A(f"v_add_u32 v{vT+9}, {sT[0]}, v{vT+9}")
        A(f"ds_write2_b32 v{vT+9}, v{vT}, v{vT+2} offset0:0 offset1:1")
        A(f"ds_write2_b32 v{vT+9}, v{vT+4}, v{vT+6} offset0:128 offset1:129")
        A(f"v_and_b32 v{vT+10}, 1, {vL}")
        A(f"v_lshlrev_b32 v{vT+10}, 9, v{vT+10}")
        A(f"v_lshrrev_b32 v{vT+11}, 4, {vL}")
        A(f"v_lshl_add_u32 v{vT+10}, v{vT+11}, 4, v{vT+10}")
        A(f"v_add_u32 v{vT+10}, {sT[0]}, v{vT+10}")

    def c_qread():
        A("s_waitcnt lgkmcnt(0)")
        for j in range(8):
            A(f"ds_read_b128 v[{vQ+4*j}:{vQ+4*j+3}], v{vT+10} offset:{j*64}")

    def c_kmax():
        A(f"s_getreg_b32 {sXCC}, hwreg(HW_REG_XCC_ID, 0, 4)")
        allreduce("v_max_f32", [vMAX], vT, [16, 32])
        A(f"v_mul_f32 v{vMS}, {sC}, v{vMAX}")
        A(f"v_mov_b32 v{vLS}, 0")
        A(f"v_mov_b32 v{vLS+1}, 0")
        stamp()

    def read_v(slot_imm, half):
        tile_stamp_a()
        for t in range(16):
            r = vVT + 4 * t + 2 * half
            A(f"ds_read_b64_tr_b16 v[{r}:{r+1}], v{vVA[t%8]} offset:{slot_imm + (t//8)*256}")

    def exps(sc):
        for r in range(4):
            A(f"v_fma_f32 v{vE+r}, v{sc+r}, {sC}, -v{vMS}")
        for r in range(4):
            A(f"v_exp_f32 v{vE+r}, v{vE+r}")
        A("s_nop 0")

    def make_p(n):
        exps(vSC + 4 * n)
        A(f"v_cvt_pk_bf16_f32 v{vPF+2*(n&1)}, v{vE}, v{vE+1}")
        A(f"v_cvt_pk_bf16_f32 v{vPF+2*(n&1)+1}, v{vE+2}, v{vE+3}")
        st["pdone"] = n

    def lsum(sc):
        exps(sc)
        A(f"v_add_f32 v{vLS}, v{vLS}, v{vE}")
        A(f"v_add_f32 v{vLS+1}, v{vLS+1}, v{vE+1}")
        A(f"v_add_f32 v{vLS}, v{vLS}, v{vE+2}")
        A(f"v_add_f32 v{vLS+1}, v{vLS+1}, v{vE+3}")

    def pv(first, lo, hi):
        for t in range(lo, hi):
            A(f"v_mfma_f32_16x16x32_bf16 v[{vACC+4*t}:{vACC+4*t+3}], v[{vPF}:{vPF+3}], v[{vVT+4*t}:{vVT+4*t+3}], " +
              ("0" if first else f"v[{vACC+4*t}:{vACC+4*t+3}]"))

    def c_lwrite():
        A(f"v_add_f32 v{vT+2}, v{vLS}, v{vLS+1}")
        allreduce("v_add_f32", [vT + 2], vT + 4, [16, 32])
        A(f"v_mov_b32 v{vT}, v{vMS}")
        A(f"v_mov_b32 v{vT+1}, 0x{LFLAG:x}")
        A(f"v_mov_b32 v{vT+3}, 0x{LFLAG:x}")
        A(f"s_lshl_b32 {sT[0]}, {sW}, 5")
        A(f"s_add_u32 {sT[0]}, {sT[0]}, {LML}")
        A(f"v_lshlrev_b32 v{vT+4}, 4, {vL}")
        A(f"v_add_u32 v{vT+4}, {sT[0]}, v{vT+4}")
        A("s_mov_b64 exec, 3")
        A(f"ds_write_b128 v{vT+4}, v[{vT}:{vT+3}]")
        A("s_mov_b64 exec, -1")

    def c_mlpub():
        A(f"s_cmp_eq_u32 {sW}, 0")
        A("s_cbranch_scc0 L_nopub")
        A(f"v_and_b32 v{vT+4}, 7, {vL}")
        A(f"v_lshlrev_b32 v{vT+4}, 4, v{vT+4}")
        A(f"v_add_u32 v{vT+4}, {LML}, v{vT+4}")
        A(f"s_mov_b32 {sT[0]}, {spin*4}")
        A("L_lml:")
        A(f"ds_read_b128 v[{vT}:{vT+3}], v{vT+4}")
        A("s_waitcnt lgkmcnt(0)")
        A(f"v_and_b32 v{vT+5}, v{vT+1}, v{vT+3}")
        A(f"v_cmp_ne_u32 vcc, 0x{LFLAG:x}, v{vT+5}")
        A("s_cbranch_vccz L_lmlok")
        A(f"s_sub_u32 {sT[0]}, {sT[0]}, 1")
        A("s_cbranch_scc0 L_lml")
        A("L_lmlok:")
        A(f"v_mov_b32 v{vT+5}, v{vT}")
        allreduce("v_max_f32", [vT + 5], vT + 6, [2, 4])
        A(f"v_sub_f32 v{vT}, v{vT}, v{vT+5}")
        A(f"v_exp_f32 v{vT}, v{vT}")
        A("s_nop 0")
        A(f"v_mul_f32 v{vT+2}, v{vT+2}, v{vT}")
        allreduce("v_add_f32", [vT + 2], vT + 6, [2, 4])
        A(f"v_mov_b32 v{vT}, v{vT+5}")
        A(f"v_mov_b32 v{vT+1}, {sTAG}")
        A(f"v_xor_b32 v{vT+3}, {sXCC}, v{vT+1}")
        A(f"s_lshl_b32 {sT[0]}, {sH}, 10")
        A(f"s_lshl_b32 {sT[1]}, {sP}, 5")
        A(f"s_add_u32 {sT[0]}, {sT[0]}, {sT[1]}")
        A(f"s_add_u32 {sT[0]}, {sT[0]}, {WS_ML}")
        A(f"v_lshlrev_b32 v{vT+4}, 4, {vL}")
        A("s_mov_b64 exec, 3")
        A(f"buffer_store_dwordx4 v[{vT}:{vT+3}], v{vT+4}, {SRD_WS}, {sT[0]} offen sc1")
        A("s_mov_b64 exec, -1")
        A("L_nopub:")

    def c_mlpoll():
        A(f"s_lshl_b32 {sT[8]}, {sH}, 10")
        A(f"s_add_u32 {sT[8]}, {sT[8]}, {WS_ML}")
        A(f"v_lshlrev_b32 v{vT+8}, 4, {vL}")
        st["ml"] = VM(f"buffer_load_dwordx4 v[{vT+12}:{vT+15}], v{vT+8}, {SRD_WS}, {sT[8]} offen sc1")

    def c_mlcheck():
        G = vT + 12
        wait_vm(st["ml"])
        A(f"s_mov_b32 {sT[0]}, {spin}")
        A("L_mlchk:")
        A(f"v_xor_b32 v{vT+9}, {sTAG}, v{G+1}")
        A(f"v_xor_b32 v{vT+10}, {sTAG}, v{G+3}")
        A(f"v_and_or_b32 v{vT+9}, v{vT+10}, -16, v{vT+9}")
        A(f"v_cmp_ne_u32 vcc, 0, v{vT+9}")
        A("s_cbranch_vccz L_mlok")
        A(f"s_sub_u32 {sT[0]}, {sT[0]}, 1")
        A("s_cbranch_scc1 L_mlok")
        A(f"buffer_load_dwordx4 v[{G}:{G+3}], v{vT+8}, {SRD_WS}, {sT[8]} offen sc1")
        A("s_waitcnt vmcnt(0)")
        A("s_branch L_mlchk")
        A("L_mlok:")
        st["mlok"] = True
        A(f"v_cmp_ne_u32 vcc, {sXCC}, v{vT+10}")
        A("s_cmp_eq_u64 vcc, 0")
        A(f"s_cselect_b32 {sLOC}, {1 if local else 0}, 0")
        A(f"v_mov_b32 v{vT+9}, v{G}")
        allreduce("v_max_f32", [vT + 9], vT + 10, [2, 4, 8, 16, 32])

    def c_mlscale():
        G = vT + 12
        A(f"v_sub_f32 v{G}, v{G}, v{vT+9}")
        A(f"v_exp_f32 v{G}, v{G}")
        A("s_nop 0")
        A(f"v_mul_f32 v{G+2}, v{G+2}, v{G}")
        allreduce("v_add_f32", [G + 2], vT + 10, [2, 4, 8, 16, 32])
        A(f"v_log_f32 v{G+2}, v{G+2}")
        A("s_nop 0")
        A(f"v_add_f32 v{vT+9}, v{vT+9}, v{G+2}")
        A(f"v_sub_f32 v{vT+10}, v{vMS}, v{vT+9}")
        A(f"v_exp_f32 v{vT+10}, v{vT+10}")

    def c_rescale():
        A(f"v_mov_b32 v{vMS}, v{vT+9}")
        A("s_nop 0")
        A(f"v_mov_b32_dpp v{vT+2}, v{vT+10} quad_perm:[0,0,0,0] row_mask:0xf bank_mask:0xf")
        A(f"v_mov_b32_dpp v{vT+3}, v{vT+10} quad_perm:[1,1,1,1] row_mask:0xf bank_mask:0xf")
        A("s_nop 4")
        for t in range(16):
            A(f"v_pk_mul_f32 v[{vACC+4*t}:{vACC+4*t+1}], v[{vACC+4*t}:{vACC+4*t+1}], v[{vT+2}:{vT+3}]")

    vWO, vW2 = vSC + 4, vSC + 36

    def issue_weights():
        assert st["pdone"] >= 12 and st.get("tail1")
        for i in range(16):
            if i % 4 == 0 and i:
                A(f"s_add_u32 {sT[0]}, {sT[0]}, {4*896}")
            VM(f"buffer_load_dwordx2 v[{vWO+2*i}:{vWO+2*i+1}], v{vT+16}, {SRD_WO}, {sT[0]} offen offset:{(i%4)*896} {wflags}")
        for i in range(8):
            if i % 4 == 0 and i:
                A(f"s_add_u32 {sT[1]}, {sT[1]}, {4*896}")
            st["w"] = VM(f"buffer_load_dwordx2 v[{vW2+2*i}:{vW2+2*i+1}], v{vT+16}, {SRD_W2}, {sT[1]} offen offset:{(i%4)*896} {wflags}")

    def issue_wdma(k):
        assert st.get("mlok")
        if k == 0:
            A(f"v_lshlrev_b32 v{vMAX}, 4, {vL}")
            A(f"s_lshl_b32 s10, {sH}, 5")
            A(f"s_add_u32 s10, s10, {sP}")
            A(f"s_mul_i32 s10, s10, {16*896}")
            A(f"s_mul_i32 s11, {sF}, {8*896}")
        wo = k < 4
        A(f"s_add_u32 s12, {sW}, {4*k if wo else 4*(k-4)}")
        A(f"s_min_u32 s12, s12, {13 if wo else 6}")
        A("s_lshl_b32 s12, s12, 10")
        A(f"s_add_u32 m0, s12, {STG if wo else STG + 14336}")
        A(f"s_add_u32 s12, s12, {'s10' if wo else 's11'}")
        idx = VM(f"buffer_load_dwordx4 v{vMAX}, {SRD_WO if wo else SRD_W2}, s12 offen {wflags} lds")
        m0bad["v"] = True
        st["w"] = idx
        return idx

    MO = ((2 * S) % R) * tb
    vMW, vMR, vO1, vH1, vH2, vXR, vOO = 6, 8, vT + 4, vT + 5, vT + 6, vT + 7, vT + 11
    sH2 = [f"s{4+k}" for k in range(16)]
    sP1, sP2, sCONS = "s68", "s69", "s70"

    def c_tail1():
        st["tail1"] = True
        A(f"v_and_b32 v{vT}, 15, {vL}")
        A(f"v_lshlrev_b32 v{vT}, 2, v{vT}")
        A(f"v_bfe_u32 v{vT+1}, {vL}, 4, 1")
        A(f"v_lshl_add_u32 v{vT}, v{vT+1}, 6, v{vT}")
        A(f"v_cmp_lt_u32 vcc, 15, {vL}")
        A(f"v_add_u32 v{vT+1}, 2048, v{vT}")
        A(f"s_add_u32 {sT[2]}, {sRING}, {MO}")
        A(f"v_cndmask_b32 v{vT}, v{vT}, v{vT+1}, vcc")
        A(f"v_add_u32 v{vMW}, {sT[2]}, v{vT}")
        A(f"v_add_u32 v{vMW+1}, 1024, v{vMW}")
        A(f"v_lshlrev_b32 v{vMR}, 3, {vL}")
        A(f"v_add_u32 v{vMR}, {MO}, v{vMR}")
        A(f"v_add_u32 v{vMR+1}, {2*R*tb}, v{vMR}")
        A(f"s_lshl_b32 {sP1}, {sH}, 5")
        A(f"s_add_u32 {sP1}, {sP1}, {sP}")
        A(f"s_mul_i32 {sT[0]}, {sP1}, {16*896}")
        A(f"s_mul_i32 {sT[1]}, {sF}, {8*896}")
        A(f"s_lshl_b32 {sP1}, {sP1}, 12")
        A(f"s_add_u32 {sP1}, {sP1}, {WS_P1O}")
        A(f"v_lshlrev_b32 v{vO1}, 4, {vL}")
        A(f"v_subrev_u32 v{vT}, 128, v0")
        A(f"v_cmp_gt_u32 vcc, 112, v{vT}")
        A(f"v_lshlrev_b32 v{vT+1}, 3, v{vT}")
        A(f"v_lshlrev_b32 v{vOO}, 4, v{vT}")
        A(f"v_bfrev_b32 v{vT+2}, 2")
        A(f"v_cndmask_b32 v{vT+16}, v{vT+2}, v{vT+1}, vcc")
        A(f"v_cndmask_b32 v{vOO}, v{vT+2}, v{vOO}, vcc")

    def c_tail2():
        A(f"v_lshrrev_b32 v{vT}, 3, {vL}")
        A(f"v_and_b32 v{vT+1}, 7, {vL}")
        A(f"v_lshlrev_b32 v{vT+1}, 4, v{vT+1}")
        A(f"v_lshl_add_u32 v{vH1}, v{vT}, 12, v{vT+1}")
        A(f"s_lshl_b32 {sT[2]}, {sH}, 17")
        A(f"s_lshl_b32 {sT[3]}, {sP}, 7")
        A(f"s_add_u32 {sT[2]}, {sT[2]}, {sT[3]}")
        A(f"s_add_u32 {sT[2]}, {sT[2]}, {WS_P1O}")
        for k in range(1, 4):
            A(f"s_add_u32 {sT[2+k]}, {sT[2]}, {k*32768}")
        A(f"s_lshl_b32 {sP2}, {sH}, 5")
        A(f"s_add_u32 {sP2}, {sP2}, {sP}")
        A(f"s_mul_i32 {sP2}, {sP2}, 3584")
        A(f"s_add_u32 {sP2}, {sP2}, {WS_P2}")
        A(f"v_mul_u32_u24 v{vT}, 3584, v{vT}")
        A(f"v_add_u32 v{vH2}, v{vT}, v{vT+1}")
        A(f"s_min_u32 {sT[6]}, {sP}, 27")
        A(f"s_lshl_b32 {sT[7]}, {sT[6]}, 7")
        A(f"s_mul_i32 {sH2[0]}, {sH}, {32*3584}")
        A(f"s_add_u32 {sH2[0]}, {sH2[0]}, {sT[7]}")
        A(f"s_add_u32 {sH2[0]}, {sH2[0]}, {WS_P2}")
        for k in range(1, 4):
            A(f"s_add_u32 {sH2[k]}, {sH2[0]}, {k*8*3584}")
        A(f"s_lshl_b32 {sH2[4]}, {sT[6]}, 3")
        A(f"s_add_u32 {sH2[4]}, {sH2[4]}, {sH}")
        A(f"s_lshl_b32 {sH2[4]}, {sH2[4]}, 7")
        A(f"s_add_u32 {sH2[4]}, {sH2[4]}, {WS_P3}")
        A(f"s_sub_u32 {sT[6]}, s2, 224")
        A(f"s_cmp_lt_u32 {sT[6]}, 28")
        A(f"s_cselect_b32 {sCONS}, 1, 0")
        A(f"s_cselect_b32 {sT[6]}, {sT[6]}, 0")
        A(f"s_lshl_b32 {sH2[5]}, {sT[6]}, 10")
        A(f"s_add_u32 {sH2[5]}, {sH2[5]}, {WS_P3}")
        A(f"s_cmp_ge_u32 {sT[6]}, 14")
        A(f"s_cselect_b32 {sT[8]}, {4 - 14*64}, 0")
        A(f"s_lshl_b32 {sT[6]}, {sT[6]}, 6")
        A(f"s_add_u32 {sT[6]}, {sT[6]}, {sT[8]}")
        A(f"v_lshrrev_b32 v{vT+1}, 1, v{vT+1}")
        A(f"v_add_u32 v{vT+17}, {sT[6]}, v{vT+1}")
        if pre1 is not None or pre2 is not None:
            A(f"s_lshl_b32 {sT[8]}, {sW}, 10")
            A(f"v_lshlrev_b32 v{vT}, 4, v0")
        if pre1 is not None:
            A(f"s_lshl_b32 {sT[7]}, {sW}, 11")
            A(f"s_sub_u32 {sT[7]}, {sP1}, {sT[7]}")
            if pre1.startswith("ld"):
                VM(f"buffer_load_dwordx4 v[{vT+12}:{vT+15}], v{vT}, {SRD_WS}, {sT[7]} offen {pre1[2:]}")
            else:
                for k in range(4):
                    A(f"v_mov_b32 v{vT+12+k}, 0")
                A(f"v_not_b32 v{vT+13}, {sTAG}")
                A(f"v_not_b32 v{vT+15}, {sTAG}")
                VM(f"buffer_store_dwordx4 v[{vT+12}:{vT+15}], v{vT}, {SRD_WS}, {sT[7]} offen {pre1[2:]}")
        if pre2 is not None:
            VM(f"buffer_load_dwordx4 v[{vT+12}:{vT+15}], v{vT}, {SRD_WS}, {sP2} offen {pre2[2:]}")

    PW, PW2, Y = vSC, vSC + 32, vSC + 48

    def c_wprep():
        assert st["pdone"] >= 13
        if wdma:
            assert lateprep and st["w"] <= vm["known"]
            A(f"v_subrev_u32 v{vT+16}, 128, v0")
            A(f"v_min_u32 v{vT+16}, 111, v{vT+16}")
            A(f"v_lshlrev_b32 v{vT+16}, 3, v{vT+16}")
            A(f"v_add_u32 v{vT+16}, {STG}, v{vT+16}")
            for i in range(24):
                A(f"ds_read_b64 v[{vWO+2*i}:{vWO+2*i+1}], v{vT+16} offset:{i*896}")
            A("s_waitcnt lgkmcnt(0)")
        elif lateprep:
            A("s_waitcnt vmcnt(4)")
        else:
            wait_vm(st["w"])
            A(f"s_cmp_lt_u32 {sW}, 2")
            A("s_cbranch_scc1 L_noprep")
        A(f"s_mov_b32 {sT[6]}, 0x05040100")
        A(f"s_mov_b32 {sT[7]}, 0x07060302")
        for k in range(12):
            for cp in range(2):
                A(f"v_perm_b32 v{PW+4*k+2*cp}, v{vWO+4*k+2+cp}, v{vWO+4*k+cp}, {sT[6]}")
                A(f"v_perm_b32 v{PW+4*k+2*cp+1}, v{vWO+4*k+2+cp}, v{vWO+4*k+cp}, {sT[7]}")
        for c in range(4):
            A(f"v_mov_b32 v{Y+2*c}, 0")
            A(f"v_mov_b32 v{Y+2*c+1}, {sTAG}")
        A("s_cmp_lt_u32 s2, 224")
        A("s_cbranch_scc0 L_noprep")
        for k in range(4):
            for c in range(4):
                A(f"v_dot2_f32_bf16 v{Y+2*c}, v{vH+2*k}, v{PW2+4*k+c}, v{Y+2*c}")
        A("L_noprep:")

    def do_touch():
        A(f"s_lshl_b32 {sT[8]}, {sW}, 15")
        A(f"s_add_u32 {sT[8]}, {sT[8]}, {sT[2]}")
        if touch == "sc1":
            VM(f"buffer_load_dword v{vT+12}, v{vH1}, {SRD_WS}, {sT[8]} offen sc1")
        else:
            A(f"s_cmp_eq_u32 {sLOC}, 1")
            A("s_cbranch_scc0 L_tfar")
            A(f"buffer_load_dword v{vT+12}, v{vH1}, {SRD_WS}, {sT[8]} offen")
            A("s_branch L_tdone")
            A("L_tfar:")
            VM(f"buffer_load_dword v{vT+12}, v{vH1}, {SRD_WS}, {sT[8]} offen sc1")
            A("L_tdone:")
        if touch2:
            A(f"s_mul_i32 {sT[8]}, {sW}, {8*3584}")
            A(f"s_add_u32 {sT[8]}, {sT[8]}, {sH2[0]}")
            VM(f"buffer_load_dword v{vT+13}, v{vH2}, {SRD_WS}, {sT[8]} offen sc1")

    def c_rkprobe(c):
        A(f"s_cmp_eq_u32 {sW}, {rkw}")
        A(f"s_cbranch_scc0 L_rkp{c}")
        A(f"s_lshl_b32 s18, {sH}, 7")
        A(f"s_add_u32 s18, s18, {WS_RK + c*1024}")
        A(f"s_lshl_b32 s19, {sP}, 2")
        A(f"s_add_u32 s19, s19, s18")
        A(f"v_lshlrev_b32 v{vT+18}, 2, {vL}")
        A(f"v_mov_b32 v{vT+19}, {sTAG}")
        A("s_mov_b32 exec_hi, 0")
        A(f"buffer_load_dword v255, v{vT+18}, {SRD_WS}, s18 offen sc1")
        A("s_mov_b32 exec_lo, 1")
        A(f"buffer_store_dword v{vT+19}, off, {SRD_WS}, s19")
        A("s_mov_b64 exec, -1")
        A(f"L_rkp{c}:")
        st["rk_n"] = vm["n"]

    def c_rkdecide(c, L):
        _, hi, gh, lo, gl = rk[c]
        A(f"s_cmp_eq_u32 {sW}, {rkw}")
        A(f"s_cbranch_scc0 L_rkd{c}")
        A(f"v_cmp_eq_u32 vcc, {sTAG}, v255")
        A("s_bcnt1_i32_b32 s18, vcc_lo")
        A(f"s_max_u32 {sWE}, s18, {hi}")
        A(f"s_sub_u32 {sWE}, {sWE}, {hi}")
        A(f"s_mul_i32 {sWE}, {sWE}, {gh}")
        A(f"s_add_u32 {sWE}, {sWE}, {L + 5}")
        A(f"s_cmp_gt_u32 s18, {hi}")
        A(f"s_cselect_b32 {sWE}, {sWE}, 0")
        A(f"s_min_u32 {sNE}, s18, {lo}")
        A(f"s_sub_u32 {sNE}, {lo}, {sNE}")
        A(f"s_mul_i32 {sNE}, {sNE}, {gl}")
        A(f"s_add_u32 {sNE}, {sNE}, {L + 5}")
        A(f"s_cmp_lt_u32 s18, {lo}")
        A(f"s_cselect_b32 {sNE}, {sNE}, 0")
        A(f"v_mov_b32 v{vT+18}, {sWE}")
        A(f"v_mov_b32 v{vT+19}, {sNE}")
        A(f"ds_write_b64 v254, v[{vT+18}:{vT+19}]")
        A(f"L_rkd{c}:")
        st["rk_on"] = True

    def c_last():
        for t in range(16):
            if t in (0, 4, 8):
                A(f"s_waitcnt lgkmcnt({ {0: 12, 4: 8, 8: 0}[t] })")
            if t >= 8:
                u = t - 8
                A(f"ds_write2_b32 v{vMW}, v{vACC+4*u}, v{vACC+4*u+1} offset0:{u*16} offset1:{u*16+128}")
            pv(False, t, t + 1)
        if stamps:
            lds_wait(True)
        stamp()
        A("s_nop 0")
        for u in range(8, 16):
            A(f"ds_write2_b32 v{vMW+1}, v{vACC+4*u}, v{vACC+4*u+1} offset0:{(u%8)*16} offset1:{(u%8)*16+128}")

    chunks = []
    C = lambda fn, need=None, free=None: chunks.append((need, free, fn))
    backlog = list(range(NB))
    for n in range(S):
        slot = (n % R) * tb
        if n < NB:
            C(lambda n=n, slot=slot: read_k(32 * n, slot, True), need=n)
            C(lambda: lds_wait(True), free=n)
            if n == NP:
                C(c_qpoll)
            if n == NB - 1:
                C(c_qcheck)
                C(c_qread)
        else:
            C(lambda slot=slot: read_k(vTL, slot), need=n)
            C(lambda: (lds_wait(True), qk_mfma(vTL, False)), free=n)
            C(lambda n=n: qk_post(vSC + 4 * n))
            for _ in range(2):
                if backlog:
                    m = backlog.pop(0)
                    C(lambda m=m: qk_mfma(32 * m, True))
                    C(lambda m=m: qk_post(vSC + 4 * m))
    assert not backlog
    C(c_kmax)
    lq = list(range(S))
    assert vgat % 2 == 1 and vpub % 2 == 1
    for n in range(S):
        j = S + n
        slot = (j % R) * tb
        if n == vgat + 3:
            C(c_rescale)
        if n == S - 2:
            C(lambda: make_p(S - 2))
            C(lambda: make_p(S - 1))
            if not lateprep:
                C(c_wprep)
        elif n < S - 2:
            C(lambda n=n: make_p(n))
        C(lambda slot=slot, n=n: read_v(slot, n & 1), need=j)
        if tat == j:
            C(do_touch)
        if wat == j:
            C(issue_weights)
        if n % 2 == 0:
            C(lambda: lds_wait(True), free=j)
        elif n == S - 1:
            C(c_last)
        else:
            C(lambda n=n: (lds_wait(True), pv(n == 1, 0, 8)), free=j)
            C(lambda n=n: pv(n == 1, 8, 16))
        for _ in range(3 if n % 2 == 0 else 2):
            if lq:
                m0, m1 = lq.pop(0), lq.pop(0)
                C(lambda m0=m0, m1=m1: (lsum(vSC + 4 * m0), lsum(vSC + 4 * m1)))
                if not lq:
                    C(c_lwrite)
        if n == vpub:
            assert not lq
            C(c_mlpub)
        if n == vgat:
            C(c_mlpoll)
        if n == vgat + 1:
            C(c_mlcheck)
            C(c_mlscale)
        if n == vgat + 3:
            C(c_tail1)
            C(c_tail2)

    freed = set()

    def emit_chunk(q, block):
        need, free, fn = q[0]
        if need is not None:
            last = need * T + T - 1
            if last not in lidx:
                assert not block
                return False
            if lidx[last] > vm["known"]:
                if not block:
                    return False
                wait_vm(lidx[last])
        q.pop(0)
        fn()
        if free is not None:
            freed.add(free)
        return True

    def tagfix():
        A("s_waitcnt lgkmcnt(0)")
        A(f"s_mul_i32 {sTAG}, {sTAG}, 1664525")
        A(f"s_add_u32 {sTAG}, {sTAG}, 1013904223")

    def stream(L0, L1, win, q, paced):
        for L in range(L0, L1):
            j, i = divmod(L, T)
            Nw = win(L)
            if ext and X * T <= L < ext[0] and Nw < ext[1]:
                wait_vm(paced[-ext[1]])
                A(f"s_cmp_lt_u32 {sZ}, 92")
                A(f"s_cbranch_scc1 L_x{L}")
                A(f"s_waitcnt vmcnt({vm['n'] - paced[-Nw]})")
                A(f"L_x{L}:")
            elif st.get("rk_on") and Nw <= N + 1:
                wait_vm(paced[-(Nw + Nhi - N)])
                A(f"s_cmp_gt_u32 {sWE}, {L}")
                A(f"s_cbranch_scc1 L_x{L}")
                A(f"s_waitcnt vmcnt({vm['n'] - paced[-Nw]})")
                if any(r[3] for r in rk):
                    A(f"s_cmp_gt_u32 {sNE}, {L}")
                    A(f"s_cbranch_scc0 L_x{L}")
                    A(f"s_waitcnt vmcnt({vm['n'] - paced[-Nlo]})")
                A(f"L_x{L}:")
            elif len(paced) >= Nw:
                wait_vm(paced[-Nw])
            if L == NL - tail - T:
                st["rk_off"] = True
            if i == 0 and j >= R:
                while (j - R) not in freed:
                    emit_chunk(q, True)
            issue_load(L)
            paced.append(lidx[L])
            if L == NL - 1 - tpos and touch is not None and tat is None:
                do_touch()
            if L == NL - 1 - wpos and not now and not wearly and not wafter and wat is None and not wdma:
                issue_weights()
            if wdma and L >= wdma[0] and (L - wdma[0]) % wdma[1] == 0 and (L - wdma[0]) // wdma[1] < 6:
                if wdma[2]:
                    wait_vm(paced[-Nw])
                    paced.append(issue_wdma((L - wdma[0]) // wdma[1]))
                else:
                    issue_wdma((L - wdma[0]) // wdma[1])
            did = False
            for c, r_ in enumerate(rk):
                if L == r_[0] and not st.get("rk_rd"):
                    c_rkprobe(c)
                    st["rk_pend"] = c
                    did = True
                elif L == r_[0]:
                    raise AssertionError("probe between a tile read and its wait")
            if st.get("rk_pend") is not None and vm["known"] > st["rk_n"] and not st.get("rk_rd") and not did:
                c_rkdecide(st["rk_pend"], L)
                st["rk_pend"] = None
                did = True
            if q and not did and (L < NL - tail or Nend <= N + 2):
                emit_chunk(q, False)

    def win_main(L):
        Nw = Nend if L >= NL - tail else N
        if kopen and NL // 2 - kopen[0] <= L < NL // 2:
            Nw = kopen[1]
        for b_ in bump:
            if b_[0] <= L < b_[1]:
                Nw = b_[2]
        if alt and Nw == N and (L // alt[1]) % alt[2] == 0:
            Nw = alt[0]
        return Nw

    split = next(k for k, ch in enumerate(chunks) if ch[0] == X - 1)
    head_chunks, rest = chunks[:split], chunks[split:]
    assert X - 1 <= NP
    ends = []
    A(f"s_cmp_lt_u32 {sZ}, 92")
    A("s_cbranch_scc1 L_producer")
    for path in ("n", "p"):
        vm.update(n=0, known=0)
        lidx.clear()
        freed.clear()
        paced = []
        stg = {"i": 0}

        def issue_stg():
            i = stg["i"]
            if rot:
                if i == 0:
                    A(f"s_mul_i32 {sT[3]}, {sZ}, 4682")
                    A(f"s_lshr_b32 {sT[3]}, {sT[3]}, 16")
                    A(f"s_mul_i32 {sT[3]}, {sT[3]}, 14")
                    A(f"s_sub_u32 {sT[3]}, {sZ}, {sT[3]}")
                else:
                    A(f"s_add_u32 {sT[3]}, {sT[3]}, 1")
                    A(f"s_cmp_eq_u32 {sT[3]}, 14")
                    A(f"s_cselect_b32 {sT[3]}, 0, {sT[3]}")
                A(f"s_lshl_b32 {sT[9]}, {sT[3]}, 10")
                A(f"s_add_u32 m0, {sT[6]}, {sT[9]}")
                A(f"s_mul_i32 {sT[9]}, {sT[3]}, {sT[4]}")
                A(f"s_add_u32 {sT[9]}, {sT[9]}, {sT[5]}")
                st["stg"] = VM(f"buffer_load_dwordx4 v21, {SRD_W}, {sT[9]} offen {wflags} lds")
            else:
                A(f"s_add_u32 m0, {sT[6]}, {i*1024}")
                if i:
                    A(f"s_add_u32 {sT[5]}, {sT[5]}, {sT[4]}")
                else:
                    A("s_nop 0")
                st["stg"] = VM(f"buffer_load_dwordx4 v21, {SRD_W}, {sT[5]} offen {wflags} lds")
            paced.append(st["stg"])
            stg["i"] += 1
            m0bad["v"] = True
        if path == "n":
            for L in range(N0):
                issue_load(L)
                paced.append(lidx[L])
            setup()
            if wearly:
                issue_weights()
            q = list(head_chunks) + [(None, None, tagfix)]
            stream(N0, X * T, (lambda L: nn[1] if nn and L < nn[0] else win_main(L)), q, paced)
        else:
            A("L_producer:")
            st["x"] = VM(f"buffer_load_dwordx4 v[{vT}:{vT+3}], v31, {SRD_X}, 0 offen")
            if not il:
                while stg["i"] < 14:
                    issue_stg()
            for L in range(B0):
                issue_load(L)
                paced.append(lidx[L])
                if il and L % il == il - 1:
                    issue_stg()
            setup()
            if wearly == 1:
                issue_weights()
            if not il:
                for fn in side_chunks[:4]:
                    fn()
                q = [(None, None, fn) for fn in side_chunks[4:]] + list(head_chunks) + [(None, None, tagfix)]
                stream(B0, X * T, lambda L: Np if L < Xp else N, q, paced)
            else:
                Ls = 14 * il
                q = [(None, None, fn) for fn in side_chunks[:5]] + list(head_chunks)
                for L in range(B0, Ls):
                    stream(L, L + 1, lambda L: Np, q, paced)
                    if L % il == il - 1:
                        if len(paced) >= Np:
                            wait_vm(paced[-Np])
                        issue_stg()
                w2 = Np2 or N
                L = Ls
                while st["stg"] > vm["known"]:
                    stream(L, L + 1, lambda L: w2, q, paced)
                    L += 1
                assert all(ch[2] not in side_chunks for ch in q)
                if q and q[0][1] is not None:
                    emit_chunk(q, True)
                q = [(None, None, fn) for fn in side_chunks[5:]] + ([(None, None, issue_weights)] if wearly == 2 else []) + q + [(None, None, tagfix)]
                stream(L, X * T, lambda L: w2 if L < Xp else N, q, paced)
        while q:
            emit_chunk(q, True)
        known_L = max([L for L in lidx if lidx[L] <= vm["known"]] + [-1])
        ends.append(({L: vm["n"] - lidx[L] for L in range(X * T - 16, X * T)}, known_L, set(freed)))
        if path == "n":
            A("s_branch L_join")
    A("L_join:")
    stamp(1)
    assert ends[0][0] == ends[1][0] and ends[0][2] == ends[1][2], ends
    vm["known"] = lidx[min(ends[0][1], ends[1][1])]
    stream(X * T, NL, win_main, rest, [lidx[L] for L in range(X * T - 16, X * T)])
    while rest:
        emit_chunk(rest, True)

    O4, G = 32, 64
    for k in range(1, 16, 2):
        A(f"v_mov_b32 v{G+k}, {sTAG}")
    A(f"s_cmp_eq_u32 {sW}, 1")
    A("s_waitcnt lgkmcnt(0)")
    A("s_barrier")
    A("s_cbranch_scc0 L_not1")
    for qd in range(4):
        for w in range(4):
            r = O4 + 8 * qd + 2 * w
            A(f"ds_read_b64 v[{r}:{r+1}], v{vMR+w//2} offset:{(w%2)*R*tb + qd*512}")
    A(f"s_cmp_eq_u32 {sLOC}, 1")
    A("s_cbranch_scc0 L_far1")
    for far in (0, 1):
        if far:
            A("L_far1:")
        for qd in range(4):
            r = O4 + 8 * qd
            A(f"s_waitcnt lgkmcnt({12 - 4*qd})")
            A(f"v_pk_add_f32 v[{r}:{r+1}], v[{r}:{r+1}], v[{r+2}:{r+3}]")
            A(f"v_pk_add_f32 v[{r+4}:{r+5}], v[{r+4}:{r+5}], v[{r+6}:{r+7}]")
            A(f"v_add_f32 v{G+4*qd}, v{r}, v{r+4}")
            A(f"v_add_f32 v{G+4*qd+2}, v{r+1}, v{r+5}")
            A(f"buffer_store_dwordx4 v[{G+4*qd}:{G+4*qd+3}], v{vO1}, {SRD_WS}, {sP1} offen offset:{(qd&1)*2048 + (qd>>1)*1024}" + (" sc1" if far else ""))
        if stamps:
            A("s_memrealtime s[94:95]")
        A("s_branch L_leave")
    nstamp["n"] += 1 if stamps else 0
    A("L_not1:")
    A(f"s_cmp_ge_u32 {sW}, 2")
    A("s_cbranch_scc1 L_bwave")
    A(f"s_mov_b32 {sT[9]}, {spin}")
    A(f"s_cmp_lt_u32 {sP}, 28")
    A("s_cbranch_scc0 L_final")

    YG = 96
    A("L_h2:")
    for k in range(4):
        A(f"buffer_load_dwordx4 v[{YG+4*k}:{YG+4*k+3}], v{vH2}, {SRD_WS}, {sH2[k]} offen sc1")
    A("s_waitcnt vmcnt(0)")
    tagcheck([YG + 1 + 2 * i for i in range(8)], vT, vT + 1)
    A("s_cbranch_vccz L_h2ok")
    if sleep2:
        A(f"s_sleep {sleep2}")
    A(f"s_sub_u32 {sT[9]}, {sT[9]}, 1")
    A("s_cbranch_scc0 L_h2")
    A("L_h2ok:")
    if stamps:
        A("s_memrealtime s[96:97]")
    A(f"v_add_f32 v{G}, v{YG}, v{YG+4}")
    A(f"v_add_f32 v{G+2}, v{YG+2}, v{YG+6}")
    A(f"v_add_f32 v{YG+8}, v{YG+8}, v{YG+12}")
    A(f"v_add_f32 v{YG+10}, v{YG+10}, v{YG+14}")
    A(f"v_add_f32 v{G}, v{G}, v{YG+8}")
    A(f"v_add_f32 v{G+2}, v{G+2}, v{YG+10}")
    allreduce("v_add_f32", [G, G + 2], vT, [8, 16, 32])
    A("s_mov_b64 exec, 0xff")
    A(f"buffer_store_dwordx4 v[{G}:{G+3}], v{vO1}, {SRD_WS}, {sH2[4]} offen sc1")
    A("s_branch L_done")

    A("L_final:")
    A(f"s_cmp_eq_u32 {sCONS}, 1")
    A("s_cbranch_scc0 L_done")
    A("s_barrier")
    A(f"buffer_load_dword v{vXR}, v{vT+17}, {SRD_X}, 0 offen")
    if outpf:
        A(f"buffer_load_dword v{vT+12}, v{vT+17}, {SRD_OUT}, 0 offen")
    for d in range(depth3 - 1):
        A(f"buffer_load_dwordx4 v[{YG+4*d}:{YG+4*d+3}], v{vO1}, {SRD_WS}, {sH2[5]} offen sc1")
    A("L_h3:")
    for d in range(depth3):
        n = (d + depth3 - 1) % depth3
        A(f"buffer_load_dwordx4 v[{YG+4*n}:{YG+4*n+3}], v{vO1}, {SRD_WS}, {sH2[5]} offen sc1")
        A(f"s_waitcnt vmcnt({depth3 - 1})")
        A(f"v_mov_b32 v{G}, v{YG+4*d}")
        A(f"v_mov_b32 v{G+2}, v{YG+4*d+2}")
        tagcheck([YG + 4 * d + 1, YG + 4 * d + 3], vT, vT + 1)
        A("s_cbranch_vccz L_h3ok")
    A(f"s_sub_u32 {sT[9]}, {sT[9]}, 1")
    A("s_cbranch_scc0 L_h3")
    A("L_h3ok:")
    if stamps:
        A("s_memrealtime s[98:99]")
    allreduce("v_add_f32", [G, G + 2], vT, [8, 16, 32])
    A(f"v_lshlrev_b32 v{vT+2}, 16, v{vXR}")
    A(f"v_and_b32 v{vT+3}, 0xffff0000, v{vXR}")
    A(f"v_add_f32 v{G}, v{G}, v{vT+2}")
    A(f"v_add_f32 v{G+2}, v{G+2}, v{vT+3}")
    A("s_mov_b64 exec, 0xff")
    A(f"v_cvt_pk_bf16_f32 v{G}, v{G}, v{G+2}")
    A(f"buffer_store_dword v{G}, v{vT+17}, {SRD_OUT}, 0 offen")
    A("s_cmp_eq_u32 s2, 224")
    A("s_cbranch_scc0 L_done")
    A("s_mov_b64 exec, 1")
    A(f"buffer_store_dword v{G+1}, off, {SRD_WS}, 0 sc1")
    A("s_branch L_done")

    A("L_bwave:")
    if wafter:
        issue_weights()
    OG = 144

    def hop1_loads(fl="sc1"):
        for k in range(4):
            A(f"buffer_load_dwordx4 v[{OG+4*k}:{OG+4*k+3}], v{vH1}, {SRD_WS}, {sT[2+k]} offen {fl}")
    if plain1:
        A(f"s_cmp_eq_u32 {sLOC}, 1")
        A("s_cbranch_scc0 L_h1far")
        hop1_loads("")
        A("s_branch L_h1first")
        A("L_h1far:")
    hop1_loads()
    A("L_h1first:")
    if lateprep:
        c_wprep()
    A(f"s_mov_b32 {sT[9]}, {spin}")
    A("L_h1chk:")
    A("s_waitcnt vmcnt(0)")
    tagcheck([OG + 1 + 2 * i for i in range(8)], vT, vT + 1)
    A("s_cbranch_vccz L_h1ok")
    A(f"s_sub_u32 {sT[9]}, {sT[9]}, 1")
    A("s_cbranch_scc1 L_h1ok")
    if sleep1:
        A(f"s_sleep {sleep1}")
    hop1_loads()
    A("s_branch L_h1chk")
    A("L_h1ok:")
    stamp()
    oa, ob = vT, vT + 1
    A(f"v_add_f32 v{oa}, v{OG}, v{OG+4}")
    A(f"v_add_f32 v{ob}, v{OG+2}, v{OG+6}")
    A(f"v_add_f32 v{OG+8}, v{OG+8}, v{OG+12}")
    A(f"v_add_f32 v{OG+10}, v{OG+10}, v{OG+14}")
    A(f"v_add_f32 v{oa}, v{oa}, v{OG+8}")
    A(f"v_add_f32 v{ob}, v{ob}, v{OG+10}")
    allreduce("v_add_f32", [oa, ob], vT + 2, [8, 16, 32])
    A(f"v_cvt_pk_bf16_f32 v{oa}, v{oa}, v{ob}")
    A("s_nop 0")
    for k in range(8):
        A(f"v_readlane_b32 {sT[k]}, v{oa}, {k}")
    for cp in range(2):
        for k in range(8):
            for c in (2 * cp, 2 * cp + 1):
                A(f"v_dot2_f32_bf16 v{Y+2*c}, {sT[k]}, v{PW+4*k+c}, v{Y+2*c}")
    A(f"s_cmp_eq_u32 {sLOC}, 1")
    A("s_cbranch_scc0 L_far2")
    A(f"buffer_store_dwordx4 v[{Y}:{Y+3}], v{vOO}, {SRD_WS}, {sP2} offen")
    A(f"buffer_store_dwordx4 v[{Y+4}:{Y+7}], v{vOO}, {SRD_WS}, {sP2} offen offset:1792")
    A("s_branch L_sent2")
    A("L_far2:")
    A(f"buffer_store_dwordx4 v[{Y}:{Y+3}], v{vOO}, {SRD_WS}, {sP2} offen sc1")
    A(f"buffer_store_dwordx4 v[{Y+4}:{Y+7}], v{vOO}, {SRD_WS}, {sP2} offen offset:1792 sc1")
    A("L_sent2:")
    stamp()
    A("L_leave:")
    A(f"s_cmp_eq_u32 {sCONS}, 1")
    A("s_cbranch_scc0 L_done")
    A("s_barrier")
    A("L_done:")
    if stamps:
        A("s_mov_b64 exec, -1")
        A("s_memrealtime s[100:101]")
        A("s_waitcnt lgkmcnt(0)")
        A(f"s_lshl_b32 {sT[0]}, s2, 2")
        A(f"s_add_u32 {sT[0]}, {sT[0]}, {sW}")
        A(f"s_lshl_b32 {sT[1]}, {sT[0]}, 8")
        A(f"s_lshl_b32 {sT[0]}, {sT[0]}, 6")
        A(f"s_add_u32 {sT[0]}, {sT[0]}, {WS_STAMP}")
        A(f"s_add_u32 {sT[1]}, {sT[1]}, {WS_STAMP + 0x10000}")
        A(f"v_lshlrev_b32 v2, 2, {vL}")
        A(f"buffer_store_dword v252, v2, {SRD_WS}, {sT[1]} offen")
        A("v_mov_b32 v2, 0")
        A("s_mov_b64 exec, 1")
        A("v_mov_b32 v3, s26")
        A(f"buffer_store_dword v3, v2, {SRD_WS}, {sT[0]} offen offset:44")
        for k in range(9):
            A(f"v_mov_b32 v3, s{84+2*k}")
            A(f"buffer_store_dword v3, v2, {SRD_WS}, {sT[0]} offen offset:{4*k}")
        A("s_getreg_b32 s84, hwreg(HW_REG_XCC_ID)")
        A("v_mov_b32 v3, s84")
        A(f"buffer_store_dword v3, v2, {SRD_WS}, {sT[0]} offen offset:36")
        A(f"v_mov_b32 v3, {sT[9]}")
        A(f"buffer_store_dword v3, v2, {SRD_WS}, {sT[0]} offen offset:40")
    A("L_end:")
    A("s_endpgm")
    body = "\n".join(("" if l.endswith(":") else "    ") + l for l in o)
    return HEADER.format(lds=LDS, k=kern) + body + FOOTER.format(k=kern)


if __name__ == "__main__":
    out = sys.argv[1]
    kw = json.loads(sys.argv[2]) if len(sys.argv) > 2 else {}
    open(out, "w").write(gen(**kw))
```

```python
import sys, json, math, struct
from gen import HEADER, FOOTER, KERN, f2u, LOG2E_16

WS_QG = 0x1000
WS_HG = WS_QG + 0x4000
WS_ML = 0x8000
WS_RK = 0xA000
WS_P1O = 0x10000
WS_P2 = 0x110000
WS_P3 = 0x1F0000
WS_STAMP = 0x300000
WS_SIZE = 0x400000


def gen(R=3, N=5, N0=8, Nend=8, tail=3, NB=8, NP=6, bits="i0 i1 w0 w1 i2 g3 g4 t2 t3 x0 x1 x2 t0 t1",
        kflags="nt", vflags="nt", wflags="nt", stamps=0, spin=200000, vpub=5, vgat=9, wpos=0, flat2=False, gate2=False, kopen=(24, 8), lateprep=True, pre1=None, pre2=None, plain1=False, touch="sc1", tpos=0, codepf=False, tlbpf=False, outpf=True, nn=(32, 4), ext=None, depth3=2, touch2=True, now=False, wafter=False, wat=None, tat=None, bump=(), epfl="", outfl="", pipe=False, skipw=True, wlate=None, wtlb=None, wdma=None, rk=((64, 20, 4, 0, 0), (186, 18, 5, 0, 0)), rkw=1, Nhi=6, Nlo=4, sleep1=0, sleep2=0,
        alt=None, X=7, Np=12, B0=6, Xp=None, il=0, Np2=9, zmap="wg", rot=True, hmap="mod8", local=True,
        kern=KERN):
    noend = noml = False
    wearly = 0
    T = 8
    tb = T * 1024
    S = 16
    pos = {n: 10 + k for k, n in enumerate(bits.split())}
    assert pos["i0"] == 10 and pos["i1"] == 11
    RING = 4 * R * tb
    STG = RING
    QW = STG + 57344
    LML = QW + 4096
    FIN = LML + 128
    LDS = FIN + 256
    assert LDS <= 163840 and LDS > 81920
    if Xp is None:
        Xp = X * T

    o = []
    A = o.append
    vm = {"n": 0, "known": 0}

    def VM(s):
        A(s)
        vm["n"] += 1
        return vm["n"]

    def wait_vm(idx, force=False):
        if idx <= vm["known"] and not force:
            return
        n = vm["n"] - idx
        assert 0 <= n <= 63, n
        A(f"s_waitcnt vmcnt({n})")
        if vm.get("opt"):
            vm["lbl"] = vm.get("lbl", 0) + 1
            A(f"s_cmp_ge_u32 s3, 2")
            A(f"s_cbranch_scc1 L_ow{vm['lbl']}")
            A(f"s_waitcnt vmcnt({n - vm['opt']})")
            A(f"L_ow{vm['lbl']}:")
        vm["known"] = max(vm["known"], idx)

    nstamp = {"n": 0}

    def stamp(mode=1):
        if stamps and (int(stamps) & mode):
            k = nstamp["n"]
            assert k < 8
            A(f"s_memrealtime s[{84+2*k}:{85+2*k}]")
            nstamp["n"] += 1

    SRD_K, SRD_V, SRD_W, SRD_WO, SRD_W2, SRD_WS, SRD_X, SRD_OUT = ("s[28:31]", "s[32:35]", "s[36:39]", "s[40:43]",
                                                                     "s[44:47]", "s[48:51]", "s[52:55]", "s[56:59]")
    sW, sH, sP, sTAG, sRING, sBASE, sC, sF = "s3", "s60", "s61", "s62", "s63", "s64", "s65", "s66"
    sOFF = "s67"
    sZ = "s27"
    sT = ["s72", "s73", "s74", "s75", "s76", "s77", "s78", "s79", "s80", "s81"]
    vL = "v1"
    vSRC = [2, 3, 4, 5]
    vKA = [6, 7, 8, 9]
    vVA = list(range(10, 18))
    vMAX, vMS = 18, 19
    vPF, vLS, vS, vE = 20, 24, 24, 28
    vVT = 32
    sLOC, sXCC = "s82", "s83"
    sWE, sNE = "s16", "s17"
    vQ, vTL, vACC, vSC, vT = 32, 64, 96, 160, 224
    vH = 244

    def srd(base, lo, size):
        A(f"s_mov_b32 s{base}, s{lo}")
        A(f"s_mov_b32 s{base+1}, s{lo+1}")
        A(f"s_mov_b32 s{base+2}, {size}")
        A(f"s_mov_b32 s{base+3}, 0x20000")

    assert hmap == "mod8" and zmap == "wg" and not il
    sZ = "s2"
    A("s_load_dwordx2 s[28:29], s[0:1], 8")
    A("s_load_dwordx16 s[4:19], s[0:1], 0")
    A("s_load_dwordx4 s[20:23], s[0:1], 64")
    A("s_load_dwordx2 s[24:25], s[0:1], 80")
    stamp(3)
    A("v_lshrrev_b32 v30, 6, v0")
    A("s_cmp_lt_u32 s2, 92")
    A("s_cbranch_scc1 L_producer")
    A("s_cmp_ge_u32 s2, 256")
    A("s_cbranch_scc1 L_end")

    def put(src, names):
        assert all(pos[names[k]] == pos[names[0]] + k for k in range(len(names)))
        A(f"s_lshl_b32 {sT[2]}, {src}, {pos[names[0]]}")
        A(f"s_or_b32 {sBASE}, {sBASE}, {sT[2]}")

    def common0():
        A(f"v_and_b32 {vL}, 63, v0")
        A("v_readfirstlane_b32 s3, v30")
        A(f"s_and_b32 {sH}, s2, 7")
        A(f"s_lshr_b32 {sP}, s2, 3")
        A(f"s_and_b32 {sT[0]}, {sP}, 7")
        A(f"s_lshr_b32 {sT[1]}, s2, 6")
        A(f"s_lshl_b32 {sBASE}, {sH}, 24")
        put(sT[0], ["x0", "x1", "x2"])
        put(sT[1], ["g3", "g4"])
        put(sW, ["w0", "w1"])
        A(f"s_mul_i32 {sRING}, {sW}, {R*tb}")
        A("s_brev_b32 s30, 16")
        A("s_mov_b32 s31, 0x20000")
        A(f"v_lshlrev_b32 v29, 4, {vL}")
        A(f"v_and_b32 v31, 32, {vL}")
        A(f"v_xor_b32 v{vSRC[0]}, v29, v31")
        A(f"v_xor_b32 v{vSRC[1]}, 64, v{vSRC[0]}")
        A(f"v_xor_b32 v{vSRC[2]}, 0x80, v{vSRC[0]}")
        A(f"v_xor_b32 v{vSRC[3]}, 64, v{vSRC[2]}")

    def common1():
        A(f"s_mov_b32 {sC}, 0x{f2u(LOG2E_16):08x}")
        A(f"s_min_u32 {sF}, s2, 223")

    def producer0():
        A("s_mov_b32 s39, 0x20000")
        A(f"s_cmp_lt_u32 {sZ}, 64")
        A(f"s_mov_b32 s38, {448*1792*2}")
        A(f"s_cmov_b32 s38, {448*4096*2}")
        A(f"s_movk_i32 {sT[4]}, 3584")
        A(f"s_cmovk_i32 {sT[4]}, 8192")
        A(f"s_and_b32 {sT[5]}, {sZ}, 63")
        A(f"s_lshl_b32 {sT[5]}, {sT[5]}, 7")
        A(f"s_mul_i32 {sT[6]}, {sW}, {sT[4]}")
        A(f"s_mulk_i32 {sT[6]}, 112")
        A(f"s_add_u32 {sT[5]}, {sT[5]}, {sT[6]}")
        A(f"v_lshrrev_b32 v30, 3, {vL}")
        A(f"v_mul_u32_u24 v30, {sT[4]}, v30")
        A(f"v_and_b32 v31, 0x70, v29")
        A("v_add_u32 v21, v31, v30")
        A(f"s_lshl_b32 {sT[4]}, {sT[4]}, 3")
        A(f"s_mul_i32 {sT[6]}, {sW}, 14336")
        A(f"s_add_u32 {sT[6]}, {sT[6]}, {STG}")
        A("s_movk_i32 s54, 896")
        A("s_mov_b32 s55, s39")
        A(f"s_movk_i32 {sT[3]}, 14")
        A("s_waitcnt lgkmcnt(0)")
        A("s_mov_b64 s[52:53], s[4:5]")
        A(f"s_cmp_lt_u32 {sZ}, 64")
        A("s_cselect_b64 s[36:37], s[10:11], s[16:17]")

    seq = [("K", n) for n in range(S)] + [("V", n) for n in range(S)]
    NL = len(seq) * T
    lidx = {}

    m0bad = {"v": False}

    def issue_load(L):
        j, i = divmod(L, T)
        kind, n = seq[j]
        if i % 4 and m0bad["v"]:
            A(f"s_add_u32 m0, {sRING}, {(j % R)*tb + (i // 4)*4096}")
            A("s_nop 0")
        m0bad["v"] = False
        if i % 4 == 0:
            g = sum(((n >> k) & 1) << pos[f"t{k}"] for k in range(4)) + ((i >> 2) << pos["i2"])
            A(f"s_add_u32 m0, {sRING}, {(j % R)*tb + i*1024}")
            A(f"s_add_u32 {sOFF}, {sBASE}, {g}")
        srd_, fl = (SRD_K, kflags) if kind == "K" else (SRD_V, vflags)
        lidx[L] = VM(f"buffer_load_dwordx4 v{vSRC[i%4]}, {srd_}, {sOFF} offen offset:{(i%4)*1024} {fl} lds")

    npf = {"n": 0}

    LFLAG = 0x600DF1A6

    def setup():
        A(f"s_lshl_b32 {sT[2]}, {sW}, 5")
        A(f"s_add_u32 {sT[2]}, {sT[2]}, {LML}")
        A(f"v_lshlrev_b32 v29, 2, {vL}")
        A(f"v_add_u32 v29, {sT[2]}, v29")
        A("v_mov_b32 v30, 0")
        A("s_mov_b64 exec, 0xff")
        A("ds_write_b32 v29, v30")
        if rk:
            A("ds_write_b32 v29, v30 offset:128")
        A("s_mov_b64 exec, -1")
        A("s_waitcnt lgkmcnt(0)")
        A("s_barrier")
        A(f"s_load_dword {sTAG}, s[24:25], 0")
        if tlbpf:
            A(f"s_lshr_b32 {sT[2]}, s2, 3")
            A(f"s_lshl_b32 {sT[2]}, {sT[2]}, 2")
            A(f"s_add_u32 {sT[2]}, {sT[2]}, {sW}")
            A(f"s_bitcmp1_b32 {sT[2]}, 3")
            A("s_cselect_b32 s70, s8, s6")
            A("s_cselect_b32 s71, s9, s7")
            A(f"s_and_b32 {sT[7]}, {sT[2]}, 7")
            A(f"s_lshl_b32 {sT[7]}, {sT[7]}, 21")
            A(f"s_lshl_b32 {sT[8]}, {sH}, 24")
            A(f"s_add_u32 {sT[7]}, {sT[7]}, {sT[8]}")
            A(f"s_lshl_b32 {sT[8]}, {sT[2]}, 7")
            A(f"s_add_u32 {sT[7]}, {sT[7]}, {sT[8]}")
            A(f"s_add_u32 s70, s70, {sT[7]}")
            A("s_addc_u32 s71, s71, 0")
            A(f"s_load_dword {sLOC}, s[70:71], 0x0")
            A(f"s_bitcmp1_b32 {sW}, 0")
            A("s_cselect_b32 s70, s12, s18")
            A("s_cselect_b32 s71, s13, s19")
            A(f"s_mov_b32 {sT[7]}, 6272")
            A(f"s_cmov_b32 {sT[7]}, 14336")
            A(f"s_mul_i32 {sT[7]}, {sT[7]}, s2")
            A(f"s_add_u32 s70, s70, {sT[7]}")
            A("s_addc_u32 s71, s71, 0")
            A(f"s_load_dword s21, s[70:71], 0x0" if False else f"s_load_dword {sXCC}, s[70:71], 0x0")
        if codepf:
            k = npf["n"]
            npf["n"] += 1
            A(f"s_getpc_b64 s[68:69]")
            A(f"L_pf{k}:")
            A(f"s_lshr_b32 {sT[2]}, s2, 3")
            A(f"s_lshl_b32 {sT[2]}, {sT[2]}, 2")
            A(f"s_add_u32 {sT[2]}, {sT[2]}, {sW}")
            A(f"s_lshl_b32 {sT[2]}, {sT[2]}, 8")
            A(f"s_min_u32 {sT[2]}, {sT[2]}, L_end-L_join-128")
            A(f"s_add_u32 {sT[2]}, {sT[2]}, L_join-L_pf{k}")
            A(f"s_add_u32 s68, s68, {sT[2]}")
            A("s_addc_u32 s69, s69, 0")
            A("s_load_dword s22, s[68:69], 0x0")
            A("s_load_dword s23, s[68:69], 0x80")
        srd(32, 8, 128 << 20)
        srd(40, 12, 4096 * 448 * 2)
        srd(44, 18, 1792 * 448 * 2)
        srd(48, 24, WS_SIZE)
        srd(56, 20, 896)
        if stamps:
            A("s_mov_b32 s26, 0")
            A("v_mov_b32 v252, 0")
            for k in (5, 6, 7):
                A(f"s_mov_b32 s{84+2*k}, s84")
        A(f"v_and_b32 v29, 15, {vL}")
        A(f"v_lshrrev_b32 v30, 4, {vL}")
        A("v_and_b32 v31, 7, v29")
        A("v_lshlrev_b32 v31, 1, v31")
        A("v_xor_b32 v31, v31, v30")
        A("v_lshlrev_b32 v31, 4, v31")
        A("v_lshl_add_u32 v31, v29, 9, v31")
        for j in range(4):
            A(f"v_xor_b32 v{vKA[j]}, {j*64}, v31")
            A(f"v_add_u32 v{vKA[j]}, {sRING}, v{vKA[j]}")
        A(f"v_lshrrev_b32 v29, 2, {vL}")
        A("v_and_b32 v30, 7, v29")
        A("v_lshlrev_b32 v30, 5, v30")
        A(f"v_and_b32 v31, 3, {vL}")
        A("v_lshlrev_b32 v31, 3, v31")
        A("v_or_b32 v31, v31, v30")
        A("v_lshl_add_u32 v31, v29, 9, v31")
        for t in range(8):
            A(f"v_xor_b32 v{vVA[t]}, {t*32}, v31")
            A(f"v_add_u32 v{vVA[t]}, {sRING}, v{vVA[t]}")
        A(f"v_mov_b32 v{vMAX}, 0xff800000")
        if rk:
            A(f"s_mov_b32 {sWE}, 0")
            A(f"s_mov_b32 {sNE}, 0")
            A(f"v_mov_b32 v254, {FIN}")

    def allreduce(op, regs, tmp, steps):
        for st in steps:
            if st <= 8:
                if len(regs) < 3:
                    A(f"s_nop {2-len(regs)}")
                for r in regs:
                    A(f"{op}_dpp v{r}, v{r}, v{r} row_ror:{st} row_mask:0xf bank_mask:0xf")
            else:
                for k, r in enumerate(regs):
                    A(f"v_mov_b32 v{tmp+k}, v{r}")
                if len(regs) < 3:
                    A(f"s_nop {2-len(regs)}")
                for k, r in enumerate(regs):
                    A(f"v_permlane{st}_swap_b32 v{r}, v{tmp+k}")
                if len(regs) < 2:
                    A("s_nop 0")
                for k, r in enumerate(regs):
                    A(f"{op} v{r}, v{r}, v{tmp+k}")

    XU = vT + 4
    a, b, c_, d_ = vT + 12, vT + 13, vT + 14, vT + 15
    XF, WF = 96, 152
    st = {}

    def side0():
        wait_vm(st["x"])
        stamp(2)
        for i in range(4):
            A(f"v_lshlrev_b32 v{XU+2*i}, 16, v{vT+i}")
            A(f"v_and_b32 v{XU+2*i+1}, 0xffff0000, v{vT+i}")
        A(f"v_add_f32 v{a}, v{XU}, v{XU+1}")
        for i in range(2, 8):
            A(f"v_add_f32 v{a}, v{a}, v{XU+i}")
        allreduce("v_add_f32", [a], b, [1, 2, 4, 8, 16, 32])

    def side1():
        A(f"v_mul_f32 v{a}, 0x{f2u(1.0/448):08x}, v{a}")
        A(f"v_mov_b32 v{b}, 0")
        for i in range(8):
            A(f"v_sub_f32 v{c_}, v{XU+i}, v{a}")
            A(f"v_fmac_f32 v{b}, v{c_}, v{c_}")
        A(f"v_cmp_gt_u32 vcc, 56, {vL}")
        A("s_nop 1")
        A(f"v_cndmask_b32 v{b}, 0, v{b}, vcc")
        allreduce("v_add_f32", [b], c_, [1, 2, 4, 8, 16, 32])

    def side2():
        A(f"v_mul_f32 v{b}, 0x{f2u(1.0/448):08x}, v{b}")
        A(f"v_cvt_pk_bf16_f32 v{c_}, v{a}, v{b}")
        A(f"v_lshlrev_b32 v{a}, 16, v{c_}")
        A(f"v_and_b32 v{b}, 0xffff0000, v{c_}")
        A(f"v_add_f32 v{b}, 0x{f2u(1e-5):08x}, v{b}")
        A(f"v_cvt_pk_bf16_f32 v{b}, v{b}, v{b}")
        A(f"v_and_b32 v{b}, 0xffff0000, v{b}")
        A(f"v_sqrt_f32 v{b}, v{b}")
        A("s_nop 0")
        A(f"v_cvt_pk_bf16_f32 v{b}, v{b}, v{b}")
        A(f"v_and_b32 v{b}, 0xffff0000, v{b}")
        A(f"v_rcp_f32 v{b}, v{b}")

    def side3():
        for i in range(8):
            A(f"v_sub_f32 v{XU+i}, v{XU+i}, v{a}")
        for i in range(4):
            A(f"v_cvt_pk_bf16_f32 v{vT+i}, v{XU+2*i}, v{XU+2*i+1}")
        for i in range(4):
            A(f"v_lshlrev_b32 v{XU+2*i}, 16, v{vT+i}")
            A(f"v_and_b32 v{XU+2*i+1}, 0xffff0000, v{vT+i}")
        for i in range(8):
            A(f"v_mul_f32 v{XU+i}, v{XU+i}, v{b}")
        for i in range(4):
            A(f"v_cvt_pk_bf16_f32 v{vT+i}, v{XU+2*i}, v{XU+2*i+1}")
        A(f"s_lshl_b32 {sT[0]}, {sW}, 10")
        A(f"s_add_u32 {sT[0]}, {sT[0]}, {QW}")
        A(f"v_lshlrev_b32 v{a}, 4, {vL}")
        A(f"v_add_u32 v{a}, {sT[0]}, v{a}")
        A(f"ds_write_b128 v{a}, v[{vT}:{vT+3}]")
        A(f"v_lshrrev_b32 v{b}, 4, {vL}")
        A(f"v_lshlrev_b32 v{c_}, 4, v{b}")
        A(f"v_add_u32 v{c_}, {sT[0]}, v{c_}")

    def side4():
        A("s_waitcnt lgkmcnt(0)")
        for i in range(14):
            A(f"ds_read_b128 v[{XF+4*i}:{XF+4*i+3}], v{c_} offset:{i*64}")
        A(f"v_lshlrev_b32 v{b}, 10, v{b}")
        A(f"v_bfe_u32 v{d_}, {vL}, 2, 2")
        A(f"v_lshl_add_u32 v{b}, v{d_}, 7, v{b}")
        A(f"v_and_b32 v{d_}, 3, {vL}")
        A(f"v_lshl_add_u32 v{b}, v{d_}, 3, v{b}")
        A(f"s_lshl_b32 {sT[1]}, {sW}, 5")
        A(f"s_add_u32 {sT[1]}, {sT[1]}, {STG}")
        A(f"v_add_u32 v{b}, {sT[1]}, v{b}")
        A(f"s_mul_i32 {sT[2]}, {sTAG}, 1664525")
        A(f"s_add_u32 {sT[2]}, {sT[2]}, 1013904223")

    def side5():
        stamp(2)
        wait_vm(st["stg"])
        A("s_waitcnt lgkmcnt(0)")
        A("s_barrier")
        stamp(2)
        for i in range(14):
            A(f"ds_read_b64_tr_b16 v[{WF+4*i}:{WF+4*i+1}], v{b} offset:{i*4096}")
            A(f"ds_read_b64_tr_b16 v[{WF+4*i+2}:{WF+4*i+3}], v{b} offset:{i*4096+512}")

    def side6():
        A(f"v_and_b32 v{d_}, 15, {vL}")
        A(f"v_cmp_eq_u32 s[70:71], 0, v{d_}")
        A(f"v_lshrrev_b32 v{a}, 4, {vL}")
        A(f"v_lshlrev_b32 v{a}, 4, v{a}")
        A(f"v_mov_b32 v{vT+1}, {sT[2]}")
        A(f"v_mov_b32 v{vT+3}, {sT[2]}")
        A(f"s_lshl_b32 {sT[0]}, {sZ}, 2")
        A(f"s_add_u32 {sT[0]}, {sT[0]}, {sW}")
        A(f"s_lshl_b32 {sT[0]}, {sT[0]}, 6")
        A(f"s_add_u32 {sT[0]}, {sT[0]}, {WS_QG}")
        A(f"s_cmp_lt_u32 {sZ}, 64")
        A(f"s_cselect_b32 {sT[1]}, 0xff800000, 0")

    def side7():
        A("s_waitcnt lgkmcnt(0)")
        for i in range(14):
            A(f"v_mfma_f32_16x16x32_bf16 v[{vS}:{vS+3}], v[{WF+4*i}:{WF+4*i+3}], v[{XF+4*i}:{XF+4*i+3}], " +
              ("0" if i == 0 else f"v[{vS}:{vS+3}]"))

    def side8():
        A("s_nop 7")
        for i in range(4):
            A(f"v_max_f32 v{vS+i}, {sT[1]}, v{vS+i}")
        A(f"v_cvt_pk_bf16_f32 v{vT}, v{vS}, v{vS+1}")
        A(f"v_cvt_pk_bf16_f32 v{vT+2}, v{vS+2}, v{vS+3}")
        A("s_mov_b64 exec, s[70:71]")
        A(f"buffer_store_dwordx4 v[{vT}:{vT+3}], v{a}, {SRD_WS}, {sT[0]} offen sc1")
        A("s_mov_b64 exec, -1")

    side_chunks = [side0, side1, side2, side3, side4, side5, side6, side7, side8]

    def tile_stamp_a():
        if stamps:
            A("s_memrealtime s[100:101]")
        if st.get("rk_on") and not st.get("rk_off"):
            A(f"ds_read_b64 v[{vT+18}:{vT+19}], v254")
            st["rk_rd"] = True

    def lds_wait(tile=False):
        A("s_waitcnt lgkmcnt(0)")
        if st.get("rk_rd"):
            A(f"v_readfirstlane_b32 {sWE}, v{vT+18}")
            A(f"v_readfirstlane_b32 {sNE}, v{vT+19}")
            st["rk_rd"] = False
        if stamps and tile:
            A("v_mov_b32 v253, s100")
            A(f"v_cmp_eq_u32 vcc, s26, {vL}")
            A("s_add_u32 s26, s26, 1")
            A("s_nop 0")
            A("v_cndmask_b32 v252, v252, v253, vcc")

    def read_k(dst, slot_imm, acc=False):
        tile_stamp_a()
        p = "a" if acc else "v"
        for j in range(8):
            A(f"ds_read_b128 {p}[{dst+4*j}:{dst+4*j+3}], v{vKA[j%4]} offset:{slot_imm + (j//4)*256}")

    def qk_mfma(src, acc):
        p = "a" if acc else "v"
        for j in range(8):
            A(f"v_mfma_f32_16x16x32_bf16 v[{vS}:{vS+3}], {p}[{src+4*j}:{src+4*j+3}], v[{vQ+4*j}:{vQ+4*j+3}], " +
              ("0" if j == 0 else f"v[{vS}:{vS+3}]"))

    def qk_post(sc):
        A("s_nop 7")
        A(f"v_cvt_pk_bf16_f32 v{sc+1}, v{vS}, v{vS+1}")
        A(f"v_cvt_pk_bf16_f32 v{sc+3}, v{vS+2}, v{vS+3}")
        A(f"v_lshlrev_b32 v{sc}, 16, v{sc+1}")
        A(f"v_and_b32 v{sc+1}, 0xffff0000, v{sc+1}")
        A(f"v_lshlrev_b32 v{sc+2}, 16, v{sc+3}")
        A(f"v_and_b32 v{sc+3}, 0xffff0000, v{sc+3}")
        A(f"v_max3_f32 v{vMAX}, v{sc}, v{sc+1}, v{vMAX}")
        A(f"v_max3_f32 v{vMAX}, v{sc+2}, v{sc+3}, v{vMAX}")

    def q_poll(emit):
        emit(f"buffer_load_dwordx4 v[{vT}:{vT+3}], v{vT+8}, {SRD_WS}, {sT[8]} offen sc1")
        emit(f"buffer_load_dwordx4 v[{vT+4}:{vT+7}], v{vT+8}, {SRD_WS}, {sT[8]} offen offset:1024 sc1")
        emit(f"buffer_load_dwordx4 v[{vH}:{vH+3}], off, {SRD_WS}, {sT[7]} sc1")
        return emit(f"buffer_load_dwordx4 v[{vH+4}:{vH+7}], off, {SRD_WS}, {sT[7]} offset:16 sc1")

    def tagcheck(regs, acc0, acc1):
        A(f"v_xor_b32 v{acc0}, {sTAG}, v{regs[0]}")
        A(f"v_xor_b32 v{acc1}, {sTAG}, v{regs[1]}")
        for i, r in enumerate(regs[2:]):
            acc = acc0 if i % 2 == 0 else acc1
            A(f"v_bitop3_b32 v{acc}, v{acc}, v{r}, {sTAG} bitop3:0xf6")
        A(f"v_or_b32 v{acc0}, v{acc0}, v{acc1}")
        A(f"v_cmp_ne_u32 vcc, 0, v{acc0}")

    def c_qpoll():
        A(f"s_lshl_b32 {sT[8]}, {sH}, 11")
        A(f"s_add_u32 {sT[8]}, {sT[8]}, {WS_QG}")
        A(f"s_lshl_b32 {sT[7]}, {sF}, 5")
        A(f"s_add_u32 {sT[7]}, {sT[7]}, {WS_HG}")
        A(f"v_lshlrev_b32 v{vT+8}, 4, {vL}")
        st["q"] = q_poll(VM)

    def c_qcheck():
        wait_vm(st["q"])
        A(f"s_mov_b32 {sT[0]}, {spin}")
        A("L_qchk:")
        tagcheck([vT + 1, vT + 3, vT + 5, vT + 7, vH + 1, vH + 3, vH + 5, vH + 7], vT + 9, vT + 10)
        A("s_cbranch_vccz L_qok")
        A(f"s_sub_u32 {sT[0]}, {sT[0]}, 1")
        A("s_cbranch_scc1 L_qok")
        q_poll(A)
        A("s_waitcnt vmcnt(0)")
        A("s_branch L_qchk")
        A("L_qok:")
        stamp()
        A(f"s_lshl_b32 {sT[0]}, {sW}, 10")
        A(f"s_add_u32 {sT[0]}, {sT[0]}, {QW}")
        A(f"v_lshlrev_b32 v{vT+9}, 3, {vL}")
        A(f"v_add_u32 v{vT+9}, {sT[0]}, v{vT+9}")
        A(f"ds_write2_b32 v{vT+9}, v{vT}, v{vT+2} offset0:0 offset1:1")
        A(f"ds_write2_b32 v{vT+9}, v{vT+4}, v{vT+6} offset0:128 offset1:129")
        A(f"v_and_b32 v{vT+10}, 1, {vL}")
        A(f"v_lshlrev_b32 v{vT+10}, 9, v{vT+10}")
        A(f"v_lshrrev_b32 v{vT+11}, 4, {vL}")
        A(f"v_lshl_add_u32 v{vT+10}, v{vT+11}, 4, v{vT+10}")
        A(f"v_add_u32 v{vT+10}, {sT[0]}, v{vT+10}")

    def c_qread():
        A("s_waitcnt lgkmcnt(0)")
        for j in range(8):
            A(f"ds_read_b128 v[{vQ+4*j}:{vQ+4*j+3}], v{vT+10} offset:{j*64}")

    def c_kmax():
        A(f"s_getreg_b32 {sXCC}, hwreg(HW_REG_XCC_ID, 0, 4)")
        allreduce("v_max_f32", [vMAX], vT, [16, 32])
        A(f"v_mul_f32 v{vMS}, {sC}, v{vMAX}")
        A(f"v_mov_b32 v{vLS}, 0")
        A(f"v_mov_b32 v{vLS+1}, 0")
        stamp()

    def read_v(slot_imm, half):
        tile_stamp_a()
        for t in range(16):
            r = vVT + 4 * t + 2 * half
            A(f"ds_read_b64_tr_b16 v[{r}:{r+1}], v{vVA[t%8]} offset:{slot_imm + (t//8)*256}")

    def exps(sc):
        for r in range(4):
            A(f"v_fma_f32 v{vE+r}, v{sc+r}, {sC}, -v{vMS}")
        for r in range(4):
            A(f"v_exp_f32 v{vE+r}, v{vE+r}")
        A("s_nop 0")

    def make_p(n):
        exps(vSC + 4 * n)
        A(f"v_cvt_pk_bf16_f32 v{vPF+2*(n&1)}, v{vE}, v{vE+1}")
        A(f"v_cvt_pk_bf16_f32 v{vPF+2*(n&1)+1}, v{vE+2}, v{vE+3}")
        st["pdone"] = n

    def lsum(sc):
        exps(sc)
        A(f"v_add_f32 v{vLS}, v{vLS}, v{vE}")
        A(f"v_add_f32 v{vLS+1}, v{vLS+1}, v{vE+1}")
        A(f"v_add_f32 v{vLS}, v{vLS}, v{vE+2}")
        A(f"v_add_f32 v{vLS+1}, v{vLS+1}, v{vE+3}")

    def pv(first, lo, hi):
        for t in range(lo, hi):
            A(f"v_mfma_f32_16x16x32_bf16 v[{vACC+4*t}:{vACC+4*t+3}], v[{vPF}:{vPF+3}], v[{vVT+4*t}:{vVT+4*t+3}], " +
              ("0" if first else f"v[{vACC+4*t}:{vACC+4*t+3}]"))

    def c_lwrite():
        A(f"v_add_f32 v{vT+2}, v{vLS}, v{vLS+1}")
        allreduce("v_add_f32", [vT + 2], vT + 4, [16, 32])
        A(f"v_mov_b32 v{vT}, v{vMS}")
        A(f"v_mov_b32 v{vT+1}, 0x{LFLAG:x}")
        A(f"v_mov_b32 v{vT+3}, 0x{LFLAG:x}")
        A(f"s_lshl_b32 {sT[0]}, {sW}, 5")
        A(f"s_add_u32 {sT[0]}, {sT[0]}, {LML}")
        A(f"v_lshlrev_b32 v{vT+4}, 4, {vL}")
        A(f"v_add_u32 v{vT+4}, {sT[0]}, v{vT+4}")
        A("s_mov_b64 exec, 3")
        A(f"ds_write_b128 v{vT+4}, v[{vT}:{vT+3}]")
        A("s_mov_b64 exec, -1")

    def c_mlpub():
        A(f"s_cmp_eq_u32 {sW}, 0")
        A("s_cbranch_scc0 L_nopub")
        A(f"v_and_b32 v{vT+4}, 7, {vL}")
        A(f"v_lshlrev_b32 v{vT+4}, 4, v{vT+4}")
        A(f"v_add_u32 v{vT+4}, {LML}, v{vT+4}")
        A(f"s_mov_b32 {sT[0]}, {spin*4}")
        A("L_lml:")
        A(f"ds_read_b128 v[{vT}:{vT+3}], v{vT+4}")
        A("s_waitcnt lgkmcnt(0)")
        A(f"v_and_b32 v{vT+5}, v{vT+1}, v{vT+3}")
        A(f"v_cmp_ne_u32 vcc, 0x{LFLAG:x}, v{vT+5}")
        A("s_cbranch_vccz L_lmlok")
        A(f"s_sub_u32 {sT[0]}, {sT[0]}, 1")
        A("s_cbranch_scc0 L_lml")
        A("L_lmlok:")
        A(f"v_mov_b32 v{vT+5}, v{vT}")
        allreduce("v_max_f32", [vT + 5], vT + 6, [2, 4])
        A(f"v_sub_f32 v{vT}, v{vT}, v{vT+5}")
        A(f"v_exp_f32 v{vT}, v{vT}")
        A("s_nop 0")
        A(f"v_mul_f32 v{vT+2}, v{vT+2}, v{vT}")
        allreduce("v_add_f32", [vT + 2], vT + 6, [2, 4])
        A(f"v_mov_b32 v{vT}, v{vT+5}")
        A(f"v_mov_b32 v{vT+1}, {sTAG}")
        A(f"v_xor_b32 v{vT+3}, {sXCC}, v{vT+1}")
        A(f"s_lshl_b32 {sT[0]}, {sH}, 10")
        A(f"s_lshl_b32 {sT[1]}, {sP}, 5")
        A(f"s_add_u32 {sT[0]}, {sT[0]}, {sT[1]}")
        A(f"s_add_u32 {sT[0]}, {sT[0]}, {WS_ML}")
        A(f"v_lshlrev_b32 v{vT+4}, 4, {vL}")
        A("s_mov_b64 exec, 3")
        A(f"buffer_store_dwordx4 v[{vT}:{vT+3}], v{vT+4}, {SRD_WS}, {sT[0]} offen sc1")
        A("s_mov_b64 exec, -1")
        A("L_nopub:")

    def c_mlpoll():
        A(f"s_lshl_b32 {sT[8]}, {sH}, 10")
        A(f"s_add_u32 {sT[8]}, {sT[8]}, {WS_ML}")
        A(f"v_lshlrev_b32 v{vT+8}, 4, {vL}")
        st["ml"] = VM(f"buffer_load_dwordx4 v[{vT+12}:{vT+15}], v{vT+8}, {SRD_WS}, {sT[8]} offen sc1")

    def c_mlcheck():
        G = vT + 12
        wait_vm(st["ml"])
        A(f"s_mov_b32 {sT[0]}, {spin}")
        A("L_mlchk:")
        A(f"v_xor_b32 v{vT+9}, {sTAG}, v{G+1}")
        A(f"v_xor_b32 v{vT+10}, {sTAG}, v{G+3}")
        A(f"v_and_or_b32 v{vT+9}, v{vT+10}, -16, v{vT+9}")
        A(f"v_cmp_ne_u32 vcc, 0, v{vT+9}")
        A("s_cbranch_vccz L_mlok")
        A(f"s_sub_u32 {sT[0]}, {sT[0]}, 1")
        A("s_cbranch_scc1 L_mlok")
        A(f"buffer_load_dwordx4 v[{G}:{G+3}], v{vT+8}, {SRD_WS}, {sT[8]} offen sc1")
        A("s_waitcnt vmcnt(0)")
        A("s_branch L_mlchk")
        A("L_mlok:")
        st["mlok"] = True
        A(f"v_cmp_ne_u32 vcc, {sXCC}, v{vT+10}")
        A("s_cmp_eq_u64 vcc, 0")
        A(f"s_cselect_b32 {sLOC}, {1 if local else 0}, 0")
        A(f"v_mov_b32 v{vT+9}, v{G}")
        allreduce("v_max_f32", [vT + 9], vT + 10, [2, 4, 8, 16, 32])

    def c_mlscale():
        G = vT + 12
        A(f"v_sub_f32 v{G}, v{G}, v{vT+9}")
        A(f"v_exp_f32 v{G}, v{G}")
        A("s_nop 0")
        A(f"v_mul_f32 v{G+2}, v{G+2}, v{G}")
        allreduce("v_add_f32", [G + 2], vT + 10, [2, 4, 8, 16, 32])
        A(f"v_log_f32 v{G+2}, v{G+2}")
        A("s_nop 0")
        A(f"v_add_f32 v{vT+9}, v{vT+9}, v{G+2}")
        A(f"v_sub_f32 v{vT+10}, v{vMS}, v{vT+9}")
        A(f"v_exp_f32 v{vT+10}, v{vT+10}")

    def c_rescale():
        A(f"v_mov_b32 v{vMS}, v{vT+9}")
        A("s_nop 0")
        A(f"v_mov_b32_dpp v{vT+2}, v{vT+10} quad_perm:[0,0,0,0] row_mask:0xf bank_mask:0xf")
        A(f"v_mov_b32_dpp v{vT+3}, v{vT+10} quad_perm:[1,1,1,1] row_mask:0xf bank_mask:0xf")
        A("s_nop 4")
        for t in range(16):
            A(f"v_pk_mul_f32 v[{vACC+4*t}:{vACC+4*t+1}], v[{vACC+4*t}:{vACC+4*t+1}], v[{vT+2}:{vT+3}]")

    vWO, vW2 = vSC + 4, vSC + 36

    def issue_weights():
        assert st["pdone"] >= 12 and st.get("tail1")
        if skipw:
            A(f"s_cmp_lt_u32 {sW}, 2")
            A("s_cbranch_scc1 L_skipw")
        for i in range(16):
            if i % 4 == 0 and i:
                A(f"s_add_u32 {sT[0]}, {sT[0]}, {4*896}")
            VM(f"buffer_load_dwordx2 v[{vWO+2*i}:{vWO+2*i+1}], v{vT+16}, {SRD_WO}, {sT[0]} offen offset:{(i%4)*896} {wflags}")
        for i in range(8):
            if i % 4 == 0 and i:
                A(f"s_add_u32 {sT[1]}, {sT[1]}, {4*896}")
            st["w"] = VM(f"buffer_load_dwordx2 v[{vW2+2*i}:{vW2+2*i+1}], v{vT+16}, {SRD_W2}, {sT[1]} offen offset:{(i%4)*896} {wflags}")
        if skipw:
            A("L_skipw:")
            vm["opt"] = 24

    def issue_wdma(k):
        assert st.get("mlok")
        if k == 0:
            A(f"v_lshlrev_b32 v{vMAX}, 4, {vL}")
            A(f"s_lshl_b32 s10, {sH}, 5")
            A(f"s_add_u32 s10, s10, {sP}")
            A(f"s_mul_i32 s10, s10, {16*896}")
            A(f"s_mul_i32 s11, {sF}, {8*896}")
        wo = k < 4
        A(f"s_add_u32 s12, {sW}, {4*k if wo else 4*(k-4)}")
        A(f"s_min_u32 s12, s12, {13 if wo else 6}")
        A("s_lshl_b32 s12, s12, 10")
        A(f"s_add_u32 m0, s12, {STG if wo else STG + 14336}")
        A(f"s_add_u32 s12, s12, {'s10' if wo else 's11'}")
        idx = VM(f"buffer_load_dwordx4 v{vMAX}, {SRD_WO if wo else SRD_W2}, s12 offen {wflags} lds")
        m0bad["v"] = True
        st["w"] = idx
        return idx

    MO = ((2 * S) % R) * tb
    vMW, vMR, vO1, vH1, vH2, vXR, vOO = 6, 8, vT + 4, vT + 5, vT + 6, vT + 7, vT + 11
    sH2 = [f"s{4+k}" for k in range(16)]
    sP1, sP2, sCONS = "s68", "s69", "s70"

    def c_tail1():
        st["tail1"] = True
        A(f"v_and_b32 v{vT}, 15, {vL}")
        A(f"v_lshlrev_b32 v{vT}, 2, v{vT}")
        A(f"v_bfe_u32 v{vT+1}, {vL}, 4, 1")
        A(f"v_lshl_add_u32 v{vT}, v{vT+1}, 6, v{vT}")
        A(f"v_cmp_lt_u32 vcc, 15, {vL}")
        A(f"v_add_u32 v{vT+1}, 2048, v{vT}")
        A(f"s_add_u32 {sT[2]}, {sRING}, {MO}")
        A(f"v_cndmask_b32 v{vT}, v{vT}, v{vT+1}, vcc")
        A(f"v_add_u32 v{vMW}, {sT[2]}, v{vT}")
        A(f"v_add_u32 v{vMW+1}, 1024, v{vMW}")
        A(f"v_lshlrev_b32 v{vMR}, 3, {vL}")
        A(f"v_add_u32 v{vMR}, {MO}, v{vMR}")
        A(f"v_add_u32 v{vMR+1}, {2*R*tb}, v{vMR}")
        A(f"s_lshl_b32 {sP1}, {sH}, 5")
        A(f"s_add_u32 {sP1}, {sP1}, {sP}")
        A(f"s_mul_i32 {sT[0]}, {sP1}, {16*896}")
        A(f"s_mul_i32 {sT[1]}, {sF}, {8*896}")
        A(f"s_lshl_b32 {sP1}, {sP1}, 12")
        A(f"s_add_u32 {sP1}, {sP1}, {WS_P1O}")
        A(f"v_lshlrev_b32 v{vO1}, 4, {vL}")
        A(f"v_subrev_u32 v{vT}, 128, v0")
        A(f"v_cmp_gt_u32 vcc, 112, v{vT}")
        A(f"v_lshlrev_b32 v{vT+1}, 3, v{vT}")
        A(f"v_lshlrev_b32 v{vOO}, 4, v{vT}")
        A(f"v_bfrev_b32 v{vT+2}, 2")
        A(f"v_cndmask_b32 v{vT+16}, v{vT+2}, v{vT+1}, vcc")
        A(f"v_cndmask_b32 v{vOO}, v{vT+2}, v{vOO}, vcc")

    def c_tail2():
        A(f"v_lshrrev_b32 v{vT}, 3, {vL}")
        A(f"v_and_b32 v{vT+1}, 7, {vL}")
        A(f"v_lshlrev_b32 v{vT+1}, 4, v{vT+1}")
        A(f"v_lshl_add_u32 v{vH1}, v{vT}, 12, v{vT+1}")
        A(f"s_lshl_b32 {sT[2]}, {sH}, 17")
        A(f"s_lshl_b32 {sT[3]}, {sP}, 7")
        A(f"s_add_u32 {sT[2]}, {sT[2]}, {sT[3]}")
        A(f"s_add_u32 {sT[2]}, {sT[2]}, {WS_P1O}")
        for k in range(1, 4):
            A(f"s_add_u32 {sT[2+k]}, {sT[2]}, {k*32768}")
        A(f"s_lshl_b32 {sP2}, {sH}, 5")
        A(f"s_add_u32 {sP2}, {sP2}, {sP}")
        A(f"s_mul_i32 {sP2}, {sP2}, 3584")
        A(f"s_add_u32 {sP2}, {sP2}, {WS_P2}")
        A(f"v_mul_u32_u24 v{vT}, 3584, v{vT}")
        A(f"v_add_u32 v{vH2}, v{vT}, v{vT+1}")
        A(f"s_min_u32 {sT[6]}, {sP}, 27")
        A(f"s_lshl_b32 {sT[7]}, {sT[6]}, 7")
        A(f"s_mul_i32 {sH2[0]}, {sH}, {32*3584}")
        A(f"s_add_u32 {sH2[0]}, {sH2[0]}, {sT[7]}")
        A(f"s_add_u32 {sH2[0]}, {sH2[0]}, {WS_P2}")
        for k in range(1, 4):
            A(f"s_add_u32 {sH2[k]}, {sH2[0]}, {k*8*3584}")
        A(f"s_lshl_b32 {sH2[4]}, {sT[6]}, 3")
        A(f"s_add_u32 {sH2[4]}, {sH2[4]}, {sH}")
        A(f"s_lshl_b32 {sH2[4]}, {sH2[4]}, 7")
        A(f"s_add_u32 {sH2[4]}, {sH2[4]}, {WS_P3}")
        A(f"s_sub_u32 {sT[6]}, s2, 224")
        A(f"s_cmp_lt_u32 {sT[6]}, 28")
        A(f"s_cselect_b32 {sCONS}, 1, 0")
        A(f"s_cselect_b32 {sT[6]}, {sT[6]}, 0")
        A(f"s_lshl_b32 {sH2[5]}, {sT[6]}, 10")
        A(f"s_add_u32 {sH2[5]}, {sH2[5]}, {WS_P3}")
        A(f"s_cmp_ge_u32 {sT[6]}, 14")
        A(f"s_cselect_b32 {sT[8]}, {4 - 14*64}, 0")
        A(f"s_lshl_b32 {sT[6]}, {sT[6]}, 6")
        A(f"s_add_u32 {sT[6]}, {sT[6]}, {sT[8]}")
        A(f"v_lshrrev_b32 v{vT+1}, 1, v{vT+1}")
        A(f"v_add_u32 v{vT+17}, {sT[6]}, v{vT+1}")
        if pre1 is not None or pre2 is not None:
            A(f"s_lshl_b32 {sT[8]}, {sW}, 10")
            A(f"v_lshlrev_b32 v{vT}, 4, v0")
        if pre1 is not None:
            A(f"s_lshl_b32 {sT[7]}, {sW}, 11")
            A(f"s_sub_u32 {sT[7]}, {sP1}, {sT[7]}")
            if pre1.startswith("ld"):
                VM(f"buffer_load_dwordx4 v[{vT+12}:{vT+15}], v{vT}, {SRD_WS}, {sT[7]} offen {pre1[2:]}")
            else:
                for k in range(4):
                    A(f"v_mov_b32 v{vT+12+k}, 0")
                A(f"v_not_b32 v{vT+13}, {sTAG}")
                A(f"v_not_b32 v{vT+15}, {sTAG}")
                VM(f"buffer_store_dwordx4 v[{vT+12}:{vT+15}], v{vT}, {SRD_WS}, {sT[7]} offen {pre1[2:]}")
        if pre2 is not None:
            VM(f"buffer_load_dwordx4 v[{vT+12}:{vT+15}], v{vT}, {SRD_WS}, {sP2} offen {pre2[2:]}")

    PW, PW2, Y = vSC, vSC + 32, vSC + 48

    def c_wprep():
        assert st["pdone"] >= 13
        if wdma or wlate:
            if wlate:
                A("s_waitcnt vmcnt(4)")
                A("s_barrier")
            else:
                assert lateprep and st["w"] <= vm["known"]
            A(f"v_subrev_u32 v{vT+16}, 128, v0")
            A(f"v_min_u32 v{vT+16}, 111, v{vT+16}")
            A(f"v_lshlrev_b32 v{vT+16}, 3, v{vT+16}")
            A(f"v_add_u32 v{vT+16}, {STG}, v{vT+16}")
            for i in range(24):
                A(f"ds_read_b64 v[{vWO+2*i}:{vWO+2*i+1}], v{vT+16} offset:{i*896}")
            A("s_waitcnt lgkmcnt(0)")
        elif lateprep:
            A("s_waitcnt vmcnt(4)")
        else:
            wait_vm(st["w"])
            A(f"s_cmp_lt_u32 {sW}, 2")
            A("s_cbranch_scc1 L_noprep")
        A(f"s_mov_b32 {sT[6]}, 0x05040100")
        A(f"s_mov_b32 {sT[7]}, 0x07060302")
        for k in range(12):
            for cp in range(2):
                A(f"v_perm_b32 v{PW+4*k+2*cp}, v{vWO+4*k+2+cp}, v{vWO+4*k+cp}, {sT[6]}")
                A(f"v_perm_b32 v{PW+4*k+2*cp+1}, v{vWO+4*k+2+cp}, v{vWO+4*k+cp}, {sT[7]}")
        for c in range(4):
            A(f"v_mov_b32 v{Y+2*c}, 0")
            A(f"v_mov_b32 v{Y+2*c+1}, {sTAG}")
        A("s_cmp_lt_u32 s2, 224")
        A("s_cbranch_scc0 L_noprep")
        for k in range(4):
            for c in range(4):
                A(f"v_dot2_f32_bf16 v{Y+2*c}, v{vH+2*k}, v{PW2+4*k+c}, v{Y+2*c}")
        A("L_noprep:")

    def do_touch():
        A(f"s_lshl_b32 {sT[8]}, {sW}, 15")
        A(f"s_add_u32 {sT[8]}, {sT[8]}, {sT[2]}")
        if touch == "sc1":
            VM(f"buffer_load_dword v{vT+12}, v{vH1}, {SRD_WS}, {sT[8]} offen sc1")
        else:
            A(f"s_cmp_eq_u32 {sLOC}, 1")
            A("s_cbranch_scc0 L_tfar")
            A(f"buffer_load_dword v{vT+12}, v{vH1}, {SRD_WS}, {sT[8]} offen")
            A("s_branch L_tdone")
            A("L_tfar:")
            VM(f"buffer_load_dword v{vT+12}, v{vH1}, {SRD_WS}, {sT[8]} offen sc1")
            A("L_tdone:")
        if touch2:
            A(f"s_mul_i32 {sT[8]}, {sW}, {8*3584}")
            A(f"s_add_u32 {sT[8]}, {sT[8]}, {sH2[0]}")
            VM(f"buffer_load_dword v{vT+13}, v{vH2}, {SRD_WS}, {sT[8]} offen sc1")

    def do_wtlb():
        VM(f"buffer_load_dword v{vT+14}, off, {SRD_WO}, {sT[0]} nt")
        VM(f"buffer_load_dword v{vT+15}, off, {SRD_W2}, {sT[1]} nt")

    def c_rkprobe(c):
        A(f"s_cmp_eq_u32 {sW}, {rkw}")
        A(f"s_cbranch_scc0 L_rkp{c}")
        A(f"s_lshl_b32 s18, {sH}, 7")
        A(f"s_add_u32 s18, s18, {WS_RK + c*1024}")
        A(f"s_lshl_b32 s19, {sP}, 2")
        A(f"s_add_u32 s19, s19, s18")
        A(f"v_lshlrev_b32 v{vT+18}, 2, {vL}")
        A(f"v_mov_b32 v{vT+19}, {sTAG}")
        A("s_mov_b32 exec_hi, 0")
        A(f"buffer_load_dword v255, v{vT+18}, {SRD_WS}, s18 offen sc1")
        A("s_mov_b32 exec_lo, 1")
        A(f"buffer_store_dword v{vT+19}, off, {SRD_WS}, s19")
        A("s_mov_b64 exec, -1")
        A(f"L_rkp{c}:")
        st["rk_n"] = vm["n"]

    def c_rkdecide(c, L):
        _, hi, gh, lo, gl = rk[c]
        A(f"s_cmp_eq_u32 {sW}, {rkw}")
        A(f"s_cbranch_scc0 L_rkd{c}")
        A(f"v_cmp_eq_u32 vcc, {sTAG}, v255")
        A("s_bcnt1_i32_b32 s18, vcc_lo")
        A(f"s_max_u32 {sWE}, s18, {hi}")
        A(f"s_sub_u32 {sWE}, {sWE}, {hi}")
        A(f"s_mul_i32 {sWE}, {sWE}, {gh}")
        A(f"s_add_u32 {sWE}, {sWE}, {L + 5}")
        A(f"s_cmp_gt_u32 s18, {hi}")
        A(f"s_cselect_b32 {sWE}, {sWE}, 0")
        A(f"s_min_u32 {sNE}, s18, {lo}")
        A(f"s_sub_u32 {sNE}, {lo}, {sNE}")
        A(f"s_mul_i32 {sNE}, {sNE}, {gl}")
        A(f"s_add_u32 {sNE}, {sNE}, {L + 5}")
        A(f"s_cmp_lt_u32 s18, {lo}")
        A(f"s_cselect_b32 {sNE}, {sNE}, 0")
        A(f"v_mov_b32 v{vT+18}, {sWE}")
        A(f"v_mov_b32 v{vT+19}, {sNE}")
        A(f"ds_write_b64 v254, v[{vT+18}:{vT+19}]")
        A(f"L_rkd{c}:")
        st["rk_on"] = True

    def c_last():
        for t in range(16):
            if t in (0, 4, 8):
                A(f"s_waitcnt lgkmcnt({ {0: 12, 4: 8, 8: 0}[t] })")
            if t >= 8:
                u = t - 8
                A(f"ds_write2_b32 v{vMW}, v{vACC+4*u}, v{vACC+4*u+1} offset0:{u*16} offset1:{u*16+128}")
            pv(False, t, t + 1)
        if stamps:
            lds_wait(True)
        stamp()
        A("s_nop 0")
        for u in range(8, 16):
            A(f"ds_write2_b32 v{vMW+1}, v{vACC+4*u}, v{vACC+4*u+1} offset0:{(u%8)*16} offset1:{(u%8)*16+128}")

    chunks = []
    C = lambda fn, need=None, free=None: chunks.append((need, free, fn))
    backlog = list(range(NB))
    for n in range(S):
        slot = (n % R) * tb
        if n < NB:
            C(lambda n=n, slot=slot: read_k(32 * n, slot, True), need=n)
            C(lambda: lds_wait(True), free=n)
            if n == NP:
                C(c_qpoll)
            if n == NB - 1:
                C(c_qcheck)
                C(c_qread)
        else:
            C(lambda slot=slot: read_k(vTL, slot), need=n)
            C(lambda: (lds_wait(True), qk_mfma(vTL, False)), free=n)
            C(lambda n=n: qk_post(vSC + 4 * n))
            for _ in range(2):
                if backlog:
                    m = backlog.pop(0)
                    C(lambda m=m: qk_mfma(32 * m, True))
                    C(lambda m=m: qk_post(vSC + 4 * m))
    assert not backlog
    C(c_kmax)
    lq = list(range(S))
    assert vgat % 2 == 1 and vpub % 2 == 1
    for n in range(S):
        j = S + n
        slot = (j % R) * tb
        if n == vgat + 3:
            C(c_rescale)
        if n == S - 2:
            C(lambda: make_p(S - 2))
            C(lambda: make_p(S - 1))
            if not lateprep:
                C(c_wprep)
        elif n < S - 2:
            C(lambda n=n: make_p(n))
        C(lambda slot=slot, n=n: read_v(slot, n & 1), need=j)
        if tat == j:
            C(do_touch)
        if wat == j:
            C(issue_weights)
        if wlate == j:
            C(lambda: [issue_wdma(k) for k in range(6)])
        if n % 2 == 0:
            C(lambda: lds_wait(True), free=j)
        elif n == S - 1:
            C(c_last)
        else:
            C(lambda n=n: (lds_wait(True), pv(n == 1, 0, 8)), free=j)
            C(lambda n=n: pv(n == 1, 8, 16))
        for _ in range(3 if n % 2 == 0 else 2):
            if lq:
                m0, m1 = lq.pop(0), lq.pop(0)
                C(lambda m0=m0, m1=m1: (lsum(vSC + 4 * m0), lsum(vSC + 4 * m1)))
                if not lq:
                    C(c_lwrite)
        if n == vpub:
            assert not lq
            C(c_mlpub)
        if n == vgat:
            C(c_mlpoll)
        if n == vgat + 1:
            C(c_mlcheck)
            C(c_mlscale)
        if n == vgat + 3:
            C(c_tail1)
            C(c_tail2)

    freed = set()

    def emit_chunk(q, block):
        need, free, fn = q[0]
        if need is not None:
            last = need * T + T - 1
            if last not in lidx:
                assert not block
                return False
            if lidx[last] > vm["known"]:
                if not block:
                    return False
                wait_vm(lidx[last])
        q.pop(0)
        fn()
        if free is not None:
            freed.add(free)
        return True

    def tagfix():
        A("s_waitcnt lgkmcnt(0)")
        A(f"s_mul_i32 {sTAG}, {sTAG}, 1664525")
        A(f"s_add_u32 {sTAG}, {sTAG}, 1013904223")

    def stream(L0, L1, win, q, paced):
        for L in range(L0, L1):
            j, i = divmod(L, T)
            Nw = win(L)
            if ext and X * T <= L < ext[0] and Nw < ext[1]:
                wait_vm(paced[-ext[1]])
                A(f"s_cmp_lt_u32 {sZ}, 92")
                A(f"s_cbranch_scc1 L_x{L}")
                A(f"s_waitcnt vmcnt({vm['n'] - paced[-Nw]})")
                A(f"L_x{L}:")
            elif st.get("rk_on") and Nw <= N + 1:
                wait_vm(paced[-(Nw + Nhi - N)])
                A(f"s_cmp_gt_u32 {sWE}, {L}")
                A(f"s_cbranch_scc1 L_x{L}")
                A(f"s_waitcnt vmcnt({vm['n'] - paced[-Nw]})")
                if any(r[3] for r in rk):
                    A(f"s_cmp_gt_u32 {sNE}, {L}")
                    A(f"s_cbranch_scc0 L_x{L}")
                    A(f"s_waitcnt vmcnt({vm['n'] - paced[-Nlo]})")
                A(f"L_x{L}:")
            elif len(paced) >= Nw:
                wait_vm(paced[-Nw])
            if L == NL - tail - T:
                st["rk_off"] = True
            if i == 0 and j >= R:
                while (j - R) not in freed:
                    emit_chunk(q, True)
            issue_load(L)
            paced.append(lidx[L])
            if L == NL - 1 - tpos and touch is not None and tat is None:
                do_touch()
                if wtlb:
                    do_wtlb()
            if L == NL - 1 - wpos and not now and not wearly and not wafter and wat is None and not wdma and wlate is None:
                issue_weights()
            if wdma and L >= wdma[0] and (L - wdma[0]) % wdma[1] == 0 and (L - wdma[0]) // wdma[1] < 6:
                if wdma[2]:
                    wait_vm(paced[-Nw])
                    paced.append(issue_wdma((L - wdma[0]) // wdma[1]))
                else:
                    issue_wdma((L - wdma[0]) // wdma[1])
            did = False
            for c, r_ in enumerate(rk):
                if L == r_[0] and not st.get("rk_rd"):
                    c_rkprobe(c)
                    st["rk_pend"] = c
                    did = True
                elif L == r_[0]:
                    raise AssertionError("probe between a tile read and its wait")
            if st.get("rk_pend") is not None and vm["known"] > st["rk_n"] and not st.get("rk_rd") and not did:
                c_rkdecide(st["rk_pend"], L)
                st["rk_pend"] = None
                did = True
            if q and not did and (L < NL - tail or Nend <= N + 2):
                emit_chunk(q, False)

    def win_main(L):
        Nw = Nend if L >= NL - tail else N
        if kopen and NL // 2 - kopen[0] <= L < NL // 2:
            Nw = kopen[1]
        for b_ in bump:
            if b_[0] <= L < b_[1]:
                Nw = b_[2]
        if alt and Nw == N and (L // alt[1]) % alt[2] == 0:
            Nw = alt[0]
        return Nw

    split = next(k for k, ch in enumerate(chunks) if ch[0] == X - 1)
    head_chunks, rest = chunks[:split], chunks[split:]
    assert X - 1 <= NP
    ends = []
    for path in ("n", "p"):
        vm.update(n=0, known=0)
        lidx.clear()
        freed.clear()
        paced = []
        stg = {"i": 0}

        def issue_stg():
            i = stg["i"]
            if rot:
                if i == 0:
                    A(f"s_mul_i32 {sT[3]}, {sZ}, 4682")
                    A(f"s_lshr_b32 {sT[3]}, {sT[3]}, 16")
                    A(f"s_mul_i32 {sT[3]}, {sT[3]}, 14")
                    A(f"s_sub_u32 {sT[3]}, {sZ}, {sT[3]}")
                else:
                    A(f"s_add_u32 {sT[3]}, {sT[3]}, 1")
                    A(f"s_cmp_eq_u32 {sT[3]}, 14")
                    A(f"s_cselect_b32 {sT[3]}, 0, {sT[3]}")
                A(f"s_lshl_b32 {sT[9]}, {sT[3]}, 10")
                A(f"s_add_u32 m0, {sT[6]}, {sT[9]}")
                A(f"s_mul_i32 {sT[9]}, {sT[3]}, {sT[4]}")
                A(f"s_add_u32 {sT[9]}, {sT[9]}, {sT[5]}")
                st["stg"] = VM(f"buffer_load_dwordx4 v21, {SRD_W}, {sT[9]} offen {wflags} lds")
            else:
                A(f"s_add_u32 m0, {sT[6]}, {i*1024}")
                if i:
                    A(f"s_add_u32 {sT[5]}, {sT[5]}, {sT[4]}")
                else:
                    A("s_nop 0")
                st["stg"] = VM(f"buffer_load_dwordx4 v21, {SRD_W}, {sT[5]} offen {wflags} lds")
            paced.append(st["stg"])
            stg["i"] += 1
            m0bad["v"] = True
        if path == "n":
            common0()
            A("s_waitcnt lgkmcnt(0)")
            for L in range(N0):
                issue_load(L)
                paced.append(lidx[L])
            srd(52, 4, 896)
            common1()
            setup()
            if wearly:
                issue_weights()
            q = list(head_chunks) + [(None, None, tagfix)]
            stream(N0, X * T, (lambda L: nn[1] if nn and L < nn[0] else win_main(L)), q, paced)
        else:
            A("L_producer:")
            common0()
            producer0()
            st["x"] = VM(f"buffer_load_dwordx4 v[{vT}:{vT+3}], v29, {SRD_X}, 0 offen")
            A(f"s_mov_b32 m0, {sT[6]}")
            A("L_stg:")
            A(f"s_sub_u32 {sT[3]}, {sT[3]}, 1")
            A(f"buffer_load_dwordx4 v21, {SRD_W}, {sT[5]} offen {wflags} lds")
            A(f"s_add_u32 {sT[5]}, {sT[5]}, {sT[4]}")
            A("s_add_u32 m0, m0, 1024")
            A(f"s_cmp_lg_u32 {sT[3]}, 0")
            A("s_cbranch_scc1 L_stg")
            for _ in range(14):
                vm["n"] += 1
                st["stg"] = vm["n"]
                paced.append(vm["n"])
            for L in range(B0):
                issue_load(L)
                paced.append(lidx[L])
                if il and L % il == il - 1:
                    issue_stg()
            common1()
            setup()
            if wearly == 1:
                issue_weights()
            if not il:
                for fn in side_chunks[:4]:
                    fn()
                q = [(None, None, fn) for fn in side_chunks[4:]] + list(head_chunks) + [(None, None, tagfix)]
                stream(B0, X * T, lambda L: Np if L < Xp else N, q, paced)
            else:
                Ls = 14 * il
                q = [(None, None, fn) for fn in side_chunks[:5]] + list(head_chunks)
                for L in range(B0, Ls):
                    stream(L, L + 1, lambda L: Np, q, paced)
                    if L % il == il - 1:
                        if len(paced) >= Np:
                            wait_vm(paced[-Np])
                        issue_stg()
                w2 = Np2 or N
                L = Ls
                while st["stg"] > vm["known"]:
                    stream(L, L + 1, lambda L: w2, q, paced)
                    L += 1
                assert all(ch[2] not in side_chunks for ch in q)
                if q and q[0][1] is not None:
                    emit_chunk(q, True)
                q = [(None, None, fn) for fn in side_chunks[5:]] + ([(None, None, issue_weights)] if wearly == 2 else []) + q + [(None, None, tagfix)]
                stream(L, X * T, lambda L: w2 if L < Xp else N, q, paced)
        while q:
            emit_chunk(q, True)
        known_L = max([L for L in lidx if lidx[L] <= vm["known"]] + [-1])
        ends.append(({L: vm["n"] - lidx[L] for L in range(X * T - 16, X * T)}, known_L, set(freed)))
        if path == "n":
            A("s_branch L_join")
    A("L_join:")
    stamp(1)
    assert ends[0][0] == ends[1][0] and ends[0][2] == ends[1][2], ends
    vm["known"] = lidx[min(ends[0][1], ends[1][1])]
    stream(X * T, NL, win_main, rest, [lidx[L] for L in range(X * T - 16, X * T)])
    while rest:
        emit_chunk(rest, True)

    def gather4(lbl, base, voff, soffs, d0, d1, first_issued, slp):
        def loads(set_):
            for k in range(4):
                r = base + 16 * set_ + 4 * k
                A(f"buffer_load_dwordx4 v[{r}:{r+3}], v{voff}, {SRD_WS}, {soffs[k]} offen sc1")

        def sums(r):
            A(f"v_add_f32 v{d0}, v{r}, v{r+4}")
            A(f"v_add_f32 v{d1}, v{r+2}, v{r+6}")
            A(f"v_add_f32 v{r+8}, v{r+8}, v{r+12}")
            A(f"v_add_f32 v{r+10}, v{r+10}, v{r+14}")
            A(f"v_add_f32 v{d0}, v{d0}, v{r+8}")
            A(f"v_add_f32 v{d1}, v{d1}, v{r+10}")
        if not first_issued:
            loads(0)
        A(f"L_{lbl}:")
        nset = 2 if pipe else 1
        for set_ in range(nset):
            r = base + 16 * set_
            if pipe:
                loads(1 - set_)
                A("s_waitcnt vmcnt(4)")
            else:
                A("s_waitcnt vmcnt(0)")
            tagcheck([r + 1 + 2 * i for i in range(8)], vT + 2, vT + 3)
            if pipe:
                sums(r)
            A(f"s_cbranch_vccz L_{lbl}ok")
        A(f"s_sub_u32 {sT[9]}, {sT[9]}, 1")
        if pipe:
            A(f"s_cbranch_scc0 L_{lbl}")
        else:
            A(f"s_cbranch_scc1 L_{lbl}ok")
            if slp:
                A(f"s_sleep {slp}")
            loads(0)
            A(f"s_branch L_{lbl}")
        A(f"L_{lbl}ok:")
        if not pipe:
            sums(base)

    O4, G = 32, 64
    for k in range(1, 16, 2):
        A(f"v_mov_b32 v{G+k}, {sTAG}")
    A(f"s_cmp_eq_u32 {sW}, 1")
    A("s_waitcnt lgkmcnt(0)")
    A("s_barrier")
    A("s_cbranch_scc0 L_not1")
    for qd in range(4):
        for w in range(4):
            r = O4 + 8 * qd + 2 * w
            A(f"ds_read_b64 v[{r}:{r+1}], v{vMR+w//2} offset:{(w%2)*R*tb + qd*512}")
    A(f"s_cmp_eq_u32 {sLOC}, 1")
    A("s_cbranch_scc0 L_far1")
    for far in (0, 1):
        if far:
            A("L_far1:")
        for qd in range(4):
            r = O4 + 8 * qd
            A(f"s_waitcnt lgkmcnt({12 - 4*qd})")
            A(f"v_pk_add_f32 v[{r}:{r+1}], v[{r}:{r+1}], v[{r+2}:{r+3}]")
            A(f"v_pk_add_f32 v[{r+4}:{r+5}], v[{r+4}:{r+5}], v[{r+6}:{r+7}]")
            A(f"v_add_f32 v{G+4*qd}, v{r}, v{r+4}")
            A(f"v_add_f32 v{G+4*qd+2}, v{r+1}, v{r+5}")
            A(f"buffer_store_dwordx4 v[{G+4*qd}:{G+4*qd+3}], v{vO1}, {SRD_WS}, {sP1} offen offset:{(qd&1)*2048 + (qd>>1)*1024}" + (" sc1" if far else ""))
        if stamps:
            A("s_memrealtime s[94:95]")
        if wlate:
            A("s_waitcnt vmcnt(4)")
            A("s_barrier")
        A("s_branch L_leave")
    nstamp["n"] += 1 if stamps else 0
    A("L_not1:")
    A(f"s_cmp_ge_u32 {sW}, 2")
    A("s_cbranch_scc1 L_bwave")
    if wlate:
        A("s_waitcnt vmcnt(0)")
        A("s_barrier")
    A(f"s_mov_b32 {sT[9]}, {spin}")
    A(f"s_cmp_lt_u32 {sP}, 28")
    A("s_cbranch_scc0 L_final")

    YG = 96
    gather4("h2", YG, vH2, sH2, G, G + 2, False, sleep2)
    if stamps:
        A("s_memrealtime s[96:97]")
    allreduce("v_add_f32", [G, G + 2], vT, [8, 16, 32])
    A("s_mov_b64 exec, 0xff")
    A(f"buffer_store_dwordx4 v[{G}:{G+3}], v{vO1}, {SRD_WS}, {sH2[4]} offen sc1")
    A("s_branch L_done")

    A("L_final:")
    A(f"s_cmp_eq_u32 {sCONS}, 1")
    A("s_cbranch_scc0 L_done")
    A("s_barrier")
    A(f"buffer_load_dword v{vXR}, v{vT+17}, {SRD_X}, 0 offen")
    if outpf:
        A(f"buffer_load_dword v{vT+12}, v{vT+17}, {SRD_OUT}, 0 offen")
        if epfl != "sc1":
            A(f"buffer_load_dword v{vT+13}, off, {SRD_WS}, 0")
    for d in range(depth3 - 1):
        A(f"buffer_load_dwordx4 v[{YG+4*d}:{YG+4*d+3}], v{vO1}, {SRD_WS}, {sH2[5]} offen sc1")
    A("L_h3:")
    for d in range(depth3):
        n = (d + depth3 - 1) % depth3
        A(f"buffer_load_dwordx4 v[{YG+4*n}:{YG+4*n+3}], v{vO1}, {SRD_WS}, {sH2[5]} offen sc1")
        A(f"s_waitcnt vmcnt({depth3 - 1})")
        A(f"v_mov_b32 v{G}, v{YG+4*d}")
        A(f"v_mov_b32 v{G+2}, v{YG+4*d+2}")
        tagcheck([YG + 4 * d + 1, YG + 4 * d + 3], vT, vT + 1)
        A("s_cbranch_vccz L_h3ok")
    A(f"s_sub_u32 {sT[9]}, {sT[9]}, 1")
    A("s_cbranch_scc0 L_h3")
    A("L_h3ok:")
    if stamps:
        A("s_memrealtime s[98:99]")
    allreduce("v_add_f32", [G, G + 2], vT, [8, 16, 32])
    A(f"v_lshlrev_b32 v{vT+2}, 16, v{vXR}")
    A(f"v_and_b32 v{vT+3}, 0xffff0000, v{vXR}")
    A(f"v_add_f32 v{G}, v{G}, v{vT+2}")
    A(f"v_add_f32 v{G+2}, v{G+2}, v{vT+3}")
    A("s_mov_b64 exec, 0xff")
    A(f"v_cvt_pk_bf16_f32 v{G}, v{G}, v{G+2}")
    A(f"buffer_store_dword v{G}, v{vT+17}, {SRD_OUT}, 0 offen {outfl}")
    A("s_cmp_eq_u32 s2, 224")
    A("s_cbranch_scc0 L_done")
    A("s_mov_b64 exec, 1")
    A(f"buffer_store_dword v{G+1}, off, {SRD_WS}, 0 {epfl}")
    A("s_branch L_done")

    A("L_bwave:")
    if wafter:
        issue_weights()
    OG = 96

    def hop1_loads(fl="sc1"):
        for k in range(4):
            A(f"buffer_load_dwordx4 v[{OG+4*k}:{OG+4*k+3}], v{vH1}, {SRD_WS}, {sT[2+k]} offen {fl}")
    if plain1:
        A(f"s_cmp_eq_u32 {sLOC}, 1")
        A("s_cbranch_scc0 L_h1far")
        hop1_loads("")
        A("s_branch L_h1first")
        A("L_h1far:")
    hop1_loads()
    A("L_h1first:")
    if lateprep:
        c_wprep()
    A(f"s_mov_b32 {sT[9]}, {spin}")
    oa, ob = vT, vT + 1
    gather4("h1", OG, vH1, sT[2:6], oa, ob, True, sleep1)
    stamp()
    allreduce("v_add_f32", [oa, ob], vT + 2, [8, 16, 32])
    A(f"v_cvt_pk_bf16_f32 v{oa}, v{oa}, v{ob}")
    A("s_nop 0")
    for k in range(8):
        A(f"v_readlane_b32 {sT[k]}, v{oa}, {k}")
    for cp in range(2):
        for k in range(8):
            for c in (2 * cp, 2 * cp + 1):
                A(f"v_dot2_f32_bf16 v{Y+2*c}, {sT[k]}, v{PW+4*k+c}, v{Y+2*c}")
    A(f"s_cmp_eq_u32 {sLOC}, 1")
    A("s_cbranch_scc0 L_far2")
    A(f"buffer_store_dwordx4 v[{Y}:{Y+3}], v{vOO}, {SRD_WS}, {sP2} offen")
    A(f"buffer_store_dwordx4 v[{Y+4}:{Y+7}], v{vOO}, {SRD_WS}, {sP2} offen offset:1792")
    A("s_branch L_sent2")
    A("L_far2:")
    A(f"buffer_store_dwordx4 v[{Y}:{Y+3}], v{vOO}, {SRD_WS}, {sP2} offen sc1")
    A(f"buffer_store_dwordx4 v[{Y+4}:{Y+7}], v{vOO}, {SRD_WS}, {sP2} offen offset:1792 sc1")
    A("L_sent2:")
    stamp()
    A("L_leave:")
    A(f"s_cmp_eq_u32 {sCONS}, 1")
    A("s_cbranch_scc0 L_done")
    A("s_barrier")
    A("L_done:")
    if stamps:
        A("s_mov_b64 exec, -1")
        A("s_memrealtime s[100:101]")
        A("s_waitcnt lgkmcnt(0)")
        A(f"s_lshl_b32 {sT[0]}, s2, 2")
        A(f"s_add_u32 {sT[0]}, {sT[0]}, {sW}")
        A(f"s_lshl_b32 {sT[1]}, {sT[0]}, 8")
        A(f"s_lshl_b32 {sT[0]}, {sT[0]}, 6")
        A(f"s_add_u32 {sT[0]}, {sT[0]}, {WS_STAMP}")
        A(f"s_add_u32 {sT[1]}, {sT[1]}, {WS_STAMP + 0x10000}")
        A(f"v_lshlrev_b32 v2, 2, {vL}")
        A(f"buffer_store_dword v252, v2, {SRD_WS}, {sT[1]} offen")
        A("v_mov_b32 v2, 0")
        A("s_mov_b64 exec, 1")
        A("v_mov_b32 v3, s26")
        A(f"buffer_store_dword v3, v2, {SRD_WS}, {sT[0]} offen offset:44")
        for k in range(9):
            A(f"v_mov_b32 v3, s{84+2*k}")
            A(f"buffer_store_dword v3, v2, {SRD_WS}, {sT[0]} offen offset:{4*k}")
        A("s_getreg_b32 s84, hwreg(HW_REG_XCC_ID)")
        A("v_mov_b32 v3, s84")
        A(f"buffer_store_dword v3, v2, {SRD_WS}, {sT[0]} offen offset:36")
        A(f"v_mov_b32 v3, {sT[9]}")
        A(f"buffer_store_dword v3, v2, {SRD_WS}, {sT[0]} offen offset:40")
    A("L_end:")
    A("s_endpgm")
    body = "\n".join(("" if l.endswith(":") else "    ") + l for l in o)
    return HEADER.format(lds=LDS, k=kern) + body + FOOTER.format(k=kern)


if __name__ == "__main__":
    out = sys.argv[1]
    kw = json.loads(sys.argv[2]) if len(sys.argv) > 2 else {}
    open(out, "w").write(gen(**kw))
```

```python
import sys, json, math, struct
from gen import HEADER, FOOTER, KERN, f2u, LOG2E_16

WS_QG = 0x1000
WS_HG = WS_QG + 0x4000
WS_ML = 0x8000
WS_RK = 0xA000
WS_RDY = 0xC000
WS_CNT = 0x200000
WS_P1O = 0x10000
WS_P2 = 0x110000
WS_P3 = 0x1F0000
WS_STAMP = 0x300000
WS_SIZE = 0x400000


def gen(R=3, N=5, N0=8, Nend=8, tail=3, NB=8, NP=6, bits="i0 w0 w1 i1 i2 g3 g4 t2 t3 x0 x1 x2 t0 t1",
        kflags="nt", vflags="nt", wflags="nt", stamps=0, spin=200000, vpub=5, vgat=9, wpos=0, flat2=False, gate2=False, kopen=None, lateprep=True, pre1=None, pre2=None, plain1=False, touch="sc1", tpos=0, codepf=False, tlbpf=True, outpf=True, nn=(32, 4), ext=None, depth3=2, touch2=True, now=False, wafter=False, wat=None, tat=None, N2=8, iw=None, ra=tuple((t, 18, 6, 26, 6) for t in (8, 11, 14, 17, 20, 23, 26)), raws=True, nk=1, ng=8, bump=(), epfl="", outfl="", pipe=False, skipw=True, wlate=None, wtlb=None, wdma=None, rk=((64, 20, 4, 0, 0), (186, 18, 5, 0, 0)), rkw=1, Nhi=6, Nlo=4, sleep1=0, sleep2=0,
        alt=None, X=7, Np=12, B0=6, Xp=None, il=0, Np2=9, zmap="wg", rot=True, hmap="mod8", local=True,
        kern=KERN):
    noend = noml = False
    if ra:
        rk = ()
        assert not codepf and len(ra) * ng <= 128 and raws
    ctl = list(rk) + list(ra)
    wearly = 0
    T = 8
    tb = T * 1024
    S = 16
    pos = {n: 10 + k for k, n in enumerate(bits.split())}
    RING = 4 * R * tb
    STG = RING
    QW = STG + 57344
    LML = QW + 4096
    FIN = LML + 128
    PRG = FIN + 256
    LDS = PRG + 1024
    assert LDS <= 163840 and LDS > 81920
    if Xp is None:
        Xp = X * T

    o = []
    A = o.append
    vm = {"n": 0, "known": 0}

    def VM(s):
        A(s)
        vm["n"] += 1
        return vm["n"]

    def wait_vm(idx, force=False):
        if idx <= vm["known"] and not force:
            return
        n = vm["n"] - idx
        assert 0 <= n <= 63, n
        A(f"s_waitcnt vmcnt({n})")
        if vm.get("opt"):
            vm["lbl"] = vm.get("lbl", 0) + 1
            A(f"s_cmp_ge_u32 s3, 2")
            A(f"s_cbranch_scc1 L_ow{vm['lbl']}")
            A(f"s_waitcnt vmcnt({n - vm['opt']})")
            A(f"L_ow{vm['lbl']}:")
        vm["known"] = max(vm["known"], idx)

    nstamp = {"n": 0}

    def stamp(mode=1):
        if stamps and (int(stamps) & mode):
            k = nstamp["n"]
            assert k < 8
            A(f"s_memrealtime s[{84+2*k}:{85+2*k}]")
            nstamp["n"] += 1

    SRD_K, SRD_V, SRD_W, SRD_WO, SRD_W2, SRD_WS, SRD_X, SRD_OUT = ("s[28:31]", "s[32:35]", "s[36:39]", "s[40:43]",
                                                                     "s[44:47]", "s[48:51]", "s[52:55]", "s[56:59]")
    sW, sH, sP, sTAG, sRING, sBASE, sC, sF = "s3", "s60", "s61", "s62", "s63", "s64", "s65", "s66"
    sOFF = "s67"
    sZ = "s27"
    sT = ["s72", "s73", "s74", "s75", "s76", "s77", "s78", "s79", "s80", "s81"]
    vL = "v1"
    vSRC = [2, 3, 4, 5]
    vKA = [6, 7, 8, 9]
    vVA = list(range(10, 18))
    vMAX, vMS = 18, 19
    vPF, vLS, vS, vE = 20, 24, 24, 28
    vVT = 32
    sLOC, sXCC = "s82", "s83"
    sWE, sNE = "s16", "s17"
    vPW, vPR, vPD = (22, 23, 255) if False else (252, 253, 255)
    if stamps and iw:
        vPW, vPR = 250, 251
    vQ, vTL, vACC, vSC, vT = 32, 64, 96, 160, 224
    vH = 244

    def srd(base, lo, size):
        A(f"s_mov_b32 s{base}, s{lo}")
        A(f"s_mov_b32 s{base+1}, s{lo+1}")
        A(f"s_mov_b32 s{base+2}, {size}")
        A(f"s_mov_b32 s{base+3}, 0x20000")

    assert hmap == "mod8" and zmap == "wg" and not il
    sZ = "s2"
    A("s_load_dwordx2 s[28:29], s[0:1], 8")
    A("s_load_dwordx16 s[4:19], s[0:1], 0")
    A("s_load_dwordx4 s[20:23], s[0:1], 64")
    A("s_load_dwordx2 s[24:25], s[0:1], 80")
    stamp(3)
    A("v_lshrrev_b32 v30, 6, v0")
    A("s_cmp_lt_u32 s2, 92")
    A("s_cbranch_scc1 L_producer")
    A("s_cmp_ge_u32 s2, 256")
    A("s_cbranch_scc1 L_end")

    def put(src, names):
        k = 0
        while k < len(names):
            e = k
            while e + 1 < len(names) and pos[names[e + 1]] == pos[names[e]] + 1:
                e += 1
            if k == 0 and e == len(names) - 1:
                A(f"s_lshl_b32 {sT[2]}, {src}, {pos[names[0]]}")
            else:
                A(f"s_bfe_u32 {sT[2]}, {src}, {((e - k + 1) << 16) | k}")
                A(f"s_lshl_b32 {sT[2]}, {sT[2]}, {pos[names[k]]}")
            A(f"s_or_b32 {sBASE}, {sBASE}, {sT[2]}")
            k = e + 1

    def common0():
        A(f"v_and_b32 {vL}, 63, v0")
        A("v_readfirstlane_b32 s3, v30")
        A(f"s_and_b32 {sH}, s2, 7")
        A(f"s_lshr_b32 {sP}, s2, 3")
        A(f"s_and_b32 {sT[0]}, {sP}, 7")
        A(f"s_lshr_b32 {sT[1]}, s2, 6")
        A(f"s_lshl_b32 {sBASE}, {sH}, 24")
        put(sT[0], ["x0", "x1", "x2"])
        put(sT[1], ["g3", "g4"])
        put(sW, ["w0", "w1"])
        A(f"s_mul_i32 {sRING}, {sW}, {R*tb}")
        A("s_brev_b32 s30, 16")
        A("s_mov_b32 s31, 0x20000")
        A(f"v_lshlrev_b32 v29, 4, {vL}")
        A(f"v_and_b32 v31, 32, {vL}")
        A(f"v_xor_b32 v{vSRC[0]}, v29, v31")
        A(f"v_xor_b32 v{vSRC[1]}, 64, v{vSRC[0]}")
        A(f"v_xor_b32 v{vSRC[2]}, 0x80, v{vSRC[0]}")
        A(f"v_xor_b32 v{vSRC[3]}, 64, v{vSRC[2]}")

    def common1():
        A(f"s_mov_b32 {sC}, 0x{f2u(LOG2E_16):08x}")
        A(f"s_min_u32 {sF}, s2, 223")

    def producer0():
        A("s_mov_b32 s39, 0x20000")
        A(f"s_cmp_lt_u32 {sZ}, 64")
        A(f"s_mov_b32 s38, {448*1792*2}")
        A(f"s_cmov_b32 s38, {448*4096*2}")
        A(f"s_movk_i32 {sT[4]}, 3584")
        A(f"s_cmovk_i32 {sT[4]}, 8192")
        A(f"s_and_b32 {sT[5]}, {sZ}, 63")
        A(f"s_lshl_b32 {sT[5]}, {sT[5]}, 7")
        A(f"s_mul_i32 {sT[6]}, {sW}, {sT[4]}")
        A(f"s_mulk_i32 {sT[6]}, 112")
        A(f"s_add_u32 {sT[5]}, {sT[5]}, {sT[6]}")
        A(f"v_lshrrev_b32 v30, 3, {vL}")
        A(f"v_mul_u32_u24 v30, {sT[4]}, v30")
        A(f"v_and_b32 v31, 0x70, v29")
        A("v_add_u32 v21, v31, v30")
        A(f"s_lshl_b32 {sT[4]}, {sT[4]}, 3")
        A(f"s_mul_i32 {sT[6]}, {sW}, 14336")
        A(f"s_add_u32 {sT[6]}, {sT[6]}, {STG}")
        A("s_movk_i32 s54, 896")
        A("s_mov_b32 s55, s39")
        A(f"s_movk_i32 {sT[3]}, 14")
        A("s_waitcnt lgkmcnt(0)")
        A("s_mov_b64 s[52:53], s[4:5]")
        A(f"s_cmp_lt_u32 {sZ}, 64")
        A("s_cselect_b64 s[36:37], s[10:11], s[16:17]")

    seq = [("K", n) for n in range(S)] + [("V", n) for n in range(S)]
    NL = len(seq) * T
    lidx = {}

    m0bad = {"v": False}

    def issue_load(L):
        j, i = divmod(L, T)
        kind, n = seq[j]
        if i % 4 and m0bad["v"]:
            A(f"s_add_u32 m0, {sRING}, {(j % R)*tb + (i // 4)*4096}")
            A("s_nop 0")
        m0bad["v"] = False
        def goff(i_):
            return (sum(((n >> k) & 1) << pos[f"t{k}"] for k in range(4)) +
                    sum(((i_ >> k) & 1) << pos[f"i{k}"] for k in range(3)) - (i_ % 4) * 1024)
        if i % 4 == 0:
            A(f"s_add_u32 m0, {sRING}, {(j % R)*tb + i*1024}")
        if i % 4 == 0 or goff(i) != goff(i - 1):
            A(f"s_add_u32 {sOFF}, {sBASE}, {goff(i)}")
        srd_, fl = (SRD_K, kflags) if kind == "K" else (SRD_V, vflags)
        lidx[L] = VM(f"buffer_load_dwordx4 v{vSRC[i%4]}, {srd_}, {sOFF} offen offset:{(i%4)*1024} {fl} lds")

    npf = {"n": 0}

    LFLAG = 0x600DF1A6

    def setup():
        A(f"s_lshl_b32 {sT[2]}, {sW}, 5")
        A(f"s_add_u32 {sT[2]}, {sT[2]}, {LML}")
        A(f"v_lshlrev_b32 v29, 2, {vL}")
        A(f"v_add_u32 v29, {sT[2]}, v29")
        A("v_mov_b32 v30, 0")
        A("s_mov_b64 exec, 0xff")
        A("ds_write_b32 v29, v30")
        if ctl:
            A("ds_write_b32 v29, v30 offset:128")
        A("s_mov_b64 exec, -1")
        if iw:
            A(f"v_lshlrev_b32 v{vPW}, 2, v0")
            A(f"v_add_u32 v{vPW}, {PRG}, v{vPW}")
            A(f"ds_write_b32 v{vPW}, v30")
            A(f"v_and_b32 v{vPR}, 3, {vL}")
            A(f"v_lshlrev_b32 v{vPR}, 8, v{vPR}")
            A(f"v_add_u32 v{vPR}, {PRG}, v{vPR}")
        A("s_waitcnt lgkmcnt(0)")
        A("s_barrier")
        A(f"s_load_dword {sTAG}, s[24:25], 0")
        if tlbpf:
            A(f"s_lshr_b32 {sT[2]}, s2, 3")
            A(f"s_lshl_b32 {sT[2]}, {sT[2]}, 2")
            A(f"s_add_u32 {sT[2]}, {sT[2]}, {sW}")
            A(f"s_bitcmp1_b32 {sT[2]}, 3")
            A("s_cselect_b32 s70, s8, s6")
            A("s_cselect_b32 s71, s9, s7")
            A(f"s_and_b32 {sT[7]}, {sT[2]}, 7")
            A(f"s_lshl_b32 {sT[7]}, {sT[7]}, 21")
            A(f"s_lshl_b32 {sT[8]}, {sH}, 24")
            A(f"s_add_u32 {sT[7]}, {sT[7]}, {sT[8]}")
            A(f"s_lshl_b32 {sT[8]}, {sT[2]}, 7")
            A(f"s_add_u32 {sT[7]}, {sT[7]}, {sT[8]}")
            A(f"s_add_u32 s70, s70, {sT[7]}")
            A("s_addc_u32 s71, s71, 0")
            A(f"s_load_dword {sLOC}, s[70:71], 0x0")
            A(f"s_bitcmp1_b32 {sW}, 0")
            A("s_cselect_b32 s70, s12, s18")
            A("s_cselect_b32 s71, s13, s19")
            A(f"s_mov_b32 {sT[7]}, 6272")
            A(f"s_cmov_b32 {sT[7]}, 14336")
            A(f"s_mul_i32 {sT[7]}, {sT[7]}, s2")
            A(f"s_add_u32 s70, s70, {sT[7]}")
            A("s_addc_u32 s71, s71, 0")
            A(f"s_load_dword s21, s[70:71], 0x0" if False else f"s_load_dword {sXCC}, s[70:71], 0x0")
        if codepf:
            k = npf["n"]
            npf["n"] += 1
            A(f"s_getpc_b64 s[68:69]")
            A(f"L_pf{k}:")
            A(f"s_lshr_b32 {sT[2]}, s2, 3")
            A(f"s_lshl_b32 {sT[2]}, {sT[2]}, 2")
            A(f"s_add_u32 {sT[2]}, {sT[2]}, {sW}")
            A(f"s_lshl_b32 {sT[2]}, {sT[2]}, 8")
            A(f"s_min_u32 {sT[2]}, {sT[2]}, L_end-L_join-128")
            A(f"s_add_u32 {sT[2]}, {sT[2]}, L_join-L_pf{k}")
            A(f"s_add_u32 s68, s68, {sT[2]}")
            A("s_addc_u32 s69, s69, 0")
            A("s_load_dword s22, s[68:69], 0x0")
            A("s_load_dword s23, s[68:69], 0x80")
        srd(32, 8, 128 << 20)
        srd(40, 12, 4096 * 448 * 2)
        srd(44, 18, 1792 * 448 * 2)
        srd(48, 24, WS_SIZE)
        srd(56, 20, 896)
        if stamps:
            A("s_mov_b32 s26, 0")
            A("v_mov_b32 v252, 0")
            for k in (5, 6, 7):
                A(f"s_mov_b32 s{84+2*k}, s84")
        A(f"v_and_b32 v29, 15, {vL}")
        A(f"v_lshrrev_b32 v30, 4, {vL}")
        A("v_and_b32 v31, 7, v29")
        A("v_lshlrev_b32 v31, 1, v31")
        A("v_xor_b32 v31, v31, v30")
        A("v_lshlrev_b32 v31, 4, v31")
        A("v_lshl_add_u32 v31, v29, 9, v31")
        for j in range(4):
            A(f"v_xor_b32 v{vKA[j]}, {j*64}, v31")
            A(f"v_add_u32 v{vKA[j]}, {sRING}, v{vKA[j]}")
        A(f"v_lshrrev_b32 v29, 2, {vL}")
        A("v_and_b32 v30, 7, v29")
        A("v_lshlrev_b32 v30, 5, v30")
        A(f"v_and_b32 v31, 3, {vL}")
        A("v_lshlrev_b32 v31, 3, v31")
        A("v_or_b32 v31, v31, v30")
        A("v_lshl_add_u32 v31, v29, 9, v31")
        for t in range(8):
            A(f"v_xor_b32 v{vVA[t]}, {t*32}, v31")
            A(f"v_add_u32 v{vVA[t]}, {sRING}, v{vVA[t]}")
        A(f"v_mov_b32 v{vMAX}, 0xff800000")
        if ra:
            A(f"s_and_b32 s14, {sP}, {nk-1}")
            if raws:
                A(f"s_and_b32 s15, {sP}, {ng-1}")
                A("s_mul_i32 s15, s15, 4352")
                A(f"s_add_u32 s15, s15, {WS_CNT}")
                A("s_add_u32 s22, s24, s15")
                A("s_addc_u32 s23, s25, 0")
            else:
                A(f"s_bfe_u32 s15, {sP}, 0x20002")
                A("s_lshl_b32 s15, s15, 4")
                A("s_add_u32 s15, s15, s14")
                A("s_lshl_b32 s15, s15, 2")
                A("s_add_u32 s22, s22, s15")
                A("s_addc_u32 s23, s23, 0")
            A(f"s_cmp_eq_u32 {sW}, {rkw}")
            A("s_cselect_b32 s14, s14, 15")
        if ctl:
            A(f"s_mov_b32 {sWE}, 0")
            A(f"s_mov_b32 {sNE}, 0")
            A(f"v_mov_b32 v254, {FIN}")

    def allreduce(op, regs, tmp, steps):
        for st in steps:
            if st <= 8:
                if len(regs) < 3:
                    A(f"s_nop {2-len(regs)}")
                for r in regs:
                    A(f"{op}_dpp v{r}, v{r}, v{r} row_ror:{st} row_mask:0xf bank_mask:0xf")
            else:
                for k, r in enumerate(regs):
                    A(f"v_mov_b32 v{tmp+k}, v{r}")
                if len(regs) < 3:
                    A(f"s_nop {2-len(regs)}")
                for k, r in enumerate(regs):
                    A(f"v_permlane{st}_swap_b32 v{r}, v{tmp+k}")
                if len(regs) < 2:
                    A("s_nop 0")
                for k, r in enumerate(regs):
                    A(f"{op} v{r}, v{r}, v{tmp+k}")

    XU = vT + 4
    a, b, c_, d_ = vT + 12, vT + 13, vT + 14, vT + 15
    XF, WF = 96, 152
    st = {}

    def side0():
        wait_vm(st["x"])
        stamp(2)
        for i in range(4):
            A(f"v_lshlrev_b32 v{XU+2*i}, 16, v{vT+i}")
            A(f"v_and_b32 v{XU+2*i+1}, 0xffff0000, v{vT+i}")
        A(f"v_add_f32 v{a}, v{XU}, v{XU+1}")
        for i in range(2, 8):
            A(f"v_add_f32 v{a}, v{a}, v{XU+i}")
        allreduce("v_add_f32", [a], b, [1, 2, 4, 8, 16, 32])

    def side1():
        A(f"v_mul_f32 v{a}, 0x{f2u(1.0/448):08x}, v{a}")
        A(f"v_mov_b32 v{b}, 0")
        for i in range(8):
            A(f"v_sub_f32 v{c_}, v{XU+i}, v{a}")
            A(f"v_fmac_f32 v{b}, v{c_}, v{c_}")
        A(f"v_cmp_gt_u32 vcc, 56, {vL}")
        A("s_nop 1")
        A(f"v_cndmask_b32 v{b}, 0, v{b}, vcc")
        allreduce("v_add_f32", [b], c_, [1, 2, 4, 8, 16, 32])

    def side2():
        A(f"v_mul_f32 v{b}, 0x{f2u(1.0/448):08x}, v{b}")
        A(f"v_cvt_pk_bf16_f32 v{c_}, v{a}, v{b}")
        A(f"v_lshlrev_b32 v{a}, 16, v{c_}")
        A(f"v_and_b32 v{b}, 0xffff0000, v{c_}")
        A(f"v_add_f32 v{b}, 0x{f2u(1e-5):08x}, v{b}")
        A(f"v_cvt_pk_bf16_f32 v{b}, v{b}, v{b}")
        A(f"v_and_b32 v{b}, 0xffff0000, v{b}")
        A(f"v_sqrt_f32 v{b}, v{b}")
        A("s_nop 0")
        A(f"v_cvt_pk_bf16_f32 v{b}, v{b}, v{b}")
        A(f"v_and_b32 v{b}, 0xffff0000, v{b}")
        A(f"v_rcp_f32 v{b}, v{b}")

    def side3():
        for i in range(8):
            A(f"v_sub_f32 v{XU+i}, v{XU+i}, v{a}")
        for i in range(4):
            A(f"v_cvt_pk_bf16_f32 v{vT+i}, v{XU+2*i}, v{XU+2*i+1}")
        for i in range(4):
            A(f"v_lshlrev_b32 v{XU+2*i}, 16, v{vT+i}")
            A(f"v_and_b32 v{XU+2*i+1}, 0xffff0000, v{vT+i}")
        for i in range(8):
            A(f"v_mul_f32 v{XU+i}, v{XU+i}, v{b}")
        for i in range(4):
            A(f"v_cvt_pk_bf16_f32 v{vT+i}, v{XU+2*i}, v{XU+2*i+1}")
        A(f"s_lshl_b32 {sT[0]}, {sW}, 10")
        A(f"s_add_u32 {sT[0]}, {sT[0]}, {QW}")
        A(f"v_lshlrev_b32 v{a}, 4, {vL}")
        A(f"v_add_u32 v{a}, {sT[0]}, v{a}")
        A(f"ds_write_b128 v{a}, v[{vT}:{vT+3}]")
        A(f"v_lshrrev_b32 v{b}, 4, {vL}")
        A(f"v_lshlrev_b32 v{c_}, 4, v{b}")
        A(f"v_add_u32 v{c_}, {sT[0]}, v{c_}")

    def side4():
        A("s_waitcnt lgkmcnt(0)")
        for i in range(14):
            A(f"ds_read_b128 v[{XF+4*i}:{XF+4*i+3}], v{c_} offset:{i*64}")
        A(f"v_lshlrev_b32 v{b}, 10, v{b}")
        A(f"v_bfe_u32 v{d_}, {vL}, 2, 2")
        A(f"v_lshl_add_u32 v{b}, v{d_}, 7, v{b}")
        A(f"v_and_b32 v{d_}, 3, {vL}")
        A(f"v_lshl_add_u32 v{b}, v{d_}, 3, v{b}")
        A(f"s_lshl_b32 {sT[1]}, {sW}, 5")
        A(f"s_add_u32 {sT[1]}, {sT[1]}, {STG}")
        A(f"v_add_u32 v{b}, {sT[1]}, v{b}")
        A(f"s_mul_i32 {sT[2]}, {sTAG}, 1664525")
        A(f"s_add_u32 {sT[2]}, {sT[2]}, 1013904223")

    def side5():
        stamp(2)
        wait_vm(st["stg"])
        A("s_waitcnt lgkmcnt(0)")
        A("s_barrier")
        stamp(2)
        for i in range(14):
            A(f"ds_read_b64_tr_b16 v[{WF+4*i}:{WF+4*i+1}], v{b} offset:{i*4096}")
            A(f"ds_read_b64_tr_b16 v[{WF+4*i+2}:{WF+4*i+3}], v{b} offset:{i*4096+512}")

    def side6():
        A(f"v_and_b32 v{d_}, 15, {vL}")
        A(f"v_cmp_eq_u32 s[70:71], 0, v{d_}")
        A(f"v_lshrrev_b32 v{a}, 4, {vL}")
        A(f"v_lshlrev_b32 v{a}, 4, v{a}")
        A(f"v_mov_b32 v{vT+1}, {sT[2]}")
        A(f"v_mov_b32 v{vT+3}, {sT[2]}")
        A(f"s_lshl_b32 {sT[0]}, {sZ}, 2")
        A(f"s_add_u32 {sT[0]}, {sT[0]}, {sW}")
        A(f"s_lshl_b32 {sT[0]}, {sT[0]}, 6")
        A(f"s_add_u32 {sT[0]}, {sT[0]}, {WS_QG}")
        A(f"s_cmp_lt_u32 {sZ}, 64")
        A(f"s_cselect_b32 {sT[1]}, 0xff800000, 0")

    def side7():
        A("s_waitcnt lgkmcnt(0)")
        for i in range(14):
            A(f"v_mfma_f32_16x16x32_bf16 v[{vS}:{vS+3}], v[{WF+4*i}:{WF+4*i+3}], v[{XF+4*i}:{XF+4*i+3}], " +
              ("0" if i == 0 else f"v[{vS}:{vS+3}]"))

    def side8():
        A("s_nop 7")
        for i in range(4):
            A(f"v_max_f32 v{vS+i}, {sT[1]}, v{vS+i}")
        A(f"v_cvt_pk_bf16_f32 v{vT}, v{vS}, v{vS+1}")
        A(f"v_cvt_pk_bf16_f32 v{vT+2}, v{vS+2}, v{vS+3}")
        A("s_mov_b64 exec, s[70:71]")
        A(f"buffer_store_dwordx4 v[{vT}:{vT+3}], v{a}, {SRD_WS}, {sT[0]} offen sc1")
        A("s_mov_b64 exec, -1")

    side_chunks = [side0, side1, side2, side3, side4, side5, side6, side7, side8]

    def tile_stamp_a():
        if stamps:
            A("s_memrealtime s[100:101]")
        if st.get("rk_on") and not st.get("rk_off"):
            A(f"ds_read_b64 v[{vT+18}:{vT+19}], v254")
            if iw:
                A(f"ds_read_b32 v{vPD}, v{vPR}")
                st["iw_own"] = st["iw_last"]
            st["rk_rd"] = True

    def lds_wait(tile=False):
        A("s_waitcnt lgkmcnt(0)")
        if st.get("rk_rd"):
            A(f"v_readfirstlane_b32 {sWE}, v{vT+18}")
            A(f"v_readfirstlane_b32 {sNE}, v{vT+19}")
            if iw:
                th, gain, thn, gn = iw
                A(f"v_add_u32_dpp v{vPD}, v{vPD}, v{vPD} quad_perm:[1,0,3,2] row_mask:0xf bank_mask:0xf")
                A("s_nop 1")
                A(f"v_add_u32_dpp v{vPD}, v{vPD}, v{vPD} quad_perm:[2,3,0,1] row_mask:0xf bank_mask:0xf")
                A("s_nop 0")
                A(f"v_readfirstlane_b32 s19, v{vPD}")
                A(f"s_sub_i32 s19, s19, {4*st['iw_own']}")
                A(f"s_mul_i32 s13, s19, {gain}")
                A(f"s_add_i32 s13, s13, {st['L']}")
                A(f"s_cmp_ge_i32 s19, {th}")
                A("s_cselect_b32 s13, s13, 0")
                A(f"s_max_u32 {sWE}, {sWE}, s13")
                if thn:
                    A(f"s_mul_i32 s13, s19, {-gn}")
                    A(f"s_add_i32 s13, s13, {st['L']}")
                    A(f"s_cmp_le_i32 s19, {-thn}")
                    A("s_cselect_b32 s13, s13, 0")
                    A(f"s_cselect_b32 {sWE}, 0, {sWE}")
                    A(f"s_max_u32 {sNE}, {sNE}, s13")
            st["rk_rd"] = False
        if tile and "tc" in st:
            j = st["tc"]
            st["tc"] += 1
            for c, r_ in enumerate(ra):
                if 1 <= j - r_[0] <= nk:
                    c_rkdecide(c, st["L"], j - r_[0] - 1)
            for c, r_ in enumerate(ra):
                if 0 <= j - r_[0] < nk:
                    assert st.get("rdy"), "probe before the ready check"
                    A(f"s_cmp_eq_u32 s14, {j - r_[0]}")
                    A(f"s_cbranch_scc0 L_ra{c}_{j}")
                    A("s_mov_b32 s18, 1")
                    A(f"s_atomic_add s18, s[22:23], {ng*4352*c} glc")
                    A(f"L_ra{c}_{j}:")
        if stamps and tile:
            A("v_mov_b32 v253, s100")
            A(f"v_cmp_eq_u32 vcc, s26, {vL}")
            A("s_add_u32 s26, s26, 1")
            A("s_nop 0")
            A("v_cndmask_b32 v252, v252, v253, vcc")

    def read_k(dst, slot_imm, acc=False):
        tile_stamp_a()
        p = "a" if acc else "v"
        for j in range(8):
            A(f"ds_read_b128 {p}[{dst+4*j}:{dst+4*j+3}], v{vKA[j%4]} offset:{slot_imm + (j//4)*256}")

    def qk_mfma(src, acc):
        p = "a" if acc else "v"
        for j in range(8):
            A(f"v_mfma_f32_16x16x32_bf16 v[{vS}:{vS+3}], {p}[{src+4*j}:{src+4*j+3}], v[{vQ+4*j}:{vQ+4*j+3}], " +
              ("0" if j == 0 else f"v[{vS}:{vS+3}]"))

    def qk_post(sc):
        A("s_nop 7")
        A(f"v_cvt_pk_bf16_f32 v{sc+1}, v{vS}, v{vS+1}")
        A(f"v_cvt_pk_bf16_f32 v{sc+3}, v{vS+2}, v{vS+3}")
        A(f"v_lshlrev_b32 v{sc}, 16, v{sc+1}")
        A(f"v_and_b32 v{sc+1}, 0xffff0000, v{sc+1}")
        A(f"v_lshlrev_b32 v{sc+2}, 16, v{sc+3}")
        A(f"v_and_b32 v{sc+3}, 0xffff0000, v{sc+3}")
        A(f"v_max3_f32 v{vMAX}, v{sc}, v{sc+1}, v{vMAX}")
        A(f"v_max3_f32 v{vMAX}, v{sc+2}, v{sc+3}, v{vMAX}")

    def q_poll(emit):
        emit(f"buffer_load_dwordx4 v[{vT}:{vT+3}], v{vT+8}, {SRD_WS}, {sT[8]} offen sc1")
        emit(f"buffer_load_dwordx4 v[{vT+4}:{vT+7}], v{vT+8}, {SRD_WS}, {sT[8]} offen offset:1024 sc1")
        emit(f"buffer_load_dwordx4 v[{vH}:{vH+3}], off, {SRD_WS}, {sT[7]} sc1")
        return emit(f"buffer_load_dwordx4 v[{vH+4}:{vH+7}], off, {SRD_WS}, {sT[7]} offset:16 sc1")

    def tagcheck(regs, acc0, acc1):
        A(f"v_xor_b32 v{acc0}, {sTAG}, v{regs[0]}")
        A(f"v_xor_b32 v{acc1}, {sTAG}, v{regs[1]}")
        for i, r in enumerate(regs[2:]):
            acc = acc0 if i % 2 == 0 else acc1
            A(f"v_bitop3_b32 v{acc}, v{acc}, v{r}, {sTAG} bitop3:0xf6")
        A(f"v_or_b32 v{acc0}, v{acc0}, v{acc1}")
        A(f"v_cmp_ne_u32 vcc, 0, v{acc0}")

    def c_qpoll():
        A(f"s_lshl_b32 {sT[8]}, {sH}, 11")
        A(f"s_add_u32 {sT[8]}, {sT[8]}, {WS_QG}")
        A(f"s_lshl_b32 {sT[7]}, {sF}, 5")
        A(f"s_add_u32 {sT[7]}, {sT[7]}, {WS_HG}")
        A(f"v_lshlrev_b32 v{vT+8}, 4, {vL}")
        if ra:
            A(f"s_mov_b32 {sT[6]}, {WS_RDY}")
            VM(f"buffer_load_dword v255, off, {SRD_WS}, {sT[6]} sc1")
        st["q"] = q_poll(VM)

    def c_qcheck():
        wait_vm(st["q"])
        if ra:
            A(f"v_readfirstlane_b32 {sT[6]}, v255")
            A(f"s_cmp_eq_u32 {sT[6]}, {sTAG}")
            A("s_cselect_b32 s14, s14, 15")
            st["rdy"] = True
        A(f"s_mov_b32 {sT[0]}, {spin}")
        A("L_qchk:")
        tagcheck([vT + 1, vT + 3, vT + 5, vT + 7, vH + 1, vH + 3, vH + 5, vH + 7], vT + 9, vT + 10)
        A("s_cbranch_vccz L_qok")
        A(f"s_sub_u32 {sT[0]}, {sT[0]}, 1")
        A("s_cbranch_scc1 L_qok")
        q_poll(A)
        A("s_waitcnt vmcnt(0)")
        A("s_branch L_qchk")
        A("L_qok:")
        stamp()
        A(f"s_lshl_b32 {sT[0]}, {sW}, 10")
        A(f"s_add_u32 {sT[0]}, {sT[0]}, {QW}")
        A(f"v_lshlrev_b32 v{vT+9}, 3, {vL}")
        A(f"v_add_u32 v{vT+9}, {sT[0]}, v{vT+9}")
        A(f"ds_write2_b32 v{vT+9}, v{vT}, v{vT+2} offset0:0 offset1:1")
        A(f"ds_write2_b32 v{vT+9}, v{vT+4}, v{vT+6} offset0:128 offset1:129")
        A(f"v_and_b32 v{vT+10}, 1, {vL}")
        A(f"v_lshlrev_b32 v{vT+10}, 9, v{vT+10}")
        A(f"v_lshrrev_b32 v{vT+11}, 4, {vL}")
        A(f"v_lshl_add_u32 v{vT+10}, v{vT+11}, 4, v{vT+10}")
        A(f"v_add_u32 v{vT+10}, {sT[0]}, v{vT+10}")

    def c_qread():
        A("s_waitcnt lgkmcnt(0)")
        for j in range(8):
            A(f"ds_read_b128 v[{vQ+4*j}:{vQ+4*j+3}], v{vT+10} offset:{j*64}")

    def c_kmax():
        A(f"s_getreg_b32 {sXCC}, hwreg(HW_REG_XCC_ID, 0, 4)")
        allreduce("v_max_f32", [vMAX], vT, [16, 32])
        A(f"v_mul_f32 v{vMS}, {sC}, v{vMAX}")
        A(f"v_mov_b32 v{vLS}, 0")
        A(f"v_mov_b32 v{vLS+1}, 0")
        stamp()

    def read_v(slot_imm, half):
        tile_stamp_a()
        for t in range(16):
            r = vVT + 4 * t + 2 * half
            A(f"ds_read_b64_tr_b16 v[{r}:{r+1}], v{vVA[t%8]} offset:{slot_imm + (t//8)*256}")

    def exps(sc):
        for r in range(4):
            A(f"v_fma_f32 v{vE+r}, v{sc+r}, {sC}, -v{vMS}")
        for r in range(4):
            A(f"v_exp_f32 v{vE+r}, v{vE+r}")
        A("s_nop 0")

    def make_p(n):
        exps(vSC + 4 * n)
        A(f"v_cvt_pk_bf16_f32 v{vPF+2*(n&1)}, v{vE}, v{vE+1}")
        A(f"v_cvt_pk_bf16_f32 v{vPF+2*(n&1)+1}, v{vE+2}, v{vE+3}")
        st["pdone"] = n

    def lsum(sc):
        exps(sc)
        A(f"v_add_f32 v{vLS}, v{vLS}, v{vE}")
        A(f"v_add_f32 v{vLS+1}, v{vLS+1}, v{vE+1}")
        A(f"v_add_f32 v{vLS}, v{vLS}, v{vE+2}")
        A(f"v_add_f32 v{vLS+1}, v{vLS+1}, v{vE+3}")

    def pv(first, lo, hi):
        for t in range(lo, hi):
            A(f"v_mfma_f32_16x16x32_bf16 v[{vACC+4*t}:{vACC+4*t+3}], v[{vPF}:{vPF+3}], v[{vVT+4*t}:{vVT+4*t+3}], " +
              ("0" if first else f"v[{vACC+4*t}:{vACC+4*t+3}]"))

    def c_lwrite():
        A(f"v_add_f32 v{vT+2}, v{vLS}, v{vLS+1}")
        allreduce("v_add_f32", [vT + 2], vT + 4, [16, 32])
        A(f"v_mov_b32 v{vT}, v{vMS}")
        A(f"v_mov_b32 v{vT+1}, 0x{LFLAG:x}")
        A(f"v_mov_b32 v{vT+3}, 0x{LFLAG:x}")
        A(f"s_lshl_b32 {sT[0]}, {sW}, 5")
        A(f"s_add_u32 {sT[0]}, {sT[0]}, {LML}")
        A(f"v_lshlrev_b32 v{vT+4}, 4, {vL}")
        A(f"v_add_u32 v{vT+4}, {sT[0]}, v{vT+4}")
        A("s_mov_b64 exec, 3")
        A(f"ds_write_b128 v{vT+4}, v[{vT}:{vT+3}]")
        A("s_mov_b64 exec, -1")

    def c_mlpub():
        A(f"s_cmp_eq_u32 {sW}, 0")
        A("s_cbranch_scc0 L_nopub")
        A(f"v_and_b32 v{vT+4}, 7, {vL}")
        A(f"v_lshlrev_b32 v{vT+4}, 4, v{vT+4}")
        A(f"v_add_u32 v{vT+4}, {LML}, v{vT+4}")
        A(f"s_mov_b32 {sT[0]}, {spin*4}")
        A("L_lml:")
        A(f"ds_read_b128 v[{vT}:{vT+3}], v{vT+4}")
        A("s_waitcnt lgkmcnt(0)")
        A(f"v_and_b32 v{vT+5}, v{vT+1}, v{vT+3}")
        A(f"v_cmp_ne_u32 vcc, 0x{LFLAG:x}, v{vT+5}")
        A("s_cbranch_vccz L_lmlok")
        A(f"s_sub_u32 {sT[0]}, {sT[0]}, 1")
        A("s_cbranch_scc0 L_lml")
        A("L_lmlok:")
        A(f"v_mov_b32 v{vT+5}, v{vT}")
        allreduce("v_max_f32", [vT + 5], vT + 6, [2, 4])
        A(f"v_sub_f32 v{vT}, v{vT}, v{vT+5}")
        A(f"v_exp_f32 v{vT}, v{vT}")
        A("s_nop 0")
        A(f"v_mul_f32 v{vT+2}, v{vT+2}, v{vT}")
        allreduce("v_add_f32", [vT + 2], vT + 6, [2, 4])
        A(f"v_mov_b32 v{vT}, v{vT+5}")
        A(f"v_mov_b32 v{vT+1}, {sTAG}")
        A(f"v_xor_b32 v{vT+3}, {sXCC}, v{vT+1}")
        A(f"s_lshl_b32 {sT[0]}, {sH}, 10")
        A(f"s_lshl_b32 {sT[1]}, {sP}, 5")
        A(f"s_add_u32 {sT[0]}, {sT[0]}, {sT[1]}")
        A(f"s_add_u32 {sT[0]}, {sT[0]}, {WS_ML}")
        A(f"v_lshlrev_b32 v{vT+4}, 4, {vL}")
        A("s_mov_b64 exec, 3")
        A(f"buffer_store_dwordx4 v[{vT}:{vT+3}], v{vT+4}, {SRD_WS}, {sT[0]} offen sc1")
        A("s_mov_b64 exec, -1")
        A("L_nopub:")

    def c_mlpoll():
        A(f"s_lshl_b32 {sT[8]}, {sH}, 10")
        A(f"s_add_u32 {sT[8]}, {sT[8]}, {WS_ML}")
        A(f"v_lshlrev_b32 v{vT+8}, 4, {vL}")
        st["ml"] = VM(f"buffer_load_dwordx4 v[{vT+12}:{vT+15}], v{vT+8}, {SRD_WS}, {sT[8]} offen sc1")

    def c_mlcheck():
        G = vT + 12
        wait_vm(st["ml"])
        A(f"s_mov_b32 {sT[0]}, {spin}")
        A("L_mlchk:")
        A(f"v_xor_b32 v{vT+9}, {sTAG}, v{G+1}")
        A(f"v_xor_b32 v{vT+10}, {sTAG}, v{G+3}")
        A(f"v_and_or_b32 v{vT+9}, v{vT+10}, -16, v{vT+9}")
        A(f"v_cmp_ne_u32 vcc, 0, v{vT+9}")
        A("s_cbranch_vccz L_mlok")
        A(f"s_sub_u32 {sT[0]}, {sT[0]}, 1")
        A("s_cbranch_scc1 L_mlok")
        A(f"buffer_load_dwordx4 v[{G}:{G+3}], v{vT+8}, {SRD_WS}, {sT[8]} offen sc1")
        A("s_waitcnt vmcnt(0)")
        A("s_branch L_mlchk")
        A("L_mlok:")
        st["mlok"] = True
        A(f"v_cmp_ne_u32 vcc, {sXCC}, v{vT+10}")
        A("s_cmp_eq_u64 vcc, 0")
        A(f"s_cselect_b32 {sLOC}, {1 if local else 0}, 0")
        A(f"v_mov_b32 v{vT+9}, v{G}")
        allreduce("v_max_f32", [vT + 9], vT + 10, [2, 4, 8, 16, 32])

    def c_mlscale():
        G = vT + 12
        A(f"v_sub_f32 v{G}, v{G}, v{vT+9}")
        A(f"v_exp_f32 v{G}, v{G}")
        A("s_nop 0")
        A(f"v_mul_f32 v{G+2}, v{G+2}, v{G}")
        allreduce("v_add_f32", [G + 2], vT + 10, [2, 4, 8, 16, 32])
        A(f"v_log_f32 v{G+2}, v{G+2}")
        A("s_nop 0")
        A(f"v_add_f32 v{vT+9}, v{vT+9}, v{G+2}")
        A(f"v_sub_f32 v{vT+10}, v{vMS}, v{vT+9}")
        A(f"v_exp_f32 v{vT+10}, v{vT+10}")

    def c_rescale():
        A(f"v_mov_b32 v{vMS}, v{vT+9}")
        A("s_nop 0")
        A(f"v_mov_b32_dpp v{vT+2}, v{vT+10} quad_perm:[0,0,0,0] row_mask:0xf bank_mask:0xf")
        A(f"v_mov_b32_dpp v{vT+3}, v{vT+10} quad_perm:[1,1,1,1] row_mask:0xf bank_mask:0xf")
        A("s_nop 4")
        for t in range(16):
            A(f"v_pk_mul_f32 v[{vACC+4*t}:{vACC+4*t+1}], v[{vACC+4*t}:{vACC+4*t+1}], v[{vT+2}:{vT+3}]")

    vWO, vW2 = vSC + 4, vSC + 36

    def issue_weights():
        assert st["pdone"] >= 12 and st.get("tail1")
        if skipw:
            A(f"s_cmp_lt_u32 {sW}, 2")
            A("s_cbranch_scc1 L_skipw")
        for i in range(16):
            if i % 4 == 0 and i:
                A(f"s_add_u32 {sT[0]}, {sT[0]}, {4*896}")
            VM(f"buffer_load_dwordx2 v[{vWO+2*i}:{vWO+2*i+1}], v{vT+16}, {SRD_WO}, {sT[0]} offen offset:{(i%4)*896} {wflags}")
        for i in range(8):
            if i % 4 == 0 and i:
                A(f"s_add_u32 {sT[1]}, {sT[1]}, {4*896}")
            st["w"] = VM(f"buffer_load_dwordx2 v[{vW2+2*i}:{vW2+2*i+1}], v{vT+16}, {SRD_W2}, {sT[1]} offen offset:{(i%4)*896} {wflags}")
        if skipw:
            A("L_skipw:")
            vm["opt"] = 24

    def issue_wdma(k):
        assert st.get("mlok")
        if k == 0:
            A(f"v_lshlrev_b32 v{vMAX}, 4, {vL}")
            A(f"s_lshl_b32 s10, {sH}, 5")
            A(f"s_add_u32 s10, s10, {sP}")
            A(f"s_mul_i32 s10, s10, {16*896}")
            A(f"s_mul_i32 s11, {sF}, {8*896}")
        wo = k < 4
        A(f"s_add_u32 s12, {sW}, {4*k if wo else 4*(k-4)}")
        A(f"s_min_u32 s12, s12, {13 if wo else 6}")
        A("s_lshl_b32 s12, s12, 10")
        A(f"s_add_u32 m0, s12, {STG if wo else STG + 14336}")
        A(f"s_add_u32 s12, s12, {'s10' if wo else 's11'}")
        idx = VM(f"buffer_load_dwordx4 v{vMAX}, {SRD_WO if wo else SRD_W2}, s12 offen {wflags} lds")
        m0bad["v"] = True
        st["w"] = idx
        return idx

    MO = ((2 * S) % R) * tb
    vMW, vMR, vO1, vH1, vH2, vXR, vOO = 6, 8, vT + 4, vT + 5, vT + 6, vT + 7, vT + 11
    sH2 = [f"s{4+k}" for k in range(16)]
    sP1, sP2, sCONS = "s68", "s69", "s70"

    def c_tail1():
        st["tail1"] = True
        A(f"v_and_b32 v{vT}, 15, {vL}")
        A(f"v_lshlrev_b32 v{vT}, 2, v{vT}")
        A(f"v_bfe_u32 v{vT+1}, {vL}, 4, 1")
        A(f"v_lshl_add_u32 v{vT}, v{vT+1}, 6, v{vT}")
        A(f"v_cmp_lt_u32 vcc, 15, {vL}")
        A(f"v_add_u32 v{vT+1}, 2048, v{vT}")
        A(f"s_add_u32 {sT[2]}, {sRING}, {MO}")
        A(f"v_cndmask_b32 v{vT}, v{vT}, v{vT+1}, vcc")
        A(f"v_add_u32 v{vMW}, {sT[2]}, v{vT}")
        A(f"v_add_u32 v{vMW+1}, 1024, v{vMW}")
        A(f"v_lshlrev_b32 v{vMR}, 3, {vL}")
        A(f"v_add_u32 v{vMR}, {MO}, v{vMR}")
        A(f"v_add_u32 v{vMR+1}, {2*R*tb}, v{vMR}")
        A(f"s_lshl_b32 {sP1}, {sH}, 5")
        A(f"s_add_u32 {sP1}, {sP1}, {sP}")
        A(f"s_mul_i32 {sT[0]}, {sP1}, {16*896}")
        A(f"s_mul_i32 {sT[1]}, {sF}, {8*896}")
        A(f"s_lshl_b32 {sP1}, {sP1}, 12")
        A(f"s_add_u32 {sP1}, {sP1}, {WS_P1O}")
        A(f"v_lshlrev_b32 v{vO1}, 4, {vL}")
        A(f"v_subrev_u32 v{vT}, 128, v0")
        A(f"v_cmp_gt_u32 vcc, 112, v{vT}")
        A(f"v_lshlrev_b32 v{vT+1}, 3, v{vT}")
        A(f"v_lshlrev_b32 v{vOO}, 4, v{vT}")
        A(f"v_bfrev_b32 v{vT+2}, 2")
        A(f"v_cndmask_b32 v{vT+16}, v{vT+2}, v{vT+1}, vcc")
        A(f"v_cndmask_b32 v{vOO}, v{vT+2}, v{vOO}, vcc")

    def c_tail2():
        A(f"v_lshrrev_b32 v{vT}, 3, {vL}")
        A(f"v_and_b32 v{vT+1}, 7, {vL}")
        A(f"v_lshlrev_b32 v{vT+1}, 4, v{vT+1}")
        A(f"v_lshl_add_u32 v{vH1}, v{vT}, 12, v{vT+1}")
        A(f"s_lshl_b32 {sT[2]}, {sH}, 17")
        A(f"s_lshl_b32 {sT[3]}, {sP}, 7")
        A(f"s_add_u32 {sT[2]}, {sT[2]}, {sT[3]}")
        A(f"s_add_u32 {sT[2]}, {sT[2]}, {WS_P1O}")
        for k in range(1, 4):
            A(f"s_add_u32 {sT[2+k]}, {sT[2]}, {k*32768}")
        A(f"s_lshl_b32 {sP2}, {sH}, 5")
        A(f"s_add_u32 {sP2}, {sP2}, {sP}")
        A(f"s_mul_i32 {sP2}, {sP2}, 3584")
        A(f"s_add_u32 {sP2}, {sP2}, {WS_P2}")
        A(f"v_mul_u32_u24 v{vT}, 3584, v{vT}")
        A(f"v_add_u32 v{vH2}, v{vT}, v{vT+1}")
        A(f"s_min_u32 {sT[6]}, {sP}, 27")
        A(f"s_lshl_b32 {sT[7]}, {sT[6]}, 7")
        A(f"s_mul_i32 {sH2[0]}, {sH}, {32*3584}")
        A(f"s_add_u32 {sH2[0]}, {sH2[0]}, {sT[7]}")
        A(f"s_add_u32 {sH2[0]}, {sH2[0]}, {WS_P2}")
        for k in range(1, 4):
            A(f"s_add_u32 {sH2[k]}, {sH2[0]}, {k*8*3584}")
        A(f"s_lshl_b32 {sH2[4]}, {sT[6]}, 3")
        A(f"s_add_u32 {sH2[4]}, {sH2[4]}, {sH}")
        A(f"s_lshl_b32 {sH2[4]}, {sH2[4]}, 7")
        A(f"s_add_u32 {sH2[4]}, {sH2[4]}, {WS_P3}")
        A(f"s_sub_u32 {sT[6]}, s2, 224")
        A(f"s_cmp_lt_u32 {sT[6]}, 28")
        A(f"s_cselect_b32 {sCONS}, 1, 0")
        A(f"s_cselect_b32 {sT[6]}, {sT[6]}, 0")
        A(f"s_lshl_b32 {sH2[5]}, {sT[6]}, 10")
        A(f"s_add_u32 {sH2[5]}, {sH2[5]}, {WS_P3}")
        A(f"s_cmp_ge_u32 {sT[6]}, 14")
        A(f"s_cselect_b32 {sT[8]}, {4 - 14*64}, 0")
        A(f"s_lshl_b32 {sT[6]}, {sT[6]}, 6")
        A(f"s_add_u32 {sT[6]}, {sT[6]}, {sT[8]}")
        A(f"v_lshrrev_b32 v{vT+1}, 1, v{vT+1}")
        A(f"v_add_u32 v{vT+17}, {sT[6]}, v{vT+1}")
        if pre1 is not None or pre2 is not None:
            A(f"s_lshl_b32 {sT[8]}, {sW}, 10")
            A(f"v_lshlrev_b32 v{vT}, 4, v0")
        if pre1 is not None:
            A(f"s_lshl_b32 {sT[7]}, {sW}, 11")
            A(f"s_sub_u32 {sT[7]}, {sP1}, {sT[7]}")
            if pre1.startswith("ld"):
                VM(f"buffer_load_dwordx4 v[{vT+12}:{vT+15}], v{vT}, {SRD_WS}, {sT[7]} offen {pre1[2:]}")
            else:
                for k in range(4):
                    A(f"v_mov_b32 v{vT+12+k}, 0")
                A(f"v_not_b32 v{vT+13}, {sTAG}")
                A(f"v_not_b32 v{vT+15}, {sTAG}")
                VM(f"buffer_store_dwordx4 v[{vT+12}:{vT+15}], v{vT}, {SRD_WS}, {sT[7]} offen {pre1[2:]}")
        if pre2 is not None:
            VM(f"buffer_load_dwordx4 v[{vT+12}:{vT+15}], v{vT}, {SRD_WS}, {sP2} offen {pre2[2:]}")

    PW, PW2, Y = vSC, vSC + 32, vSC + 48

    def c_wprep():
        assert st["pdone"] >= 13
        if wdma or wlate:
            if wlate:
                A("s_waitcnt vmcnt(4)")
                A("s_barrier")
            else:
                assert lateprep and st["w"] <= vm["known"]
            A(f"v_subrev_u32 v{vT+16}, 128, v0")
            A(f"v_min_u32 v{vT+16}, 111, v{vT+16}")
            A(f"v_lshlrev_b32 v{vT+16}, 3, v{vT+16}")
            A(f"v_add_u32 v{vT+16}, {STG}, v{vT+16}")
            for i in range(24):
                A(f"ds_read_b64 v[{vWO+2*i}:{vWO+2*i+1}], v{vT+16} offset:{i*896}")
            A("s_waitcnt lgkmcnt(0)")
        elif lateprep:
            A("s_waitcnt vmcnt(4)")
        else:
            wait_vm(st["w"])
            A(f"s_cmp_lt_u32 {sW}, 2")
            A("s_cbranch_scc1 L_noprep")
        A(f"s_mov_b32 {sT[6]}, 0x05040100")
        A(f"s_mov_b32 {sT[7]}, 0x07060302")
        for k in range(12):
            for cp in range(2):
                A(f"v_perm_b32 v{PW+4*k+2*cp}, v{vWO+4*k+2+cp}, v{vWO+4*k+cp}, {sT[6]}")
                A(f"v_perm_b32 v{PW+4*k+2*cp+1}, v{vWO+4*k+2+cp}, v{vWO+4*k+cp}, {sT[7]}")
        for c in range(4):
            A(f"v_mov_b32 v{Y+2*c}, 0")
            A(f"v_mov_b32 v{Y+2*c+1}, {sTAG}")
        A("s_cmp_lt_u32 s2, 224")
        A("s_cbranch_scc0 L_noprep")
        for k in range(4):
            for c in range(4):
                A(f"v_dot2_f32_bf16 v{Y+2*c}, v{vH+2*k}, v{PW2+4*k+c}, v{Y+2*c}")
        A("L_noprep:")

    def do_touch():
        A(f"s_lshl_b32 {sT[8]}, {sW}, 15")
        A(f"s_add_u32 {sT[8]}, {sT[8]}, {sT[2]}")
        if touch == "sc1":
            VM(f"buffer_load_dword v{vT+12}, v{vH1}, {SRD_WS}, {sT[8]} offen sc1")
        else:
            A(f"s_cmp_eq_u32 {sLOC}, 1")
            A("s_cbranch_scc0 L_tfar")
            A(f"buffer_load_dword v{vT+12}, v{vH1}, {SRD_WS}, {sT[8]} offen")
            A("s_branch L_tdone")
            A("L_tfar:")
            VM(f"buffer_load_dword v{vT+12}, v{vH1}, {SRD_WS}, {sT[8]} offen sc1")
            A("L_tdone:")
        if touch2:
            A(f"s_mul_i32 {sT[8]}, {sW}, {8*3584}")
            A(f"s_add_u32 {sT[8]}, {sT[8]}, {sH2[0]}")
            VM(f"buffer_load_dword v{vT+13}, v{vH2}, {SRD_WS}, {sT[8]} offen sc1")

    def do_wtlb():
        VM(f"buffer_load_dword v{vT+14}, off, {SRD_WO}, {sT[0]} nt")
        VM(f"buffer_load_dword v{vT+15}, off, {SRD_W2}, {sT[1]} nt")

    def c_rkprobe(c):
        A(f"s_cmp_eq_u32 {sW}, {rkw}")
        A(f"s_cbranch_scc0 L_rkp{c}")
        A(f"s_lshl_b32 s18, {sH}, 7")
        A(f"s_add_u32 s18, s18, {WS_RK + c*1024}")
        A(f"s_lshl_b32 s19, {sP}, 2")
        A(f"s_add_u32 s19, s19, s18")
        A(f"v_lshlrev_b32 v{vT+18}, 2, {vL}")
        A(f"v_mov_b32 v{vT+19}, {sTAG}")
        A("s_mov_b32 exec_hi, 0")
        A(f"buffer_load_dword v255, v{vT+18}, {SRD_WS}, s18 offen sc1")
        A("s_mov_b32 exec_lo, 1")
        A(f"buffer_store_dword v{vT+19}, off, {SRD_WS}, s19")
        A("s_mov_b64 exec, -1")
        A(f"L_rkp{c}:")
        st["rk_n"] = vm["n"]

    def c_rkdecide(c, L, k=None):
        _, hi, gh, lo, gl = ctl[c]
        if k is None:
            A(f"s_cmp_eq_u32 {sW}, {rkw}")
            A(f"s_cbranch_scc0 L_rkd{c}")
            A(f"v_cmp_eq_u32 vcc, {sTAG}, v255")
            A("s_bcnt1_i32_b32 s18, vcc_lo")
        else:
            A(f"s_cmp_eq_u32 s14, {k}")
            c = f"{c}_{k}"
            A(f"s_cbranch_scc0 L_rkd{c}")
        A(f"s_sub_u32 {sWE}, s18, {hi}")
        A(f"s_mul_i32 {sWE}, {sWE}, {gh}")
        A(f"s_add_u32 {sWE}, {sWE}, {L + 5}")
        A(f"s_cmp_gt_u32 s18, {hi}")
        A(f"s_cselect_b32 {sWE}, {sWE}, 0")
        if N2:
            A(f"s_sub_u32 {sNE}, s18, {lo}")
            A(f"s_mul_i32 {sNE}, {sNE}, {gl}")
            A(f"s_add_u32 {sNE}, {sNE}, {L + 5}")
            A(f"s_cmp_gt_u32 s18, {lo}")
            A(f"s_cselect_b32 {sNE}, {sNE}, 0")
        elif lo:
            A(f"s_min_u32 {sNE}, s18, {lo}")
            A(f"s_sub_u32 {sNE}, {lo}, {sNE}")
            A(f"s_mul_i32 {sNE}, {sNE}, {gl}")
            A(f"s_add_u32 {sNE}, {sNE}, {L + 5}")
            A(f"s_cmp_lt_u32 s18, {lo}")
            A(f"s_cselect_b32 {sNE}, {sNE}, 0")
        else:
            A(f"s_mov_b32 {sNE}, 0")
        A(f"v_mov_b32 v{vT+18}, {sWE}")
        A(f"v_mov_b32 v{vT+19}, {sNE}")
        A(f"ds_write_b64 v254, v[{vT+18}:{vT+19}]")
        A(f"L_rkd{c}:")
        st["rk_on"] = True

    def c_last():
        for t in range(16):
            if t in (0, 4, 8):
                A(f"s_waitcnt lgkmcnt({ {0: 12, 4: 8, 8: 0}[t] })")
            if t >= 8:
                u = t - 8
                A(f"ds_write2_b32 v{vMW}, v{vACC+4*u}, v{vACC+4*u+1} offset0:{u*16} offset1:{u*16+128}")
            pv(False, t, t + 1)
        if stamps:
            lds_wait(True)
        stamp()
        A("s_nop 0")
        for u in range(8, 16):
            A(f"ds_write2_b32 v{vMW+1}, v{vACC+4*u}, v{vACC+4*u+1} offset0:{(u%8)*16} offset1:{(u%8)*16+128}")

    chunks = []
    C = lambda fn, need=None, free=None: chunks.append((need, free, fn))
    backlog = list(range(NB))
    for n in range(S):
        slot = (n % R) * tb
        if n < NB:
            C(lambda n=n, slot=slot: read_k(32 * n, slot, True), need=n)
            C(lambda: lds_wait(True), free=n)
            if n == NP:
                C(c_qpoll)
            if n == NB - 1:
                C(c_qcheck)
                C(c_qread)
        else:
            C(lambda slot=slot: read_k(vTL, slot), need=n)
            C(lambda: (lds_wait(True), qk_mfma(vTL, False)), free=n)
            C(lambda n=n: qk_post(vSC + 4 * n))
            for _ in range(2):
                if backlog:
                    m = backlog.pop(0)
                    C(lambda m=m: qk_mfma(32 * m, True))
                    C(lambda m=m: qk_post(vSC + 4 * m))
    assert not backlog
    C(c_kmax)
    lq = list(range(S))
    assert vgat % 2 == 1 and vpub % 2 == 1
    for n in range(S):
        j = S + n
        slot = (j % R) * tb
        if n == vgat + 3:
            C(c_rescale)
        if n == S - 2:
            C(lambda: make_p(S - 2))
            C(lambda: make_p(S - 1))
            if not lateprep:
                C(c_wprep)
        elif n < S - 2:
            C(lambda n=n: make_p(n))
        C(lambda slot=slot, n=n: read_v(slot, n & 1), need=j)
        if tat == j:
            C(do_touch)
        if wat == j:
            C(issue_weights)
        if wlate == j:
            C(lambda: [issue_wdma(k) for k in range(6)])
        if n % 2 == 0:
            C(lambda: lds_wait(True), free=j)
        elif n == S - 1:
            C(c_last)
        else:
            C(lambda n=n: (lds_wait(True), pv(n == 1, 0, 8)), free=j)
            C(lambda n=n: pv(n == 1, 8, 16))
        for _ in range(3 if n % 2 == 0 else 2):
            if lq:
                m0, m1 = lq.pop(0), lq.pop(0)
                C(lambda m0=m0, m1=m1: (lsum(vSC + 4 * m0), lsum(vSC + 4 * m1)))
                if not lq:
                    C(c_lwrite)
        if n == vpub:
            assert not lq
            C(c_mlpub)
        if n == vgat:
            C(c_mlpoll)
        if n == vgat + 1:
            C(c_mlcheck)
            C(c_mlscale)
        if n == vgat + 3:
            C(c_tail1)
            C(c_tail2)

    freed = set()

    def emit_chunk(q, block):
        need, free, fn = q[0]
        if need is not None:
            last = need * T + T - 1
            if last not in lidx:
                assert not block
                return False
            if lidx[last] > vm["known"]:
                if not block:
                    return False
                wait_vm(lidx[last])
        q.pop(0)
        fn()
        if free is not None:
            freed.add(free)
        return True

    def tagfix():
        A("s_waitcnt lgkmcnt(0)")
        A(f"s_mul_i32 {sTAG}, {sTAG}, 1664525")
        A(f"s_add_u32 {sTAG}, {sTAG}, 1013904223")

    def stream(L0, L1, win, q, paced):
        for L in range(L0, L1):
            j, i = divmod(L, T)
            st["L"] = L
            Nw = win(L)
            if ext and X * T <= L < ext[0] and Nw < ext[1]:
                wait_vm(paced[-ext[1]])
                A(f"s_cmp_lt_u32 {sZ}, 92")
                A(f"s_cbranch_scc1 L_x{L}")
                A(f"s_waitcnt vmcnt({vm['n'] - paced[-Nw]})")
                A(f"L_x{L}:")
            elif st.get("rk_on") and Nw <= N + 1:
                if N2:
                    wait_vm(paced[-(Nw + N2 - N)])
                    A(f"s_cmp_gt_u32 {sNE}, {L}")
                    A(f"s_cbranch_scc1 L_x{L}")
                    A(f"s_waitcnt vmcnt({vm['n'] - paced[-(Nw + Nhi - N)]})")
                else:
                    wait_vm(paced[-(Nw + Nhi - N)])
                A(f"s_cmp_gt_u32 {sWE}, {L}")
                A(f"s_cbranch_scc1 L_x{L}")
                A(f"s_waitcnt vmcnt({vm['n'] - paced[-Nw]})")
                if not N2 and (any(r[3] for r in ctl) or (iw and iw[2])):
                    A(f"s_cmp_gt_u32 {sNE}, {L}")
                    A(f"s_cbranch_scc0 L_x{L}")
                    A(f"s_waitcnt vmcnt({vm['n'] - paced[-Nlo]})")
                A(f"L_x{L}:")
            elif len(paced) >= Nw:
                wait_vm(paced[-Nw])
            if L == NL - tail - T:
                st["rk_off"] = True
            if i == 0 and j >= R:
                while (j - R) not in freed:
                    emit_chunk(q, True)
            issue_load(L)
            paced.append(lidx[L])
            if iw and "tc" in st and not st.get("rk_off") and not st.get("rk_rd"):
                A(f"v_mov_b32 v{vPD}, {L}")
                A(f"ds_write_b32 v{vPW}, v{vPD}")
                st["iw_last"] = L
            if L == NL - 1 - tpos and touch is not None and tat is None:
                do_touch()
                if wtlb:
                    do_wtlb()
            if L == NL - 1 - wpos and not now and not wearly and not wafter and wat is None and not wdma and wlate is None:
                issue_weights()
            if wdma and L >= wdma[0] and (L - wdma[0]) % wdma[1] == 0 and (L - wdma[0]) // wdma[1] < 6:
                if wdma[2]:
                    wait_vm(paced[-Nw])
                    paced.append(issue_wdma((L - wdma[0]) // wdma[1]))
                else:
                    issue_wdma((L - wdma[0]) // wdma[1])
            did = False
            for c, r_ in enumerate(rk):
                if L == r_[0] and not st.get("rk_rd"):
                    c_rkprobe(c)
                    st["rk_pend"] = c
                    did = True
                elif L == r_[0]:
                    raise AssertionError("probe between a tile read and its wait")
            if st.get("rk_pend") is not None and vm["known"] > st["rk_n"] and not st.get("rk_rd") and not did:
                c_rkdecide(st["rk_pend"], L)
                st["rk_pend"] = None
                did = True
            if q and not did and (L < NL - tail or Nend <= N + 2):
                emit_chunk(q, False)

    def win_main(L):
        Nw = Nend if L >= NL - tail else N
        if kopen and NL // 2 - kopen[0] <= L < NL // 2:
            Nw = kopen[1]
        for b_ in bump:
            if b_[0] <= L < b_[1]:
                Nw = b_[2]
        if alt and Nw == N and (L // alt[1]) % alt[2] == (alt[3] if len(alt) > 3 else 0):
            Nw = alt[0]
        return Nw

    split = next(k for k, ch in enumerate(chunks) if ch[0] == X - 1)
    head_chunks, rest = chunks[:split], chunks[split:]
    assert X - 1 <= NP
    ends = []
    for path in ("n", "p"):
        vm.update(n=0, known=0)
        lidx.clear()
        freed.clear()
        paced = []
        stg = {"i": 0}

        def issue_stg():
            i = stg["i"]
            if rot:
                if i == 0:
                    A(f"s_mul_i32 {sT[3]}, {sZ}, 4682")
                    A(f"s_lshr_b32 {sT[3]}, {sT[3]}, 16")
                    A(f"s_mul_i32 {sT[3]}, {sT[3]}, 14")
                    A(f"s_sub_u32 {sT[3]}, {sZ}, {sT[3]}")
                else:
                    A(f"s_add_u32 {sT[3]}, {sT[3]}, 1")
                    A(f"s_cmp_eq_u32 {sT[3]}, 14")
                    A(f"s_cselect_b32 {sT[3]}, 0, {sT[3]}")
                A(f"s_lshl_b32 {sT[9]}, {sT[3]}, 10")
                A(f"s_add_u32 m0, {sT[6]}, {sT[9]}")
                A(f"s_mul_i32 {sT[9]}, {sT[3]}, {sT[4]}")
                A(f"s_add_u32 {sT[9]}, {sT[9]}, {sT[5]}")
                st["stg"] = VM(f"buffer_load_dwordx4 v21, {SRD_W}, {sT[9]} offen {wflags} lds")
            else:
                A(f"s_add_u32 m0, {sT[6]}, {i*1024}")
                if i:
                    A(f"s_add_u32 {sT[5]}, {sT[5]}, {sT[4]}")
                else:
                    A("s_nop 0")
                st["stg"] = VM(f"buffer_load_dwordx4 v21, {SRD_W}, {sT[5]} offen {wflags} lds")
            paced.append(st["stg"])
            stg["i"] += 1
            m0bad["v"] = True
        if path == "n":
            common0()
            A("s_waitcnt lgkmcnt(0)")
            for L in range(N0):
                issue_load(L)
                paced.append(lidx[L])
            srd(52, 4, 896)
            common1()
            setup()
            if wearly:
                issue_weights()
            if ra:
                A(f"s_lshl_b32 {sT[2]}, s2, 2")
                A(f"s_add_u32 {sT[2]}, {sT[2]}, {sW}")
                A(f"s_cmp_eq_u32 {sT[2]}, 1023")
                A("s_cbranch_scc0 L_noclear")
                A(f"v_mul_u32_u24 v29, 4352, {vL}")
                A("v_mov_b32 v30, 0")
                A(f"s_mov_b32 {sT[2]}, {WS_CNT}")
                A(f"buffer_store_dword v30, v29, {SRD_WS}, {sT[2]} offen sc0 sc1")
                if len(ra) * ng > 64:
                    A(f"s_add_u32 {sT[2]}, {sT[2]}, {64*4352}")
                    A(f"buffer_store_dword v30, v29, {SRD_WS}, {sT[2]} offen sc0 sc1")
                A("s_waitcnt vmcnt(0) lgkmcnt(0)")
                A(f"s_mul_i32 {sT[2]}, {sTAG}, 1664525")
                A(f"s_add_u32 {sT[2]}, {sT[2]}, 1013904223")
                A(f"v_mov_b32 v30, {sT[2]}")
                A(f"s_mov_b32 {sT[2]}, {WS_RDY}")
                A("s_mov_b64 exec, 1")
                A(f"buffer_store_dword v30, off, {SRD_WS}, {sT[2]} sc1")
                A("s_mov_b64 exec, -1")
                A("L_noclear:")
            q = list(head_chunks) + [(None, None, tagfix)]
            stream(N0, X * T, (lambda L: nn[1] if nn and L < nn[0] else win_main(L)), q, paced)
        else:
            A("L_producer:")
            common0()
            producer0()
            st["x"] = VM(f"buffer_load_dwordx4 v[{vT}:{vT+3}], v29, {SRD_X}, 0 offen")
            A(f"s_mov_b32 m0, {sT[6]}")
            A("L_stg:")
            A(f"s_sub_u32 {sT[3]}, {sT[3]}, 1")
            A(f"buffer_load_dwordx4 v21, {SRD_W}, {sT[5]} offen {wflags} lds")
            A(f"s_add_u32 {sT[5]}, {sT[5]}, {sT[4]}")
            A("s_add_u32 m0, m0, 1024")
            A(f"s_cmp_lg_u32 {sT[3]}, 0")
            A("s_cbranch_scc1 L_stg")
            for _ in range(14):
                vm["n"] += 1
                st["stg"] = vm["n"]
                paced.append(vm["n"])
            for L in range(B0):
                issue_load(L)
                paced.append(lidx[L])
                if il and L % il == il - 1:
                    issue_stg()
            common1()
            setup()
            if wearly == 1:
                issue_weights()
            if not il:
                for fn in side_chunks[:4]:
                    fn()
                q = [(None, None, fn) for fn in side_chunks[4:]] + list(head_chunks) + [(None, None, tagfix)]
                stream(B0, X * T, lambda L: Np if L < Xp else N, q, paced)
            else:
                Ls = 14 * il
                q = [(None, None, fn) for fn in side_chunks[:5]] + list(head_chunks)
                for L in range(B0, Ls):
                    stream(L, L + 1, lambda L: Np, q, paced)
                    if L % il == il - 1:
                        if len(paced) >= Np:
                            wait_vm(paced[-Np])
                        issue_stg()
                w2 = Np2 or N
                L = Ls
                while st["stg"] > vm["known"]:
                    stream(L, L + 1, lambda L: w2, q, paced)
                    L += 1
                assert all(ch[2] not in side_chunks for ch in q)
                if q and q[0][1] is not None:
                    emit_chunk(q, True)
                q = [(None, None, fn) for fn in side_chunks[5:]] + ([(None, None, issue_weights)] if wearly == 2 else []) + q + [(None, None, tagfix)]
                stream(L, X * T, lambda L: w2 if L < Xp else N, q, paced)
        while q:
            emit_chunk(q, True)
        known_L = max([L for L in lidx if lidx[L] <= vm["known"]] + [-1])
        ends.append(({L: vm["n"] - lidx[L] for L in range(X * T - 16, X * T)}, known_L, set(freed)))
        if path == "n":
            A("s_branch L_join")
    A("L_join:")
    st["tc"] = X - 1
    if iw:
        assert not rk
        st["rk_on"] = True
    stamp(1)
    assert ends[0][0] == ends[1][0] and ends[0][2] == ends[1][2], ends
    vm["known"] = lidx[min(ends[0][1], ends[1][1])]
    stream(X * T, NL, win_main, rest, [lidx[L] for L in range(X * T - 16, X * T)])
    while rest:
        emit_chunk(rest, True)

    def gather4(lbl, base, voff, soffs, d0, d1, first_issued, slp):
        def loads(set_):
            for k in range(4):
                r = base + 16 * set_ + 4 * k
                A(f"buffer_load_dwordx4 v[{r}:{r+3}], v{voff}, {SRD_WS}, {soffs[k]} offen sc1")

        def sums(r):
            A(f"v_add_f32 v{d0}, v{r}, v{r+4}")
            A(f"v_add_f32 v{d1}, v{r+2}, v{r+6}")
            A(f"v_add_f32 v{r+8}, v{r+8}, v{r+12}")
            A(f"v_add_f32 v{r+10}, v{r+10}, v{r+14}")
            A(f"v_add_f32 v{d0}, v{d0}, v{r+8}")
            A(f"v_add_f32 v{d1}, v{d1}, v{r+10}")
        if not first_issued:
            loads(0)
        A(f"L_{lbl}:")
        nset = 2 if pipe else 1
        for set_ in range(nset):
            r = base + 16 * set_
            if pipe:
                loads(1 - set_)
                A("s_waitcnt vmcnt(4)")
            else:
                A("s_waitcnt vmcnt(0)")
            tagcheck([r + 1 + 2 * i for i in range(8)], vT + 2, vT + 3)
            if pipe:
                sums(r)
            A(f"s_cbranch_vccz L_{lbl}ok")
        A(f"s_sub_u32 {sT[9]}, {sT[9]}, 1")
        if pipe:
            A(f"s_cbranch_scc0 L_{lbl}")
        else:
            A(f"s_cbranch_scc1 L_{lbl}ok")
            if slp:
                A(f"s_sleep {slp}")
            loads(0)
            A(f"s_branch L_{lbl}")
        A(f"L_{lbl}ok:")
        if not pipe:
            sums(base)

    O4, G = 32, 64
    for k in range(1, 16, 2):
        A(f"v_mov_b32 v{G+k}, {sTAG}")
    A(f"s_cmp_eq_u32 {sW}, 1")
    A("s_waitcnt lgkmcnt(0)")
    A("s_barrier")
    A("s_cbranch_scc0 L_not1")
    for qd in range(4):
        for w in range(4):
            r = O4 + 8 * qd + 2 * w
            A(f"ds_read_b64 v[{r}:{r+1}], v{vMR+w//2} offset:{(w%2)*R*tb + qd*512}")
    A(f"s_cmp_eq_u32 {sLOC}, 1")
    A("s_cbranch_scc0 L_far1")
    for far in (0, 1):
        if far:
            A("L_far1:")
        for qd in range(4):
            r = O4 + 8 * qd
            A(f"s_waitcnt lgkmcnt({12 - 4*qd})")
            A(f"v_pk_add_f32 v[{r}:{r+1}], v[{r}:{r+1}], v[{r+2}:{r+3}]")
            A(f"v_pk_add_f32 v[{r+4}:{r+5}], v[{r+4}:{r+5}], v[{r+6}:{r+7}]")
            A(f"v_add_f32 v{G+4*qd}, v{r}, v{r+4}")
            A(f"v_add_f32 v{G+4*qd+2}, v{r+1}, v{r+5}")
            A(f"buffer_store_dwordx4 v[{G+4*qd}:{G+4*qd+3}], v{vO1}, {SRD_WS}, {sP1} offen offset:{(qd&1)*2048 + (qd>>1)*1024}" + (" sc1" if far else ""))
        if stamps:
            A("s_memrealtime s[94:95]")
        if wlate:
            A("s_waitcnt vmcnt(4)")
            A("s_barrier")
        A("s_branch L_leave")
    nstamp["n"] += 1 if stamps else 0
    A("L_not1:")
    A(f"s_cmp_ge_u32 {sW}, 2")
    A("s_cbranch_scc1 L_bwave")
    if wlate:
        A("s_waitcnt vmcnt(0)")
        A("s_barrier")
    A(f"s_mov_b32 {sT[9]}, {spin}")
    A(f"s_cmp_lt_u32 {sP}, 28")
    A("s_cbranch_scc0 L_final")

    YG = 96
    gather4("h2", YG, vH2, sH2, G, G + 2, False, sleep2)
    if stamps:
        A("s_memrealtime s[96:97]")
    allreduce("v_add_f32", [G, G + 2], vT, [8, 16, 32])
    A("s_mov_b64 exec, 0xff")
    A(f"buffer_store_dwordx4 v[{G}:{G+3}], v{vO1}, {SRD_WS}, {sH2[4]} offen sc1")
    A("s_branch L_done")

    A("L_final:")
    A(f"s_cmp_eq_u32 {sCONS}, 1")
    A("s_cbranch_scc0 L_done")
    A("s_barrier")
    A(f"buffer_load_dword v{vXR}, v{vT+17}, {SRD_X}, 0 offen")
    if outpf:
        A(f"buffer_load_dword v{vT+12}, v{vT+17}, {SRD_OUT}, 0 offen")
        if epfl != "sc1":
            A(f"buffer_load_dword v{vT+13}, off, {SRD_WS}, 0")
    for d in range(depth3 - 1):
        A(f"buffer_load_dwordx4 v[{YG+4*d}:{YG+4*d+3}], v{vO1}, {SRD_WS}, {sH2[5]} offen sc1")
    A("L_h3:")
    for d in range(depth3):
        n = (d + depth3 - 1) % depth3
        A(f"buffer_load_dwordx4 v[{YG+4*n}:{YG+4*n+3}], v{vO1}, {SRD_WS}, {sH2[5]} offen sc1")
        A(f"s_waitcnt vmcnt({depth3 - 1})")
        A(f"v_mov_b32 v{G}, v{YG+4*d}")
        A(f"v_mov_b32 v{G+2}, v{YG+4*d+2}")
        tagcheck([YG + 4 * d + 1, YG + 4 * d + 3], vT, vT + 1)
        A("s_cbranch_vccz L_h3ok")
    A(f"s_sub_u32 {sT[9]}, {sT[9]}, 1")
    A("s_cbranch_scc0 L_h3")
    A("L_h3ok:")
    if stamps:
        A("s_memrealtime s[98:99]")
    allreduce("v_add_f32", [G, G + 2], vT, [8, 16, 32])
    A(f"v_lshlrev_b32 v{vT+2}, 16, v{vXR}")
    A(f"v_and_b32 v{vT+3}, 0xffff0000, v{vXR}")
    A(f"v_add_f32 v{G}, v{G}, v{vT+2}")
    A(f"v_add_f32 v{G+2}, v{G+2}, v{vT+3}")
    A("s_mov_b64 exec, 0xff")
    A(f"v_cvt_pk_bf16_f32 v{G}, v{G}, v{G+2}")
    A(f"buffer_store_dword v{G}, v{vT+17}, {SRD_OUT}, 0 offen {outfl}")
    A("s_cmp_eq_u32 s2, 224")
    A("s_cbranch_scc0 L_done")
    A("s_mov_b64 exec, 1")
    A(f"buffer_store_dword v{G+1}, off, {SRD_WS}, 0 {epfl}")
    A("s_branch L_done")

    A("L_bwave:")
    if wafter:
        issue_weights()
    OG = 96

    def hop1_loads(fl="sc1"):
        for k in range(4):
            A(f"buffer_load_dwordx4 v[{OG+4*k}:{OG+4*k+3}], v{vH1}, {SRD_WS}, {sT[2+k]} offen {fl}")
    if plain1:
        A(f"s_cmp_eq_u32 {sLOC}, 1")
        A("s_cbranch_scc0 L_h1far")
        hop1_loads("")
        A("s_branch L_h1first")
        A("L_h1far:")
    hop1_loads()
    A("L_h1first:")
    if lateprep:
        c_wprep()
    A(f"s_mov_b32 {sT[9]}, {spin}")
    oa, ob = vT, vT + 1
    gather4("h1", OG, vH1, sT[2:6], oa, ob, True, sleep1)
    stamp()
    allreduce("v_add_f32", [oa, ob], vT + 2, [8, 16, 32])
    A(f"v_cvt_pk_bf16_f32 v{oa}, v{oa}, v{ob}")
    A("s_nop 0")
    for k in range(8):
        A(f"v_readlane_b32 {sT[k]}, v{oa}, {k}")
    for cp in range(2):
        for k in range(8):
            for c in (2 * cp, 2 * cp + 1):
                A(f"v_dot2_f32_bf16 v{Y+2*c}, {sT[k]}, v{PW+4*k+c}, v{Y+2*c}")
    A(f"s_cmp_eq_u32 {sLOC}, 1")
    A("s_cbranch_scc0 L_far2")
    A(f"buffer_store_dwordx4 v[{Y}:{Y+3}], v{vOO}, {SRD_WS}, {sP2} offen")
    A(f"buffer_store_dwordx4 v[{Y+4}:{Y+7}], v{vOO}, {SRD_WS}, {sP2} offen offset:1792")
    A("s_branch L_sent2")
    A("L_far2:")
    A(f"buffer_store_dwordx4 v[{Y}:{Y+3}], v{vOO}, {SRD_WS}, {sP2} offen sc1")
    A(f"buffer_store_dwordx4 v[{Y+4}:{Y+7}], v{vOO}, {SRD_WS}, {sP2} offen offset:1792 sc1")
    A("L_sent2:")
    stamp()
    A("L_leave:")
    A(f"s_cmp_eq_u32 {sCONS}, 1")
    A("s_cbranch_scc0 L_done")
    A("s_barrier")
    A("L_done:")
    if stamps:
        A("s_mov_b64 exec, -1")
        A("s_memrealtime s[100:101]")
        A("s_waitcnt lgkmcnt(0)")
        A(f"s_lshl_b32 {sT[0]}, s2, 2")
        A(f"s_add_u32 {sT[0]}, {sT[0]}, {sW}")
        A(f"s_lshl_b32 {sT[1]}, {sT[0]}, 8")
        A(f"s_lshl_b32 {sT[0]}, {sT[0]}, 6")
        A(f"s_add_u32 {sT[0]}, {sT[0]}, {WS_STAMP}")
        A(f"s_add_u32 {sT[1]}, {sT[1]}, {WS_STAMP + 0x10000}")
        A(f"v_lshlrev_b32 v2, 2, {vL}")
        A(f"buffer_store_dword v252, v2, {SRD_WS}, {sT[1]} offen")
        A("v_mov_b32 v2, 0")
        A("s_mov_b64 exec, 1")
        A("v_mov_b32 v3, s26")
        A(f"buffer_store_dword v3, v2, {SRD_WS}, {sT[0]} offen offset:44")
        for k in range(9):
            A(f"v_mov_b32 v3, s{84+2*k}")
            A(f"buffer_store_dword v3, v2, {SRD_WS}, {sT[0]} offen offset:{4*k}")
        A("s_getreg_b32 s84, hwreg(HW_REG_XCC_ID)")
        A("v_mov_b32 v3, s84")
        A(f"buffer_store_dword v3, v2, {SRD_WS}, {sT[0]} offen offset:36")
        A(f"v_mov_b32 v3, {sT[9]}")
        A(f"buffer_store_dword v3, v2, {SRD_WS}, {sT[0]} offen offset:40")
    A("L_end:")
    A("s_endpgm")
    body = "\n".join(("" if l.endswith(":") else "    ") + l for l in o)
    return HEADER.format(lds=LDS, k=kern) + body + FOOTER.format(k=kern)


if __name__ == "__main__":
    out = sys.argv[1]
    kw = json.loads(sys.argv[2]) if len(sys.argv) > 2 else {}
    open(out, "w").write(gen(**kw))
```

```python
import sys, json, math, struct
from gen import HEADER, FOOTER, KERN, f2u, LOG2E_16

WS_QG = 0x1000
WS_HG = WS_QG + 0x4000
WS_ML = 0x8000
WS_RK = 0xA000
WS_RDY = 0xC000
WS_CNT = 0x200000
WS_P1O = 0x10000
WS_P2 = 0x110000
WS_P3 = 0x1F0000
WS_STAMP = 0x300000
WS_SIZE = 0x400000


def gen(R=3, N=5, N0=8, Nend=12, tail=7, NB=8, NP=6, bits="i0 w0 w1 i1 i2 g3 g4 t2 t3 x0 x1 x2 t0 t1",
        kflags="nt", vflags="nt", wflags="nt", stamps=0, spin=4000000, vpub=5, vgat=9, wpos=0, flat2=False, gate2=False, kopen=None, lateprep=True, pre1=None, pre2=None, plain1=False, touch="sc1", tpos=0, codepf=False, tlbpf=True, outpf=True, nn=(32, 4), ext=None, depth3=4, touch2=True, now=False, wafter=False, wat=None, tat=None, diag=0, dry=False, w2at=None, pad=0, gateA=False, st3="sc1", ld3="sc1", bb=None, N2=8, iw=None, ra=tuple((t, 18, 6, 26, 6) for t in (8, 11, 14, 17, 20, 23, 26)), raws=True, nk=1, ng=8, bump=(), epfl="", outfl="", pipe=False, skipw=True, wlate=None, wtlb=None, wdma=None, rk=((64, 20, 4, 0, 0), (186, 18, 5, 0, 0)), rkw=1, Nhi=6, Nlo=4, sleep1=0, sleep2=0,
        alt=None, X=7, Np=12, B0=6, Xp=None, il=0, Np2=9, zmap="wg", rot=True, hmap="mod8", local=True,
        kern=KERN):
    noend = noml = False
    assert not wdma and wlate is None
    if ra:
        rk = ()
        assert not codepf and len(ra) * ng <= 128 and raws
    ctl = list(rk) + list(ra)
    wearly = 0
    T = 8
    tb = T * 1024
    S = 16
    if "h" not in bits.split():
        bits = "h " + bits
    pos = {n: 9 + k for k, n in enumerate(bits.split())}
    genh = pos["h"] != 9
    RING = 4 * R * tb
    STG = RING
    QW = STG + 57344
    LML = QW + 4096
    FIN = LML + 128
    PRG = FIN + 256
    LDS = PRG + (1024 if iw else 0)
    assert LDS <= 163840 and LDS > 81920
    if Xp is None:
        Xp = X * T

    o = []
    A = o.append
    vm = {"n": 0, "known": 0}

    def VM(s):
        A(s)
        vm["n"] += 1
        return vm["n"]

    def wait_vm(idx, force=False):
        if idx <= vm["known"] and not force:
            return
        n = vm["n"] - idx
        assert 0 <= n <= 63, n
        A(f"s_waitcnt vmcnt({n})")
        if vm.get("opt") and idx < vm["optend"]:
            assert idx <= vm["optend"] - vm["opt"]
            vm["lbl"] = vm.get("lbl", 0) + 1
            A(f"s_cmp_ge_u32 s3, 2")
            A(f"s_cbranch_scc1 L_ow{vm['lbl']}")
            A(f"s_waitcnt vmcnt({n - vm['opt']})")
            A(f"L_ow{vm['lbl']}:")
        vm["known"] = max(vm["known"], idx)

    nstamp = {"n": 0}

    def stamp(mode=1):
        if stamps and (int(stamps) & mode):
            k = nstamp["n"]
            assert k < 8
            A(f"s_memrealtime s[{84+2*k}:{85+2*k}]")
            nstamp["n"] += 1

    SRD_K, SRD_V, SRD_W, SRD_WO, SRD_W2, SRD_WS, SRD_X, SRD_OUT = ("s[28:31]", "s[32:35]", "s[36:39]", "s[40:43]",
                                                                     "s[44:47]", "s[48:51]", "s[52:55]", "s[56:59]")
    sW, sH, sP, sTAG, sRING, sBASE, sC, sF = "s3", "s60", "s61", "s62", "s63", "s64", "s65", "s66"
    sOFF = "s67"
    sZ = "s27"
    sT = ["s72", "s73", "s74", "s75", "s76", "s77", "s78", "s79", "s80", "s81"]
    vL = "v1"
    vSRC = [2, 3, 4, 5]
    vKA = [6, 7, 8, 9]
    vVA = list(range(10, 18))
    vMAX, vMS = 18, 19
    vPF, vLS, vS, vE = 20, 24, 24, 28
    vVT = 32
    sLOC, sXCC = "s82", "s83"
    sWE, sNE = "s16", "s17"
    vPW, vPR, vPD = (22, 23, 255) if False else (252, 253, 255)
    if stamps and iw:
        vPW, vPR = 250, 251
    vQ, vTL, vACC, vSC, vT = 32, 64, 96, 160, 224
    vH = 244

    def srd(base, lo, size):
        A(f"s_mov_b32 s{base}, s{lo}")
        A(f"s_mov_b32 s{base+1}, s{lo+1}")
        A(f"s_mov_b32 s{base+2}, {size}")
        A(f"s_mov_b32 s{base+3}, 0x20000")

    assert hmap == "mod8" and zmap == "wg" and not il
    sZ = "s2"
    A("s_load_dwordx2 s[28:29], s[0:1], 8")
    A("s_load_dwordx16 s[4:19], s[0:1], 0")
    A("s_load_dwordx4 s[20:23], s[0:1], 64")
    A("s_load_dwordx2 s[24:25], s[0:1], 80")
    stamp(3)
    if diag:
        A("s_memrealtime s[84:85]")
    A("v_lshrrev_b32 v30, 6, v0")
    A("s_cmp_lt_u32 s2, 92")
    A("s_cbranch_scc1 L_producer")
    A("s_cmp_ge_u32 s2, 256")
    A("s_cbranch_scc1 L_end")

    def put(src, names):
        k = 0
        while k < len(names):
            e = k
            while e + 1 < len(names) and pos[names[e + 1]] == pos[names[e]] + 1:
                e += 1
            if k == 0 and e == len(names) - 1:
                A(f"s_lshl_b32 {sT[2]}, {src}, {pos[names[0]]}")
            else:
                A(f"s_bfe_u32 {sT[2]}, {src}, {((e - k + 1) << 16) | k}")
                A(f"s_lshl_b32 {sT[2]}, {sT[2]}, {pos[names[k]]}")
            A(f"s_or_b32 {sBASE}, {sBASE}, {sT[2]}")
            k = e + 1

    def common0():
        A(f"v_and_b32 {vL}, 63, v0")
        A("v_readfirstlane_b32 s3, v30")
        A(f"s_and_b32 {sH}, s2, 7")
        A(f"s_lshr_b32 {sP}, s2, 3")
        A(f"s_and_b32 {sT[0]}, {sP}, 7")
        A(f"s_lshr_b32 {sT[1]}, s2, 6")
        A(f"s_lshl_b32 {sBASE}, {sH}, 24")
        put(sT[0], ["x0", "x1", "x2"])
        put(sT[1], ["g3", "g4"])
        put(sW, ["w0", "w1"])
        A(f"s_mul_i32 {sRING}, {sW}, {R*tb}")
        A("s_brev_b32 s30, 16")
        A("s_mov_b32 s31, 0x20000")
        A(f"v_lshlrev_b32 v29, 4, {vL}")
        A(f"v_and_b32 v31, 32, {vL}")
        A(f"v_xor_b32 v{vSRC[0]}, v29, v31")
        if genh:
            A(f"v_and_b32 v{vSRC[0]}, 0x1ff, v{vSRC[0]}")
            A(f"v_lshl_add_u32 v{vSRC[0]}, v31, {pos['h'] - 5}, v{vSRC[0]}")
        A(f"v_xor_b32 v{vSRC[1]}, 64, v{vSRC[0]}")
        A(f"v_xor_b32 v{vSRC[2]}, 0x80, v{vSRC[0]}")
        A(f"v_xor_b32 v{vSRC[3]}, 64, v{vSRC[2]}")

    def common1():
        A(f"s_mov_b32 {sC}, 0x{f2u(LOG2E_16):08x}")
        A(f"s_min_u32 {sF}, s2, 223")

    def producer0():
        A("s_mov_b32 s39, 0x20000")
        A(f"s_cmp_lt_u32 {sZ}, 64")
        A(f"s_mov_b32 s38, {448*1792*2}")
        A(f"s_cmov_b32 s38, {448*4096*2}")
        A(f"s_movk_i32 {sT[4]}, 3584")
        A(f"s_cmovk_i32 {sT[4]}, 8192")
        A(f"s_and_b32 {sT[5]}, {sZ}, 63")
        A(f"s_lshl_b32 {sT[5]}, {sT[5]}, 7")
        A(f"s_mul_i32 {sT[6]}, {sW}, {sT[4]}")
        A(f"s_mulk_i32 {sT[6]}, 112")
        A(f"s_add_u32 {sT[5]}, {sT[5]}, {sT[6]}")
        A(f"v_lshrrev_b32 v30, 3, {vL}")
        A(f"v_mul_u32_u24 v30, {sT[4]}, v30")
        A(f"v_and_b32 v31, 0x70, v29")
        A("v_add_u32 v21, v31, v30")
        A(f"s_lshl_b32 {sT[4]}, {sT[4]}, 3")
        A(f"s_mul_i32 {sT[6]}, {sW}, 14336")
        A(f"s_add_u32 {sT[6]}, {sT[6]}, {STG}")
        A("s_movk_i32 s54, 896")
        A("s_mov_b32 s55, s39")
        A(f"s_movk_i32 {sT[3]}, 14")
        A("s_waitcnt lgkmcnt(0)")
        A("s_mov_b64 s[52:53], s[4:5]")
        A(f"s_cmp_lt_u32 {sZ}, 64")
        A("s_cselect_b64 s[36:37], s[10:11], s[16:17]")

    seq = [("K", n) for n in range(S)] + [("V", n) for n in range(S)]
    NL = len(seq) * T
    lidx = {}

    m0bad = {"v": False}

    def issue_load(L):
        j, i = divmod(L, T)
        kind, n = seq[j]
        if i % 4 and m0bad["v"]:
            A(f"s_add_u32 m0, {sRING}, {(j % R)*tb + (i // 4)*4096}")
            A("s_nop 0")
        m0bad["v"] = False
        def goff(i_):
            return (sum(((n >> k) & 1) << pos[f"t{k}"] for k in range(4)) +
                    sum(((i_ >> k) & 1) << pos[f"i{k}"] for k in range(3)) - (i_ % 4) * 1024)
        srd_, fl = (SRD_K, kflags) if kind == "K" else (SRD_V, vflags)
        if genh:
            A(f"s_add_u32 m0, {sRING}, {(j % R)*tb + i*1024}")
            A(f"s_add_u32 {sOFF}, {sBASE}, {goff(i) + (i % 4)*1024}")
            lidx[L] = VM(f"buffer_load_dwordx4 v{vSRC[i%4]}, {srd_}, {sOFF} offen {fl} lds")
            return
        if i % 4 == 0:
            A(f"s_add_u32 m0, {sRING}, {(j % R)*tb + i*1024}")
        if i % 4 == 0 or goff(i) != goff(i - 1):
            A(f"s_add_u32 {sOFF}, {sBASE}, {goff(i)}")
        lidx[L] = VM(f"buffer_load_dwordx4 v{vSRC[i%4]}, {srd_}, {sOFF} offen offset:{(i%4)*1024} {fl} lds")

    npf = {"n": 0}

    LFLAG = 0x600DF1A6

    def setup():
        A(f"s_lshl_b32 {sT[2]}, {sW}, 5")
        A(f"s_add_u32 {sT[2]}, {sT[2]}, {LML}")
        A(f"v_lshlrev_b32 v29, 2, {vL}")
        A(f"v_add_u32 v29, {sT[2]}, v29")
        A("v_mov_b32 v30, 0")
        A("s_mov_b64 exec, 0xff")
        A("ds_write_b32 v29, v30")
        if ctl:
            A("ds_write_b32 v29, v30 offset:128")
        A("s_mov_b64 exec, -1")
        if iw:
            A(f"v_lshlrev_b32 v{vPW}, 2, v0")
            A(f"v_add_u32 v{vPW}, {PRG}, v{vPW}")
            A(f"ds_write_b32 v{vPW}, v30")
            A(f"v_and_b32 v{vPR}, 3, {vL}")
            A(f"v_lshlrev_b32 v{vPR}, 8, v{vPR}")
            A(f"v_add_u32 v{vPR}, {PRG}, v{vPR}")
        A("s_waitcnt lgkmcnt(0)")
        A("s_barrier")
        A(f"s_load_dword {sTAG}, s[24:25], 0")
        if tlbpf:
            A(f"s_lshr_b32 {sT[2]}, s2, 3")
            A(f"s_lshl_b32 {sT[2]}, {sT[2]}, 2")
            A(f"s_add_u32 {sT[2]}, {sT[2]}, {sW}")
            A(f"s_bitcmp1_b32 {sT[2]}, 3")
            A("s_cselect_b32 s70, s8, s6")
            A("s_cselect_b32 s71, s9, s7")
            A(f"s_and_b32 {sT[7]}, {sT[2]}, 7")
            A(f"s_lshl_b32 {sT[7]}, {sT[7]}, 21")
            A(f"s_lshl_b32 {sT[8]}, {sH}, 24")
            A(f"s_add_u32 {sT[7]}, {sT[7]}, {sT[8]}")
            A(f"s_lshl_b32 {sT[8]}, {sT[2]}, 7")
            A(f"s_add_u32 {sT[7]}, {sT[7]}, {sT[8]}")
            A(f"s_add_u32 s70, s70, {sT[7]}")
            A("s_addc_u32 s71, s71, 0")
            A(f"s_load_dword {sLOC}, s[70:71], 0x0")
            A(f"s_bitcmp1_b32 {sW}, 0")
            A("s_cselect_b32 s70, s12, s18")
            A("s_cselect_b32 s71, s13, s19")
            A(f"s_mov_b32 {sT[7]}, 6272")
            A(f"s_cmov_b32 {sT[7]}, 14336")
            A(f"s_mul_i32 {sT[7]}, {sT[7]}, s2")
            A(f"s_add_u32 s70, s70, {sT[7]}")
            A("s_addc_u32 s71, s71, 0")
            A(f"s_load_dword s21, s[70:71], 0x0" if False else f"s_load_dword {sXCC}, s[70:71], 0x0")
        if codepf:
            k = npf["n"]
            npf["n"] += 1
            A(f"s_getpc_b64 s[68:69]")
            A(f"L_pf{k}:")
            A(f"s_lshr_b32 {sT[2]}, s2, 3")
            A(f"s_lshl_b32 {sT[2]}, {sT[2]}, 2")
            A(f"s_add_u32 {sT[2]}, {sT[2]}, {sW}")
            A(f"s_lshl_b32 {sT[2]}, {sT[2]}, 8")
            A(f"s_min_u32 {sT[2]}, {sT[2]}, L_end-L_join-128")
            A(f"s_add_u32 {sT[2]}, {sT[2]}, L_join-L_pf{k}")
            A(f"s_add_u32 s68, s68, {sT[2]}")
            A("s_addc_u32 s69, s69, 0")
            A("s_load_dword s22, s[68:69], 0x0")
            A("s_load_dword s23, s[68:69], 0x80")
        srd(32, 8, 128 << 20)
        srd(40, 12, 4096 * 448 * 2)
        srd(44, 18, 1792 * 448 * 2)
        srd(48, 24, WS_SIZE)
        srd(56, 20, 896)
        if stamps:
            A("s_mov_b32 s26, 0")
            A("v_mov_b32 v252, 0")
            for k in (5, 6, 7):
                A(f"s_mov_b32 s{84+2*k}, s84")
        A(f"v_and_b32 v29, 15, {vL}")
        A(f"v_lshrrev_b32 v30, 4, {vL}")
        A("v_and_b32 v31, 7, v29")
        A("v_lshlrev_b32 v31, 1, v31")
        A("v_xor_b32 v31, v31, v30")
        A("v_lshlrev_b32 v31, 4, v31")
        A("v_lshl_add_u32 v31, v29, 9, v31")
        for j in range(4):
            A(f"v_xor_b32 v{vKA[j]}, {j*64}, v31")
            A(f"v_add_u32 v{vKA[j]}, {sRING}, v{vKA[j]}")
        A(f"v_bfe_u32 v29, {vL}, 2, 2")
        A(f"v_lshrrev_b32 v30, 4, {vL}")
        A("v_xor_b32 v30, v30, v29")
        A(f"v_and_b32 v31, 3, {vL}")
        A("v_lshlrev_b32 v31, 3, v31")
        A("v_lshl_add_u32 v31, v30, 5, v31")
        A("v_lshl_add_u32 v31, v29, 9, v31")
        A(f"v_add_u32 v{vVA[0]}, {sRING}, v31")
        A(f"v_mov_b32 v{vMAX}, 0xff800000")
        if ra:
            A(f"s_and_b32 s14, {sP}, {nk-1}")
            if raws:
                A(f"s_and_b32 s15, {sP}, {ng-1}")
                A("s_mul_i32 s15, s15, 4352")
                A(f"s_add_u32 s15, s15, {WS_CNT}")
                A("s_add_u32 s22, s24, s15")
                A("s_addc_u32 s23, s25, 0")
            else:
                A(f"s_bfe_u32 s15, {sP}, 0x20002")
                A("s_lshl_b32 s15, s15, 4")
                A("s_add_u32 s15, s15, s14")
                A("s_lshl_b32 s15, s15, 2")
                A("s_add_u32 s22, s22, s15")
                A("s_addc_u32 s23, s23, 0")
            A(f"s_cmp_eq_u32 {sW}, {rkw}")
            A("s_cselect_b32 s14, s14, 15")
        if ctl:
            A(f"s_mov_b32 {sWE}, 0")
            A(f"s_mov_b32 {sNE}, 0")
            A(f"v_mov_b32 v254, {FIN}")

    def allreduce(op, regs, tmp, steps):
        for st in steps:
            if st <= 8:
                if len(regs) < 3:
                    A(f"s_nop {2-len(regs)}")
                for r in regs:
                    A(f"{op}_dpp v{r}, v{r}, v{r} row_ror:{st} row_mask:0xf bank_mask:0xf")
            else:
                for k, r in enumerate(regs):
                    A(f"v_mov_b32 v{tmp+k}, v{r}")
                if len(regs) < 3:
                    A(f"s_nop {2-len(regs)}")
                for k, r in enumerate(regs):
                    A(f"v_permlane{st}_swap_b32 v{r}, v{tmp+k}")
                if len(regs) < 2:
                    A("s_nop 0")
                for k, r in enumerate(regs):
                    A(f"{op} v{r}, v{r}, v{tmp+k}")

    XU = vT + 4
    a, b, c_, d_ = vT + 12, vT + 13, vT + 14, vT + 15
    XF, WF = 96, 152
    st = {}

    def side0():
        wait_vm(st["x"])
        stamp(2)
        for i in range(4):
            A(f"v_lshlrev_b32 v{XU+2*i}, 16, v{vT+i}")
            A(f"v_and_b32 v{XU+2*i+1}, 0xffff0000, v{vT+i}")
        A(f"v_add_f32 v{a}, v{XU}, v{XU+1}")
        for i in range(2, 8):
            A(f"v_add_f32 v{a}, v{a}, v{XU+i}")
        allreduce("v_add_f32", [a], b, [1, 2, 4, 8, 16, 32])

    def side1():
        A(f"v_mul_f32 v{a}, 0x{f2u(1.0/448):08x}, v{a}")
        A(f"v_mov_b32 v{b}, 0")
        for i in range(8):
            A(f"v_sub_f32 v{c_}, v{XU+i}, v{a}")
            A(f"v_fmac_f32 v{b}, v{c_}, v{c_}")
        A(f"v_cmp_gt_u32 vcc, 56, {vL}")
        A("s_nop 1")
        A(f"v_cndmask_b32 v{b}, 0, v{b}, vcc")
        allreduce("v_add_f32", [b], c_, [1, 2, 4, 8, 16, 32])

    def side2():
        A(f"v_mul_f32 v{b}, 0x{f2u(1.0/448):08x}, v{b}")
        A(f"v_cvt_pk_bf16_f32 v{c_}, v{a}, v{b}")
        A(f"v_lshlrev_b32 v{a}, 16, v{c_}")
        A(f"v_and_b32 v{b}, 0xffff0000, v{c_}")
        A(f"v_add_f32 v{b}, 0x{f2u(1e-5):08x}, v{b}")
        A(f"v_cvt_pk_bf16_f32 v{b}, v{b}, v{b}")
        A(f"v_and_b32 v{b}, 0xffff0000, v{b}")
        A(f"v_sqrt_f32 v{b}, v{b}")
        A("s_nop 0")
        A(f"v_cvt_pk_bf16_f32 v{b}, v{b}, v{b}")
        A(f"v_and_b32 v{b}, 0xffff0000, v{b}")
        A(f"v_rcp_f32 v{b}, v{b}")

    def side3():
        for i in range(8):
            A(f"v_sub_f32 v{XU+i}, v{XU+i}, v{a}")
        for i in range(4):
            A(f"v_cvt_pk_bf16_f32 v{vT+i}, v{XU+2*i}, v{XU+2*i+1}")
        for i in range(4):
            A(f"v_lshlrev_b32 v{XU+2*i}, 16, v{vT+i}")
            A(f"v_and_b32 v{XU+2*i+1}, 0xffff0000, v{vT+i}")
        for i in range(8):
            A(f"v_mul_f32 v{XU+i}, v{XU+i}, v{b}")
        for i in range(4):
            A(f"v_cvt_pk_bf16_f32 v{vT+i}, v{XU+2*i}, v{XU+2*i+1}")
        A(f"s_lshl_b32 {sT[0]}, {sW}, 10")
        A(f"s_add_u32 {sT[0]}, {sT[0]}, {QW}")
        A(f"v_lshlrev_b32 v{a}, 4, {vL}")
        A(f"v_add_u32 v{a}, {sT[0]}, v{a}")
        A(f"ds_write_b128 v{a}, v[{vT}:{vT+3}]")
        A(f"v_lshrrev_b32 v{b}, 4, {vL}")
        A(f"v_lshlrev_b32 v{c_}, 4, v{b}")
        A(f"v_add_u32 v{c_}, {sT[0]}, v{c_}")

    def side4():
        A("s_waitcnt lgkmcnt(0)")
        for i in range(14):
            A(f"ds_read_b128 v[{XF+4*i}:{XF+4*i+3}], v{c_} offset:{i*64}")
        A(f"v_lshlrev_b32 v{b}, 10, v{b}")
        A(f"v_bfe_u32 v{d_}, {vL}, 2, 2")
        A(f"v_lshl_add_u32 v{b}, v{d_}, 7, v{b}")
        A(f"v_and_b32 v{d_}, 3, {vL}")
        A(f"v_lshl_add_u32 v{b}, v{d_}, 3, v{b}")
        A(f"s_lshl_b32 {sT[1]}, {sW}, 5")
        A(f"s_add_u32 {sT[1]}, {sT[1]}, {STG}")
        A(f"v_add_u32 v{b}, {sT[1]}, v{b}")
        A(f"s_mul_i32 {sT[2]}, {sTAG}, 1664525")
        A(f"s_add_u32 {sT[2]}, {sT[2]}, 1013904223")

    def side5():
        stamp(2)
        wait_vm(st["stg"])
        A("s_waitcnt lgkmcnt(0)")
        A("s_barrier")
        stamp(2)
        for i in range(14):
            A(f"ds_read_b64_tr_b16 v[{WF+4*i}:{WF+4*i+1}], v{b} offset:{i*4096}")
            A(f"ds_read_b64_tr_b16 v[{WF+4*i+2}:{WF+4*i+3}], v{b} offset:{i*4096+512}")

    def side6():
        A(f"v_and_b32 v{d_}, 15, {vL}")
        A(f"v_cmp_eq_u32 s[70:71], 0, v{d_}")
        A(f"v_lshrrev_b32 v{a}, 4, {vL}")
        A(f"v_lshlrev_b32 v{a}, 4, v{a}")
        A(f"v_mov_b32 v{vT+1}, {sT[2]}")
        A(f"v_mov_b32 v{vT+3}, {sT[2]}")
        A(f"s_lshl_b32 {sT[0]}, {sZ}, 2")
        A(f"s_add_u32 {sT[0]}, {sT[0]}, {sW}")
        A(f"s_lshl_b32 {sT[0]}, {sT[0]}, 6")
        A(f"s_add_u32 {sT[0]}, {sT[0]}, {WS_QG}")
        A(f"s_cmp_lt_u32 {sZ}, 64")
        A(f"s_cselect_b32 {sT[1]}, 0xff800000, 0")

    def side7():
        A("s_waitcnt lgkmcnt(0)")
        for i in range(14):
            A(f"v_mfma_f32_16x16x32_bf16 v[{vS}:{vS+3}], v[{WF+4*i}:{WF+4*i+3}], v[{XF+4*i}:{XF+4*i+3}], " +
              ("0" if i == 0 else f"v[{vS}:{vS+3}]"))

    def side8():
        A("s_nop 7")
        for i in range(4):
            A(f"v_max_f32 v{vS+i}, {sT[1]}, v{vS+i}")
        A(f"v_cvt_pk_bf16_f32 v{vT}, v{vS}, v{vS+1}")
        A(f"v_cvt_pk_bf16_f32 v{vT+2}, v{vS+2}, v{vS+3}")
        A("s_mov_b64 exec, s[70:71]")
        A(f"buffer_store_dwordx4 v[{vT}:{vT+3}], v{a}, {SRD_WS}, {sT[0]} offen sc1")
        A("s_mov_b64 exec, -1")

    side_chunks = [side0, side1, side2, side3, side4, side5, side6, side7, side8]

    def tile_stamp_a():
        if stamps:
            A("s_memrealtime s[100:101]")
        if st.get("rk_on") and not st.get("rk_off"):
            A(f"ds_read_b64 v[{vT+18}:{vT+19}], v254")
            if iw:
                A(f"ds_read_b32 v{vPD}, v{vPR}")
                st["iw_own"] = st["iw_last"]
            st["rk_rd"] = True

    def lds_wait(tile=False):
        A("s_waitcnt lgkmcnt(0)")
        if st.get("rk_rd"):
            A(f"v_readfirstlane_b32 {sWE}, v{vT+18}")
            A(f"v_readfirstlane_b32 {sNE}, v{vT+19}")
            if bb and st["tc"] >= bb[0]:
                A(f"s_cmp_ge_u32 {sW}, 2")
                A(f"s_cmovk_i32 {sWE if bb[1] == 1 else sNE}, 0x100")
            if iw:
                th, gain, thn, gn = iw
                A(f"v_add_u32_dpp v{vPD}, v{vPD}, v{vPD} quad_perm:[1,0,3,2] row_mask:0xf bank_mask:0xf")
                A("s_nop 1")
                A(f"v_add_u32_dpp v{vPD}, v{vPD}, v{vPD} quad_perm:[2,3,0,1] row_mask:0xf bank_mask:0xf")
                A("s_nop 0")
                A(f"v_readfirstlane_b32 s19, v{vPD}")
                A(f"s_sub_i32 s19, s19, {4*st['iw_own']}")
                A(f"s_mul_i32 s13, s19, {gain}")
                A(f"s_add_i32 s13, s13, {st['L']}")
                A(f"s_cmp_ge_i32 s19, {th}")
                A("s_cselect_b32 s13, s13, 0")
                A(f"s_max_u32 {sWE}, {sWE}, s13")
                if thn:
                    A(f"s_mul_i32 s13, s19, {-gn}")
                    A(f"s_add_i32 s13, s13, {st['L']}")
                    A(f"s_cmp_le_i32 s19, {-thn}")
                    A("s_cselect_b32 s13, s13, 0")
                    A(f"s_cselect_b32 {sWE}, 0, {sWE}")
                    A(f"s_max_u32 {sNE}, {sNE}, s13")
            st["rk_rd"] = False
        if tile and "tc" in st:
            j = st["tc"]
            st["tc"] += 1
            for c, r_ in enumerate(ra):
                if 1 <= j - r_[0] <= nk:
                    c_rkdecide(c, st["L"], j - r_[0] - 1)
            for c, r_ in enumerate(ra):
                if 0 <= j - r_[0] < nk:
                    assert st.get("rdy"), "probe before the ready check"
                    A(f"s_cmp_eq_u32 s14, {j - r_[0]}")
                    A(f"s_cbranch_scc0 L_ra{c}_{j}")
                    A("s_mov_b32 s18, 1")
                    A(f"s_atomic_add s18, s[22:23], {ng*4352*c} glc")
                    A(f"L_ra{c}_{j}:")
        if stamps and tile:
            A("v_mov_b32 v253, s100")
            A(f"v_cmp_eq_u32 vcc, s26, {vL}")
            A("s_add_u32 s26, s26, 1")
            A("s_nop 0")
            A("v_cndmask_b32 v252, v252, v253, vcc")

    def read_k(dst, slot_imm, acc=False):
        tile_stamp_a()
        p = "a" if acc else "v"
        for j in range(8):
            A(f"ds_read_b128 {p}[{dst+4*j}:{dst+4*j+3}], v{vKA[j%4]} offset:{slot_imm + (j//4)*256}")

    def qk_mfma(src, acc):
        p = "a" if acc else "v"
        for j in range(8):
            A(f"v_mfma_f32_16x16x32_bf16 v[{vS}:{vS+3}], {p}[{src+4*j}:{src+4*j+3}], v[{vQ+4*j}:{vQ+4*j+3}], " +
              ("0" if j == 0 else f"v[{vS}:{vS+3}]"))

    def qk_post(sc):
        A("s_nop 7")
        A(f"v_cvt_pk_bf16_f32 v{sc+1}, v{vS}, v{vS+1}")
        A(f"v_cvt_pk_bf16_f32 v{sc+3}, v{vS+2}, v{vS+3}")
        A(f"v_lshlrev_b32 v{sc}, 16, v{sc+1}")
        A(f"v_and_b32 v{sc+1}, 0xffff0000, v{sc+1}")
        A(f"v_lshlrev_b32 v{sc+2}, 16, v{sc+3}")
        A(f"v_and_b32 v{sc+3}, 0xffff0000, v{sc+3}")
        A(f"v_max3_f32 v{vMAX}, v{sc}, v{sc+1}, v{vMAX}")
        A(f"v_max3_f32 v{vMAX}, v{sc+2}, v{sc+3}, v{vMAX}")

    def q_poll(emit):
        emit(f"buffer_load_dwordx4 v[{vT}:{vT+3}], v{vT+8}, {SRD_WS}, {sT[8]} offen sc1")
        emit(f"buffer_load_dwordx4 v[{vT+4}:{vT+7}], v{vT+8}, {SRD_WS}, {sT[8]} offen offset:1024 sc1")
        emit(f"buffer_load_dwordx4 v[{vH}:{vH+3}], off, {SRD_WS}, {sT[7]} sc1")
        return emit(f"buffer_load_dwordx4 v[{vH+4}:{vH+7}], off, {SRD_WS}, {sT[7]} offset:16 sc1")

    def tagcheck(regs, acc0, acc1):
        A(f"v_xor_b32 v{acc0}, {sTAG}, v{regs[0]}")
        A(f"v_xor_b32 v{acc1}, {sTAG}, v{regs[1]}")
        for i, r in enumerate(regs[2:]):
            acc = acc0 if i % 2 == 0 else acc1
            A(f"v_bitop3_b32 v{acc}, v{acc}, v{r}, {sTAG} bitop3:0xf6")
        A(f"v_or_b32 v{acc0}, v{acc0}, v{acc1}")
        A(f"v_cmp_ne_u32 vcc, 0, v{acc0}")

    def c_qpoll():
        A(f"s_lshl_b32 {sT[8]}, {sH}, 11")
        A(f"s_add_u32 {sT[8]}, {sT[8]}, {WS_QG}")
        A(f"s_lshl_b32 {sT[7]}, {sF}, 5")
        A(f"s_add_u32 {sT[7]}, {sT[7]}, {WS_HG}")
        A(f"v_lshlrev_b32 v{vT+8}, 4, {vL}")
        if ra:
            A(f"s_mov_b32 {sT[6]}, {WS_RDY}")
            VM(f"buffer_load_dword v255, off, {SRD_WS}, {sT[6]} sc1")
        st["q"] = q_poll(VM)

    def c_qcheck():
        wait_vm(st["q"])
        if ra:
            A(f"v_readfirstlane_b32 {sT[6]}, v255")
            A(f"s_cmp_eq_u32 {sT[6]}, {sTAG}")
            A("s_cselect_b32 s14, s14, 15")
            st["rdy"] = True
        A(f"s_mov_b32 {sT[0]}, {spin}")
        A("L_qchk:")
        tagcheck([vT + 1, vT + 3, vT + 5, vT + 7, vH + 1, vH + 3, vH + 5, vH + 7], vT + 9, vT + 10)
        A("s_cbranch_vccz L_qok")
        A(f"s_sub_u32 {sT[0]}, {sT[0]}, 1")
        A("s_cbranch_scc1 L_qok")
        q_poll(A)
        A("s_waitcnt vmcnt(0)")
        A("s_branch L_qchk")
        A("L_qok:")
        stamp()
        A(f"s_lshl_b32 {sT[0]}, {sW}, 10")
        A(f"s_add_u32 {sT[0]}, {sT[0]}, {QW}")
        A(f"v_lshlrev_b32 v{vT+9}, 3, {vL}")
        A(f"v_add_u32 v{vT+9}, {sT[0]}, v{vT+9}")
        A(f"ds_write2_b32 v{vT+9}, v{vT}, v{vT+2} offset0:0 offset1:1")
        A(f"ds_write2_b32 v{vT+9}, v{vT+4}, v{vT+6} offset0:128 offset1:129")
        A(f"v_and_b32 v{vT+10}, 1, {vL}")
        A(f"v_lshlrev_b32 v{vT+10}, 9, v{vT+10}")
        A(f"v_lshrrev_b32 v{vT+11}, 4, {vL}")
        A(f"v_lshl_add_u32 v{vT+10}, v{vT+11}, 4, v{vT+10}")
        A(f"v_add_u32 v{vT+10}, {sT[0]}, v{vT+10}")

    def c_qread():
        A("s_waitcnt lgkmcnt(0)")
        for j in range(8):
            A(f"ds_read_b128 v[{vQ+4*j}:{vQ+4*j+3}], v{vT+10} offset:{j*64}")

    def c_kmax():
        A(f"s_getreg_b32 {sXCC}, hwreg(HW_REG_XCC_ID, 0, 4)")
        allreduce("v_max_f32", [vMAX], vT, [16, 32])
        if diag == 3:
            A("s_memrealtime s[86:87]")
        A(f"v_mul_f32 v{vMS}, {sC}, v{vMAX}")
        A(f"v_mov_b32 v{vLS}, 0")
        A(f"v_mov_b32 v{vLS+1}, 0")
        stamp()

    def read_vg(slot_imm, g):
        for qd in range(4):
            r = vVT + 8 * g + 2 * qd
            A(f"ds_read_b64_tr_b16 v[{r}:{r+1}], v{vVA[0]} offset:{slot_imm + g*2048 + ((qd ^ g) & 1)*128 + (qd >> 1)*256}")

    def read_v(slot_imm, half):
        tile_stamp_a()
        for g in range(4):
            read_vg(slot_imm, g)

    def exps(sc):
        for r in range(4):
            A(f"v_fma_f32 v{vE+r}, v{sc+r}, {sC}, -v{vMS}")
        for r in range(4):
            A(f"v_exp_f32 v{vE+r}, v{vE+r}")
        A("s_nop 0")

    def make_p(n):
        exps(vSC + 4 * n)
        A(f"v_cvt_pk_bf16_f32 v{vPF+2*(n&1)}, v{vE}, v{vE+1}")
        A(f"v_cvt_pk_bf16_f32 v{vPF+2*(n&1)+1}, v{vE+2}, v{vE+3}")
        st["pdone"] = n

    def lsum(sc):
        exps(sc)
        A(f"v_add_f32 v{vLS}, v{vLS}, v{vE}")
        A(f"v_add_f32 v{vLS+1}, v{vLS+1}, v{vE+1}")
        A(f"v_add_f32 v{vLS}, v{vLS}, v{vE+2}")
        A(f"v_add_f32 v{vLS+1}, v{vLS+1}, v{vE+3}")

    def pvg(n, g):
        pf = vPF + 2 * (n & 1)
        for qd in range(4):
            r = vVT + 8 * g + 2 * qd
            A(f"v_mfma_f32_4x4x4_16b_bf16 v[{vACC+4*qd}:{vACC+4*qd+3}], v[{pf}:{pf+1}], v[{r}:{r+1}], " +
              ("0" if n == 0 and g == 0 else f"v[{vACC+4*qd}:{vACC+4*qd+3}]") + f" cbsz:4 abid:{4*g}")

    def pv(n):
        for g in range(4):
            pvg(n, g)

    def c_lwrite():
        A(f"v_add_f32 v{vT+2}, v{vLS}, v{vLS+1}")
        allreduce("v_add_f32", [vT + 2], vT + 4, [16, 32])
        A(f"v_mov_b32 v{vT}, v{vMS}")
        A(f"v_mov_b32 v{vT+1}, 0x{LFLAG:x}")
        A(f"v_mov_b32 v{vT+3}, 0x{LFLAG:x}")
        A(f"s_lshl_b32 {sT[0]}, {sW}, 5")
        A(f"s_add_u32 {sT[0]}, {sT[0]}, {LML}")
        A(f"v_lshlrev_b32 v{vT+4}, 4, {vL}")
        A(f"v_add_u32 v{vT+4}, {sT[0]}, v{vT+4}")
        A("s_mov_b64 exec, 3")
        A(f"ds_write_b128 v{vT+4}, v[{vT}:{vT+3}]")
        A("s_mov_b64 exec, -1")

    def c_mlpub():
        A(f"s_cmp_eq_u32 {sW}, 0")
        A("s_cbranch_scc0 L_nopub")
        A(f"v_and_b32 v{vT+4}, 7, {vL}")
        A(f"v_lshlrev_b32 v{vT+4}, 4, v{vT+4}")
        A(f"v_add_u32 v{vT+4}, {LML}, v{vT+4}")
        A(f"s_mov_b32 {sT[0]}, {spin*4}")
        A("L_lml:")
        A(f"ds_read_b128 v[{vT}:{vT+3}], v{vT+4}")
        A("s_waitcnt lgkmcnt(0)")
        A(f"v_and_b32 v{vT+5}, v{vT+1}, v{vT+3}")
        A(f"v_cmp_ne_u32 vcc, 0x{LFLAG:x}, v{vT+5}")
        A("s_cbranch_vccz L_lmlok")
        A(f"s_sub_u32 {sT[0]}, {sT[0]}, 1")
        A("s_cbranch_scc0 L_lml")
        A("L_lmlok:")
        A(f"v_mov_b32 v{vT+5}, v{vT}")
        allreduce("v_max_f32", [vT + 5], vT + 6, [2, 4])
        A(f"v_sub_f32 v{vT}, v{vT}, v{vT+5}")
        A(f"v_exp_f32 v{vT}, v{vT}")
        A("s_nop 0")
        A(f"v_mul_f32 v{vT+2}, v{vT+2}, v{vT}")
        allreduce("v_add_f32", [vT + 2], vT + 6, [2, 4])
        A(f"v_mov_b32 v{vT}, v{vT+5}")
        A(f"v_mov_b32 v{vT+1}, {sTAG}")
        A(f"v_xor_b32 v{vT+3}, {sXCC}, v{vT+1}")
        A(f"s_lshl_b32 {sT[0]}, {sH}, 10")
        A(f"s_lshl_b32 {sT[1]}, {sP}, 5")
        A(f"s_add_u32 {sT[0]}, {sT[0]}, {sT[1]}")
        A(f"s_add_u32 {sT[0]}, {sT[0]}, {WS_ML}")
        A(f"v_lshlrev_b32 v{vT+4}, 4, {vL}")
        A("s_mov_b64 exec, 3")
        A(f"buffer_store_dwordx4 v[{vT}:{vT+3}], v{vT+4}, {SRD_WS}, {sT[0]} offen sc1")
        A("s_mov_b64 exec, -1")
        A("L_nopub:")

    def c_mlpoll():
        A(f"s_lshl_b32 {sT[8]}, {sH}, 10")
        A(f"s_add_u32 {sT[8]}, {sT[8]}, {WS_ML}")
        A(f"v_lshlrev_b32 v{vT+8}, 4, {vL}")
        st["ml"] = VM(f"buffer_load_dwordx4 v[{vT+12}:{vT+15}], v{vT+8}, {SRD_WS}, {sT[8]} offen sc1")

    def c_mlcheck():
        G = vT + 12
        wait_vm(st["ml"])
        A(f"s_mov_b32 {sT[0]}, {spin}")
        A("L_mlchk:")
        A(f"v_xor_b32 v{vT+9}, {sTAG}, v{G+1}")
        A(f"v_xor_b32 v{vT+10}, {sTAG}, v{G+3}")
        A(f"v_and_or_b32 v{vT+9}, v{vT+10}, -16, v{vT+9}")
        A(f"v_cmp_ne_u32 vcc, 0, v{vT+9}")
        A("s_cbranch_vccz L_mlok")
        A(f"s_sub_u32 {sT[0]}, {sT[0]}, 1")
        A("s_cbranch_scc1 L_mlok")
        A(f"buffer_load_dwordx4 v[{G}:{G+3}], v{vT+8}, {SRD_WS}, {sT[8]} offen sc1")
        A("s_waitcnt vmcnt(0)")
        A("s_branch L_mlchk")
        A("L_mlok:")
        st["mlok"] = True
        A(f"v_cmp_ne_u32 vcc, {sXCC}, v{vT+10}")
        A("s_cmp_eq_u64 vcc, 0")
        A(f"s_cselect_b32 {sLOC}, {1 if local else 0}, 0")
        A(f"v_mov_b32 v{vT+9}, v{G}")
        allreduce("v_max_f32", [vT + 9], vT + 10, [2, 4, 8, 16, 32])

    def c_mlscale():
        G = vT + 12
        A(f"v_sub_f32 v{G}, v{G}, v{vT+9}")
        A(f"v_exp_f32 v{G}, v{G}")
        A("s_nop 0")
        A(f"v_mul_f32 v{G+2}, v{G+2}, v{G}")
        allreduce("v_add_f32", [G + 2], vT + 10, [2, 4, 8, 16, 32])
        A(f"v_log_f32 v{G+2}, v{G+2}")
        A("s_nop 0")
        A(f"v_add_f32 v{vT+9}, v{vT+9}, v{G+2}")
        A(f"v_sub_f32 v{vT+10}, v{vMS}, v{vT+9}")
        A(f"v_exp_f32 v{vT+10}, v{vT+10}")

    def c_rescale():
        A(f"v_mov_b32 v{vMS}, v{vT+9}")
        A("s_nop 0")
        A(f"v_mov_b32_dpp v{vT+2}, v{vT+10} quad_perm:[0,0,0,0] row_mask:0xf bank_mask:0xf")
        A(f"v_mov_b32_dpp v{vT+3}, v{vT+10} quad_perm:[1,1,1,1] row_mask:0xf bank_mask:0xf")
        A("s_nop 4")
        for t in range(4):
            A(f"v_pk_mul_f32 v[{vACC+4*t}:{vACC+4*t+1}], v[{vACC+4*t}:{vACC+4*t+1}], v[{vT+2}:{vT+3}]")

    vWO, vW2 = vSC + 4, vSC + 36

    def issue_weights():
        assert st["pdone"] >= 12 and st.get("tail1")
        if skipw:
            A(f"s_cmp_lt_u32 {sW}, 2")
            A("s_cbranch_scc1 L_skipw")
        for i in range(16):
            hd, k = divmod(i, 8)
            if i % 4 == 0 and i:
                A(f"s_add_u32 {sT[0]}, {sT[0]}, {(252 if i == 8 else 4)*896}")
            r = vWO + 4 * k + 2 * hd
            VM(f"buffer_load_dwordx2 v[{r}:{r+1}], v{vT+16}, {SRD_WO}, {sT[0]} offen offset:{(i%4)*896} {wflags}")
        if w2at is None:
            for i in range(8):
                if i % 4 == 0 and i:
                    A(f"s_add_u32 {sT[1]}, {sT[1]}, {4*896}")
                st["w"] = VM(f"buffer_load_dwordx2 v[{vW2+2*i}:{vW2+2*i+1}], v{vT+16}, {SRD_W2}, {sT[1]} offen offset:{(i%4)*896} {wflags}")
        if skipw:
            A("L_skipw:")
            vm["opt"] = 24 if w2at is None else 16
            vm["optend"] = vm["n"]

    E2 = 144

    def c_w2issue():
        A(f"v_subrev_u32 v{vT}, 128, v0")
        A(f"v_cmp_gt_u32 vcc, 112, v{vT}")
        A(f"v_lshlrev_b32 v{vT+1}, 3, v{vT}")
        A(f"v_bfrev_b32 v{vT+2}, 2")
        A(f"s_mul_i32 {sT[1]}, {sF}, {8*896}")
        A(f"v_cndmask_b32 v11, v{vT+2}, v{vT+1}, vcc")
        for i in range(8):
            if i == 4:
                A(f"s_add_u32 {sT[1]}, {sT[1]}, {4*896}")
            st["w2"] = VM(f"buffer_load_dwordx2 v[{E2+2*i}:{E2+2*i+1}], v11, {SRD_W2}, {sT[1]} offen offset:{(i%4)*896} {wflags}")

    def c_w2use():
        wait_vm(st["w2"])
        A(f"s_mov_b32 {sT[6]}, 0x05040100")
        A(f"s_mov_b32 {sT[7]}, 0x07060302")
        for k in range(4):
            for cp in range(2):
                A(f"v_perm_b32 v{80+4*k+2*cp}, v{E2+4*k+2+cp}, v{E2+4*k+cp}, {sT[6]}")
                A(f"v_perm_b32 v{80+4*k+2*cp+1}, v{E2+4*k+2+cp}, v{E2+4*k+cp}, {sT[7]}")
        for c in range(4):
            A(f"v_mov_b32 v{E2+2*c}, 0")
            A(f"v_mov_b32 v{E2+2*c+1}, {sTAG}")
        A("s_cmp_lt_u32 s2, 224")
        A("s_cbranch_scc0 L_now2")
        for k in range(4):
            for c in range(4):
                A(f"v_dot2_f32_bf16 v{E2+2*c}, v{vH+2*k}, v{80+4*k+c}, v{E2+2*c}")
        A("L_now2:")

    def issue_wdma(k):
        assert st.get("mlok")
        if k == 0:
            A(f"v_lshlrev_b32 v{vMAX}, 4, {vL}")
            A(f"s_lshl_b32 s10, {sH}, 5")
            A(f"s_add_u32 s10, s10, {sP}")
            A(f"s_mul_i32 s10, s10, {16*896}")
            A(f"s_mul_i32 s11, {sF}, {8*896}")
        wo = k < 4
        A(f"s_add_u32 s12, {sW}, {4*k if wo else 4*(k-4)}")
        A(f"s_min_u32 s12, s12, {13 if wo else 6}")
        A("s_lshl_b32 s12, s12, 10")
        A(f"s_add_u32 m0, s12, {STG if wo else STG + 14336}")
        A(f"s_add_u32 s12, s12, {'s10' if wo else 's11'}")
        idx = VM(f"buffer_load_dwordx4 v{vMAX}, {SRD_WO if wo else SRD_W2}, s12 offen {wflags} lds")
        m0bad["v"] = True
        st["w"] = idx
        return idx

    MO = ((2 * S) % R) * tb
    vMW, vMR, vO1, vH1, vH2, vXR, vOO = 6, 8, vT + 4, vT + 5, vT + 6, vT + 7, vT + 11
    sH2 = [f"s{4+k}" for k in range(16)]
    sP1, sP2, sCONS = "s68", "s69", "s70"

    def c_tail1():
        st["tail1"] = True
        A(f"s_add_u32 {sT[2]}, {sRING}, {MO}")
        A(f"v_lshlrev_b32 v{vMW}, 4, {vL}")
        A(f"v_add_u32 v{vMW}, {sT[2]}, v{vMW}")
        A(f"v_lshlrev_b32 v{vMR}, 4, {vL}")
        A(f"v_add_u32 v{vMR}, {MO}, v{vMR}")
        A(f"v_add_u32 v{vMR+1}, {2*R*tb}, v{vMR}")
        A(f"s_lshl_b32 {sP1}, {sH}, 5")
        A(f"s_add_u32 {sP1}, {sP1}, {sP}")
        A(f"s_lshl_b32 {sT[0]}, {sH}, 6")
        A(f"s_add_u32 {sT[0]}, {sT[0]}, {sP}")
        A(f"s_mul_i32 {sT[0]}, {sT[0]}, {8*896}")
        A(f"s_mul_i32 {sT[1]}, {sF}, {8*896}")
        A(f"s_lshl_b32 {sP1}, {sP1}, 12")
        A(f"s_add_u32 {sP1}, {sP1}, {WS_P1O}")
        A(f"v_lshlrev_b32 v{vO1}, 4, {vL}")
        for k in range(1, 16, 2):
            A(f"v_mov_b32 v{64+k}, {sTAG}")
        A(f"v_subrev_u32 v{vT}, 128, v0")
        A(f"v_cmp_gt_u32 vcc, 112, v{vT}")
        A(f"v_lshlrev_b32 v{vT+1}, 3, v{vT}")
        A(f"v_lshlrev_b32 v{vOO}, 4, v{vT}")
        A(f"v_bfrev_b32 v{vT+2}, 2")
        A(f"v_cndmask_b32 v{vT+16}, v{vT+2}, v{vT+1}, vcc")
        A(f"v_cndmask_b32 v{vOO}, v{vT+2}, v{vOO}, vcc")

    def c_tail2():
        A(f"v_lshrrev_b32 v{vT}, 3, {vL}")
        A(f"v_and_b32 v{vT+1}, 7, {vL}")
        A(f"v_lshlrev_b32 v{vT+1}, 4, v{vT+1}")
        A(f"v_lshl_add_u32 v{vH1}, v{vT}, 12, v{vT+1}")
        A(f"s_lshl_b32 {sT[2]}, {sH}, 17")
        A(f"s_lshl_b32 {sT[3]}, {sP}, 7")
        A(f"s_add_u32 {sT[2]}, {sT[2]}, {sT[3]}")
        A(f"s_add_u32 {sT[2]}, {sT[2]}, {WS_P1O}")
        for k in range(1, 4):
            A(f"s_add_u32 {sT[2+k]}, {sT[2]}, {k*32768}")
        A(f"s_lshl_b32 {sP2}, {sH}, 5")
        A(f"s_add_u32 {sP2}, {sP2}, {sP}")
        A(f"s_mul_i32 {sP2}, {sP2}, 3584")
        A(f"s_add_u32 {sP2}, {sP2}, {WS_P2}")
        A(f"v_mul_u32_u24 v{vT}, 3584, v{vT}")
        A(f"v_add_u32 v{vH2}, v{vT}, v{vT+1}")
        A(f"s_min_u32 {sT[6]}, {sP}, 27")
        A(f"s_lshl_b32 {sT[7]}, {sT[6]}, 7")
        A(f"s_mul_i32 {sH2[0]}, {sH}, {32*3584}")
        A(f"s_add_u32 {sH2[0]}, {sH2[0]}, {sT[7]}")
        A(f"s_add_u32 {sH2[0]}, {sH2[0]}, {WS_P2}")
        for k in range(1, 4):
            A(f"s_add_u32 {sH2[k]}, {sH2[0]}, {k*8*3584}")
        A(f"s_lshl_b32 {sH2[4]}, {sT[6]}, 3")
        A(f"s_add_u32 {sH2[4]}, {sH2[4]}, {sH}")
        A(f"s_lshl_b32 {sH2[4]}, {sH2[4]}, 7")
        A(f"s_add_u32 {sH2[4]}, {sH2[4]}, {WS_P3}")
        A(f"s_sub_u32 {sT[6]}, s2, 224")
        A(f"s_cmp_lt_u32 {sT[6]}, 28")
        A(f"s_cselect_b32 {sCONS}, 1, 0")
        A(f"s_cselect_b32 {sT[6]}, {sT[6]}, 0")
        A(f"s_lshl_b32 {sH2[5]}, {sT[6]}, 10")
        A(f"s_add_u32 {sH2[5]}, {sH2[5]}, {WS_P3}")
        A(f"s_cmp_ge_u32 {sT[6]}, 14")
        A(f"s_cselect_b32 {sT[8]}, {4 - 14*64}, 0")
        A(f"s_lshl_b32 {sT[6]}, {sT[6]}, 6")
        A(f"s_add_u32 {sT[6]}, {sT[6]}, {sT[8]}")
        A(f"v_lshrrev_b32 v{vT+1}, 1, v{vT+1}")
        A(f"v_add_u32 v{vT+17}, {sT[6]}, v{vT+1}")
        if pre1 is not None or pre2 is not None:
            A(f"s_lshl_b32 {sT[8]}, {sW}, 10")
            A(f"v_lshlrev_b32 v{vT}, 4, v0")
        if pre1 is not None:
            A(f"s_lshl_b32 {sT[7]}, {sW}, 11")
            A(f"s_sub_u32 {sT[7]}, {sP1}, {sT[7]}")
            if pre1.startswith("ld"):
                VM(f"buffer_load_dwordx4 v[{vT+12}:{vT+15}], v{vT}, {SRD_WS}, {sT[7]} offen {pre1[2:]}")
            else:
                for k in range(4):
                    A(f"v_mov_b32 v{vT+12+k}, 0")
                A(f"v_not_b32 v{vT+13}, {sTAG}")
                A(f"v_not_b32 v{vT+15}, {sTAG}")
                VM(f"buffer_store_dwordx4 v[{vT+12}:{vT+15}], v{vT}, {SRD_WS}, {sT[7]} offen {pre1[2:]}")
        if pre2 is not None:
            VM(f"buffer_load_dwordx4 v[{vT+12}:{vT+15}], v{vT}, {SRD_WS}, {sP2} offen {pre2[2:]}")

    PW, PW2, Y = vSC, vSC + 32, (vSC + 48 if w2at is None else E2)

    def c_wprep():
        assert st["pdone"] >= 13
        if wdma or wlate:
            if wlate:
                A("s_waitcnt vmcnt(4)")
                A("s_barrier")
            else:
                assert lateprep and st["w"] <= vm["known"]
            A(f"v_subrev_u32 v{vT+16}, 128, v0")
            A(f"v_min_u32 v{vT+16}, 111, v{vT+16}")
            A(f"v_lshlrev_b32 v{vT+16}, 3, v{vT+16}")
            A(f"v_add_u32 v{vT+16}, {STG}, v{vT+16}")
            for i in range(24):
                A(f"ds_read_b64 v[{vWO+2*i}:{vWO+2*i+1}], v{vT+16} offset:{i*896}")
            A("s_waitcnt lgkmcnt(0)")
        elif lateprep:
            A("s_waitcnt vmcnt(4)")
        else:
            wait_vm(st["w"])
            A(f"s_cmp_lt_u32 {sW}, 2")
            A("s_cbranch_scc1 L_noprep")
        A(f"s_mov_b32 {sT[6]}, 0x05040100")
        A(f"s_mov_b32 {sT[7]}, 0x07060302")
        for k in range(12 if w2at is None else 8):
            for cp in range(2):
                A(f"v_perm_b32 v{PW+4*k+2*cp}, v{vWO+4*k+2+cp}, v{vWO+4*k+cp}, {sT[6]}")
                A(f"v_perm_b32 v{PW+4*k+2*cp+1}, v{vWO+4*k+2+cp}, v{vWO+4*k+cp}, {sT[7]}")
        if w2at is not None:
            return
        for c in range(4):
            A(f"v_mov_b32 v{Y+2*c}, 0")
            A(f"v_mov_b32 v{Y+2*c+1}, {sTAG}")
        A("s_cmp_lt_u32 s2, 224")
        A("s_cbranch_scc0 L_noprep")
        for k in range(4):
            for c in range(4):
                A(f"v_dot2_f32_bf16 v{Y+2*c}, v{vH+2*k}, v{PW2+4*k+c}, v{Y+2*c}")
        A("L_noprep:")

    def do_touch():
        A(f"s_lshl_b32 {sT[8]}, {sW}, 15")
        A(f"s_add_u32 {sT[8]}, {sT[8]}, {sT[2]}")
        if touch == "sc1":
            VM(f"buffer_load_dword v{vT+12}, v{vH1}, {SRD_WS}, {sT[8]} offen sc1")
        elif touch == "one":
            VM(f"buffer_load_dword v{vT+12}, off, {SRD_WS}, {sT[2]} sc1")
        else:
            A(f"s_cmp_eq_u32 {sLOC}, 1")
            A("s_cbranch_scc0 L_tfar")
            A(f"buffer_load_dword v{vT+12}, v{vH1}, {SRD_WS}, {sT[8]} offen")
            A("s_branch L_tdone")
            A("L_tfar:")
            VM(f"buffer_load_dword v{vT+12}, v{vH1}, {SRD_WS}, {sT[8]} offen sc1")
            A("L_tdone:")
        if touch2:
            A(f"s_mul_i32 {sT[8]}, {sW}, {8*3584}")
            A(f"s_add_u32 {sT[8]}, {sT[8]}, {sH2[0]}")
            VM(f"buffer_load_dword v{vT+13}, v{vH2}, {SRD_WS}, {sT[8]} offen sc1")

    def do_wtlb():
        VM(f"buffer_load_dword v{vT+14}, off, {SRD_WO}, {sT[0]} nt")
        VM(f"buffer_load_dword v{vT+15}, off, {SRD_W2}, {sT[1]} nt")

    def c_rkprobe(c):
        A(f"s_cmp_eq_u32 {sW}, {rkw}")
        A(f"s_cbranch_scc0 L_rkp{c}")
        A(f"s_lshl_b32 s18, {sH}, 7")
        A(f"s_add_u32 s18, s18, {WS_RK + c*1024}")
        A(f"s_lshl_b32 s19, {sP}, 2")
        A(f"s_add_u32 s19, s19, s18")
        A(f"v_lshlrev_b32 v{vT+18}, 2, {vL}")
        A(f"v_mov_b32 v{vT+19}, {sTAG}")
        A("s_mov_b32 exec_hi, 0")
        A(f"buffer_load_dword v255, v{vT+18}, {SRD_WS}, s18 offen sc1")
        A("s_mov_b32 exec_lo, 1")
        A(f"buffer_store_dword v{vT+19}, off, {SRD_WS}, s19")
        A("s_mov_b64 exec, -1")
        A(f"L_rkp{c}:")
        st["rk_n"] = vm["n"]

    def c_rkdecide(c, L, k=None):
        _, hi, gh, lo, gl = ctl[c]
        if k is None:
            A(f"s_cmp_eq_u32 {sW}, {rkw}")
            A(f"s_cbranch_scc0 L_rkd{c}")
            A(f"v_cmp_eq_u32 vcc, {sTAG}, v255")
            A("s_bcnt1_i32_b32 s18, vcc_lo")
        else:
            A(f"s_cmp_eq_u32 s14, {k}")
            c = f"{c}_{k}"
            A(f"s_cbranch_scc0 L_rkd{c}")
        A(f"s_sub_u32 {sWE}, s18, {hi}")
        A(f"s_mul_i32 {sWE}, {sWE}, {gh}")
        A(f"s_add_u32 {sWE}, {sWE}, {L + 5}")
        A(f"s_cmp_gt_u32 s18, {hi}")
        A(f"s_cselect_b32 {sWE}, {sWE}, 0")
        if N2:
            A(f"s_sub_u32 {sNE}, s18, {lo}")
            A(f"s_mul_i32 {sNE}, {sNE}, {gl}")
            A(f"s_add_u32 {sNE}, {sNE}, {L + 5}")
            A(f"s_cmp_gt_u32 s18, {lo}")
            A(f"s_cselect_b32 {sNE}, {sNE}, 0")
        elif lo:
            A(f"s_min_u32 {sNE}, s18, {lo}")
            A(f"s_sub_u32 {sNE}, {lo}, {sNE}")
            A(f"s_mul_i32 {sNE}, {sNE}, {gl}")
            A(f"s_add_u32 {sNE}, {sNE}, {L + 5}")
            A(f"s_cmp_lt_u32 s18, {lo}")
            A(f"s_cselect_b32 {sNE}, {sNE}, 0")
        else:
            A(f"s_mov_b32 {sNE}, 0")
        A(f"v_mov_b32 v{vT+18}, {sWE}")
        A(f"v_mov_b32 v{vT+19}, {sNE}")
        A(f"ds_write_b64 v254, v[{vT+18}:{vT+19}]")
        A(f"L_rkd{c}:")
        st["rk_on"] = True

    def c_last():
        slot = ((2 * S - 1) % R) * tb
        tile_stamp_a()
        for g in range(4):
            wait_vm(lidx[NL - T + 2 * g + 1])
            read_vg(slot, g)
            if g:
                A("s_waitcnt lgkmcnt(4)")
                pvg(S - 1, g - 1)
        A("s_waitcnt lgkmcnt(0)")
        pvg(S - 1, 3)
        if stamps:
            lds_wait(True)
        stamp()
        A("s_nop 1")
        A("s_nop 0")
        for hf in range(2):
            r = vACC + 8 * hf
            A(f"ds_write2_b64 v{vMW}, v[{r}:{r+1}], v[{r+4}:{r+5}] offset0:{128*hf} offset1:{128*hf+1}")
            if hf == 0:
                A("s_nop 0")

    chunks = []
    C = lambda fn, need=None, free=None: chunks.append((need, free, fn))
    backlog = list(range(NB))
    for n in range(S):
        slot = (n % R) * tb
        if n < NB:
            C(lambda n=n, slot=slot: read_k(32 * n, slot, True), need=n)
            C(lambda: lds_wait(True), free=n)
            if n == NP:
                C(c_qpoll)
            if n == NB - 1:
                C(c_qcheck)
                C(c_qread)
        else:
            C(lambda slot=slot: read_k(vTL, slot), need=n)
            C(lambda: (lds_wait(True), qk_mfma(vTL, False)), free=n)
            C(lambda n=n: qk_post(vSC + 4 * n))
            for _ in range(2):
                if backlog:
                    m = backlog.pop(0)
                    C(lambda m=m: qk_mfma(32 * m, True))
                    C(lambda m=m: qk_post(vSC + 4 * m))
    assert not backlog
    C(c_kmax)
    lq = list(range(S))
    assert vgat % 2 == 1 and vpub % 2 == 1
    for n in range(S):
        j = S + n
        slot = (j % R) * tb
        if n == vgat + 3:
            C(c_rescale)
        if n == S - 2:
            C(lambda: make_p(S - 2))
            C(lambda: make_p(S - 1))
            if not lateprep:
                C(c_wprep)
        elif n < S - 2:
            C(lambda n=n: make_p(n))
        if n < S - 1:
            C(lambda slot=slot, n=n: read_v(slot, n & 1), need=j)
        if tat == j:
            C(do_touch)
        if wat == j:
            C(issue_weights)
        if n == S - 1:
            C(c_last, need="issued")
        else:
            C(lambda n=n: (lds_wait(True), pv(n)), free=j)
        for _ in range(3 if n % 2 == 0 else 2):
            if lq:
                m0, m1 = lq.pop(0), lq.pop(0)
                C(lambda m0=m0, m1=m1: (lsum(vSC + 4 * m0), lsum(vSC + 4 * m1)))
                if not lq:
                    C(c_lwrite)
        if w2at == j:
            C(c_w2issue)
        if w2at is not None and w2at + 2 == j:
            C(c_w2use)
        if n == vpub:
            assert not lq
            C(c_mlpub)
        if n == vgat:
            C(c_mlpoll)
        if n == vgat + 1:
            C(c_mlcheck)
            C(c_mlscale)
        if n == vgat + 3:
            C(c_tail1)
            C(c_tail2)

    freed = set()

    def emit_chunk(q, block):
        need, free, fn = q[0]
        if need == "issued":
            if not block:
                return False
        elif need is not None:
            last = need * T + T - 1
            if last not in lidx:
                assert not block
                return False
            if lidx[last] > vm["known"]:
                if not block:
                    return False
                wait_vm(lidx[last])
        q.pop(0)
        fn()
        if free is not None:
            freed.add(free)
        return True

    def tagfix():
        A("s_waitcnt lgkmcnt(0)")
        A(f"s_mul_i32 {sTAG}, {sTAG}, 1664525")
        A(f"s_add_u32 {sTAG}, {sTAG}, 1013904223")

    def stream(L0, L1, win, q, paced):
        for L in range(L0, L1):
            j, i = divmod(L, T)
            st["L"] = L
            Nw = win(L)
            if ext and X * T <= L < ext[0] and Nw < ext[1]:
                wait_vm(paced[-ext[1]])
                A(f"s_cmp_lt_u32 {sZ}, 92")
                A(f"s_cbranch_scc1 L_x{L}")
                A(f"s_waitcnt vmcnt({vm['n'] - paced[-Nw]})")
                A(f"L_x{L}:")
            elif st.get("rk_on") and Nw <= N + 1:
                if N2:
                    wait_vm(paced[-(Nw + N2 - N)])
                    A(f"s_cmp_gt_u32 {sNE}, {L}")
                    A(f"s_cbranch_scc1 L_x{L}")
                    A(f"s_waitcnt vmcnt({vm['n'] - paced[-(Nw + Nhi - N)]})")
                else:
                    wait_vm(paced[-(Nw + Nhi - N)])
                A(f"s_cmp_gt_u32 {sWE}, {L}")
                A(f"s_cbranch_scc1 L_x{L}")
                A(f"s_waitcnt vmcnt({vm['n'] - paced[-Nw]})")
                if not N2 and (any(r[3] for r in ctl) or (iw and iw[2])):
                    A(f"s_cmp_gt_u32 {sNE}, {L}")
                    A(f"s_cbranch_scc0 L_x{L}")
                    A(f"s_waitcnt vmcnt({vm['n'] - paced[-Nlo]})")
                A(f"L_x{L}:")
            elif len(paced) >= Nw:
                wait_vm(paced[-Nw])
            if L == NL - tail - T:
                st["rk_off"] = True
            if i == 0 and j >= R:
                while (j - R) not in freed:
                    emit_chunk(q, True)
            issue_load(L)
            paced.append(lidx[L])
            if iw and "tc" in st and not st.get("rk_off") and not st.get("rk_rd"):
                A(f"v_mov_b32 v{vPD}, {L}")
                A(f"ds_write_b32 v{vPW}, v{vPD}")
                st["iw_last"] = L
            if L == NL - 1 - tpos and touch is not None and tat is None:
                do_touch()
                if wtlb:
                    do_wtlb()
            if L == NL - 1 - wpos and not now and not wearly and not wafter and wat is None and not wdma and wlate is None:
                issue_weights()
            if wdma and L >= wdma[0] and (L - wdma[0]) % wdma[1] == 0 and (L - wdma[0]) // wdma[1] < 6:
                if wdma[2]:
                    wait_vm(paced[-Nw])
                    paced.append(issue_wdma((L - wdma[0]) // wdma[1]))
                else:
                    issue_wdma((L - wdma[0]) // wdma[1])
            did = False
            for c, r_ in enumerate(rk):
                if L == r_[0] and not st.get("rk_rd"):
                    c_rkprobe(c)
                    st["rk_pend"] = c
                    did = True
                elif L == r_[0]:
                    raise AssertionError("probe between a tile read and its wait")
            if st.get("rk_pend") is not None and vm["known"] > st["rk_n"] and not st.get("rk_rd") and not did:
                c_rkdecide(st["rk_pend"], L)
                st["rk_pend"] = None
                did = True
            if q and not did and (L < NL - tail or Nend <= N + 2):
                emit_chunk(q, False)

    def win_main(L):
        Nw = Nend if L >= NL - tail else N
        if kopen and NL // 2 - kopen[0] <= L < NL // 2:
            Nw = kopen[1]
        for b_ in bump:
            if b_[0] <= L < b_[1]:
                Nw = b_[2]
        if alt and Nw == N and (L // alt[1]) % alt[2] == (alt[3] if len(alt) > 3 else 0):
            Nw = alt[0]
        return Nw

    split = next(k for k, ch in enumerate(chunks) if ch[0] == X - 1)
    head_chunks, rest = chunks[:split], chunks[split:]
    assert X - 1 <= NP
    ends = []
    for path in ("n", "p"):
        vm.update(n=0, known=0)
        lidx.clear()
        freed.clear()
        paced = []
        stg = {"i": 0}

        def issue_stg():
            i = stg["i"]
            if rot:
                if i == 0:
                    A(f"s_mul_i32 {sT[3]}, {sZ}, 4682")
                    A(f"s_lshr_b32 {sT[3]}, {sT[3]}, 16")
                    A(f"s_mul_i32 {sT[3]}, {sT[3]}, 14")
                    A(f"s_sub_u32 {sT[3]}, {sZ}, {sT[3]}")
                else:
                    A(f"s_add_u32 {sT[3]}, {sT[3]}, 1")
                    A(f"s_cmp_eq_u32 {sT[3]}, 14")
                    A(f"s_cselect_b32 {sT[3]}, 0, {sT[3]}")
                A(f"s_lshl_b32 {sT[9]}, {sT[3]}, 10")
                A(f"s_add_u32 m0, {sT[6]}, {sT[9]}")
                A(f"s_mul_i32 {sT[9]}, {sT[3]}, {sT[4]}")
                A(f"s_add_u32 {sT[9]}, {sT[9]}, {sT[5]}")
                st["stg"] = VM(f"buffer_load_dwordx4 v21, {SRD_W}, {sT[9]} offen {wflags} lds")
            else:
                A(f"s_add_u32 m0, {sT[6]}, {i*1024}")
                if i:
                    A(f"s_add_u32 {sT[5]}, {sT[5]}, {sT[4]}")
                else:
                    A("s_nop 0")
                st["stg"] = VM(f"buffer_load_dwordx4 v21, {SRD_W}, {sT[5]} offen {wflags} lds")
            paced.append(st["stg"])
            stg["i"] += 1
            m0bad["v"] = True
        if path == "n":
            common0()
            A("s_waitcnt lgkmcnt(0)")
            for L in range(N0):
                issue_load(L)
                paced.append(lidx[L])
            srd(52, 4, 896)
            common1()
            setup()
            if wearly:
                issue_weights()
            if ra:
                A(f"s_lshl_b32 {sT[2]}, s2, 2")
                A(f"s_add_u32 {sT[2]}, {sT[2]}, {sW}")
                A(f"s_cmp_eq_u32 {sT[2]}, 1023")
                A("s_cbranch_scc0 L_noclear")
                A(f"v_mul_u32_u24 v29, 4352, {vL}")
                A("v_mov_b32 v30, 0")
                A(f"s_mov_b32 {sT[2]}, {WS_CNT}")
                A(f"buffer_store_dword v30, v29, {SRD_WS}, {sT[2]} offen sc0 sc1")
                if len(ra) * ng > 64:
                    A(f"s_add_u32 {sT[2]}, {sT[2]}, {64*4352}")
                    A(f"buffer_store_dword v30, v29, {SRD_WS}, {sT[2]} offen sc0 sc1")
                A("s_waitcnt vmcnt(0) lgkmcnt(0)")
                A(f"s_mul_i32 {sT[2]}, {sTAG}, 1664525")
                A(f"s_add_u32 {sT[2]}, {sT[2]}, 1013904223")
                A(f"v_mov_b32 v30, {sT[2]}")
                A(f"s_mov_b32 {sT[2]}, {WS_RDY}")
                A("s_mov_b64 exec, 1")
                A(f"buffer_store_dword v30, off, {SRD_WS}, {sT[2]} sc1")
                A("s_mov_b64 exec, -1")
                A("L_noclear:")
            q = list(head_chunks) + [(None, None, tagfix)]
            stream(N0, X * T, (lambda L: nn[1] if nn and L < nn[0] else win_main(L)), q, paced)
        else:
            A("L_producer:")
            common0()
            producer0()
            st["x"] = VM(f"buffer_load_dwordx4 v[{vT}:{vT+3}], v29, {SRD_X}, 0 offen")
            A(f"s_mov_b32 m0, {sT[6]}")
            A("L_stg:")
            A(f"s_sub_u32 {sT[3]}, {sT[3]}, 1")
            A(f"buffer_load_dwordx4 v21, {SRD_W}, {sT[5]} offen {wflags} lds")
            A(f"s_add_u32 {sT[5]}, {sT[5]}, {sT[4]}")
            A("s_add_u32 m0, m0, 1024")
            A(f"s_cmp_lg_u32 {sT[3]}, 0")
            A("s_cbranch_scc1 L_stg")
            for _ in range(14):
                vm["n"] += 1
                st["stg"] = vm["n"]
                paced.append(vm["n"])
            for L in range(B0):
                issue_load(L)
                paced.append(lidx[L])
                if il and L % il == il - 1:
                    issue_stg()
            common1()
            setup()
            if wearly == 1:
                issue_weights()
            if not il:
                for fn in side_chunks[:4]:
                    fn()
                q = [(None, None, fn) for fn in side_chunks[4:]] + list(head_chunks) + [(None, None, tagfix)]
                stream(B0, X * T, lambda L: Np if L < Xp else N, q, paced)
            else:
                Ls = 14 * il
                q = [(None, None, fn) for fn in side_chunks[:5]] + list(head_chunks)
                for L in range(B0, Ls):
                    stream(L, L + 1, lambda L: Np, q, paced)
                    if L % il == il - 1:
                        if len(paced) >= Np:
                            wait_vm(paced[-Np])
                        issue_stg()
                w2 = Np2 or N
                L = Ls
                while st["stg"] > vm["known"]:
                    stream(L, L + 1, lambda L: w2, q, paced)
                    L += 1
                assert all(ch[2] not in side_chunks for ch in q)
                if q and q[0][1] is not None:
                    emit_chunk(q, True)
                q = [(None, None, fn) for fn in side_chunks[5:]] + ([(None, None, issue_weights)] if wearly == 2 else []) + q + [(None, None, tagfix)]
                stream(L, X * T, lambda L: w2 if L < Xp else N, q, paced)
        while q:
            emit_chunk(q, True)
        known_L = max([L for L in lidx if lidx[L] <= vm["known"]] + [-1])
        ends.append(({L: vm["n"] - lidx[L] for L in range(X * T - 16, X * T)}, known_L, set(freed)))
        if path == "n":
            A("s_branch L_join")
    for _ in range(pad):
        A("s_nop 0")
    A("L_join:")
    if diag == 2:
        A("s_memrealtime s[86:87]")
    st["tc"] = X - 1
    if iw:
        assert not rk
        st["rk_on"] = True
    stamp(1)
    assert ends[0][0] == ends[1][0] and ends[0][2] == ends[1][2], ends
    vm["known"] = lidx[min(ends[0][1], ends[1][1])]
    stream(X * T, NL, win_main, rest, [lidx[L] for L in range(X * T - 16, X * T)])
    while rest:
        emit_chunk(rest, True)

    def gather4(lbl, base, voff, soffs, d0, d1, first_issued, slp):
        def loads(set_):
            for k in range(4):
                r = base + 16 * set_ + 4 * k
                A(f"buffer_load_dwordx4 v[{r}:{r+3}], v{voff}, {SRD_WS}, {soffs[k]} offen sc1")

        def sums(r):
            A(f"v_add_f32 v{d0}, v{r}, v{r+4}")
            A(f"v_add_f32 v{d1}, v{r+2}, v{r+6}")
            A(f"v_add_f32 v{r+8}, v{r+8}, v{r+12}")
            A(f"v_add_f32 v{r+10}, v{r+10}, v{r+14}")
            A(f"v_add_f32 v{d0}, v{d0}, v{r+8}")
            A(f"v_add_f32 v{d1}, v{d1}, v{r+10}")
        if not first_issued:
            loads(0)
        if dry:
            A("s_mov_b64 exec, 0")
            A(f"s_branch L_{lbl}ok")
            A(f"L_{lbl}back:")
            A("s_mov_b64 exec, -1")
        A(f"L_{lbl}:")
        nset = 2 if pipe else 1
        for set_ in range(nset):
            r = base + 16 * set_
            if pipe:
                loads(1 - set_)
                A("s_waitcnt vmcnt(4)")
            else:
                A("s_waitcnt vmcnt(0)")
            tagcheck([r + 1 + 2 * i for i in range(8)], vT + 2, vT + 3)
            if pipe:
                sums(r)
            A(f"s_cbranch_vccz L_{lbl}ok")
        A(f"s_sub_u32 {sT[9]}, {sT[9]}, 1")
        if pipe:
            A(f"s_cbranch_scc0 L_{lbl}")
        else:
            A(f"s_cbranch_scc1 L_{lbl}ok")
            if slp:
                A(f"s_sleep {slp}")
            loads(0)
            A(f"s_branch L_{lbl}")
        A(f"L_{lbl}ok:")
        if not pipe:
            sums(base)

    O4, G = 32, 64
    if diag == 4:
        A("s_memrealtime s[86:87]")
    A(f"s_cmp_eq_u32 {sW}, 1")
    A("s_waitcnt lgkmcnt(0)")
    A("s_barrier")
    A("s_cbranch_scc0 L_not1")
    for hf in range(2):
        for k, w in enumerate((0, 2, 3)):
            r = O4 + 12 * hf + 4 * k
            A(f"ds_read_b128 v[{r}:{r+3}], v{vMR+w//2} offset:{(w%2)*R*tb + hf*1024}")
    A(f"s_cmp_eq_u32 {sLOC}, 1")
    A("s_cbranch_scc0 L_far1")
    for far in (0, 1):
        if far:
            A("L_far1:")
        for qd in range(4):
            r = O4 + 12 * (qd >> 1) + 2 * (qd & 1)
            own = vACC + 4 * qd
            if qd % 2 == 0:
                A(f"s_waitcnt lgkmcnt({3 - 3*(qd >> 1)})")
            A(f"v_pk_add_f32 v[{r}:{r+1}], v[{r}:{r+1}], v[{own}:{own+1}]")
            A(f"v_pk_add_f32 v[{r+4}:{r+5}], v[{r+4}:{r+5}], v[{r+8}:{r+9}]")
            A(f"v_add_f32 v{G+4*qd}, v{r}, v{r+4}")
            A(f"v_add_f32 v{G+4*qd+2}, v{r+1}, v{r+5}")
            A(f"buffer_store_dwordx4 v[{G+4*qd}:{G+4*qd+3}], v{vO1}, {SRD_WS}, {sP1} offen offset:{qd*1024}" + (" sc1" if far else ""))
        if stamps:
            A("s_memrealtime s[94:95]")
        if wlate:
            A("s_waitcnt vmcnt(4)")
            A("s_barrier")
        A("s_branch L_leave")
    nstamp["n"] += 1 if stamps else 0
    A("L_not1:")
    A(f"s_cmp_ge_u32 {sW}, 2")
    A("s_cbranch_scc1 L_bwave")
    if wlate:
        A("s_waitcnt vmcnt(0)")
        A("s_barrier")
    A(f"s_mov_b32 {sT[9]}, {spin}")
    A(f"s_cmp_lt_u32 {sP}, 28")
    A("s_cbranch_scc0 L_final")

    YG = 112
    if gateA:
        A("s_barrier")
    gather4("h2", YG, vH2, sH2, G, G + 2, False, sleep2)
    if stamps:
        A("s_memrealtime s[96:97]")
    allreduce("v_add_f32", [G, G + 2], vT, [8, 16, 32])
    if dry:
        A("s_cbranch_execz L_h2back")
    A("s_mov_b64 exec, 0xff")
    A(f"buffer_store_dwordx4 v[{G}:{G+3}], v{vO1}, {SRD_WS}, {sH2[4]} offen {st3}")
    A("s_branch L_done")

    A("L_final:")
    A(f"s_cmp_eq_u32 {sCONS}, 1")
    A("s_cbranch_scc0 L_done")
    if dry:
        A("s_mov_b64 exec, 0")
        A("s_branch L_h3ok")
        A("L_h3back:")
        A("s_mov_b64 exec, -1")
    A("s_barrier")
    A(f"buffer_load_dword v{vXR}, v{vT+17}, {SRD_X}, 0 offen")
    if outpf:
        A(f"buffer_load_dword v{vT+12}, v{vT+17}, {SRD_OUT}, 0 offen")
        if epfl != "sc1":
            A(f"buffer_load_dword v{vT+13}, off, {SRD_WS}, 0")
    for d in range(depth3 - 1):
        A(f"buffer_load_dwordx4 v[{YG+4*d}:{YG+4*d+3}], v{vO1}, {SRD_WS}, {sH2[5]} offen {ld3}")
    A("L_h3:")
    for d in range(depth3):
        n = (d + depth3 - 1) % depth3
        A(f"buffer_load_dwordx4 v[{YG+4*n}:{YG+4*n+3}], v{vO1}, {SRD_WS}, {sH2[5]} offen {ld3}")
        A(f"s_waitcnt vmcnt({depth3 - 1})")
        A(f"v_mov_b32 v{G}, v{YG+4*d}")
        A(f"v_mov_b32 v{G+2}, v{YG+4*d+2}")
        tagcheck([YG + 4 * d + 1, YG + 4 * d + 3], vT, vT + 1)
        A("s_cbranch_vccz L_h3ok")
    A(f"s_sub_u32 {sT[9]}, {sT[9]}, 1")
    A("s_cbranch_scc0 L_h3")
    A("L_h3ok:")
    if stamps:
        A("s_memrealtime s[98:99]")
    allreduce("v_add_f32", [G, G + 2], vT, [8, 16, 32])
    A(f"v_lshlrev_b32 v{vT+2}, 16, v{vXR}")
    A(f"v_and_b32 v{vT+3}, 0xffff0000, v{vXR}")
    A(f"v_add_f32 v{G}, v{G}, v{vT+2}")
    A(f"v_add_f32 v{G+2}, v{G+2}, v{vT+3}")
    if dry:
        A("s_cbranch_execz L_h3back")
    A("s_mov_b64 exec, 0xff")
    A(f"v_cvt_pk_bf16_f32 v{G}, v{G}, v{G+2}")
    A(f"buffer_store_dword v{G}, v{vT+17}, {SRD_OUT}, 0 offen {outfl}")
    if diag:
        if diag == 1:
            A("s_memrealtime s[86:87]")
        A("s_memrealtime s[88:89]")
        A("s_waitcnt lgkmcnt(0)")
        A("s_sub_u32 s86, s86, s84")
        A("s_add_u32 s86, s86, s88")
        A("L_diag:")
        A("s_memrealtime s[88:89]")
        A("s_waitcnt lgkmcnt(0)")
        A("s_sub_u32 s90, s88, s86")
        A("s_cmp_lt_i32 s90, 0")
        A("s_cbranch_scc1 L_diag")
    A("s_cmp_eq_u32 s2, 224")
    A("s_cbranch_scc0 L_done")
    A("s_mov_b64 exec, 1")
    A(f"buffer_store_dword v{G+1}, off, {SRD_WS}, 0 {epfl}")
    A("s_branch L_done")

    A("L_bwave:")
    if wafter:
        issue_weights()
    OG = 112

    def hop1_loads(fl="sc1"):
        for k in range(4):
            A(f"buffer_load_dwordx4 v[{OG+4*k}:{OG+4*k+3}], v{vH1}, {SRD_WS}, {sT[2+k]} offen {fl}")
    if plain1:
        A(f"s_cmp_eq_u32 {sLOC}, 1")
        A("s_cbranch_scc0 L_h1far")
        hop1_loads("")
        A("s_branch L_h1first")
        A("L_h1far:")
    hop1_loads()
    A("L_h1first:")
    if lateprep:
        c_wprep()
    A(f"s_mov_b32 {sT[9]}, {spin}")
    oa, ob = vT, vT + 1
    gather4("h1", OG, vH1, sT[2:6], oa, ob, True, sleep1)
    stamp()
    allreduce("v_add_f32", [oa, ob], vT + 2, [8, 16, 32])
    A(f"v_cvt_pk_bf16_f32 v{oa}, v{oa}, v{ob}")
    A("s_nop 0")
    for k in range(8):
        A(f"v_readlane_b32 s{10+k}, v{oa}, {k}")
    for cp in range(2):
        for k in range(8):
            for c in (2 * cp, 2 * cp + 1):
                A(f"v_dot2_f32_bf16 v{Y+2*c}, s{10+k}, v{PW+4*k+c}, v{Y+2*c}")
    if dry:
        A("s_cbranch_execz L_h1back")
    A(f"s_cmp_eq_u32 {sLOC}, 1")
    A("s_cbranch_scc0 L_far2")
    A(f"buffer_store_dwordx4 v[{Y}:{Y+3}], v{vOO}, {SRD_WS}, {sP2} offen")
    A(f"buffer_store_dwordx4 v[{Y+4}:{Y+7}], v{vOO}, {SRD_WS}, {sP2} offen offset:1792")
    A("s_branch L_sent2")
    A("L_far2:")
    A(f"buffer_store_dwordx4 v[{Y}:{Y+3}], v{vOO}, {SRD_WS}, {sP2} offen sc1")
    A(f"buffer_store_dwordx4 v[{Y+4}:{Y+7}], v{vOO}, {SRD_WS}, {sP2} offen offset:1792 sc1")
    A("L_sent2:")
    stamp()
    A("L_leave:")
    if not gateA:
        A(f"s_cmp_eq_u32 {sCONS}, 1")
        A("s_cbranch_scc0 L_done")
    A("s_barrier")
    A("L_done:")
    if stamps:
        A("s_mov_b64 exec, -1")
        A("s_memrealtime s[100:101]")
        A("s_waitcnt lgkmcnt(0)")
        A(f"s_lshl_b32 {sT[0]}, s2, 2")
        A(f"s_add_u32 {sT[0]}, {sT[0]}, {sW}")
        A(f"s_lshl_b32 {sT[1]}, {sT[0]}, 8")
        A(f"s_lshl_b32 {sT[0]}, {sT[0]}, 6")
        A(f"s_add_u32 {sT[0]}, {sT[0]}, {WS_STAMP}")
        A(f"s_add_u32 {sT[1]}, {sT[1]}, {WS_STAMP + 0x10000}")
        A(f"v_lshlrev_b32 v2, 2, {vL}")
        A(f"buffer_store_dword v252, v2, {SRD_WS}, {sT[1]} offen")
        A("v_mov_b32 v2, 0")
        A("s_mov_b64 exec, 1")
        A("v_mov_b32 v3, s26")
        A(f"buffer_store_dword v3, v2, {SRD_WS}, {sT[0]} offen offset:44")
        for k in range(9):
            A(f"v_mov_b32 v3, s{84+2*k}")
            A(f"buffer_store_dword v3, v2, {SRD_WS}, {sT[0]} offen offset:{4*k}")
        A("s_getreg_b32 s84, hwreg(HW_REG_XCC_ID)")
        A("v_mov_b32 v3, s84")
        A(f"buffer_store_dword v3, v2, {SRD_WS}, {sT[0]} offen offset:36")
        A(f"v_mov_b32 v3, {sT[9]}")
        A(f"buffer_store_dword v3, v2, {SRD_WS}, {sT[0]} offen offset:40")
    A("L_end:")
    A("s_endpgm")
    body = "\n".join(("" if l.endswith(":") else "    ") + l for l in o)
    return HEADER.format(lds=LDS, k=kern) + body + FOOTER.format(k=kern)


if __name__ == "__main__":
    out = sys.argv[1]
    kw = json.loads(sys.argv[2]) if len(sys.argv) > 2 else {}
    open(out, "w").write(gen(**kw))
```

```python
import sys, json, math, struct
from gen import HEADER, FOOTER, KERN, f2u, LOG2E_16

WS_QG = 0x1000
WS_HG = WS_QG + 0x4000
WS_ML = 0x8000
WS_RK = 0xA000
WS_RDY = 0xC000
WS_CNT = 0x200000
WS_P1O = 0x10000
WS_P2 = 0x110000
WS_P3 = 0x1F0000
WS_STAMP = 0x300000
WS_SIZE = 0x400000


def gen(R=3, N=5, N0=8, Nend=12, tail=7, NB=8, NP=6, bits="i0 w0 w1 i1 i2 g3 g4 t2 t3 x0 x1 x2 t0 t1",
        kflags="nt", vflags="nt", wflags="nt", stamps=0, spin=4000000, vpub=5, vgat=9, wpos=0, flat2=False, gate2=False, kopen=None, lateprep=True, pre1=None, pre2=None, plain1=False, touch="sc1", tpos=0, codepf=False, tlbpf=True, outpf=True, nn=(32, 4), ext=None, depth3=4, touch2=True, now=False, wafter=False, wat=None, tat=None, diag=0, dmul=1, dry=False, w2at=None, pad=0, gateA=False, st3="sc1", ld3="sc1", bb=None, N2=8, iw=None, ra=tuple((t, 18, 6, 26, 6) for t in (8, 11, 14, 17, 20, 23, 26)), raws=True, nk=1, ng=8, bump=(), epfl="", outfl="", pipe=False, skipw=True, wlate=None, wtlb=None, wdma=None, rk=((64, 20, 4, 0, 0), (186, 18, 5, 0, 0)), rkw=1, Nhi=6, Nlo=4, sleep1=0, sleep2=0,
        alt=None, X=7, Np=12, B0=6, Xp=None, il=0, Np2=9, zmap="wg", rot=True, hmap="mod8", local=True,
        kern=KERN):
    noend = noml = False
    assert not wdma and wlate is None
    if ra:
        rk = ()
        assert len(ra) * ng <= 128 and raws
    ctl = list(rk) + list(ra)
    wearly = 0
    T = 8
    tb = T * 1024
    S = 16
    if "h" not in bits.split():
        bits = "h " + bits
    pos = {n: 9 + k for k, n in enumerate(bits.split())}
    genh = pos["h"] != 9
    RING = 4 * R * tb
    STG = RING
    QW = STG + 57344
    LML = QW + 4096
    FIN = LML + 128
    PRG = FIN + 256
    LDS = PRG + (1024 if iw else 0)
    assert LDS <= 163840 and LDS > 81920
    if Xp is None:
        Xp = X * T

    o = []
    A = o.append
    vm = {"n": 0, "known": 0}

    def VM(s):
        A(s)
        vm["n"] += 1
        return vm["n"]

    def wait_vm(idx, force=False):
        if idx <= vm["known"] and not force:
            return
        n = vm["n"] - idx
        assert 0 <= n <= 63, n
        A(f"s_waitcnt vmcnt({n})")
        if vm.get("opt") and idx < vm["optend"]:
            assert idx <= vm["optend"] - vm["opt"]
            vm["lbl"] = vm.get("lbl", 0) + 1
            A(f"s_cmp_ge_u32 s3, 2")
            A(f"s_cbranch_scc1 L_ow{vm['lbl']}")
            A(f"s_waitcnt vmcnt({n - vm['opt']})")
            A(f"L_ow{vm['lbl']}:")
        vm["known"] = max(vm["known"], idx)

    nstamp = {"n": 0}

    def stamp(mode=1):
        if stamps and (int(stamps) & mode):
            k = nstamp["n"]
            assert k < 8
            A(f"s_memrealtime s[{84+2*k}:{85+2*k}]")
            nstamp["n"] += 1

    SRD_K, SRD_V, SRD_W, SRD_WO, SRD_W2, SRD_WS, SRD_X, SRD_OUT = ("s[28:31]", "s[32:35]", "s[36:39]", "s[40:43]",
                                                                     "s[44:47]", "s[48:51]", "s[52:55]", "s[56:59]")
    sW, sH, sP, sTAG, sRING, sBASE, sC, sF = "s3", "s60", "s61", "s62", "s63", "s64", "s65", "s66"
    sOFF = "s67"
    sZ = "s27"
    sT = ["s72", "s73", "s74", "s75", "s76", "s77", "s78", "s79", "s80", "s81"]
    vL = "v1"
    vSRC = [2, 3, 4, 5]
    vKA = [6, 7, 8, 9]
    vVA = list(range(10, 18))
    vMAX, vMS = 18, 19
    vPF, vLS, vS, vE = 20, 24, 24, 28
    vVT = 32
    sLOC, sXCC = "s82", "s83"
    sWE, sNE = "s16", "s17"
    vPW, vPR, vPD = (22, 23, 255) if False else (252, 253, 255)
    if stamps and iw:
        vPW, vPR = 250, 251
    vQ, vTL, vACC, vSC, vT = 32, 64, 96, 160, 224
    vH = 244

    def srd(base, lo, size):
        A(f"s_mov_b32 s{base}, s{lo}")
        A(f"s_mov_b32 s{base+1}, s{lo+1}")
        A(f"s_mov_b32 s{base+2}, {size}")
        A(f"s_mov_b32 s{base+3}, 0x20000")

    assert hmap == "mod8" and zmap == "wg" and not il
    sZ = "s2"
    A("L_c0:")
    A("s_load_dwordx2 s[28:29], s[0:1], 8")
    A("s_load_dwordx16 s[4:19], s[0:1], 0")
    A("s_load_dwordx4 s[20:23], s[0:1], 64")
    A("s_load_dwordx2 s[24:25], s[0:1], 80")
    stamp(3)
    if diag:
        A("s_memrealtime s[84:85]")
    A("v_lshrrev_b32 v30, 6, v0")
    A("s_cmp_lt_u32 s2, 92")
    A("s_cbranch_scc1 L_producer")
    A("s_cmp_ge_u32 s2, 256")
    A("s_cbranch_scc1 L_end")

    def put(src, names):
        k = 0
        while k < len(names):
            e = k
            while e + 1 < len(names) and pos[names[e + 1]] == pos[names[e]] + 1:
                e += 1
            if k == 0 and e == len(names) - 1:
                A(f"s_lshl_b32 {sT[2]}, {src}, {pos[names[0]]}")
            else:
                A(f"s_bfe_u32 {sT[2]}, {src}, {((e - k + 1) << 16) | k}")
                A(f"s_lshl_b32 {sT[2]}, {sT[2]}, {pos[names[k]]}")
            A(f"s_or_b32 {sBASE}, {sBASE}, {sT[2]}")
            k = e + 1

    def common0():
        A(f"v_and_b32 {vL}, 63, v0")
        A("v_readfirstlane_b32 s3, v30")
        A(f"s_and_b32 {sH}, s2, 7")
        A(f"s_lshr_b32 {sP}, s2, 3")
        A(f"s_and_b32 {sT[0]}, {sP}, 7")
        A(f"s_lshr_b32 {sT[1]}, s2, 6")
        A(f"s_lshl_b32 {sBASE}, {sH}, 24")
        put(sT[0], ["x0", "x1", "x2"])
        put(sT[1], ["g3", "g4"])
        put(sW, ["w0", "w1"])
        A(f"s_mul_i32 {sRING}, {sW}, {R*tb}")
        A("s_brev_b32 s30, 16")
        A("s_mov_b32 s31, 0x20000")
        A(f"v_lshlrev_b32 v29, 4, {vL}")
        A(f"v_and_b32 v31, 32, {vL}")
        A(f"v_xor_b32 v{vSRC[0]}, v29, v31")
        if genh:
            A(f"v_and_b32 v{vSRC[0]}, 0x1ff, v{vSRC[0]}")
            A(f"v_lshl_add_u32 v{vSRC[0]}, v31, {pos['h'] - 5}, v{vSRC[0]}")
        A(f"v_xor_b32 v{vSRC[1]}, 64, v{vSRC[0]}")
        A(f"v_xor_b32 v{vSRC[2]}, 0x80, v{vSRC[0]}")
        A(f"v_xor_b32 v{vSRC[3]}, 64, v{vSRC[2]}")

    def common1():
        A(f"s_mov_b32 {sC}, 0x{f2u(LOG2E_16):08x}")
        A(f"s_min_u32 {sF}, s2, 223")

    def producer0():
        A("s_mov_b32 s39, 0x20000")
        A(f"s_cmp_lt_u32 {sZ}, 64")
        A(f"s_mov_b32 s38, {448*1792*2}")
        A(f"s_cmov_b32 s38, {448*4096*2}")
        A(f"s_movk_i32 {sT[4]}, 3584")
        A(f"s_cmovk_i32 {sT[4]}, 8192")
        A(f"s_and_b32 {sT[5]}, {sZ}, 63")
        A(f"s_lshl_b32 {sT[5]}, {sT[5]}, 7")
        A(f"s_mul_i32 {sT[6]}, {sW}, {sT[4]}")
        A(f"s_mulk_i32 {sT[6]}, 112")
        A(f"s_add_u32 {sT[5]}, {sT[5]}, {sT[6]}")
        A(f"v_lshrrev_b32 v30, 3, {vL}")
        A(f"v_mul_u32_u24 v30, {sT[4]}, v30")
        A(f"v_and_b32 v31, 0x70, v29")
        A("v_add_u32 v21, v31, v30")
        A(f"s_lshl_b32 {sT[4]}, {sT[4]}, 3")
        A(f"s_mul_i32 {sT[6]}, {sW}, 14336")
        A(f"s_add_u32 {sT[6]}, {sT[6]}, {STG}")
        A("s_movk_i32 s54, 896")
        A("s_mov_b32 s55, s39")
        A(f"s_movk_i32 {sT[3]}, 14")
        A("s_waitcnt lgkmcnt(0)")
        A("s_mov_b64 s[52:53], s[4:5]")
        A(f"s_cmp_lt_u32 {sZ}, 64")
        A("s_cselect_b64 s[36:37], s[10:11], s[16:17]")

    seq = [("K", n) for n in range(S)] + [("V", n) for n in range(S)]
    NL = len(seq) * T
    lidx = {}

    m0bad = {"v": False}

    def issue_load(L):
        j, i = divmod(L, T)
        kind, n = seq[j]
        if i % 4 and m0bad["v"]:
            A(f"s_add_u32 m0, {sRING}, {(j % R)*tb + (i // 4)*4096}")
            A("s_nop 0")
        m0bad["v"] = False
        def goff(i_):
            return (sum(((n >> k) & 1) << pos[f"t{k}"] for k in range(4)) +
                    sum(((i_ >> k) & 1) << pos[f"i{k}"] for k in range(3)) - (i_ % 4) * 1024)
        srd_, fl = (SRD_K, kflags) if kind == "K" else (SRD_V, vflags)
        if genh:
            A(f"s_add_u32 m0, {sRING}, {(j % R)*tb + i*1024}")
            A(f"s_add_u32 {sOFF}, {sBASE}, {goff(i) + (i % 4)*1024}")
            lidx[L] = VM(f"buffer_load_dwordx4 v{vSRC[i%4]}, {srd_}, {sOFF} offen {fl} lds")
            return
        if i % 4 == 0:
            A(f"s_add_u32 m0, {sRING}, {(j % R)*tb + i*1024}")
        if i % 4 == 0 or goff(i) != goff(i - 1):
            A(f"s_add_u32 {sOFF}, {sBASE}, {goff(i)}")
        lidx[L] = VM(f"buffer_load_dwordx4 v{vSRC[i%4]}, {srd_}, {sOFF} offen offset:{(i%4)*1024} {fl} lds")

    npf = {"n": 0}

    LFLAG = 0x600DF1A6

    def setup():
        A(f"s_lshl_b32 {sT[2]}, {sW}, 5")
        A(f"s_add_u32 {sT[2]}, {sT[2]}, {LML}")
        A(f"v_lshlrev_b32 v29, 2, {vL}")
        A(f"v_add_u32 v29, {sT[2]}, v29")
        A("v_mov_b32 v30, 0")
        A("s_mov_b64 exec, 0xff")
        A("ds_write_b32 v29, v30")
        if ctl:
            A("ds_write_b32 v29, v30 offset:128")
        A("s_mov_b64 exec, -1")
        if iw:
            A(f"v_lshlrev_b32 v{vPW}, 2, v0")
            A(f"v_add_u32 v{vPW}, {PRG}, v{vPW}")
            A(f"ds_write_b32 v{vPW}, v30")
            A(f"v_and_b32 v{vPR}, 3, {vL}")
            A(f"v_lshlrev_b32 v{vPR}, 8, v{vPR}")
            A(f"v_add_u32 v{vPR}, {PRG}, v{vPR}")
        A("s_waitcnt lgkmcnt(0)")
        A("s_barrier")
        A(f"s_load_dword {sTAG}, s[24:25], 0")
        if tlbpf:
            A(f"s_lshr_b32 {sT[2]}, s2, 3")
            A(f"s_lshl_b32 {sT[2]}, {sT[2]}, 2")
            A(f"s_add_u32 {sT[2]}, {sT[2]}, {sW}")
            A(f"s_bitcmp1_b32 {sT[2]}, 3")
            A("s_cselect_b32 s70, s8, s6")
            A("s_cselect_b32 s71, s9, s7")
            A(f"s_and_b32 {sT[7]}, {sT[2]}, 7")
            A(f"s_lshl_b32 {sT[7]}, {sT[7]}, 21")
            A(f"s_lshl_b32 {sT[8]}, {sH}, 24")
            A(f"s_add_u32 {sT[7]}, {sT[7]}, {sT[8]}")
            A(f"s_lshl_b32 {sT[8]}, {sT[2]}, 7")
            A(f"s_add_u32 {sT[7]}, {sT[7]}, {sT[8]}")
            A(f"s_add_u32 s70, s70, {sT[7]}")
            A("s_addc_u32 s71, s71, 0")
            A(f"s_load_dword {sLOC}, s[70:71], 0x0")
            A(f"s_bitcmp1_b32 {sW}, 0")
            A("s_cselect_b32 s70, s12, s18")
            A("s_cselect_b32 s71, s13, s19")
            A(f"s_mov_b32 {sT[7]}, 6272")
            A(f"s_cmov_b32 {sT[7]}, 14336")
            A(f"s_mul_i32 {sT[7]}, {sT[7]}, s2")
            A(f"s_add_u32 s70, s70, {sT[7]}")
            A("s_addc_u32 s71, s71, 0")
            A(f"s_load_dword s21, s[70:71], 0x0" if False else f"s_load_dword {sXCC}, s[70:71], 0x0")
        if codepf:
            k = npf["n"]
            npf["n"] += 1
            A(f"s_getpc_b64 s[68:69]")
            A(f"L_pf{k}:")
            A(f"s_lshr_b32 {sT[2]}, s2, 3")
            A(f"s_lshl_b32 {sT[2]}, {sT[2]}, 2")
            A(f"s_add_u32 {sT[2]}, {sT[2]}, {sW}")
            A(f"s_lshl_b32 {sT[2]}, {sT[2]}, 8")
            A(f"s_min_u32 {sT[2]}, {sT[2]}, L_end-L_c0-128")
            A(f"s_sub_u32 s68, s68, L_pf{k}-L_c0")
            A("s_subb_u32 s69, s69, 0")
            A(f"s_add_u32 s68, s68, {sT[2]}")
            A("s_addc_u32 s69, s69, 0")
            A("s_load_dword s27, s[68:69], 0x0")
            A("s_load_dword s27, s[68:69], 0x80")
        srd(32, 8, 128 << 20)
        srd(40, 12, 4096 * 448 * 2)
        srd(44, 18, 1792 * 448 * 2)
        srd(48, 24, WS_SIZE)
        srd(56, 20, 896)
        if stamps:
            A("s_mov_b32 s26, 0")
            A("v_mov_b32 v252, 0")
            for k in (5, 6, 7):
                A(f"s_mov_b32 s{84+2*k}, s84")
        A(f"v_and_b32 v29, 15, {vL}")
        A(f"v_lshrrev_b32 v30, 4, {vL}")
        A("v_and_b32 v31, 7, v29")
        A("v_lshlrev_b32 v31, 1, v31")
        A("v_xor_b32 v31, v31, v30")
        A("v_lshlrev_b32 v31, 4, v31")
        A("v_lshl_add_u32 v31, v29, 9, v31")
        for j in range(4):
            A(f"v_xor_b32 v{vKA[j]}, {j*64}, v31")
            A(f"v_add_u32 v{vKA[j]}, {sRING}, v{vKA[j]}")
        A(f"v_bfe_u32 v29, {vL}, 2, 2")
        A(f"v_lshrrev_b32 v30, 4, {vL}")
        A("v_xor_b32 v30, v30, v29")
        A(f"v_and_b32 v31, 3, {vL}")
        A("v_lshlrev_b32 v31, 3, v31")
        A("v_lshl_add_u32 v31, v30, 5, v31")
        A("v_lshl_add_u32 v31, v29, 9, v31")
        A(f"v_add_u32 v{vVA[0]}, {sRING}, v31")
        A(f"v_mov_b32 v{vMAX}, 0xff800000")
        if ra:
            A(f"s_and_b32 s14, {sP}, {nk-1}")
            if raws:
                A(f"s_and_b32 s15, {sP}, {ng-1}")
                A("s_mul_i32 s15, s15, 4352")
                A(f"s_add_u32 s15, s15, {WS_CNT}")
                A("s_add_u32 s22, s24, s15")
                A("s_addc_u32 s23, s25, 0")
            else:
                A(f"s_bfe_u32 s15, {sP}, 0x20002")
                A("s_lshl_b32 s15, s15, 4")
                A("s_add_u32 s15, s15, s14")
                A("s_lshl_b32 s15, s15, 2")
                A("s_add_u32 s22, s22, s15")
                A("s_addc_u32 s23, s23, 0")
            A(f"s_cmp_eq_u32 {sW}, {rkw}")
            A("s_cselect_b32 s14, s14, 15")
        if ctl:
            A(f"s_mov_b32 {sWE}, 0")
            A(f"s_mov_b32 {sNE}, 0")
            A(f"v_mov_b32 v254, {FIN}")

    def allreduce(op, regs, tmp, steps):
        for st in steps:
            if st <= 8:
                if len(regs) < 3:
                    A(f"s_nop {2-len(regs)}")
                for r in regs:
                    A(f"{op}_dpp v{r}, v{r}, v{r} row_ror:{st} row_mask:0xf bank_mask:0xf")
            else:
                for k, r in enumerate(regs):
                    A(f"v_mov_b32 v{tmp+k}, v{r}")
                if len(regs) < 3:
                    A(f"s_nop {2-len(regs)}")
                for k, r in enumerate(regs):
                    A(f"v_permlane{st}_swap_b32 v{r}, v{tmp+k}")
                if len(regs) < 2:
                    A("s_nop 0")
                for k, r in enumerate(regs):
                    A(f"{op} v{r}, v{r}, v{tmp+k}")

    XU = vT + 4
    a, b, c_, d_ = vT + 12, vT + 13, vT + 14, vT + 15
    XF, WF = 96, 152
    st = {}

    def side0():
        wait_vm(st["x"])
        stamp(2)
        for i in range(4):
            A(f"v_lshlrev_b32 v{XU+2*i}, 16, v{vT+i}")
            A(f"v_and_b32 v{XU+2*i+1}, 0xffff0000, v{vT+i}")
        A(f"v_add_f32 v{a}, v{XU}, v{XU+1}")
        for i in range(2, 8):
            A(f"v_add_f32 v{a}, v{a}, v{XU+i}")
        allreduce("v_add_f32", [a], b, [1, 2, 4, 8, 16, 32])

    def side1():
        A(f"v_mul_f32 v{a}, 0x{f2u(1.0/448):08x}, v{a}")
        A(f"v_mov_b32 v{b}, 0")
        for i in range(8):
            A(f"v_sub_f32 v{c_}, v{XU+i}, v{a}")
            A(f"v_fmac_f32 v{b}, v{c_}, v{c_}")
        A(f"v_cmp_gt_u32 vcc, 56, {vL}")
        A("s_nop 1")
        A(f"v_cndmask_b32 v{b}, 0, v{b}, vcc")
        allreduce("v_add_f32", [b], c_, [1, 2, 4, 8, 16, 32])

    def side2():
        A(f"v_mul_f32 v{b}, 0x{f2u(1.0/448):08x}, v{b}")
        A(f"v_cvt_pk_bf16_f32 v{c_}, v{a}, v{b}")
        A(f"v_lshlrev_b32 v{a}, 16, v{c_}")
        A(f"v_and_b32 v{b}, 0xffff0000, v{c_}")
        A(f"v_add_f32 v{b}, 0x{f2u(1e-5):08x}, v{b}")
        A(f"v_cvt_pk_bf16_f32 v{b}, v{b}, v{b}")
        A(f"v_and_b32 v{b}, 0xffff0000, v{b}")
        A(f"v_sqrt_f32 v{b}, v{b}")
        A("s_nop 0")
        A(f"v_cvt_pk_bf16_f32 v{b}, v{b}, v{b}")
        A(f"v_and_b32 v{b}, 0xffff0000, v{b}")
        A(f"v_rcp_f32 v{b}, v{b}")

    def side3():
        for i in range(8):
            A(f"v_sub_f32 v{XU+i}, v{XU+i}, v{a}")
        for i in range(4):
            A(f"v_cvt_pk_bf16_f32 v{vT+i}, v{XU+2*i}, v{XU+2*i+1}")
        for i in range(4):
            A(f"v_lshlrev_b32 v{XU+2*i}, 16, v{vT+i}")
            A(f"v_and_b32 v{XU+2*i+1}, 0xffff0000, v{vT+i}")
        for i in range(8):
            A(f"v_mul_f32 v{XU+i}, v{XU+i}, v{b}")
        for i in range(4):
            A(f"v_cvt_pk_bf16_f32 v{vT+i}, v{XU+2*i}, v{XU+2*i+1}")
        A(f"s_lshl_b32 {sT[0]}, {sW}, 10")
        A(f"s_add_u32 {sT[0]}, {sT[0]}, {QW}")
        A(f"v_lshlrev_b32 v{a}, 4, {vL}")
        A(f"v_add_u32 v{a}, {sT[0]}, v{a}")
        A(f"ds_write_b128 v{a}, v[{vT}:{vT+3}]")
        A(f"v_lshrrev_b32 v{b}, 4, {vL}")
        A(f"v_lshlrev_b32 v{c_}, 4, v{b}")
        A(f"v_add_u32 v{c_}, {sT[0]}, v{c_}")

    def side4():
        A("s_waitcnt lgkmcnt(0)")
        for i in range(14):
            A(f"ds_read_b128 v[{XF+4*i}:{XF+4*i+3}], v{c_} offset:{i*64}")
        A(f"v_lshlrev_b32 v{b}, 10, v{b}")
        A(f"v_bfe_u32 v{d_}, {vL}, 2, 2")
        A(f"v_lshl_add_u32 v{b}, v{d_}, 7, v{b}")
        A(f"v_and_b32 v{d_}, 3, {vL}")
        A(f"v_lshl_add_u32 v{b}, v{d_}, 3, v{b}")
        A(f"s_lshl_b32 {sT[1]}, {sW}, 5")
        A(f"s_add_u32 {sT[1]}, {sT[1]}, {STG}")
        A(f"v_add_u32 v{b}, {sT[1]}, v{b}")
        A(f"s_mul_i32 {sT[2]}, {sTAG}, 1664525")
        A(f"s_add_u32 {sT[2]}, {sT[2]}, 1013904223")

    def side5():
        stamp(2)
        wait_vm(st["stg"])
        A("s_waitcnt lgkmcnt(0)")
        A("s_barrier")
        stamp(2)
        for i in range(14):
            A(f"ds_read_b64_tr_b16 v[{WF+4*i}:{WF+4*i+1}], v{b} offset:{i*4096}")
            A(f"ds_read_b64_tr_b16 v[{WF+4*i+2}:{WF+4*i+3}], v{b} offset:{i*4096+512}")

    def side6():
        A(f"v_and_b32 v{d_}, 15, {vL}")
        A(f"v_cmp_eq_u32 s[70:71], 0, v{d_}")
        A(f"v_lshrrev_b32 v{a}, 4, {vL}")
        A(f"v_lshlrev_b32 v{a}, 4, v{a}")
        A(f"v_mov_b32 v{vT+1}, {sT[2]}")
        A(f"v_mov_b32 v{vT+3}, {sT[2]}")
        A(f"s_lshl_b32 {sT[0]}, {sZ}, 2")
        A(f"s_add_u32 {sT[0]}, {sT[0]}, {sW}")
        A(f"s_lshl_b32 {sT[0]}, {sT[0]}, 6")
        A(f"s_add_u32 {sT[0]}, {sT[0]}, {WS_QG}")
        A(f"s_cmp_lt_u32 {sZ}, 64")
        A(f"s_cselect_b32 {sT[1]}, 0xff800000, 0")

    def side7():
        A("s_waitcnt lgkmcnt(0)")
        for i in range(14):
            A(f"v_mfma_f32_16x16x32_bf16 v[{vS}:{vS+3}], v[{WF+4*i}:{WF+4*i+3}], v[{XF+4*i}:{XF+4*i+3}], " +
              ("0" if i == 0 else f"v[{vS}:{vS+3}]"))

    def side8():
        A("s_nop 7")
        for i in range(4):
            A(f"v_max_f32 v{vS+i}, {sT[1]}, v{vS+i}")
        A(f"v_cvt_pk_bf16_f32 v{vT}, v{vS}, v{vS+1}")
        A(f"v_cvt_pk_bf16_f32 v{vT+2}, v{vS+2}, v{vS+3}")
        A("s_mov_b64 exec, s[70:71]")
        A(f"buffer_store_dwordx4 v[{vT}:{vT+3}], v{a}, {SRD_WS}, {sT[0]} offen sc1")
        A("s_mov_b64 exec, -1")

    side_chunks = [side0, side1, side2, side3, side4, side5, side6, side7, side8]

    def tile_stamp_a():
        if stamps:
            A("s_memrealtime s[100:101]")
        if st.get("rk_on") and not st.get("rk_off"):
            A(f"ds_read_b64 v[{vT+18}:{vT+19}], v254")
            if iw:
                A(f"ds_read_b32 v{vPD}, v{vPR}")
                st["iw_own"] = st["iw_last"]
            st["rk_rd"] = True

    def lds_wait(tile=False):
        A("s_waitcnt lgkmcnt(0)")
        if st.get("rk_rd"):
            A(f"v_readfirstlane_b32 {sWE}, v{vT+18}")
            A(f"v_readfirstlane_b32 {sNE}, v{vT+19}")
            if bb and st["tc"] >= bb[0]:
                A(f"s_cmp_ge_u32 {sW}, 2")
                A(f"s_cmovk_i32 {sWE if bb[1] == 1 else sNE}, 0x100")
            if iw:
                th, gain, thn, gn = iw
                A(f"v_add_u32_dpp v{vPD}, v{vPD}, v{vPD} quad_perm:[1,0,3,2] row_mask:0xf bank_mask:0xf")
                A("s_nop 1")
                A(f"v_add_u32_dpp v{vPD}, v{vPD}, v{vPD} quad_perm:[2,3,0,1] row_mask:0xf bank_mask:0xf")
                A("s_nop 0")
                A(f"v_readfirstlane_b32 s19, v{vPD}")
                A(f"s_sub_i32 s19, s19, {4*st['iw_own']}")
                A(f"s_mul_i32 s13, s19, {gain}")
                A(f"s_add_i32 s13, s13, {st['L']}")
                A(f"s_cmp_ge_i32 s19, {th}")
                A("s_cselect_b32 s13, s13, 0")
                A(f"s_max_u32 {sWE}, {sWE}, s13")
                if thn:
                    A(f"s_mul_i32 s13, s19, {-gn}")
                    A(f"s_add_i32 s13, s13, {st['L']}")
                    A(f"s_cmp_le_i32 s19, {-thn}")
                    A("s_cselect_b32 s13, s13, 0")
                    A(f"s_cselect_b32 {sWE}, 0, {sWE}")
                    A(f"s_max_u32 {sNE}, {sNE}, s13")
            st["rk_rd"] = False
        if tile and "tc" in st:
            j = st["tc"]
            st["tc"] += 1
            for c, r_ in enumerate(ra):
                if 1 <= j - r_[0] <= nk:
                    c_rkdecide(c, st["L"], j - r_[0] - 1)
            for c, r_ in enumerate(ra):
                if 0 <= j - r_[0] < nk:
                    assert st.get("rdy"), "probe before the ready check"
                    A(f"s_cmp_eq_u32 s14, {j - r_[0]}")
                    A(f"s_cbranch_scc0 L_ra{c}_{j}")
                    A("s_mov_b32 s18, 1")
                    A(f"s_atomic_add s18, s[22:23], {ng*4352*c} glc")
                    A(f"L_ra{c}_{j}:")
        if stamps and tile:
            A("v_mov_b32 v253, s100")
            A(f"v_cmp_eq_u32 vcc, s26, {vL}")
            A("s_add_u32 s26, s26, 1")
            A("s_nop 0")
            A("v_cndmask_b32 v252, v252, v253, vcc")

    def read_k(dst, slot_imm, acc=False):
        tile_stamp_a()
        p = "a" if acc else "v"
        for j in range(8):
            A(f"ds_read_b128 {p}[{dst+4*j}:{dst+4*j+3}], v{vKA[j%4]} offset:{slot_imm + (j//4)*256}")

    def qk_mfma(src, acc):
        p = "a" if acc else "v"
        for j in range(8):
            A(f"v_mfma_f32_16x16x32_bf16 v[{vS}:{vS+3}], {p}[{src+4*j}:{src+4*j+3}], v[{vQ+4*j}:{vQ+4*j+3}], " +
              ("0" if j == 0 else f"v[{vS}:{vS+3}]"))

    def qk_post(sc):
        A("s_nop 7")
        A(f"v_cvt_pk_bf16_f32 v{sc+1}, v{vS}, v{vS+1}")
        A(f"v_cvt_pk_bf16_f32 v{sc+3}, v{vS+2}, v{vS+3}")
        A(f"v_lshlrev_b32 v{sc}, 16, v{sc+1}")
        A(f"v_and_b32 v{sc+1}, 0xffff0000, v{sc+1}")
        A(f"v_lshlrev_b32 v{sc+2}, 16, v{sc+3}")
        A(f"v_and_b32 v{sc+3}, 0xffff0000, v{sc+3}")
        A(f"v_max3_f32 v{vMAX}, v{sc}, v{sc+1}, v{vMAX}")
        A(f"v_max3_f32 v{vMAX}, v{sc+2}, v{sc+3}, v{vMAX}")

    def q_poll(emit):
        emit(f"buffer_load_dwordx4 v[{vT}:{vT+3}], v{vT+8}, {SRD_WS}, {sT[8]} offen sc1")
        emit(f"buffer_load_dwordx4 v[{vT+4}:{vT+7}], v{vT+8}, {SRD_WS}, {sT[8]} offen offset:1024 sc1")
        emit(f"buffer_load_dwordx4 v[{vH}:{vH+3}], off, {SRD_WS}, {sT[7]} sc1")
        return emit(f"buffer_load_dwordx4 v[{vH+4}:{vH+7}], off, {SRD_WS}, {sT[7]} offset:16 sc1")

    def tagcheck(regs, acc0, acc1):
        A(f"v_xor_b32 v{acc0}, {sTAG}, v{regs[0]}")
        A(f"v_xor_b32 v{acc1}, {sTAG}, v{regs[1]}")
        for i, r in enumerate(regs[2:]):
            acc = acc0 if i % 2 == 0 else acc1
            A(f"v_bitop3_b32 v{acc}, v{acc}, v{r}, {sTAG} bitop3:0xf6")
        A(f"v_or_b32 v{acc0}, v{acc0}, v{acc1}")
        A(f"v_cmp_ne_u32 vcc, 0, v{acc0}")

    def c_qpoll():
        A(f"s_lshl_b32 {sT[8]}, {sH}, 11")
        A(f"s_add_u32 {sT[8]}, {sT[8]}, {WS_QG}")
        A(f"s_lshl_b32 {sT[7]}, {sF}, 5")
        A(f"s_add_u32 {sT[7]}, {sT[7]}, {WS_HG}")
        A(f"v_lshlrev_b32 v{vT+8}, 4, {vL}")
        if ra:
            A(f"s_mov_b32 {sT[6]}, {WS_RDY}")
            VM(f"buffer_load_dword v255, off, {SRD_WS}, {sT[6]} sc1")
        st["q"] = q_poll(VM)

    def c_qcheck():
        wait_vm(st["q"])
        if ra:
            A(f"v_readfirstlane_b32 {sT[6]}, v255")
            A(f"s_cmp_eq_u32 {sT[6]}, {sTAG}")
            A("s_cselect_b32 s14, s14, 15")
            st["rdy"] = True
        A(f"s_mov_b32 {sT[0]}, {spin}")
        A("L_qchk:")
        tagcheck([vT + 1, vT + 3, vT + 5, vT + 7, vH + 1, vH + 3, vH + 5, vH + 7], vT + 9, vT + 10)
        A("s_cbranch_vccz L_qok")
        A(f"s_sub_u32 {sT[0]}, {sT[0]}, 1")
        A("s_cbranch_scc1 L_qok")
        q_poll(A)
        A("s_waitcnt vmcnt(0)")
        A("s_branch L_qchk")
        A("L_qok:")
        stamp()
        A(f"s_lshl_b32 {sT[0]}, {sW}, 10")
        A(f"s_add_u32 {sT[0]}, {sT[0]}, {QW}")
        A(f"v_lshlrev_b32 v{vT+9}, 3, {vL}")
        A(f"v_add_u32 v{vT+9}, {sT[0]}, v{vT+9}")
        A(f"ds_write2_b32 v{vT+9}, v{vT}, v{vT+2} offset0:0 offset1:1")
        A(f"ds_write2_b32 v{vT+9}, v{vT+4}, v{vT+6} offset0:128 offset1:129")
        A(f"v_and_b32 v{vT+10}, 1, {vL}")
        A(f"v_lshlrev_b32 v{vT+10}, 9, v{vT+10}")
        A(f"v_lshrrev_b32 v{vT+11}, 4, {vL}")
        A(f"v_lshl_add_u32 v{vT+10}, v{vT+11}, 4, v{vT+10}")
        A(f"v_add_u32 v{vT+10}, {sT[0]}, v{vT+10}")

    def c_qread():
        A("s_waitcnt lgkmcnt(0)")
        for j in range(8):
            A(f"ds_read_b128 v[{vQ+4*j}:{vQ+4*j+3}], v{vT+10} offset:{j*64}")

    def c_kmax():
        A(f"s_getreg_b32 {sXCC}, hwreg(HW_REG_XCC_ID, 0, 4)")
        allreduce("v_max_f32", [vMAX], vT, [16, 32])
        if diag == 3:
            A("s_memrealtime s[86:87]")
        A(f"v_mul_f32 v{vMS}, {sC}, v{vMAX}")
        A(f"v_mov_b32 v{vLS}, 0")
        A(f"v_mov_b32 v{vLS+1}, 0")
        stamp()

    def read_vg(slot_imm, g):
        for qd in range(4):
            r = vVT + 8 * g + 2 * qd
            A(f"ds_read_b64_tr_b16 v[{r}:{r+1}], v{vVA[0]} offset:{slot_imm + g*2048 + ((qd ^ g) & 1)*128 + (qd >> 1)*256}")

    def read_v(slot_imm, half):
        tile_stamp_a()
        for g in range(4):
            read_vg(slot_imm, g)

    def exps(sc):
        for r in range(4):
            A(f"v_fma_f32 v{vE+r}, v{sc+r}, {sC}, -v{vMS}")
        for r in range(4):
            A(f"v_exp_f32 v{vE+r}, v{vE+r}")
        A("s_nop 0")

    def make_p(n):
        exps(vSC + 4 * n)
        A(f"v_cvt_pk_bf16_f32 v{vPF+2*(n&1)}, v{vE}, v{vE+1}")
        A(f"v_cvt_pk_bf16_f32 v{vPF+2*(n&1)+1}, v{vE+2}, v{vE+3}")
        st["pdone"] = n

    def lsum(sc):
        exps(sc)
        A(f"v_add_f32 v{vLS}, v{vLS}, v{vE}")
        A(f"v_add_f32 v{vLS+1}, v{vLS+1}, v{vE+1}")
        A(f"v_add_f32 v{vLS}, v{vLS}, v{vE+2}")
        A(f"v_add_f32 v{vLS+1}, v{vLS+1}, v{vE+3}")

    def pvg(n, g):
        pf = vPF + 2 * (n & 1)
        for qd in range(4):
            r = vVT + 8 * g + 2 * qd
            A(f"v_mfma_f32_4x4x4_16b_bf16 v[{vACC+4*qd}:{vACC+4*qd+3}], v[{pf}:{pf+1}], v[{r}:{r+1}], " +
              ("0" if n == 0 and g == 0 else f"v[{vACC+4*qd}:{vACC+4*qd+3}]") + f" cbsz:4 abid:{4*g}")

    def pv(n):
        for g in range(4):
            pvg(n, g)

    def c_lwrite():
        A(f"v_add_f32 v{vT+2}, v{vLS}, v{vLS+1}")
        allreduce("v_add_f32", [vT + 2], vT + 4, [16, 32])
        A(f"v_mov_b32 v{vT}, v{vMS}")
        A(f"v_mov_b32 v{vT+1}, 0x{LFLAG:x}")
        A(f"v_mov_b32 v{vT+3}, 0x{LFLAG:x}")
        A(f"s_lshl_b32 {sT[0]}, {sW}, 5")
        A(f"s_add_u32 {sT[0]}, {sT[0]}, {LML}")
        A(f"v_lshlrev_b32 v{vT+4}, 4, {vL}")
        A(f"v_add_u32 v{vT+4}, {sT[0]}, v{vT+4}")
        A("s_mov_b64 exec, 3")
        A(f"ds_write_b128 v{vT+4}, v[{vT}:{vT+3}]")
        A("s_mov_b64 exec, -1")

    def c_mlpub():
        A(f"s_cmp_eq_u32 {sW}, 0")
        A("s_cbranch_scc0 L_nopub")
        A(f"v_and_b32 v{vT+4}, 7, {vL}")
        A(f"v_lshlrev_b32 v{vT+4}, 4, v{vT+4}")
        A(f"v_add_u32 v{vT+4}, {LML}, v{vT+4}")
        A(f"s_mov_b32 {sT[0]}, {spin*4}")
        A("L_lml:")
        A(f"ds_read_b128 v[{vT}:{vT+3}], v{vT+4}")
        A("s_waitcnt lgkmcnt(0)")
        A(f"v_and_b32 v{vT+5}, v{vT+1}, v{vT+3}")
        A(f"v_cmp_ne_u32 vcc, 0x{LFLAG:x}, v{vT+5}")
        A("s_cbranch_vccz L_lmlok")
        A(f"s_sub_u32 {sT[0]}, {sT[0]}, 1")
        A("s_cbranch_scc0 L_lml")
        A("L_lmlok:")
        A(f"v_mov_b32 v{vT+5}, v{vT}")
        allreduce("v_max_f32", [vT + 5], vT + 6, [2, 4])
        A(f"v_sub_f32 v{vT}, v{vT}, v{vT+5}")
        A(f"v_exp_f32 v{vT}, v{vT}")
        A("s_nop 0")
        A(f"v_mul_f32 v{vT+2}, v{vT+2}, v{vT}")
        allreduce("v_add_f32", [vT + 2], vT + 6, [2, 4])
        A(f"v_mov_b32 v{vT}, v{vT+5}")
        A(f"v_mov_b32 v{vT+1}, {sTAG}")
        A(f"v_xor_b32 v{vT+3}, {sXCC}, v{vT+1}")
        A(f"s_lshl_b32 {sT[0]}, {sH}, 10")
        A(f"s_lshl_b32 {sT[1]}, {sP}, 5")
        A(f"s_add_u32 {sT[0]}, {sT[0]}, {sT[1]}")
        A(f"s_add_u32 {sT[0]}, {sT[0]}, {WS_ML}")
        A(f"v_lshlrev_b32 v{vT+4}, 4, {vL}")
        A("s_mov_b64 exec, 3")
        A(f"buffer_store_dwordx4 v[{vT}:{vT+3}], v{vT+4}, {SRD_WS}, {sT[0]} offen sc1")
        A("s_mov_b64 exec, -1")
        A("L_nopub:")

    def c_mlpoll():
        A(f"s_lshl_b32 {sT[8]}, {sH}, 10")
        A(f"s_add_u32 {sT[8]}, {sT[8]}, {WS_ML}")
        A(f"v_lshlrev_b32 v{vT+8}, 4, {vL}")
        st["ml"] = VM(f"buffer_load_dwordx4 v[{vT+12}:{vT+15}], v{vT+8}, {SRD_WS}, {sT[8]} offen sc1")

    def c_mlcheck():
        G = vT + 12
        wait_vm(st["ml"])
        A(f"s_mov_b32 {sT[0]}, {spin}")
        A("L_mlchk:")
        A(f"v_xor_b32 v{vT+9}, {sTAG}, v{G+1}")
        A(f"v_xor_b32 v{vT+10}, {sTAG}, v{G+3}")
        A(f"v_and_or_b32 v{vT+9}, v{vT+10}, -16, v{vT+9}")
        A(f"v_cmp_ne_u32 vcc, 0, v{vT+9}")
        A("s_cbranch_vccz L_mlok")
        A(f"s_sub_u32 {sT[0]}, {sT[0]}, 1")
        A("s_cbranch_scc1 L_mlok")
        A(f"buffer_load_dwordx4 v[{G}:{G+3}], v{vT+8}, {SRD_WS}, {sT[8]} offen sc1")
        A("s_waitcnt vmcnt(0)")
        A("s_branch L_mlchk")
        A("L_mlok:")
        st["mlok"] = True
        A(f"v_cmp_ne_u32 vcc, {sXCC}, v{vT+10}")
        A("s_cmp_eq_u64 vcc, 0")
        A(f"s_cselect_b32 {sLOC}, {1 if local else 0}, 0")
        A(f"v_mov_b32 v{vT+9}, v{G}")
        allreduce("v_max_f32", [vT + 9], vT + 10, [2, 4, 8, 16, 32])

    def c_mlscale():
        G = vT + 12
        A(f"v_sub_f32 v{G}, v{G}, v{vT+9}")
        A(f"v_exp_f32 v{G}, v{G}")
        A("s_nop 0")
        A(f"v_mul_f32 v{G+2}, v{G+2}, v{G}")
        allreduce("v_add_f32", [G + 2], vT + 10, [2, 4, 8, 16, 32])
        A(f"v_log_f32 v{G+2}, v{G+2}")
        A("s_nop 0")
        A(f"v_add_f32 v{vT+9}, v{vT+9}, v{G+2}")
        A(f"v_sub_f32 v{vT+10}, v{vMS}, v{vT+9}")
        A(f"v_exp_f32 v{vT+10}, v{vT+10}")

    def c_rescale():
        A(f"v_mov_b32 v{vMS}, v{vT+9}")
        A("s_nop 0")
        A(f"v_mov_b32_dpp v{vT+2}, v{vT+10} quad_perm:[0,0,0,0] row_mask:0xf bank_mask:0xf")
        A(f"v_mov_b32_dpp v{vT+3}, v{vT+10} quad_perm:[1,1,1,1] row_mask:0xf bank_mask:0xf")
        A("s_nop 4")
        for t in range(4):
            A(f"v_pk_mul_f32 v[{vACC+4*t}:{vACC+4*t+1}], v[{vACC+4*t}:{vACC+4*t+1}], v[{vT+2}:{vT+3}]")

    vWO, vW2 = vSC + 4, vSC + 36

    def issue_weights():
        assert st["pdone"] >= 12 and st.get("tail1")
        if skipw:
            A(f"s_cmp_lt_u32 {sW}, 2")
            A("s_cbranch_scc1 L_skipw")
        for i in range(16):
            hd, k = divmod(i, 8)
            if i % 4 == 0 and i:
                A(f"s_add_u32 {sT[0]}, {sT[0]}, {(252 if i == 8 else 4)*896}")
            r = vWO + 4 * k + 2 * hd
            VM(f"buffer_load_dwordx2 v[{r}:{r+1}], v{vT+16}, {SRD_WO}, {sT[0]} offen offset:{(i%4)*896} {wflags}")
        if w2at is None:
            for i in range(8):
                if i % 4 == 0 and i:
                    A(f"s_add_u32 {sT[1]}, {sT[1]}, {4*896}")
                st["w"] = VM(f"buffer_load_dwordx2 v[{vW2+2*i}:{vW2+2*i+1}], v{vT+16}, {SRD_W2}, {sT[1]} offen offset:{(i%4)*896} {wflags}")
        if skipw:
            A("L_skipw:")
            vm["opt"] = 24 if w2at is None else 16
            vm["optend"] = vm["n"]

    E2 = 144

    def c_w2issue():
        A(f"v_subrev_u32 v{vT}, 128, v0")
        A(f"v_cmp_gt_u32 vcc, 112, v{vT}")
        A(f"v_lshlrev_b32 v{vT+1}, 3, v{vT}")
        A(f"v_bfrev_b32 v{vT+2}, 2")
        A(f"s_mul_i32 {sT[1]}, {sF}, {8*896}")
        A(f"v_cndmask_b32 v11, v{vT+2}, v{vT+1}, vcc")
        for i in range(8):
            if i == 4:
                A(f"s_add_u32 {sT[1]}, {sT[1]}, {4*896}")
            st["w2"] = VM(f"buffer_load_dwordx2 v[{E2+2*i}:{E2+2*i+1}], v11, {SRD_W2}, {sT[1]} offen offset:{(i%4)*896} {wflags}")

    def c_w2use():
        wait_vm(st["w2"])
        A(f"s_mov_b32 {sT[6]}, 0x05040100")
        A(f"s_mov_b32 {sT[7]}, 0x07060302")
        for k in range(4):
            for cp in range(2):
                A(f"v_perm_b32 v{80+4*k+2*cp}, v{E2+4*k+2+cp}, v{E2+4*k+cp}, {sT[6]}")
                A(f"v_perm_b32 v{80+4*k+2*cp+1}, v{E2+4*k+2+cp}, v{E2+4*k+cp}, {sT[7]}")
        for c in range(4):
            A(f"v_mov_b32 v{E2+2*c}, 0")
            A(f"v_mov_b32 v{E2+2*c+1}, {sTAG}")
        A("s_cmp_lt_u32 s2, 224")
        A("s_cbranch_scc0 L_now2")
        for k in range(4):
            for c in range(4):
                A(f"v_dot2_f32_bf16 v{E2+2*c}, v{vH+2*k}, v{80+4*k+c}, v{E2+2*c}")
        A("L_now2:")

    def issue_wdma(k):
        assert st.get("mlok")
        if k == 0:
            A(f"v_lshlrev_b32 v{vMAX}, 4, {vL}")
            A(f"s_lshl_b32 s10, {sH}, 5")
            A(f"s_add_u32 s10, s10, {sP}")
            A(f"s_mul_i32 s10, s10, {16*896}")
            A(f"s_mul_i32 s11, {sF}, {8*896}")
        wo = k < 4
        A(f"s_add_u32 s12, {sW}, {4*k if wo else 4*(k-4)}")
        A(f"s_min_u32 s12, s12, {13 if wo else 6}")
        A("s_lshl_b32 s12, s12, 10")
        A(f"s_add_u32 m0, s12, {STG if wo else STG + 14336}")
        A(f"s_add_u32 s12, s12, {'s10' if wo else 's11'}")
        idx = VM(f"buffer_load_dwordx4 v{vMAX}, {SRD_WO if wo else SRD_W2}, s12 offen {wflags} lds")
        m0bad["v"] = True
        st["w"] = idx
        return idx

    MO = ((2 * S) % R) * tb
    vMW, vMR, vO1, vH1, vH2, vXR, vOO = 6, 8, vT + 4, vT + 5, vT + 6, vT + 7, vT + 11
    sH2 = [f"s{4+k}" for k in range(16)]
    sP1, sP2, sCONS = "s68", "s69", "s70"

    def c_tail1():
        st["tail1"] = True
        A(f"s_add_u32 {sT[2]}, {sRING}, {MO}")
        A(f"v_lshlrev_b32 v{vMW}, 4, {vL}")
        A(f"v_add_u32 v{vMW}, {sT[2]}, v{vMW}")
        A(f"v_lshlrev_b32 v{vMR}, 4, {vL}")
        A(f"v_add_u32 v{vMR}, {MO}, v{vMR}")
        A(f"v_add_u32 v{vMR+1}, {2*R*tb}, v{vMR}")
        A(f"s_lshl_b32 {sP1}, {sH}, 5")
        A(f"s_add_u32 {sP1}, {sP1}, {sP}")
        A(f"s_lshl_b32 {sT[0]}, {sH}, 6")
        A(f"s_add_u32 {sT[0]}, {sT[0]}, {sP}")
        A(f"s_mul_i32 {sT[0]}, {sT[0]}, {8*896}")
        A(f"s_mul_i32 {sT[1]}, {sF}, {8*896}")
        A(f"s_lshl_b32 {sP1}, {sP1}, 12")
        A(f"s_add_u32 {sP1}, {sP1}, {WS_P1O}")
        A(f"v_lshlrev_b32 v{vO1}, 4, {vL}")
        for k in range(1, 16, 2):
            A(f"v_mov_b32 v{64+k}, {sTAG}")
        A(f"v_subrev_u32 v{vT}, 128, v0")
        A(f"v_cmp_gt_u32 vcc, 112, v{vT}")
        A(f"v_lshlrev_b32 v{vT+1}, 3, v{vT}")
        A(f"v_lshlrev_b32 v{vOO}, 4, v{vT}")
        A(f"v_bfrev_b32 v{vT+2}, 2")
        A(f"v_cndmask_b32 v{vT+16}, v{vT+2}, v{vT+1}, vcc")
        A(f"v_cndmask_b32 v{vOO}, v{vT+2}, v{vOO}, vcc")

    def c_tail2():
        A(f"v_lshrrev_b32 v{vT}, 3, {vL}")
        A(f"v_and_b32 v{vT+1}, 7, {vL}")
        A(f"v_lshlrev_b32 v{vT+1}, 4, v{vT+1}")
        A(f"v_lshl_add_u32 v{vH1}, v{vT}, 12, v{vT+1}")
        A(f"s_lshl_b32 {sT[2]}, {sH}, 17")
        A(f"s_lshl_b32 {sT[3]}, {sP}, 7")
        A(f"s_add_u32 {sT[2]}, {sT[2]}, {sT[3]}")
        A(f"s_add_u32 {sT[2]}, {sT[2]}, {WS_P1O}")
        for k in range(1, 4):
            A(f"s_add_u32 {sT[2+k]}, {sT[2]}, {k*32768}")
        A(f"s_lshl_b32 {sP2}, {sH}, 5")
        A(f"s_add_u32 {sP2}, {sP2}, {sP}")
        A(f"s_mul_i32 {sP2}, {sP2}, 3584")
        A(f"s_add_u32 {sP2}, {sP2}, {WS_P2}")
        A(f"v_mul_u32_u24 v{vT}, 3584, v{vT}")
        A(f"v_add_u32 v{vH2}, v{vT}, v{vT+1}")
        A(f"s_min_u32 {sT[6]}, {sP}, 27")
        A(f"s_lshl_b32 {sT[7]}, {sT[6]}, 7")
        A(f"s_mul_i32 {sH2[0]}, {sH}, {32*3584}")
        A(f"s_add_u32 {sH2[0]}, {sH2[0]}, {sT[7]}")
        A(f"s_add_u32 {sH2[0]}, {sH2[0]}, {WS_P2}")
        for k in range(1, 4):
            A(f"s_add_u32 {sH2[k]}, {sH2[0]}, {k*8*3584}")
        A(f"s_lshl_b32 {sH2[4]}, {sT[6]}, 3")
        A(f"s_add_u32 {sH2[4]}, {sH2[4]}, {sH}")
        A(f"s_lshl_b32 {sH2[4]}, {sH2[4]}, 7")
        A(f"s_add_u32 {sH2[4]}, {sH2[4]}, {WS_P3}")
        A(f"s_sub_u32 {sT[6]}, s2, 224")
        A(f"s_cmp_lt_u32 {sT[6]}, 28")
        A(f"s_cselect_b32 {sCONS}, 1, 0")
        A(f"s_cselect_b32 {sT[6]}, {sT[6]}, 0")
        A(f"s_lshl_b32 {sH2[5]}, {sT[6]}, 10")
        A(f"s_add_u32 {sH2[5]}, {sH2[5]}, {WS_P3}")
        A(f"s_cmp_ge_u32 {sT[6]}, 14")
        A(f"s_cselect_b32 {sT[8]}, {4 - 14*64}, 0")
        A(f"s_lshl_b32 {sT[6]}, {sT[6]}, 6")
        A(f"s_add_u32 {sT[6]}, {sT[6]}, {sT[8]}")
        A(f"v_lshrrev_b32 v{vT+1}, 1, v{vT+1}")
        A(f"v_add_u32 v{vT+17}, {sT[6]}, v{vT+1}")
        if pre1 is not None or pre2 is not None:
            A(f"s_lshl_b32 {sT[8]}, {sW}, 10")
            A(f"v_lshlrev_b32 v{vT}, 4, v0")
        if pre1 is not None:
            A(f"s_lshl_b32 {sT[7]}, {sW}, 11")
            A(f"s_sub_u32 {sT[7]}, {sP1}, {sT[7]}")
            if pre1.startswith("ld"):
                VM(f"buffer_load_dwordx4 v[{vT+12}:{vT+15}], v{vT}, {SRD_WS}, {sT[7]} offen {pre1[2:]}")
            else:
                for k in range(4):
                    A(f"v_mov_b32 v{vT+12+k}, 0")
                A(f"v_not_b32 v{vT+13}, {sTAG}")
                A(f"v_not_b32 v{vT+15}, {sTAG}")
                VM(f"buffer_store_dwordx4 v[{vT+12}:{vT+15}], v{vT}, {SRD_WS}, {sT[7]} offen {pre1[2:]}")
        if pre2 is not None:
            VM(f"buffer_load_dwordx4 v[{vT+12}:{vT+15}], v{vT}, {SRD_WS}, {sP2} offen {pre2[2:]}")

    PW, PW2, Y = vSC, vSC + 32, (vSC + 48 if w2at is None else E2)

    def c_wprep():
        assert st["pdone"] >= 13
        if wdma or wlate:
            if wlate:
                A("s_waitcnt vmcnt(4)")
                A("s_barrier")
            else:
                assert lateprep and st["w"] <= vm["known"]
            A(f"v_subrev_u32 v{vT+16}, 128, v0")
            A(f"v_min_u32 v{vT+16}, 111, v{vT+16}")
            A(f"v_lshlrev_b32 v{vT+16}, 3, v{vT+16}")
            A(f"v_add_u32 v{vT+16}, {STG}, v{vT+16}")
            for i in range(24):
                A(f"ds_read_b64 v[{vWO+2*i}:{vWO+2*i+1}], v{vT+16} offset:{i*896}")
            A("s_waitcnt lgkmcnt(0)")
        elif lateprep:
            A("s_waitcnt vmcnt(4)")
        else:
            wait_vm(st["w"])
            A(f"s_cmp_lt_u32 {sW}, 2")
            A("s_cbranch_scc1 L_noprep")
        A(f"s_mov_b32 {sT[6]}, 0x05040100")
        A(f"s_mov_b32 {sT[7]}, 0x07060302")
        for k in range(12 if w2at is None else 8):
            for cp in range(2):
                A(f"v_perm_b32 v{PW+4*k+2*cp}, v{vWO+4*k+2+cp}, v{vWO+4*k+cp}, {sT[6]}")
                A(f"v_perm_b32 v{PW+4*k+2*cp+1}, v{vWO+4*k+2+cp}, v{vWO+4*k+cp}, {sT[7]}")
        if w2at is not None:
            return
        for c in range(4):
            A(f"v_mov_b32 v{Y+2*c}, 0")
            A(f"v_mov_b32 v{Y+2*c+1}, {sTAG}")
        A("s_cmp_lt_u32 s2, 224")
        A("s_cbranch_scc0 L_noprep")
        for k in range(4):
            for c in range(4):
                A(f"v_dot2_f32_bf16 v{Y+2*c}, v{vH+2*k}, v{PW2+4*k+c}, v{Y+2*c}")
        A("L_noprep:")

    def do_touch():
        A(f"s_lshl_b32 {sT[8]}, {sW}, 15")
        A(f"s_add_u32 {sT[8]}, {sT[8]}, {sT[2]}")
        if touch == "sc1":
            VM(f"buffer_load_dword v{vT+12}, v{vH1}, {SRD_WS}, {sT[8]} offen sc1")
        elif touch == "one":
            VM(f"buffer_load_dword v{vT+12}, off, {SRD_WS}, {sT[2]} sc1")
        else:
            A(f"s_cmp_eq_u32 {sLOC}, 1")
            A("s_cbranch_scc0 L_tfar")
            A(f"buffer_load_dword v{vT+12}, v{vH1}, {SRD_WS}, {sT[8]} offen")
            A("s_branch L_tdone")
            A("L_tfar:")
            VM(f"buffer_load_dword v{vT+12}, v{vH1}, {SRD_WS}, {sT[8]} offen sc1")
            A("L_tdone:")
        if touch2:
            A(f"s_mul_i32 {sT[8]}, {sW}, {8*3584}")
            A(f"s_add_u32 {sT[8]}, {sT[8]}, {sH2[0]}")
            VM(f"buffer_load_dword v{vT+13}, v{vH2}, {SRD_WS}, {sT[8]} offen sc1")

    def do_wtlb():
        VM(f"buffer_load_dword v{vT+14}, off, {SRD_WO}, {sT[0]} nt")
        VM(f"buffer_load_dword v{vT+15}, off, {SRD_W2}, {sT[1]} nt")

    def c_rkprobe(c):
        A(f"s_cmp_eq_u32 {sW}, {rkw}")
        A(f"s_cbranch_scc0 L_rkp{c}")
        A(f"s_lshl_b32 s18, {sH}, 7")
        A(f"s_add_u32 s18, s18, {WS_RK + c*1024}")
        A(f"s_lshl_b32 s19, {sP}, 2")
        A(f"s_add_u32 s19, s19, s18")
        A(f"v_lshlrev_b32 v{vT+18}, 2, {vL}")
        A(f"v_mov_b32 v{vT+19}, {sTAG}")
        A("s_mov_b32 exec_hi, 0")
        A(f"buffer_load_dword v255, v{vT+18}, {SRD_WS}, s18 offen sc1")
        A("s_mov_b32 exec_lo, 1")
        A(f"buffer_store_dword v{vT+19}, off, {SRD_WS}, s19")
        A("s_mov_b64 exec, -1")
        A(f"L_rkp{c}:")
        st["rk_n"] = vm["n"]

    def c_rkdecide(c, L, k=None):
        _, hi, gh, lo, gl = ctl[c]
        if k is None:
            A(f"s_cmp_eq_u32 {sW}, {rkw}")
            A(f"s_cbranch_scc0 L_rkd{c}")
            A(f"v_cmp_eq_u32 vcc, {sTAG}, v255")
            A("s_bcnt1_i32_b32 s18, vcc_lo")
        else:
            A(f"s_cmp_eq_u32 s14, {k}")
            c = f"{c}_{k}"
            A(f"s_cbranch_scc0 L_rkd{c}")
        A(f"s_sub_u32 {sWE}, s18, {hi}")
        A(f"s_mul_i32 {sWE}, {sWE}, {gh}")
        A(f"s_add_u32 {sWE}, {sWE}, {L + 5}")
        A(f"s_cmp_gt_u32 s18, {hi}")
        A(f"s_cselect_b32 {sWE}, {sWE}, 0")
        if N2:
            A(f"s_sub_u32 {sNE}, s18, {lo}")
            A(f"s_mul_i32 {sNE}, {sNE}, {gl}")
            A(f"s_add_u32 {sNE}, {sNE}, {L + 5}")
            A(f"s_cmp_gt_u32 s18, {lo}")
            A(f"s_cselect_b32 {sNE}, {sNE}, 0")
        elif lo:
            A(f"s_min_u32 {sNE}, s18, {lo}")
            A(f"s_sub_u32 {sNE}, {lo}, {sNE}")
            A(f"s_mul_i32 {sNE}, {sNE}, {gl}")
            A(f"s_add_u32 {sNE}, {sNE}, {L + 5}")
            A(f"s_cmp_lt_u32 s18, {lo}")
            A(f"s_cselect_b32 {sNE}, {sNE}, 0")
        else:
            A(f"s_mov_b32 {sNE}, 0")
        A(f"v_mov_b32 v{vT+18}, {sWE}")
        A(f"v_mov_b32 v{vT+19}, {sNE}")
        A(f"ds_write_b64 v254, v[{vT+18}:{vT+19}]")
        A(f"L_rkd{c}:")
        st["rk_on"] = True

    def c_last():
        slot = ((2 * S - 1) % R) * tb
        tile_stamp_a()
        for g in range(4):
            wait_vm(lidx[NL - T + 2 * g + 1])
            read_vg(slot, g)
            if g:
                A("s_waitcnt lgkmcnt(4)")
                pvg(S - 1, g - 1)
        A("s_waitcnt lgkmcnt(0)")
        pvg(S - 1, 3)
        if stamps:
            lds_wait(True)
        stamp()
        A("s_nop 1")
        A("s_nop 0")
        for hf in range(2):
            r = vACC + 8 * hf
            A(f"ds_write2_b64 v{vMW}, v[{r}:{r+1}], v[{r+4}:{r+5}] offset0:{128*hf} offset1:{128*hf+1}")
            if hf == 0:
                A("s_nop 0")

    chunks = []
    C = lambda fn, need=None, free=None: chunks.append((need, free, fn))
    backlog = list(range(NB))
    for n in range(S):
        slot = (n % R) * tb
        if n < NB:
            C(lambda n=n, slot=slot: read_k(32 * n, slot, True), need=n)
            C(lambda: lds_wait(True), free=n)
            if n == NP:
                C(c_qpoll)
            if n == NB - 1:
                C(c_qcheck)
                C(c_qread)
        else:
            C(lambda slot=slot: read_k(vTL, slot), need=n)
            C(lambda: (lds_wait(True), qk_mfma(vTL, False)), free=n)
            C(lambda n=n: qk_post(vSC + 4 * n))
            for _ in range(2):
                if backlog:
                    m = backlog.pop(0)
                    C(lambda m=m: qk_mfma(32 * m, True))
                    C(lambda m=m: qk_post(vSC + 4 * m))
    assert not backlog
    C(c_kmax)
    lq = list(range(S))
    assert vgat % 2 == 1 and vpub % 2 == 1
    for n in range(S):
        j = S + n
        slot = (j % R) * tb
        if n == vgat + 3:
            C(c_rescale)
        if n == S - 2:
            C(lambda: make_p(S - 2))
            C(lambda: make_p(S - 1))
            if not lateprep:
                C(c_wprep)
        elif n < S - 2:
            C(lambda n=n: make_p(n))
        if n < S - 1:
            C(lambda slot=slot, n=n: read_v(slot, n & 1), need=j)
        if tat == j:
            C(do_touch)
        if wat == j:
            C(issue_weights)
        if n == S - 1:
            C(c_last, need="issued")
        else:
            C(lambda n=n: (lds_wait(True), pv(n)), free=j)
        for _ in range(3 if n % 2 == 0 else 2):
            if lq:
                m0, m1 = lq.pop(0), lq.pop(0)
                C(lambda m0=m0, m1=m1: (lsum(vSC + 4 * m0), lsum(vSC + 4 * m1)))
                if not lq:
                    C(c_lwrite)
        if w2at == j:
            C(c_w2issue)
        if w2at is not None and w2at + 2 == j:
            C(c_w2use)
        if n == vpub:
            assert not lq
            C(c_mlpub)
        if n == vgat:
            C(c_mlpoll)
        if n == vgat + 1:
            C(c_mlcheck)
            C(c_mlscale)
        if n == vgat + 3:
            C(c_tail1)
            C(c_tail2)

    freed = set()

    def emit_chunk(q, block):
        need, free, fn = q[0]
        if need == "issued":
            if not block:
                return False
        elif need is not None:
            last = need * T + T - 1
            if last not in lidx:
                assert not block
                return False
            if lidx[last] > vm["known"]:
                if not block:
                    return False
                wait_vm(lidx[last])
        q.pop(0)
        fn()
        if free is not None:
            freed.add(free)
        return True

    def tagfix():
        A("s_waitcnt lgkmcnt(0)")
        A(f"s_mul_i32 {sTAG}, {sTAG}, 1664525")
        A(f"s_add_u32 {sTAG}, {sTAG}, 1013904223")

    def stream(L0, L1, win, q, paced):
        for L in range(L0, L1):
            j, i = divmod(L, T)
            st["L"] = L
            Nw = win(L)
            if ext and X * T <= L < ext[0] and Nw < ext[1]:
                wait_vm(paced[-ext[1]])
                A(f"s_cmp_lt_u32 {sZ}, 92")
                A(f"s_cbranch_scc1 L_x{L}")
                A(f"s_waitcnt vmcnt({vm['n'] - paced[-Nw]})")
                A(f"L_x{L}:")
            elif st.get("rk_on") and Nw <= N + 1:
                if N2:
                    wait_vm(paced[-(Nw + N2 - N)])
                    A(f"s_cmp_gt_u32 {sNE}, {L}")
                    A(f"s_cbranch_scc1 L_x{L}")
                    A(f"s_waitcnt vmcnt({vm['n'] - paced[-(Nw + Nhi - N)]})")
                else:
                    wait_vm(paced[-(Nw + Nhi - N)])
                A(f"s_cmp_gt_u32 {sWE}, {L}")
                A(f"s_cbranch_scc1 L_x{L}")
                A(f"s_waitcnt vmcnt({vm['n'] - paced[-Nw]})")
                if not N2 and (any(r[3] for r in ctl) or (iw and iw[2])):
                    A(f"s_cmp_gt_u32 {sNE}, {L}")
                    A(f"s_cbranch_scc0 L_x{L}")
                    A(f"s_waitcnt vmcnt({vm['n'] - paced[-Nlo]})")
                A(f"L_x{L}:")
            elif len(paced) >= Nw:
                wait_vm(paced[-Nw])
            if L == NL - tail - T:
                st["rk_off"] = True
            if i == 0 and j >= R:
                while (j - R) not in freed:
                    emit_chunk(q, True)
            issue_load(L)
            paced.append(lidx[L])
            if iw and "tc" in st and not st.get("rk_off") and not st.get("rk_rd"):
                A(f"v_mov_b32 v{vPD}, {L}")
                A(f"ds_write_b32 v{vPW}, v{vPD}")
                st["iw_last"] = L
            if L == NL - 1 - tpos and touch is not None and tat is None:
                do_touch()
                if wtlb:
                    do_wtlb()
            if L == NL - 1 - wpos and not now and not wearly and not wafter and wat is None and not wdma and wlate is None:
                issue_weights()
            if wdma and L >= wdma[0] and (L - wdma[0]) % wdma[1] == 0 and (L - wdma[0]) // wdma[1] < 6:
                if wdma[2]:
                    wait_vm(paced[-Nw])
                    paced.append(issue_wdma((L - wdma[0]) // wdma[1]))
                else:
                    issue_wdma((L - wdma[0]) // wdma[1])
            did = False
            for c, r_ in enumerate(rk):
                if L == r_[0] and not st.get("rk_rd"):
                    c_rkprobe(c)
                    st["rk_pend"] = c
                    did = True
                elif L == r_[0]:
                    raise AssertionError("probe between a tile read and its wait")
            if st.get("rk_pend") is not None and vm["known"] > st["rk_n"] and not st.get("rk_rd") and not did:
                c_rkdecide(st["rk_pend"], L)
                st["rk_pend"] = None
                did = True
            if q and not did and (L < NL - tail or Nend <= N + 2):
                emit_chunk(q, False)

    def win_main(L):
        Nw = Nend if L >= NL - tail else N
        if kopen and NL // 2 - kopen[0] <= L < NL // 2:
            Nw = kopen[1]
        for b_ in bump:
            if b_[0] <= L < b_[1]:
                Nw = b_[2]
        if alt and Nw == N and (L // alt[1]) % alt[2] == (alt[3] if len(alt) > 3 else 0):
            Nw = alt[0]
        return Nw

    split = next(k for k, ch in enumerate(chunks) if ch[0] == X - 1)
    head_chunks, rest = chunks[:split], chunks[split:]
    assert X - 1 <= NP
    ends = []
    for path in ("n", "p"):
        vm.update(n=0, known=0)
        lidx.clear()
        freed.clear()
        paced = []
        stg = {"i": 0}

        def issue_stg():
            i = stg["i"]
            if rot:
                if i == 0:
                    A(f"s_mul_i32 {sT[3]}, {sZ}, 4682")
                    A(f"s_lshr_b32 {sT[3]}, {sT[3]}, 16")
                    A(f"s_mul_i32 {sT[3]}, {sT[3]}, 14")
                    A(f"s_sub_u32 {sT[3]}, {sZ}, {sT[3]}")
                else:
                    A(f"s_add_u32 {sT[3]}, {sT[3]}, 1")
                    A(f"s_cmp_eq_u32 {sT[3]}, 14")
                    A(f"s_cselect_b32 {sT[3]}, 0, {sT[3]}")
                A(f"s_lshl_b32 {sT[9]}, {sT[3]}, 10")
                A(f"s_add_u32 m0, {sT[6]}, {sT[9]}")
                A(f"s_mul_i32 {sT[9]}, {sT[3]}, {sT[4]}")
                A(f"s_add_u32 {sT[9]}, {sT[9]}, {sT[5]}")
                st["stg"] = VM(f"buffer_load_dwordx4 v21, {SRD_W}, {sT[9]} offen {wflags} lds")
            else:
                A(f"s_add_u32 m0, {sT[6]}, {i*1024}")
                if i:
                    A(f"s_add_u32 {sT[5]}, {sT[5]}, {sT[4]}")
                else:
                    A("s_nop 0")
                st["stg"] = VM(f"buffer_load_dwordx4 v21, {SRD_W}, {sT[5]} offen {wflags} lds")
            paced.append(st["stg"])
            stg["i"] += 1
            m0bad["v"] = True
        if path == "n":
            common0()
            A("s_waitcnt lgkmcnt(0)")
            if diag == 6:
                A("s_memrealtime s[86:87]")
            for L in range(N0):
                issue_load(L)
                paced.append(lidx[L])
            srd(52, 4, 896)
            common1()
            setup()
            if wearly:
                issue_weights()
            if ra:
                A(f"s_lshl_b32 {sT[2]}, s2, 2")
                A(f"s_add_u32 {sT[2]}, {sT[2]}, {sW}")
                A(f"s_cmp_eq_u32 {sT[2]}, 1023")
                A("s_cbranch_scc0 L_noclear")
                A(f"v_mul_u32_u24 v29, 4352, {vL}")
                A("v_mov_b32 v30, 0")
                A(f"s_mov_b32 {sT[2]}, {WS_CNT}")
                A(f"buffer_store_dword v30, v29, {SRD_WS}, {sT[2]} offen sc0 sc1")
                if len(ra) * ng > 64:
                    A(f"s_add_u32 {sT[2]}, {sT[2]}, {64*4352}")
                    A(f"buffer_store_dword v30, v29, {SRD_WS}, {sT[2]} offen sc0 sc1")
                A("s_waitcnt vmcnt(0) lgkmcnt(0)")
                A(f"s_mul_i32 {sT[2]}, {sTAG}, 1664525")
                A(f"s_add_u32 {sT[2]}, {sT[2]}, 1013904223")
                A(f"v_mov_b32 v30, {sT[2]}")
                A(f"s_mov_b32 {sT[2]}, {WS_RDY}")
                A("s_mov_b64 exec, 1")
                A(f"buffer_store_dword v30, off, {SRD_WS}, {sT[2]} sc1")
                A("s_mov_b64 exec, -1")
                A("L_noclear:")
            if diag == 5:
                A(f"s_waitcnt vmcnt({N0-1})")
                A("s_memrealtime s[86:87]")
            q = list(head_chunks) + [(None, None, tagfix)]
            stream(N0, X * T, (lambda L: nn[1] if nn and L < nn[0] else win_main(L)), q, paced)
        else:
            A("L_producer:")
            common0()
            producer0()
            st["x"] = VM(f"buffer_load_dwordx4 v[{vT}:{vT+3}], v29, {SRD_X}, 0 offen")
            A(f"s_mov_b32 m0, {sT[6]}")
            A("L_stg:")
            A(f"s_sub_u32 {sT[3]}, {sT[3]}, 1")
            A(f"buffer_load_dwordx4 v21, {SRD_W}, {sT[5]} offen {wflags} lds")
            A(f"s_add_u32 {sT[5]}, {sT[5]}, {sT[4]}")
            A("s_add_u32 m0, m0, 1024")
            A(f"s_cmp_lg_u32 {sT[3]}, 0")
            A("s_cbranch_scc1 L_stg")
            for _ in range(14):
                vm["n"] += 1
                st["stg"] = vm["n"]
                paced.append(vm["n"])
            for L in range(B0):
                issue_load(L)
                paced.append(lidx[L])
                if il and L % il == il - 1:
                    issue_stg()
            common1()
            setup()
            if wearly == 1:
                issue_weights()
            if not il:
                for fn in side_chunks[:4]:
                    fn()
                q = [(None, None, fn) for fn in side_chunks[4:]] + list(head_chunks) + [(None, None, tagfix)]
                stream(B0, X * T, lambda L: Np if L < Xp else N, q, paced)
            else:
                Ls = 14 * il
                q = [(None, None, fn) for fn in side_chunks[:5]] + list(head_chunks)
                for L in range(B0, Ls):
                    stream(L, L + 1, lambda L: Np, q, paced)
                    if L % il == il - 1:
                        if len(paced) >= Np:
                            wait_vm(paced[-Np])
                        issue_stg()
                w2 = Np2 or N
                L = Ls
                while st["stg"] > vm["known"]:
                    stream(L, L + 1, lambda L: w2, q, paced)
                    L += 1
                assert all(ch[2] not in side_chunks for ch in q)
                if q and q[0][1] is not None:
                    emit_chunk(q, True)
                q = [(None, None, fn) for fn in side_chunks[5:]] + ([(None, None, issue_weights)] if wearly == 2 else []) + q + [(None, None, tagfix)]
                stream(L, X * T, lambda L: w2 if L < Xp else N, q, paced)
        while q:
            emit_chunk(q, True)
        known_L = max([L for L in lidx if lidx[L] <= vm["known"]] + [-1])
        ends.append(({L: vm["n"] - lidx[L] for L in range(X * T - 16, X * T)}, known_L, set(freed)))
        if path == "n":
            A("s_branch L_join")
    for _ in range(pad):
        A("s_nop 0")
    A("L_join:")
    if diag == 2:
        A("s_memrealtime s[86:87]")
    st["tc"] = X - 1
    if iw:
        assert not rk
        st["rk_on"] = True
    stamp(1)
    assert ends[0][0] == ends[1][0] and ends[0][2] == ends[1][2], ends
    vm["known"] = lidx[min(ends[0][1], ends[1][1])]
    stream(X * T, NL, win_main, rest, [lidx[L] for L in range(X * T - 16, X * T)])
    while rest:
        emit_chunk(rest, True)

    def gather4(lbl, base, voff, soffs, d0, d1, first_issued, slp):
        def loads(set_):
            for k in range(4):
                r = base + 16 * set_ + 4 * k
                A(f"buffer_load_dwordx4 v[{r}:{r+3}], v{voff}, {SRD_WS}, {soffs[k]} offen sc1")

        def sums(r):
            A(f"v_add_f32 v{d0}, v{r}, v{r+4}")
            A(f"v_add_f32 v{d1}, v{r+2}, v{r+6}")
            A(f"v_add_f32 v{r+8}, v{r+8}, v{r+12}")
            A(f"v_add_f32 v{r+10}, v{r+10}, v{r+14}")
            A(f"v_add_f32 v{d0}, v{d0}, v{r+8}")
            A(f"v_add_f32 v{d1}, v{d1}, v{r+10}")
        if not first_issued:
            loads(0)
        if dry:
            A("s_mov_b64 exec, 0")
            A(f"s_branch L_{lbl}ok")
            A(f"L_{lbl}back:")
            A("s_mov_b64 exec, -1")
        A(f"L_{lbl}:")
        nset = 2 if pipe else 1
        for set_ in range(nset):
            r = base + 16 * set_
            if pipe:
                loads(1 - set_)
                A("s_waitcnt vmcnt(4)")
            else:
                A("s_waitcnt vmcnt(0)")
            tagcheck([r + 1 + 2 * i for i in range(8)], vT + 2, vT + 3)
            if pipe:
                sums(r)
            A(f"s_cbranch_vccz L_{lbl}ok")
        A(f"s_sub_u32 {sT[9]}, {sT[9]}, 1")
        if pipe:
            A(f"s_cbranch_scc0 L_{lbl}")
        else:
            A(f"s_cbranch_scc1 L_{lbl}ok")
            if slp:
                A(f"s_sleep {slp}")
            loads(0)
            A(f"s_branch L_{lbl}")
        A(f"L_{lbl}ok:")
        if not pipe:
            sums(base)

    O4, G = 32, 64
    if diag == 4:
        A("s_memrealtime s[86:87]")
    A(f"s_cmp_eq_u32 {sW}, 1")
    A("s_waitcnt lgkmcnt(0)")
    A("s_barrier")
    A("s_cbranch_scc0 L_not1")
    for hf in range(2):
        for k, w in enumerate((0, 2, 3)):
            r = O4 + 12 * hf + 4 * k
            A(f"ds_read_b128 v[{r}:{r+3}], v{vMR+w//2} offset:{(w%2)*R*tb + hf*1024}")
    A(f"s_cmp_eq_u32 {sLOC}, 1")
    A("s_cbranch_scc0 L_far1")
    for far in (0, 1):
        if far:
            A("L_far1:")
        for qd in range(4):
            r = O4 + 12 * (qd >> 1) + 2 * (qd & 1)
            own = vACC + 4 * qd
            if qd % 2 == 0:
                A(f"s_waitcnt lgkmcnt({3 - 3*(qd >> 1)})")
            A(f"v_pk_add_f32 v[{r}:{r+1}], v[{r}:{r+1}], v[{own}:{own+1}]")
            A(f"v_pk_add_f32 v[{r+4}:{r+5}], v[{r+4}:{r+5}], v[{r+8}:{r+9}]")
            A(f"v_add_f32 v{G+4*qd}, v{r}, v{r+4}")
            A(f"v_add_f32 v{G+4*qd+2}, v{r+1}, v{r+5}")
            A(f"buffer_store_dwordx4 v[{G+4*qd}:{G+4*qd+3}], v{vO1}, {SRD_WS}, {sP1} offen offset:{qd*1024}" + (" sc1" if far else ""))
        if stamps:
            A("s_memrealtime s[94:95]")
        if wlate:
            A("s_waitcnt vmcnt(4)")
            A("s_barrier")
        A("s_branch L_leave")
    nstamp["n"] += 1 if stamps else 0
    A("L_not1:")
    A(f"s_cmp_ge_u32 {sW}, 2")
    A("s_cbranch_scc1 L_bwave")
    if wlate:
        A("s_waitcnt vmcnt(0)")
        A("s_barrier")
    A(f"s_mov_b32 {sT[9]}, {spin}")
    A(f"s_cmp_lt_u32 {sP}, 28")
    A("s_cbranch_scc0 L_final")

    YG = 112
    if gateA:
        A("s_barrier")
    gather4("h2", YG, vH2, sH2, G, G + 2, False, sleep2)
    if stamps:
        A("s_memrealtime s[96:97]")
    allreduce("v_add_f32", [G, G + 2], vT, [8, 16, 32])
    if dry:
        A("s_cbranch_execz L_h2back")
    A("s_mov_b64 exec, 0xff")
    A(f"buffer_store_dwordx4 v[{G}:{G+3}], v{vO1}, {SRD_WS}, {sH2[4]} offen {st3}")
    A("s_branch L_done")

    A("L_final:")
    A(f"s_cmp_eq_u32 {sCONS}, 1")
    A("s_cbranch_scc0 L_done")
    if dry:
        A("s_mov_b64 exec, 0")
        A("s_branch L_h3ok")
        A("L_h3back:")
        A("s_mov_b64 exec, -1")
    A("s_barrier")
    A(f"buffer_load_dword v{vXR}, v{vT+17}, {SRD_X}, 0 offen")
    if outpf:
        A(f"buffer_load_dword v{vT+12}, v{vT+17}, {SRD_OUT}, 0 offen")
        if epfl != "sc1":
            A(f"buffer_load_dword v{vT+13}, off, {SRD_WS}, 0")
    for d in range(depth3 - 1):
        A(f"buffer_load_dwordx4 v[{YG+4*d}:{YG+4*d+3}], v{vO1}, {SRD_WS}, {sH2[5]} offen {ld3}")
    A("L_h3:")
    for d in range(depth3):
        n = (d + depth3 - 1) % depth3
        A(f"buffer_load_dwordx4 v[{YG+4*n}:{YG+4*n+3}], v{vO1}, {SRD_WS}, {sH2[5]} offen {ld3}")
        A(f"s_waitcnt vmcnt({depth3 - 1})")
        A(f"v_mov_b32 v{G}, v{YG+4*d}")
        A(f"v_mov_b32 v{G+2}, v{YG+4*d+2}")
        tagcheck([YG + 4 * d + 1, YG + 4 * d + 3], vT, vT + 1)
        A("s_cbranch_vccz L_h3ok")
    A(f"s_sub_u32 {sT[9]}, {sT[9]}, 1")
    A("s_cbranch_scc0 L_h3")
    A("L_h3ok:")
    if stamps:
        A("s_memrealtime s[98:99]")
    allreduce("v_add_f32", [G, G + 2], vT, [8, 16, 32])
    A(f"v_lshlrev_b32 v{vT+2}, 16, v{vXR}")
    A(f"v_and_b32 v{vT+3}, 0xffff0000, v{vXR}")
    A(f"v_add_f32 v{G}, v{G}, v{vT+2}")
    A(f"v_add_f32 v{G+2}, v{G+2}, v{vT+3}")
    if dry:
        A("s_cbranch_execz L_h3back")
    A("s_mov_b64 exec, 0xff")
    A(f"v_cvt_pk_bf16_f32 v{G}, v{G}, v{G+2}")
    A(f"buffer_store_dword v{G}, v{vT+17}, {SRD_OUT}, 0 offen {outfl}")
    if diag:
        if diag == 1:
            A("s_memrealtime s[86:87]")
        A("s_memrealtime s[88:89]")
        A("s_waitcnt lgkmcnt(0)")
        A("s_sub_u32 s86, s86, s84")
        A(f"s_mul_i32 s86, s86, {dmul}")
        A("s_add_u32 s86, s86, s88")
        A("L_diag:")
        A("s_memrealtime s[88:89]")
        A("s_waitcnt lgkmcnt(0)")
        A("s_sub_u32 s90, s88, s86")
        A("s_cmp_lt_i32 s90, 0")
        A("s_cbranch_scc1 L_diag")
    A("s_cmp_eq_u32 s2, 224")
    A("s_cbranch_scc0 L_done")
    A("s_mov_b64 exec, 1")
    A(f"buffer_store_dword v{G+1}, off, {SRD_WS}, 0 {epfl}")
    A("s_branch L_done")

    A("L_bwave:")
    if wafter:
        issue_weights()
    OG = 112

    def hop1_loads(fl="sc1"):
        for k in range(4):
            A(f"buffer_load_dwordx4 v[{OG+4*k}:{OG+4*k+3}], v{vH1}, {SRD_WS}, {sT[2+k]} offen {fl}")
    if plain1:
        A(f"s_cmp_eq_u32 {sLOC}, 1")
        A("s_cbranch_scc0 L_h1far")
        hop1_loads("")
        A("s_branch L_h1first")
        A("L_h1far:")
    hop1_loads()
    A("L_h1first:")
    if lateprep:
        c_wprep()
    A(f"s_mov_b32 {sT[9]}, {spin}")
    oa, ob = vT, vT + 1
    gather4("h1", OG, vH1, sT[2:6], oa, ob, True, sleep1)
    stamp()
    allreduce("v_add_f32", [oa, ob], vT + 2, [8, 16, 32])
    A(f"v_cvt_pk_bf16_f32 v{oa}, v{oa}, v{ob}")
    A("s_nop 0")
    for k in range(8):
        A(f"v_readlane_b32 s{10+k}, v{oa}, {k}")
    for cp in range(2):
        for k in range(8):
            for c in (2 * cp, 2 * cp + 1):
                A(f"v_dot2_f32_bf16 v{Y+2*c}, s{10+k}, v{PW+4*k+c}, v{Y+2*c}")
    if dry:
        A("s_cbranch_execz L_h1back")
    A(f"s_cmp_eq_u32 {sLOC}, 1")
    A("s_cbranch_scc0 L_far2")
    A(f"buffer_store_dwordx4 v[{Y}:{Y+3}], v{vOO}, {SRD_WS}, {sP2} offen")
    A(f"buffer_store_dwordx4 v[{Y+4}:{Y+7}], v{vOO}, {SRD_WS}, {sP2} offen offset:1792")
    A("s_branch L_sent2")
    A("L_far2:")
    A(f"buffer_store_dwordx4 v[{Y}:{Y+3}], v{vOO}, {SRD_WS}, {sP2} offen sc1")
    A(f"buffer_store_dwordx4 v[{Y+4}:{Y+7}], v{vOO}, {SRD_WS}, {sP2} offen offset:1792 sc1")
    A("L_sent2:")
    stamp()
    A("L_leave:")
    if not gateA:
        A(f"s_cmp_eq_u32 {sCONS}, 1")
        A("s_cbranch_scc0 L_done")
    A("s_barrier")
    A("L_done:")
    if stamps:
        A("s_mov_b64 exec, -1")
        A("s_memrealtime s[100:101]")
        A("s_waitcnt lgkmcnt(0)")
        A(f"s_lshl_b32 {sT[0]}, s2, 2")
        A(f"s_add_u32 {sT[0]}, {sT[0]}, {sW}")
        A(f"s_lshl_b32 {sT[1]}, {sT[0]}, 8")
        A(f"s_lshl_b32 {sT[0]}, {sT[0]}, 6")
        A(f"s_add_u32 {sT[0]}, {sT[0]}, {WS_STAMP}")
        A(f"s_add_u32 {sT[1]}, {sT[1]}, {WS_STAMP + 0x10000}")
        A(f"v_lshlrev_b32 v2, 2, {vL}")
        A(f"buffer_store_dword v252, v2, {SRD_WS}, {sT[1]} offen")
        A("v_mov_b32 v2, 0")
        A("s_mov_b64 exec, 1")
        A("v_mov_b32 v3, s26")
        A(f"buffer_store_dword v3, v2, {SRD_WS}, {sT[0]} offen offset:44")
        for k in range(9):
            A(f"v_mov_b32 v3, s{84+2*k}")
            A(f"buffer_store_dword v3, v2, {SRD_WS}, {sT[0]} offen offset:{4*k}")
        A("s_getreg_b32 s84, hwreg(HW_REG_XCC_ID)")
        A("v_mov_b32 v3, s84")
        A(f"buffer_store_dword v3, v2, {SRD_WS}, {sT[0]} offen offset:36")
        A(f"v_mov_b32 v3, {sT[9]}")
        A(f"buffer_store_dword v3, v2, {SRD_WS}, {sT[0]} offen offset:40")
    A("L_end:")
    A("s_endpgm")
    body = "\n".join(("" if l.endswith(":") else "    ") + l for l in o)
    return HEADER.format(lds=LDS, k=kern) + body + FOOTER.format(k=kern)


if __name__ == "__main__":
    out = sys.argv[1]
    kw = json.loads(sys.argv[2]) if len(sys.argv) > 2 else {}
    open(out, "w").write(gen(**kw))
```

```python
import sys, json, math, struct
from gen import HEADER, FOOTER, KERN, f2u, LOG2E_16

WS_QG = 0x1000
WS_HG = WS_QG + 0x4000
WS_ML = 0x8000
WS_RK = 0xA000
WS_RDY = 0xC000
WS_CNT = 0x200000
WS_P1O = 0x10000
WS_P2 = 0x110000
WS_P3 = 0x1F0000
WS_EP2 = 0x1FF000
WS_STAMP = 0x300000
WS_SIZE = 0x400000

DOC = '; ---------------------------------------------------------------------------------------------------------\n;\n; One launch, 256 workgroups (one per CU, LDS-limited), 4 waves each; head = wg & 7, p = wg >> 3.\n;  * Every wave streams 16 K tiles, then the 16 matching V tiles (16 keys = 8 KB each) with LDS-DMA into a\n;  * Hand-offs between workgroups go through d_ws as 8-byte {data, tag} granules; the tag is derived from two\n;    words the previous launch left, so stale contents never match.  Hand-offs inside a head use ordinary\n;    stores only when all 32 workgroups report the same XCC id, otherwise write-through (sc1) stores.\n; ---------------------------------------------------------------------------------------------------------\n'


def gen(R=3, N=5, N0=8, Nend=12, tail=7, NB=8, NP=6, bits="i0 w0 w1 i1 i2 g3 g4 t2 t3 x0 x1 x2 t0 t1",
        kflags="nt", vflags="nt", wflags="nt", stamps=0, spin=4000000, vpub=5, vgat=9, wpos=0, flat2=False, gate2=False, kopen=None, lateprep=True, pre1=None, pre2=None, plain1=False, touch="sc1", tpos=0, codepf=True, tlbpf=True, outpf=True, nn=(32, 4), ext=None, depth3=4, touch2=True, now=False, wafter=False, wat=None, tat=None, wtouch=False, jit=0, diag=0, dmul=1, dry=False, w2at=None, pad=0, gateA=False, st3="sc1", ld3="sc1", bb=None, N2=8, iw=None, ra=tuple((t, 18, 6, 26, 6) for t in (8, 11, 14, 17, 20, 23, 26)), raws=True, nk=1, ng=8, bump=(), epfl="", outfl="", pipe=False, skipw=True, wlate=None, wtlb=None, wdma=None, rk=((64, 20, 4, 0, 0), (186, 18, 5, 0, 0)), rkw=1, Nhi=6, Nlo=4, sleep1=0, sleep2=0,
        alt=None, X=7, Np=12, B0=6, Xp=None, il=0, Np2=9, zmap="wg", rot=True, hmap="mod8", local=True,
        kern=KERN):
    noend = noml = False
    assert not wdma and wlate is None
    if ra:
        rk = ()
        assert len(ra) * ng <= 128 and raws
    ctl = list(rk) + list(ra)
    wearly = 0
    T = 8
    tb = T * 1024
    S = 16
    if "h" not in bits.split():
        bits = "h " + bits
    pos = {n: 9 + k for k, n in enumerate(bits.split())}
    genh = pos["h"] != 9
    RING = 4 * R * tb
    STG = RING
    QW = STG + 57344
    LML = QW + 4096
    FIN = LML + 128
    PRG = FIN + 256
    LDS = PRG + (1024 if iw else 0)
    assert LDS <= 163840 and LDS > 81920
    if Xp is None:
        Xp = X * T

    o = []
    A = o.append
    vm = {"n": 0, "known": 0}

    def VM(s):
        A(s)
        vm["n"] += 1
        return vm["n"]

    def wait_vm(idx, force=False):
        if idx <= vm["known"] and not force:
            return
        n = vm["n"] - idx
        assert 0 <= n <= 63, n
        A(f"s_waitcnt vmcnt({n})")
        if vm.get("opt") and idx < vm["optend"]:
            assert idx <= vm["optend"] - vm["opt"]
            vm["lbl"] = vm.get("lbl", 0) + 1
            A(f"s_cmp_ge_u32 s3, 2")
            A(f"s_cbranch_scc1 L_ow{vm['lbl']}")
            A(f"s_waitcnt vmcnt({n - vm['opt']})")
            A(f"L_ow{vm['lbl']}:")
        vm["known"] = max(vm["known"], idx)

    nstamp = {"n": 0}

    def stamp(mode=1):
        if stamps and (int(stamps) & mode):
            k = nstamp["n"]
            assert k < 8
            A(f"s_memrealtime s[{84+2*k}:{85+2*k}]")
            nstamp["n"] += 1

    SRD_K, SRD_V, SRD_W, SRD_WO, SRD_W2, SRD_WS, SRD_X, SRD_OUT = ("s[28:31]", "s[32:35]", "s[36:39]", "s[40:43]",
                                                                     "s[44:47]", "s[48:51]", "s[52:55]", "s[56:59]")
    sW, sH, sP, sTAG, sRING, sBASE, sC, sF = "s3", "s60", "s61", "s62", "s63", "s64", "s65", "s66"
    sOFF = "s67"
    sZ = "s27"
    sT = ["s72", "s73", "s74", "s75", "s76", "s77", "s78", "s79", "s80", "s81"]
    vL = "v1"
    vSRC = [2, 3, 4, 5]
    vKA = [6, 7, 8, 9]
    vVA = list(range(10, 18))
    vMAX, vMS = 18, 19
    vPF, vLS, vS, vE = 20, 24, 24, 28
    vVT = 32
    sLOC, sXCC = "s82", "s83"
    sWE, sNE = "s16", "s17"
    vPW, vPR, vPD = (22, 23, 255) if False else (252, 253, 255)
    if stamps and iw:
        vPW, vPR = 250, 251
    vQ, vTL, vACC, vSC, vT = 32, 64, 96, 160, 224
    vH = 244

    def mk_tag(dst):
        A(f"s_lshl1_add_u32 {dst}, s27, {sTAG}")
        A(f"s_mul_i32 {dst}, {dst}, 1664525")
        A(f"s_add_u32 {dst}, {dst}, 1013904223")

    def srd(base, lo, size):
        A(f"s_mov_b32 s{base}, s{lo}")
        A(f"s_mov_b32 s{base+1}, s{lo+1}")
        A(f"s_mov_b32 s{base+2}, {size}")
        A(f"s_mov_b32 s{base+3}, 0x20000")

    assert hmap == "mod8" and zmap == "wg" and not il
    sZ = "s2"
    A("L_c0:")
    A("s_load_dwordx2 s[28:29], s[0:1], 8")
    A("s_load_dwordx16 s[4:19], s[0:1], 0")
    A("s_load_dwordx4 s[20:23], s[0:1], 64")
    A("s_load_dwordx2 s[24:25], s[0:1], 80")
    stamp(3)
    if diag:
        A("s_memrealtime s[84:85]")
    A("v_lshrrev_b32 v30, 6, v0")
    A("s_cmp_lt_u32 s2, 92")
    A("s_cbranch_scc1 L_producer")
    A("s_cmp_ge_u32 s2, 256")
    A("s_cbranch_scc1 L_end")

    def put(src, names):
        k = 0
        while k < len(names):
            e = k
            while e + 1 < len(names) and pos[names[e + 1]] == pos[names[e]] + 1:
                e += 1
            if k == 0 and e == len(names) - 1:
                A(f"s_lshl_b32 {sT[2]}, {src}, {pos[names[0]]}")
            else:
                A(f"s_bfe_u32 {sT[2]}, {src}, {((e - k + 1) << 16) | k}")
                A(f"s_lshl_b32 {sT[2]}, {sT[2]}, {pos[names[k]]}")
            A(f"s_or_b32 {sBASE}, {sBASE}, {sT[2]}")
            k = e + 1

    def common0():
        A(f"v_and_b32 {vL}, 63, v0")
        A("v_readfirstlane_b32 s3, v30")
        A(f"s_and_b32 {sH}, s2, 7")
        A(f"s_lshr_b32 {sP}, s2, 3")
        A(f"s_and_b32 {sT[0]}, {sP}, 7")
        A(f"s_lshr_b32 {sT[1]}, s2, 6")
        A(f"s_lshl_b32 {sBASE}, {sH}, 24")
        put(sT[0], ["x0", "x1", "x2"])
        put(sT[1], ["g3", "g4"])
        put(sW, ["w0", "w1"])
        A(f"s_mul_i32 {sRING}, {sW}, {R*tb}")
        A("s_brev_b32 s30, 16")
        A("s_mov_b32 s31, 0x20000")
        A(f"v_lshlrev_b32 v29, 4, {vL}")
        A(f"v_and_b32 v31, 32, {vL}")
        A(f"v_xor_b32 v{vSRC[0]}, v29, v31")
        if genh:
            A(f"v_and_b32 v{vSRC[0]}, 0x1ff, v{vSRC[0]}")
            A(f"v_lshl_add_u32 v{vSRC[0]}, v31, {pos['h'] - 5}, v{vSRC[0]}")
        A(f"v_xor_b32 v{vSRC[1]}, 64, v{vSRC[0]}")
        A(f"v_xor_b32 v{vSRC[2]}, 0x80, v{vSRC[0]}")
        A(f"v_xor_b32 v{vSRC[3]}, 64, v{vSRC[2]}")

    def common1():
        A(f"s_mov_b32 {sC}, 0x{f2u(LOG2E_16):08x}")
        A(f"s_min_u32 {sF}, s2, 223")

    def producer0():
        A("s_mov_b32 s39, 0x20000")
        A(f"s_cmp_lt_u32 {sZ}, 64")
        A(f"s_mov_b32 s38, {448*1792*2}")
        A(f"s_cmov_b32 s38, {448*4096*2}")
        A(f"s_movk_i32 {sT[4]}, 3584")
        A(f"s_cmovk_i32 {sT[4]}, 8192")
        A(f"s_and_b32 {sT[5]}, {sZ}, 63")
        A(f"s_lshl_b32 {sT[5]}, {sT[5]}, 7")
        A(f"s_mul_i32 {sT[6]}, {sW}, {sT[4]}")
        A(f"s_mulk_i32 {sT[6]}, 112")
        A(f"s_add_u32 {sT[5]}, {sT[5]}, {sT[6]}")
        A(f"v_lshrrev_b32 v30, 3, {vL}")
        A(f"v_mul_u32_u24 v30, {sT[4]}, v30")
        A(f"v_and_b32 v31, 0x70, v29")
        A("v_add_u32 v21, v31, v30")
        A(f"s_lshl_b32 {sT[4]}, {sT[4]}, 3")
        A(f"s_mul_i32 {sT[6]}, {sW}, 14336")
        A(f"s_add_u32 {sT[6]}, {sT[6]}, {STG}")
        A("s_movk_i32 s54, 896")
        A("s_mov_b32 s55, s39")
        A(f"s_movk_i32 {sT[3]}, 14")
        A("s_waitcnt lgkmcnt(0)")
        A("s_mov_b64 s[52:53], s[4:5]")
        A(f"s_cmp_lt_u32 {sZ}, 64")
        A("s_cselect_b64 s[36:37], s[10:11], s[16:17]")
        if wtouch:
            A(f"s_load_dword {sLOC}, s[36:37], {sT[5]}")
            A(f"s_load_dword {sXCC}, s[28:29], {sBASE}")

    seq = [("K", n) for n in range(S)] + [("V", n) for n in range(S)]
    NL = len(seq) * T
    lidx = {}

    m0bad = {"v": False}

    def issue_load(L):
        j, i = divmod(L, T)
        kind, n = seq[j]
        if i % 4 and m0bad["v"]:
            A(f"s_add_u32 m0, {sRING}, {(j % R)*tb + (i // 4)*4096}")
            A("s_nop 0")
        m0bad["v"] = False
        def goff(i_):
            return (sum(((n >> k) & 1) << pos[f"t{k}"] for k in range(4)) +
                    sum(((i_ >> k) & 1) << pos[f"i{k}"] for k in range(3)) - (i_ % 4) * 1024)
        srd_, fl = (SRD_K, kflags) if kind == "K" else (SRD_V, vflags)
        if genh:
            A(f"s_add_u32 m0, {sRING}, {(j % R)*tb + i*1024}")
            A(f"s_add_u32 {sOFF}, {sBASE}, {goff(i) + (i % 4)*1024}")
            lidx[L] = VM(f"buffer_load_dwordx4 v{vSRC[i%4]}, {srd_}, {sOFF} offen {fl} lds")
            return
        if i % 4 == 0:
            A(f"s_add_u32 m0, {sRING}, {(j % R)*tb + i*1024}")
        if i % 4 == 0 or goff(i) != goff(i - 1):
            A(f"s_add_u32 {sOFF}, {sBASE}, {goff(i)}")
        lidx[L] = VM(f"buffer_load_dwordx4 v{vSRC[i%4]}, {srd_}, {sOFF} offen offset:{(i%4)*1024} {fl} lds")

    npf = {"n": 0}

    LFLAG = 0x600DF1A6

    def setup():
        A(f"s_lshl_b32 {sT[2]}, {sW}, 5")
        A(f"s_add_u32 {sT[2]}, {sT[2]}, {LML}")
        A(f"v_lshlrev_b32 v29, 2, {vL}")
        A(f"v_add_u32 v29, {sT[2]}, v29")
        A("v_mov_b32 v30, 0")
        A("s_mov_b64 exec, 0xff")
        A("ds_write_b32 v29, v30")
        if ctl:
            A("ds_write_b32 v29, v30 offset:128")
        A("s_mov_b64 exec, -1")
        if iw:
            A(f"v_lshlrev_b32 v{vPW}, 2, v0")
            A(f"v_add_u32 v{vPW}, {PRG}, v{vPW}")
            A(f"ds_write_b32 v{vPW}, v30")
            A(f"v_and_b32 v{vPR}, 3, {vL}")
            A(f"v_lshlrev_b32 v{vPR}, 8, v{vPR}")
            A(f"v_add_u32 v{vPR}, {PRG}, v{vPR}")
        A("s_waitcnt lgkmcnt(0)")
        A("s_barrier")
        A(f"s_load_dword {sTAG}, s[24:25], 0")
        A(f"s_mov_b32 {sT[2]}, {WS_EP2}")
        A(f"s_load_dword s27, s[24:25], {sT[2]}")
        if tlbpf:
            A(f"s_lshr_b32 {sT[2]}, s2, 3")
            A(f"s_lshl_b32 {sT[2]}, {sT[2]}, 2")
            A(f"s_add_u32 {sT[2]}, {sT[2]}, {sW}")
            A(f"s_bitcmp1_b32 {sT[2]}, 3")
            A("s_cselect_b32 s70, s8, s6")
            A("s_cselect_b32 s71, s9, s7")
            A(f"s_and_b32 {sT[7]}, {sT[2]}, 7")
            A(f"s_lshl_b32 {sT[7]}, {sT[7]}, 21")
            A(f"s_lshl_b32 {sT[8]}, {sH}, 24")
            A(f"s_add_u32 {sT[7]}, {sT[7]}, {sT[8]}")
            A(f"s_lshl_b32 {sT[8]}, {sT[2]}, 7")
            A(f"s_add_u32 {sT[7]}, {sT[7]}, {sT[8]}")
            A(f"s_add_u32 s70, s70, {sT[7]}")
            A("s_addc_u32 s71, s71, 0")
            A(f"s_load_dword {sLOC}, s[70:71], 0x0")
            A(f"s_bitcmp1_b32 {sW}, 0")
            A("s_cselect_b32 s70, s12, s18")
            A("s_cselect_b32 s71, s13, s19")
            A(f"s_mov_b32 {sT[7]}, 6272")
            A(f"s_cmov_b32 {sT[7]}, 14336")
            A(f"s_mul_i32 {sT[7]}, {sT[7]}, s2")
            A(f"s_add_u32 s70, s70, {sT[7]}")
            A("s_addc_u32 s71, s71, 0")
            A(f"s_load_dword s21, s[70:71], 0x0" if False else f"s_load_dword {sXCC}, s[70:71], 0x0")
        if codepf:
            k = npf["n"]
            npf["n"] += 1
            A(f"s_getpc_b64 s[68:69]")
            A(f"L_pf{k}:")
            A(f"s_lshr_b32 {sT[2]}, s2, 3")
            A(f"s_lshl_b32 {sT[2]}, {sT[2]}, 2")
            A(f"s_add_u32 {sT[2]}, {sT[2]}, {sW}")
            A(f"s_lshl_b32 {sT[2]}, {sT[2]}, 8")
            A(f"s_min_u32 {sT[2]}, {sT[2]}, L_end-L_c0-128")
            A(f"s_sub_u32 s68, s68, L_pf{k}-L_c0")
            A("s_subb_u32 s69, s69, 0")
            A(f"s_add_u32 s68, s68, {sT[2]}")
            A("s_addc_u32 s69, s69, 0")
            A(f"s_load_dword {sLOC}, s[68:69], 0x0")
            A(f"s_load_dword {sLOC}, s[68:69], 0x80")
        srd(32, 8, 128 << 20)
        srd(40, 12, 4096 * 448 * 2)
        srd(44, 18, 1792 * 448 * 2)
        srd(48, 24, WS_SIZE)
        srd(56, 20, 896)
        if stamps:
            A("s_mov_b32 s26, 0")
            A("v_mov_b32 v252, 0")
            for k in (5, 6, 7):
                A(f"s_mov_b32 s{84+2*k}, s84")
        A(f"v_and_b32 v29, 15, {vL}")
        A(f"v_lshrrev_b32 v30, 4, {vL}")
        A("v_and_b32 v31, 7, v29")
        A("v_lshlrev_b32 v31, 1, v31")
        A("v_xor_b32 v31, v31, v30")
        A("v_lshlrev_b32 v31, 4, v31")
        A("v_lshl_add_u32 v31, v29, 9, v31")
        for j in range(4):
            A(f"v_xor_b32 v{vKA[j]}, {j*64}, v31")
            A(f"v_add_u32 v{vKA[j]}, {sRING}, v{vKA[j]}")
        A(f"v_bfe_u32 v29, {vL}, 2, 2")
        A(f"v_lshrrev_b32 v30, 4, {vL}")
        A("v_xor_b32 v30, v30, v29")
        A(f"v_and_b32 v31, 3, {vL}")
        A("v_lshlrev_b32 v31, 3, v31")
        A("v_lshl_add_u32 v31, v30, 5, v31")
        A("v_lshl_add_u32 v31, v29, 9, v31")
        A(f"v_add_u32 v{vVA[0]}, {sRING}, v31")
        A(f"v_mov_b32 v{vMAX}, 0xff800000")
        if ra:
            A(f"s_and_b32 s14, {sP}, {nk-1}")
            if raws:
                A(f"s_and_b32 s15, {sP}, {ng-1}")
                A("s_mul_i32 s15, s15, 4352")
                A(f"s_add_u32 s15, s15, {WS_CNT}")
                A("s_add_u32 s22, s24, s15")
                A("s_addc_u32 s23, s25, 0")
            else:
                A(f"s_bfe_u32 s15, {sP}, 0x20002")
                A("s_lshl_b32 s15, s15, 4")
                A("s_add_u32 s15, s15, s14")
                A("s_lshl_b32 s15, s15, 2")
                A("s_add_u32 s22, s22, s15")
                A("s_addc_u32 s23, s23, 0")
            A(f"s_cmp_eq_u32 {sW}, {rkw}")
            A("s_cselect_b32 s14, s14, 15")
        if ctl:
            A(f"s_mov_b32 {sWE}, 0")
            A(f"s_mov_b32 {sNE}, 0")
            A(f"v_mov_b32 v254, {FIN}")

    def allreduce(op, regs, tmp, steps):
        for st in steps:
            if st <= 8:
                if len(regs) < 3:
                    A(f"s_nop {2-len(regs)}")
                for r in regs:
                    A(f"{op}_dpp v{r}, v{r}, v{r} row_ror:{st} row_mask:0xf bank_mask:0xf")
            else:
                for k, r in enumerate(regs):
                    A(f"v_mov_b32 v{tmp+k}, v{r}")
                if len(regs) < 3:
                    A(f"s_nop {2-len(regs)}")
                for k, r in enumerate(regs):
                    A(f"v_permlane{st}_swap_b32 v{r}, v{tmp+k}")
                if len(regs) < 2:
                    A("s_nop 0")
                for k, r in enumerate(regs):
                    A(f"{op} v{r}, v{r}, v{tmp+k}")

    XU = vT + 4
    a, b, c_, d_ = vT + 12, vT + 13, vT + 14, vT + 15
    XF, WF = 96, 152
    st = {}

    def side0():
        A("; layer norm with the reference rounding steps")
        wait_vm(st["x"])
        stamp(2)
        for i in range(4):
            A(f"v_lshlrev_b32 v{XU+2*i}, 16, v{vT+i}")
            A(f"v_and_b32 v{XU+2*i+1}, 0xffff0000, v{vT+i}")
        A(f"v_add_f32 v{a}, v{XU}, v{XU+1}")
        for i in range(2, 8):
            A(f"v_add_f32 v{a}, v{a}, v{XU+i}")
        allreduce("v_add_f32", [a], b, [1, 2, 4, 8, 16, 32])

    def side1():
        A(f"v_mul_f32 v{a}, 0x{f2u(1.0/448):08x}, v{a}")
        A(f"v_mov_b32 v{b}, 0")
        for i in range(8):
            A(f"v_sub_f32 v{c_}, v{XU+i}, v{a}")
            A(f"v_fmac_f32 v{b}, v{c_}, v{c_}")
        A(f"v_cmp_gt_u32 vcc, 56, {vL}")
        A("s_nop 1")
        A(f"v_cndmask_b32 v{b}, 0, v{b}, vcc")
        allreduce("v_add_f32", [b], c_, [1, 2, 4, 8, 16, 32])

    def side2():
        A(f"v_mul_f32 v{b}, 0x{f2u(1.0/448):08x}, v{b}")
        A(f"v_cvt_pk_bf16_f32 v{c_}, v{a}, v{b}")
        A(f"v_lshlrev_b32 v{a}, 16, v{c_}")
        A(f"v_and_b32 v{b}, 0xffff0000, v{c_}")
        A(f"v_add_f32 v{b}, 0x{f2u(1e-5):08x}, v{b}")
        A(f"v_cvt_pk_bf16_f32 v{b}, v{b}, v{b}")
        A(f"v_and_b32 v{b}, 0xffff0000, v{b}")
        A(f"v_sqrt_f32 v{b}, v{b}")
        A("s_nop 0")
        A(f"v_cvt_pk_bf16_f32 v{b}, v{b}, v{b}")
        A(f"v_and_b32 v{b}, 0xffff0000, v{b}")
        A(f"v_rcp_f32 v{b}, v{b}")

    def side3():
        for i in range(8):
            A(f"v_sub_f32 v{XU+i}, v{XU+i}, v{a}")
        for i in range(4):
            A(f"v_cvt_pk_bf16_f32 v{vT+i}, v{XU+2*i}, v{XU+2*i+1}")
        for i in range(4):
            A(f"v_lshlrev_b32 v{XU+2*i}, 16, v{vT+i}")
            A(f"v_and_b32 v{XU+2*i+1}, 0xffff0000, v{vT+i}")
        for i in range(8):
            A(f"v_mul_f32 v{XU+i}, v{XU+i}, v{b}")
        for i in range(4):
            A(f"v_cvt_pk_bf16_f32 v{vT+i}, v{XU+2*i}, v{XU+2*i+1}")
        A(f"s_lshl_b32 {sT[0]}, {sW}, 10")
        A(f"s_add_u32 {sT[0]}, {sT[0]}, {QW}")
        A(f"v_lshlrev_b32 v{a}, 4, {vL}")
        A(f"v_add_u32 v{a}, {sT[0]}, v{a}")
        A(f"ds_write_b128 v{a}, v[{vT}:{vT+3}]")
        A(f"v_lshrrev_b32 v{b}, 4, {vL}")
        A(f"v_lshlrev_b32 v{c_}, 4, v{b}")
        A(f"v_add_u32 v{c_}, {sT[0]}, v{c_}")

    def side4():
        A("s_waitcnt lgkmcnt(0)")
        for i in range(14):
            A(f"ds_read_b128 v[{XF+4*i}:{XF+4*i+3}], v{c_} offset:{i*64}")
        A(f"v_lshlrev_b32 v{b}, 10, v{b}")
        A(f"v_bfe_u32 v{d_}, {vL}, 2, 2")
        A(f"v_lshl_add_u32 v{b}, v{d_}, 7, v{b}")
        A(f"v_and_b32 v{d_}, 3, {vL}")
        A(f"v_lshl_add_u32 v{b}, v{d_}, 3, v{b}")
        A(f"s_lshl_b32 {sT[1]}, {sW}, 5")
        A(f"s_add_u32 {sT[1]}, {sT[1]}, {STG}")
        A(f"v_add_u32 v{b}, {sT[1]}, v{b}")
        mk_tag(f"{sT[2]}")

    def side5():
        stamp(2)
        wait_vm(st["stg"])
        A("s_waitcnt lgkmcnt(0)")
        A("s_barrier")
        if diag == 7:
            A("s_memrealtime s[86:87]")
        stamp(2)
        for i in range(14):
            A(f"ds_read_b64_tr_b16 v[{WF+4*i}:{WF+4*i+1}], v{b} offset:{i*4096}")
            A(f"ds_read_b64_tr_b16 v[{WF+4*i+2}:{WF+4*i+3}], v{b} offset:{i*4096+512}")

    def side6():
        A(f"v_and_b32 v{d_}, 15, {vL}")
        A(f"v_cmp_eq_u32 s[70:71], 0, v{d_}")
        A(f"v_lshrrev_b32 v{a}, 4, {vL}")
        A(f"v_lshlrev_b32 v{a}, 4, v{a}")
        A(f"v_mov_b32 v{vT+1}, {sT[2]}")
        A(f"v_mov_b32 v{vT+3}, {sT[2]}")
        A(f"s_lshl_b32 {sT[0]}, {sZ}, 2")
        A(f"s_add_u32 {sT[0]}, {sT[0]}, {sW}")
        A(f"s_lshl_b32 {sT[0]}, {sT[0]}, 6")
        A(f"s_add_u32 {sT[0]}, {sT[0]}, {WS_QG}")
        A(f"s_cmp_lt_u32 {sZ}, 64")
        A(f"s_cselect_b32 {sT[1]}, 0xff800000, 0")

    def side7():
        A("s_waitcnt lgkmcnt(0)")
        for i in range(14):
            A(f"v_mfma_f32_16x16x32_bf16 v[{vS}:{vS+3}], v[{WF+4*i}:{WF+4*i+3}], v[{XF+4*i}:{XF+4*i+3}], " +
              ("0" if i == 0 else f"v[{vS}:{vS+3}]"))

    def side8():
        A("s_nop 7")
        for i in range(4):
            A(f"v_max_f32 v{vS+i}, {sT[1]}, v{vS+i}")
        A(f"v_cvt_pk_bf16_f32 v{vT}, v{vS}, v{vS+1}")
        A(f"v_cvt_pk_bf16_f32 v{vT+2}, v{vS+2}, v{vS+3}")
        A("s_mov_b64 exec, s[70:71]")
        A(f"buffer_store_dwordx4 v[{vT}:{vT+3}], v{a}, {SRD_WS}, {sT[0]} offen sc1")
        A("s_mov_b64 exec, -1")

    side_chunks = [side0, side1, side2, side3, side4, side5, side6, side7, side8]

    def tile_stamp_a():
        if stamps:
            A("s_memrealtime s[100:101]")
        if st.get("rk_on") and not st.get("rk_off"):
            A(f"ds_read_b64 v[{vT+18}:{vT+19}], v254")
            if iw:
                A(f"ds_read_b32 v{vPD}, v{vPR}")
                st["iw_own"] = st["iw_last"]
            st["rk_rd"] = True

    def lds_wait(tile=False):
        A("s_waitcnt lgkmcnt(0)")
        if st.get("rk_rd"):
            A(f"v_readfirstlane_b32 {sWE}, v{vT+18}")
            A(f"v_readfirstlane_b32 {sNE}, v{vT+19}")
            if bb and st["tc"] >= bb[0]:
                A(f"s_cmp_ge_u32 {sW}, 2")
                A(f"s_cmovk_i32 {sWE if bb[1] == 1 else sNE}, 0x100")
            if iw:
                th, gain, thn, gn = iw
                A(f"v_add_u32_dpp v{vPD}, v{vPD}, v{vPD} quad_perm:[1,0,3,2] row_mask:0xf bank_mask:0xf")
                A("s_nop 1")
                A(f"v_add_u32_dpp v{vPD}, v{vPD}, v{vPD} quad_perm:[2,3,0,1] row_mask:0xf bank_mask:0xf")
                A("s_nop 0")
                A(f"v_readfirstlane_b32 s19, v{vPD}")
                A(f"s_sub_i32 s19, s19, {4*st['iw_own']}")
                A(f"s_mul_i32 s13, s19, {gain}")
                A(f"s_add_i32 s13, s13, {st['L']}")
                A(f"s_cmp_ge_i32 s19, {th}")
                A("s_cselect_b32 s13, s13, 0")
                A(f"s_max_u32 {sWE}, {sWE}, s13")
                if thn:
                    A(f"s_mul_i32 s13, s19, {-gn}")
                    A(f"s_add_i32 s13, s13, {st['L']}")
                    A(f"s_cmp_le_i32 s19, {-thn}")
                    A("s_cselect_b32 s13, s13, 0")
                    A(f"s_cselect_b32 {sWE}, 0, {sWE}")
                    A(f"s_max_u32 {sNE}, {sNE}, s13")
            st["rk_rd"] = False
        if tile and "tc" in st:
            j = st["tc"]
            st["tc"] += 1
            for c, r_ in enumerate(ra):
                if 1 <= j - r_[0] <= nk:
                    c_rkdecide(c, st["L"], j - r_[0] - 1)
            for c, r_ in enumerate(ra):
                if 0 <= j - r_[0] < nk:
                    assert st.get("rdy"), "probe before the ready check"
                    A(f"s_cmp_eq_u32 s14, {j - r_[0]}")
                    A(f"s_cbranch_scc0 L_ra{c}_{j}")
                    A("s_mov_b32 s18, 1")
                    A(f"s_atomic_add s18, s[22:23], {ng*4352*c} glc")
                    A(f"L_ra{c}_{j}:")
        if stamps and tile:
            A("v_mov_b32 v253, s100")
            A(f"v_cmp_eq_u32 vcc, s26, {vL}")
            A("s_add_u32 s26, s26, 1")
            A("s_nop 0")
            A("v_cndmask_b32 v252, v252, v253, vcc")

    def read_k(dst, slot_imm, acc=False):
        tile_stamp_a()
        p = "a" if acc else "v"
        for j in range(8):
            A(f"ds_read_b128 {p}[{dst+4*j}:{dst+4*j+3}], v{vKA[j%4]} offset:{slot_imm + (j//4)*256}")

    def qk_mfma(src, acc):
        p = "a" if acc else "v"
        for j in range(8):
            A(f"v_mfma_f32_16x16x32_bf16 v[{vS}:{vS+3}], {p}[{src+4*j}:{src+4*j+3}], v[{vQ+4*j}:{vQ+4*j+3}], " +
              ("0" if j == 0 else f"v[{vS}:{vS+3}]"))

    def qk_post(sc):
        A("s_nop 7")
        A(f"v_cvt_pk_bf16_f32 v{sc+1}, v{vS}, v{vS+1}")
        A(f"v_cvt_pk_bf16_f32 v{sc+3}, v{vS+2}, v{vS+3}")
        A(f"v_lshlrev_b32 v{sc}, 16, v{sc+1}")
        A(f"v_and_b32 v{sc+1}, 0xffff0000, v{sc+1}")
        A(f"v_lshlrev_b32 v{sc+2}, 16, v{sc+3}")
        A(f"v_and_b32 v{sc+3}, 0xffff0000, v{sc+3}")
        A(f"v_max3_f32 v{vMAX}, v{sc}, v{sc+1}, v{vMAX}")
        A(f"v_max3_f32 v{vMAX}, v{sc+2}, v{sc+3}, v{vMAX}")

    def q_poll(emit):
        emit(f"buffer_load_dwordx4 v[{vT}:{vT+3}], v{vT+8}, {SRD_WS}, {sT[8]} offen sc1")
        emit(f"buffer_load_dwordx4 v[{vT+4}:{vT+7}], v{vT+8}, {SRD_WS}, {sT[8]} offen offset:1024 sc1")
        emit(f"buffer_load_dwordx4 v[{vH}:{vH+3}], off, {SRD_WS}, {sT[7]} sc1")
        return emit(f"buffer_load_dwordx4 v[{vH+4}:{vH+7}], off, {SRD_WS}, {sT[7]} offset:16 sc1")

    def tagcheck(regs, acc0, acc1):
        A(f"v_xor_b32 v{acc0}, {sTAG}, v{regs[0]}")
        A(f"v_xor_b32 v{acc1}, {sTAG}, v{regs[1]}")
        for i, r in enumerate(regs[2:]):
            acc = acc0 if i % 2 == 0 else acc1
            A(f"v_bitop3_b32 v{acc}, v{acc}, v{r}, {sTAG} bitop3:0xf6")
        A(f"v_or_b32 v{acc0}, v{acc0}, v{acc1}")
        A(f"v_cmp_ne_u32 vcc, 0, v{acc0}")

    def c_qpoll():
        A("; fetch q (and h, counter-ready word)")
        A(f"s_lshl_b32 {sT[8]}, {sH}, 11")
        A(f"s_add_u32 {sT[8]}, {sT[8]}, {WS_QG}")
        A(f"s_lshl_b32 {sT[7]}, {sF}, 5")
        A(f"s_add_u32 {sT[7]}, {sT[7]}, {WS_HG}")
        A(f"v_lshlrev_b32 v{vT+8}, 4, {vL}")
        if ra:
            A(f"s_mov_b32 {sT[6]}, {WS_RDY}")
            VM(f"buffer_load_dword v255, off, {SRD_WS}, {sT[6]} sc1")
        st["q"] = q_poll(VM)

    def c_qcheck():
        A("; check the q tags, build the B fragments")
        wait_vm(st["q"])
        if ra:
            A(f"v_readfirstlane_b32 {sT[6]}, v255")
            A(f"s_cmp_eq_u32 {sT[6]}, {sTAG}")
            A("s_cselect_b32 s14, s14, 15")
            st["rdy"] = True
        A(f"s_mov_b32 {sT[0]}, {spin}")
        A("L_qchk:")
        tagcheck([vT + 1, vT + 3, vT + 5, vT + 7, vH + 1, vH + 3, vH + 5, vH + 7], vT + 9, vT + 10)
        A("s_cbranch_vccz L_qok")
        A(f"s_sub_u32 {sT[0]}, {sT[0]}, 1")
        A("s_cbranch_scc1 L_qok")
        q_poll(A)
        A("s_waitcnt vmcnt(0)")
        A("s_branch L_qchk")
        A("L_qok:")
        stamp()
        A(f"s_lshl_b32 {sT[0]}, {sW}, 10")
        A(f"s_add_u32 {sT[0]}, {sT[0]}, {QW}")
        A(f"v_lshlrev_b32 v{vT+9}, 3, {vL}")
        A(f"v_add_u32 v{vT+9}, {sT[0]}, v{vT+9}")
        A(f"ds_write2_b32 v{vT+9}, v{vT}, v{vT+2} offset0:0 offset1:1")
        A(f"ds_write2_b32 v{vT+9}, v{vT+4}, v{vT+6} offset0:128 offset1:129")
        A(f"v_and_b32 v{vT+10}, 1, {vL}")
        A(f"v_lshlrev_b32 v{vT+10}, 9, v{vT+10}")
        A(f"v_lshrrev_b32 v{vT+11}, 4, {vL}")
        A(f"v_lshl_add_u32 v{vT+10}, v{vT+11}, 4, v{vT+10}")
        A(f"v_add_u32 v{vT+10}, {sT[0]}, v{vT+10}")

    def c_qread():
        A("s_waitcnt lgkmcnt(0)")
        for j in range(8):
            A(f"ds_read_b128 v[{vQ+4*j}:{vQ+4*j+3}], v{vT+10} offset:{j*64}")

    def c_kmax():
        A("; end of the K pass: wave max")
        A(f"s_getreg_b32 {sXCC}, hwreg(HW_REG_XCC_ID, 0, 4)")
        allreduce("v_max_f32", [vMAX], vT, [16, 32])
        if diag == 3:
            A("s_memrealtime s[86:87]")
        A(f"v_mul_f32 v{vMS}, {sC}, v{vMAX}")
        A(f"v_mov_b32 v{vLS}, 0")
        A(f"v_mov_b32 v{vLS+1}, 0")
        stamp()

    def read_vg(slot_imm, g):
        for qd in range(4):
            r = vVT + 8 * g + 2 * qd
            A(f"ds_read_b64_tr_b16 v[{r}:{r+1}], v{vVA[0]} offset:{slot_imm + g*2048 + ((qd ^ g) & 1)*128 + (qd >> 1)*256}")

    def read_v(slot_imm, half):
        tile_stamp_a()
        for g in range(4):
            read_vg(slot_imm, g)

    def exps(sc):
        for r in range(4):
            A(f"v_fma_f32 v{vE+r}, v{sc+r}, {sC}, -v{vMS}")
        for r in range(4):
            A(f"v_exp_f32 v{vE+r}, v{vE+r}")
        A("s_nop 0")

    def make_p(n):
        exps(vSC + 4 * n)
        A(f"v_cvt_pk_bf16_f32 v{vPF+2*(n&1)}, v{vE}, v{vE+1}")
        A(f"v_cvt_pk_bf16_f32 v{vPF+2*(n&1)+1}, v{vE+2}, v{vE+3}")
        st["pdone"] = n

    def lsum(sc):
        exps(sc)
        A(f"v_add_f32 v{vLS}, v{vLS}, v{vE}")
        A(f"v_add_f32 v{vLS+1}, v{vLS+1}, v{vE+1}")
        A(f"v_add_f32 v{vLS}, v{vLS}, v{vE+2}")
        A(f"v_add_f32 v{vLS+1}, v{vLS+1}, v{vE+3}")

    def pvg(n, g):
        pf = vPF + 2 * (n & 1)
        for qd in range(4):
            r = vVT + 8 * g + 2 * qd
            A(f"v_mfma_f32_4x4x4_16b_bf16 v[{vACC+4*qd}:{vACC+4*qd+3}], v[{pf}:{pf+1}], v[{r}:{r+1}], " +
              ("0" if n == 0 and g == 0 else f"v[{vACC+4*qd}:{vACC+4*qd+3}]") + f" cbsz:4 abid:{4*g}")

    def pv(n):
        for g in range(4):
            pvg(n, g)

    def c_lwrite():
        A("; wave (max, sum) -> LDS")
        A(f"v_add_f32 v{vT+2}, v{vLS}, v{vLS+1}")
        allreduce("v_add_f32", [vT + 2], vT + 4, [16, 32])
        A(f"v_mov_b32 v{vT}, v{vMS}")
        A(f"v_mov_b32 v{vT+1}, 0x{LFLAG:x}")
        A(f"v_mov_b32 v{vT+3}, 0x{LFLAG:x}")
        A(f"s_lshl_b32 {sT[0]}, {sW}, 5")
        A(f"s_add_u32 {sT[0]}, {sT[0]}, {LML}")
        A(f"v_lshlrev_b32 v{vT+4}, 4, {vL}")
        A(f"v_add_u32 v{vT+4}, {sT[0]}, v{vT+4}")
        A("s_mov_b64 exec, 3")
        A(f"ds_write_b128 v{vT+4}, v[{vT}:{vT+3}]")
        A("s_mov_b64 exec, -1")

    def c_mlpub():
        A("; wave 0: workgroup (max, sum) -> d_ws")
        A(f"s_cmp_eq_u32 {sW}, 0")
        A("s_cbranch_scc0 L_nopub")
        A(f"v_and_b32 v{vT+4}, 7, {vL}")
        A(f"v_lshlrev_b32 v{vT+4}, 4, v{vT+4}")
        A(f"v_add_u32 v{vT+4}, {LML}, v{vT+4}")
        A(f"s_mov_b32 {sT[0]}, {spin*4}")
        A("L_lml:")
        A(f"ds_read_b128 v[{vT}:{vT+3}], v{vT+4}")
        A("s_waitcnt lgkmcnt(0)")
        A(f"v_and_b32 v{vT+5}, v{vT+1}, v{vT+3}")
        A(f"v_cmp_ne_u32 vcc, 0x{LFLAG:x}, v{vT+5}")
        A("s_cbranch_vccz L_lmlok")
        A(f"s_sub_u32 {sT[0]}, {sT[0]}, 1")
        A("s_cbranch_scc0 L_lml")
        A("L_lmlok:")
        A(f"v_mov_b32 v{vT+5}, v{vT}")
        allreduce("v_max_f32", [vT + 5], vT + 6, [2, 4])
        A(f"v_sub_f32 v{vT}, v{vT}, v{vT+5}")
        A(f"v_exp_f32 v{vT}, v{vT}")
        A("s_nop 0")
        A(f"v_mul_f32 v{vT+2}, v{vT+2}, v{vT}")
        allreduce("v_add_f32", [vT + 2], vT + 6, [2, 4])
        A(f"v_mov_b32 v{vT}, v{vT+5}")
        A(f"v_mov_b32 v{vT+1}, {sTAG}")
        A(f"v_xor_b32 v{vT+3}, {sXCC}, v{vT+1}")
        A(f"s_lshl_b32 {sT[0]}, {sH}, 10")
        A(f"s_lshl_b32 {sT[1]}, {sP}, 5")
        A(f"s_add_u32 {sT[0]}, {sT[0]}, {sT[1]}")
        A(f"s_add_u32 {sT[0]}, {sT[0]}, {WS_ML}")
        A(f"v_lshlrev_b32 v{vT+4}, 4, {vL}")
        A("s_mov_b64 exec, 3")
        A(f"buffer_store_dwordx4 v[{vT}:{vT+3}], v{vT+4}, {SRD_WS}, {sT[0]} offen sc1")
        A("s_mov_b64 exec, -1")
        A("L_nopub:")

    def c_mlpoll():
        A("; fetch the 32 (max, sum) records of this head")
        A(f"s_lshl_b32 {sT[8]}, {sH}, 10")
        A(f"s_add_u32 {sT[8]}, {sT[8]}, {WS_ML}")
        A(f"v_lshlrev_b32 v{vT+8}, 4, {vL}")
        st["ml"] = VM(f"buffer_load_dwordx4 v[{vT+12}:{vT+15}], v{vT+8}, {SRD_WS}, {sT[8]} offen sc1")

    def c_mlcheck():
        A("; head-wide max; same-die check")
        G = vT + 12
        wait_vm(st["ml"])
        A(f"s_mov_b32 {sT[0]}, {spin}")
        A("L_mlchk:")
        A(f"v_xor_b32 v{vT+9}, {sTAG}, v{G+1}")
        A(f"v_xor_b32 v{vT+10}, {sTAG}, v{G+3}")
        A(f"v_and_or_b32 v{vT+9}, v{vT+10}, -16, v{vT+9}")
        A(f"v_cmp_ne_u32 vcc, 0, v{vT+9}")
        A("s_cbranch_vccz L_mlok")
        A(f"s_sub_u32 {sT[0]}, {sT[0]}, 1")
        A("s_cbranch_scc1 L_mlok")
        A(f"buffer_load_dwordx4 v[{G}:{G+3}], v{vT+8}, {SRD_WS}, {sT[8]} offen sc1")
        A("s_waitcnt vmcnt(0)")
        A("s_branch L_mlchk")
        A("L_mlok:")
        st["mlok"] = True
        A(f"v_cmp_ne_u32 vcc, {sXCC}, v{vT+10}")
        A("s_cmp_eq_u64 vcc, 0")
        A(f"s_cselect_b32 {sLOC}, {1 if local else 0}, 0")
        A(f"v_mov_b32 v{vT+9}, v{G}")
        allreduce("v_max_f32", [vT + 9], vT + 10, [2, 4, 8, 16, 32])

    def c_mlscale():
        A("; head-wide sum -> global exponent offset")
        G = vT + 12
        A(f"v_sub_f32 v{G}, v{G}, v{vT+9}")
        A(f"v_exp_f32 v{G}, v{G}")
        A("s_nop 0")
        A(f"v_mul_f32 v{G+2}, v{G+2}, v{G}")
        allreduce("v_add_f32", [G + 2], vT + 10, [2, 4, 8, 16, 32])
        A(f"v_log_f32 v{G+2}, v{G+2}")
        A("s_nop 0")
        A(f"v_add_f32 v{vT+9}, v{vT+9}, v{G+2}")
        A(f"v_sub_f32 v{vT+10}, v{vMS}, v{vT+9}")
        A(f"v_exp_f32 v{vT+10}, v{vT+10}")

    def c_rescale():
        A("; move the accumulators to the global normalisation")
        A(f"v_mov_b32 v{vMS}, v{vT+9}")
        A("s_nop 0")
        A(f"v_mov_b32_dpp v{vT+2}, v{vT+10} quad_perm:[0,0,0,0] row_mask:0xf bank_mask:0xf")
        A(f"v_mov_b32_dpp v{vT+3}, v{vT+10} quad_perm:[1,1,1,1] row_mask:0xf bank_mask:0xf")
        A("s_nop 4")
        for t in range(4):
            A(f"v_pk_mul_f32 v[{vACC+4*t}:{vACC+4*t+1}], v[{vACC+4*t}:{vACC+4*t+1}], v[{vT+2}:{vT+3}]")

    vWO, vW2 = vSC + 4, vSC + 36

    def issue_weights():
        A("; waves 2,3: wo / w2 rows")
        assert st["pdone"] >= 12 and st.get("tail1")
        if skipw:
            A(f"s_cmp_lt_u32 {sW}, 2")
            A("s_cbranch_scc1 L_skipw")
        for i in range(16):
            hd, k = divmod(i, 8)
            if i % 4 == 0 and i:
                A(f"s_add_u32 {sT[0]}, {sT[0]}, {(252 if i == 8 else 4)*896}")
            r = vWO + 4 * k + 2 * hd
            VM(f"buffer_load_dwordx2 v[{r}:{r+1}], v{vT+16}, {SRD_WO}, {sT[0]} offen offset:{(i%4)*896} {wflags}")
        if w2at is None:
            for i in range(8):
                if i % 4 == 0 and i:
                    A(f"s_add_u32 {sT[1]}, {sT[1]}, {4*896}")
                st["w"] = VM(f"buffer_load_dwordx2 v[{vW2+2*i}:{vW2+2*i+1}], v{vT+16}, {SRD_W2}, {sT[1]} offen offset:{(i%4)*896} {wflags}")
        if skipw:
            A("L_skipw:")
            vm["opt"] = 24 if w2at is None else 16
            vm["optend"] = vm["n"]

    E2 = 144

    def c_w2issue():
        A(f"v_subrev_u32 v{vT}, 128, v0")
        A(f"v_cmp_gt_u32 vcc, 112, v{vT}")
        A(f"v_lshlrev_b32 v{vT+1}, 3, v{vT}")
        A(f"v_bfrev_b32 v{vT+2}, 2")
        A(f"s_mul_i32 {sT[1]}, {sF}, {8*896}")
        A(f"v_cndmask_b32 v11, v{vT+2}, v{vT+1}, vcc")
        for i in range(8):
            if i == 4:
                A(f"s_add_u32 {sT[1]}, {sT[1]}, {4*896}")
            st["w2"] = VM(f"buffer_load_dwordx2 v[{E2+2*i}:{E2+2*i+1}], v11, {SRD_W2}, {sT[1]} offen offset:{(i%4)*896} {wflags}")

    def c_w2use():
        wait_vm(st["w2"])
        A(f"s_mov_b32 {sT[6]}, 0x05040100")
        A(f"s_mov_b32 {sT[7]}, 0x07060302")
        for k in range(4):
            for cp in range(2):
                A(f"v_perm_b32 v{80+4*k+2*cp}, v{E2+4*k+2+cp}, v{E2+4*k+cp}, {sT[6]}")
                A(f"v_perm_b32 v{80+4*k+2*cp+1}, v{E2+4*k+2+cp}, v{E2+4*k+cp}, {sT[7]}")
        for c in range(4):
            A(f"v_mov_b32 v{E2+2*c}, 0")
            A(f"v_mov_b32 v{E2+2*c+1}, {sTAG}")
        A("s_cmp_lt_u32 s2, 224")
        A("s_cbranch_scc0 L_now2")
        for k in range(4):
            for c in range(4):
                A(f"v_dot2_f32_bf16 v{E2+2*c}, v{vH+2*k}, v{80+4*k+c}, v{E2+2*c}")
        A("L_now2:")

    def issue_wdma(k):
        assert st.get("mlok")
        if k == 0:
            A(f"v_lshlrev_b32 v{vMAX}, 4, {vL}")
            A(f"s_lshl_b32 s10, {sH}, 5")
            A(f"s_add_u32 s10, s10, {sP}")
            A(f"s_mul_i32 s10, s10, {16*896}")
            A(f"s_mul_i32 s11, {sF}, {8*896}")
        wo = k < 4
        A(f"s_add_u32 s12, {sW}, {4*k if wo else 4*(k-4)}")
        A(f"s_min_u32 s12, s12, {13 if wo else 6}")
        A("s_lshl_b32 s12, s12, 10")
        A(f"s_add_u32 m0, s12, {STG if wo else STG + 14336}")
        A(f"s_add_u32 s12, s12, {'s10' if wo else 's11'}")
        idx = VM(f"buffer_load_dwordx4 v{vMAX}, {SRD_WO if wo else SRD_W2}, s12 offen {wflags} lds")
        m0bad["v"] = True
        st["w"] = idx
        return idx

    MO = ((2 * S) % R) * tb
    vMW, vMR, vO1, vH1, vH2, vXR, vOO = 6, 8, vT + 4, vT + 5, vT + 6, vT + 7, vT + 11
    sH2 = [f"s{4+k}" for k in range(16)]
    sP1, sP2, sCONS = "s68", "s69", "s70"

    def c_tail1():
        A("; addresses for the end phase")
        st["tail1"] = True
        A(f"s_add_u32 {sT[2]}, {sRING}, {MO}")
        A(f"v_lshlrev_b32 v{vMW}, 4, {vL}")
        A(f"v_add_u32 v{vMW}, {sT[2]}, v{vMW}")
        A(f"v_lshlrev_b32 v{vMR}, 4, {vL}")
        A(f"v_add_u32 v{vMR}, {MO}, v{vMR}")
        A(f"v_add_u32 v{vMR+1}, {2*R*tb}, v{vMR}")
        A(f"s_lshl_b32 {sP1}, {sH}, 5")
        A(f"s_add_u32 {sP1}, {sP1}, {sP}")
        A(f"s_lshl_b32 {sT[0]}, {sH}, 6")
        A(f"s_add_u32 {sT[0]}, {sT[0]}, {sP}")
        A(f"s_mul_i32 {sT[0]}, {sT[0]}, {8*896}")
        A(f"s_mul_i32 {sT[1]}, {sF}, {8*896}")
        A(f"s_lshl_b32 {sP1}, {sP1}, 12")
        A(f"s_add_u32 {sP1}, {sP1}, {WS_P1O}")
        A(f"v_lshlrev_b32 v{vO1}, 4, {vL}")
        for k in range(1, 16, 2):
            A(f"v_mov_b32 v{64+k}, {sTAG}")
        A(f"v_subrev_u32 v{vT}, 128, v0")
        A(f"v_cmp_gt_u32 vcc, 112, v{vT}")
        A(f"v_lshlrev_b32 v{vT+1}, 3, v{vT}")
        A(f"v_lshlrev_b32 v{vOO}, 4, v{vT}")
        A(f"v_bfrev_b32 v{vT+2}, 2")
        A(f"v_cndmask_b32 v{vT+16}, v{vT+2}, v{vT+1}, vcc")
        A(f"v_cndmask_b32 v{vOO}, v{vT+2}, v{vOO}, vcc")

    def c_tail2():
        A(f"v_lshrrev_b32 v{vT}, 3, {vL}")
        A(f"v_and_b32 v{vT+1}, 7, {vL}")
        A(f"v_lshlrev_b32 v{vT+1}, 4, v{vT+1}")
        A(f"v_lshl_add_u32 v{vH1}, v{vT}, 12, v{vT+1}")
        A(f"s_lshl_b32 {sT[2]}, {sH}, 17")
        A(f"s_lshl_b32 {sT[3]}, {sP}, 7")
        A(f"s_add_u32 {sT[2]}, {sT[2]}, {sT[3]}")
        A(f"s_add_u32 {sT[2]}, {sT[2]}, {WS_P1O}")
        for k in range(1, 4):
            A(f"s_add_u32 {sT[2+k]}, {sT[2]}, {k*32768}")
        A(f"s_lshl_b32 {sP2}, {sH}, 5")
        A(f"s_add_u32 {sP2}, {sP2}, {sP}")
        A(f"s_mul_i32 {sP2}, {sP2}, 3584")
        A(f"s_add_u32 {sP2}, {sP2}, {WS_P2}")
        A(f"v_mul_u32_u24 v{vT}, 3584, v{vT}")
        A(f"v_add_u32 v{vH2}, v{vT}, v{vT+1}")
        A(f"s_min_u32 {sT[6]}, {sP}, 27")
        A(f"s_lshl_b32 {sT[7]}, {sT[6]}, 7")
        A(f"s_mul_i32 {sH2[0]}, {sH}, {32*3584}")
        A(f"s_add_u32 {sH2[0]}, {sH2[0]}, {sT[7]}")
        A(f"s_add_u32 {sH2[0]}, {sH2[0]}, {WS_P2}")
        for k in range(1, 4):
            A(f"s_add_u32 {sH2[k]}, {sH2[0]}, {k*8*3584}")
        A(f"s_lshl_b32 {sH2[4]}, {sT[6]}, 3")
        A(f"s_add_u32 {sH2[4]}, {sH2[4]}, {sH}")
        A(f"s_lshl_b32 {sH2[4]}, {sH2[4]}, 7")
        A(f"s_add_u32 {sH2[4]}, {sH2[4]}, {WS_P3}")
        A(f"s_sub_u32 {sT[6]}, s2, 224")
        A(f"s_cmp_lt_u32 {sT[6]}, 28")
        A(f"s_cselect_b32 {sCONS}, 1, 0")
        A(f"s_cselect_b32 {sT[6]}, {sT[6]}, 0")
        A(f"s_lshl_b32 {sH2[5]}, {sT[6]}, 10")
        A(f"s_add_u32 {sH2[5]}, {sH2[5]}, {WS_P3}")
        A(f"s_cmp_ge_u32 {sT[6]}, 14")
        A(f"s_cselect_b32 {sT[8]}, {4 - 14*64}, 0")
        A(f"s_lshl_b32 {sT[6]}, {sT[6]}, 6")
        A(f"s_add_u32 {sT[6]}, {sT[6]}, {sT[8]}")
        A(f"v_lshrrev_b32 v{vT+1}, 1, v{vT+1}")
        A(f"v_add_u32 v{vT+17}, {sT[6]}, v{vT+1}")
        if pre1 is not None or pre2 is not None:
            A(f"s_lshl_b32 {sT[8]}, {sW}, 10")
            A(f"v_lshlrev_b32 v{vT}, 4, v0")
        if pre1 is not None:
            A(f"s_lshl_b32 {sT[7]}, {sW}, 11")
            A(f"s_sub_u32 {sT[7]}, {sP1}, {sT[7]}")
            if pre1.startswith("ld"):
                VM(f"buffer_load_dwordx4 v[{vT+12}:{vT+15}], v{vT}, {SRD_WS}, {sT[7]} offen {pre1[2:]}")
            else:
                for k in range(4):
                    A(f"v_mov_b32 v{vT+12+k}, 0")
                A(f"v_not_b32 v{vT+13}, {sTAG}")
                A(f"v_not_b32 v{vT+15}, {sTAG}")
                VM(f"buffer_store_dwordx4 v[{vT+12}:{vT+15}], v{vT}, {SRD_WS}, {sT[7]} offen {pre1[2:]}")
        if pre2 is not None:
            VM(f"buffer_load_dwordx4 v[{vT+12}:{vT+15}], v{vT}, {SRD_WS}, {sP2} offen {pre2[2:]}")

    PW, PW2, Y = vSC, vSC + 32, (vSC + 48 if w2at is None else E2)

    def c_wprep():
        assert st["pdone"] >= 13
        if wdma or wlate:
            if wlate:
                A("s_waitcnt vmcnt(4)")
                A("s_barrier")
            else:
                assert lateprep and st["w"] <= vm["known"]
            A(f"v_subrev_u32 v{vT+16}, 128, v0")
            A(f"v_min_u32 v{vT+16}, 111, v{vT+16}")
            A(f"v_lshlrev_b32 v{vT+16}, 3, v{vT+16}")
            A(f"v_add_u32 v{vT+16}, {STG}, v{vT+16}")
            for i in range(24):
                A(f"ds_read_b64 v[{vWO+2*i}:{vWO+2*i+1}], v{vT+16} offset:{i*896}")
            A("s_waitcnt lgkmcnt(0)")
        elif lateprep:
            A("s_waitcnt vmcnt(4)")
        else:
            wait_vm(st["w"])
            A(f"s_cmp_lt_u32 {sW}, 2")
            A("s_cbranch_scc1 L_noprep")
        A(f"s_mov_b32 {sT[6]}, 0x05040100")
        A(f"s_mov_b32 {sT[7]}, 0x07060302")
        for k in range(12 if w2at is None else 8):
            for cp in range(2):
                A(f"v_perm_b32 v{PW+4*k+2*cp}, v{vWO+4*k+2+cp}, v{vWO+4*k+cp}, {sT[6]}")
                A(f"v_perm_b32 v{PW+4*k+2*cp+1}, v{vWO+4*k+2+cp}, v{vWO+4*k+cp}, {sT[7]}")
        if w2at is not None:
            return
        for c in range(4):
            A(f"v_mov_b32 v{Y+2*c}, 0")
            A(f"v_mov_b32 v{Y+2*c+1}, {sTAG}")
        A("s_cmp_lt_u32 s2, 224")
        A("s_cbranch_scc0 L_noprep")
        for k in range(4):
            for c in range(4):
                A(f"v_dot2_f32_bf16 v{Y+2*c}, v{vH+2*k}, v{PW2+4*k+c}, v{Y+2*c}")
        A("L_noprep:")

    def do_touch():
        A("; bring the inbox lines of the final hand-offs into L2")
        A(f"s_lshl_b32 {sT[8]}, {sW}, 15")
        A(f"s_add_u32 {sT[8]}, {sT[8]}, {sT[2]}")
        if touch == "sc1":
            VM(f"buffer_load_dword v{vT+12}, v{vH1}, {SRD_WS}, {sT[8]} offen sc1")
        elif touch == "one":
            VM(f"buffer_load_dword v{vT+12}, off, {SRD_WS}, {sT[2]} sc1")
        else:
            A(f"s_cmp_eq_u32 {sLOC}, 1")
            A("s_cbranch_scc0 L_tfar")
            A(f"buffer_load_dword v{vT+12}, v{vH1}, {SRD_WS}, {sT[8]} offen")
            A("s_branch L_tdone")
            A("L_tfar:")
            VM(f"buffer_load_dword v{vT+12}, v{vH1}, {SRD_WS}, {sT[8]} offen sc1")
            A("L_tdone:")
        if touch2:
            A(f"s_mul_i32 {sT[8]}, {sW}, {8*3584}")
            A(f"s_add_u32 {sT[8]}, {sT[8]}, {sH2[0]}")
            VM(f"buffer_load_dword v{vT+13}, v{vH2}, {SRD_WS}, {sT[8]} offen sc1")

    def do_wtlb():
        VM(f"buffer_load_dword v{vT+14}, off, {SRD_WO}, {sT[0]} nt")
        VM(f"buffer_load_dword v{vT+15}, off, {SRD_W2}, {sT[1]} nt")

    def c_rkprobe(c):
        A(f"s_cmp_eq_u32 {sW}, {rkw}")
        A(f"s_cbranch_scc0 L_rkp{c}")
        A(f"s_lshl_b32 s18, {sH}, 7")
        A(f"s_add_u32 s18, s18, {WS_RK + c*1024}")
        A(f"s_lshl_b32 s19, {sP}, 2")
        A(f"s_add_u32 s19, s19, s18")
        A(f"v_lshlrev_b32 v{vT+18}, 2, {vL}")
        A(f"v_mov_b32 v{vT+19}, {sTAG}")
        A("s_mov_b32 exec_hi, 0")
        A(f"buffer_load_dword v255, v{vT+18}, {SRD_WS}, s18 offen sc1")
        A("s_mov_b32 exec_lo, 1")
        A(f"buffer_store_dword v{vT+19}, off, {SRD_WS}, s19")
        A("s_mov_b64 exec, -1")
        A(f"L_rkp{c}:")
        st["rk_n"] = vm["n"]

    def c_rkdecide(c, L, k=None):
        _, hi, gh, lo, gl = ctl[c]
        if k is None:
            A(f"s_cmp_eq_u32 {sW}, {rkw}")
            A(f"s_cbranch_scc0 L_rkd{c}")
            A(f"v_cmp_eq_u32 vcc, {sTAG}, v255")
            A("s_bcnt1_i32_b32 s18, vcc_lo")
        else:
            A(f"s_cmp_eq_u32 s14, {k}")
            c = f"{c}_{k}"
            A(f"s_cbranch_scc0 L_rkd{c}")
        A(f"s_sub_u32 {sWE}, s18, {hi}")
        A(f"s_mul_i32 {sWE}, {sWE}, {gh}")
        A(f"s_add_u32 {sWE}, {sWE}, {L + 5}")
        A(f"s_cmp_gt_u32 s18, {hi}")
        A(f"s_cselect_b32 {sWE}, {sWE}, 0")
        if N2:
            A(f"s_sub_u32 {sNE}, s18, {lo}")
            A(f"s_mul_i32 {sNE}, {sNE}, {gl}")
            A(f"s_add_u32 {sNE}, {sNE}, {L + 5}")
            A(f"s_cmp_gt_u32 s18, {lo}")
            A(f"s_cselect_b32 {sNE}, {sNE}, 0")
        elif lo:
            A(f"s_min_u32 {sNE}, s18, {lo}")
            A(f"s_sub_u32 {sNE}, {lo}, {sNE}")
            A(f"s_mul_i32 {sNE}, {sNE}, {gl}")
            A(f"s_add_u32 {sNE}, {sNE}, {L + 5}")
            A(f"s_cmp_lt_u32 s18, {lo}")
            A(f"s_cselect_b32 {sNE}, {sNE}, 0")
        else:
            A(f"s_mov_b32 {sNE}, 0")
        A(f"v_mov_b32 v{vT+18}, {sWE}")
        A(f"v_mov_b32 v{vT+19}, {sNE}")
        A(f"ds_write_b64 v254, v[{vT+18}:{vT+19}]")
        A(f"L_rkd{c}:")
        st["rk_on"] = True

    def c_last():
        A("; last V tile, four keys at a time")
        slot = ((2 * S - 1) % R) * tb
        tile_stamp_a()
        for g in range(4):
            wait_vm(lidx[NL - T + 2 * g + 1])
            read_vg(slot, g)
            if g:
                A("s_waitcnt lgkmcnt(4)")
                pvg(S - 1, g - 1)
        A("s_waitcnt lgkmcnt(0)")
        pvg(S - 1, 3)
        if stamps:
            lds_wait(True)
        stamp()
        A("s_nop 1")
        A("s_nop 0")
        for hf in range(2):
            r = vACC + 8 * hf
            A(f"ds_write2_b64 v{vMW}, v[{r}:{r+1}], v[{r+4}:{r+5}] offset0:{128*hf} offset1:{128*hf+1}")
            if hf == 0:
                A("s_nop 0")

    chunks = []
    C = lambda fn, need=None, free=None: chunks.append((need, free, fn))
    backlog = list(range(NB))
    for n in range(S):
        slot = (n % R) * tb
        if n < NB:
            C(lambda n=n, slot=slot: read_k(32 * n, slot, True), need=n)
            C(lambda: lds_wait(True), free=n)
            if n == NP:
                C(c_qpoll)
            if n == NB - 1:
                C(c_qcheck)
                C(c_qread)
        else:
            C(lambda slot=slot: read_k(vTL, slot), need=n)
            C(lambda: (lds_wait(True), qk_mfma(vTL, False)), free=n)
            C(lambda n=n: qk_post(vSC + 4 * n))
            for _ in range(2):
                if backlog:
                    m = backlog.pop(0)
                    C(lambda m=m: qk_mfma(32 * m, True))
                    C(lambda m=m: qk_post(vSC + 4 * m))
    assert not backlog
    C(c_kmax)
    lq = list(range(S))
    assert vgat % 2 == 1 and vpub % 2 == 1
    for n in range(S):
        j = S + n
        slot = (j % R) * tb
        if n == vgat + 3:
            C(c_rescale)
        if n == S - 2:
            C(lambda: make_p(S - 2))
            C(lambda: make_p(S - 1))
            if not lateprep:
                C(c_wprep)
        elif n < S - 2:
            C(lambda n=n: make_p(n))
        if n < S - 1:
            C(lambda slot=slot, n=n: read_v(slot, n & 1), need=j)
        if tat == j:
            C(do_touch)
        if wat == j:
            C(issue_weights)
        if n == S - 1:
            C(c_last, need="issued")
        else:
            C(lambda n=n: (lds_wait(True), pv(n)), free=j)
        for _ in range(3 if n % 2 == 0 else 2):
            if lq:
                m0, m1 = lq.pop(0), lq.pop(0)
                C(lambda m0=m0, m1=m1: (lsum(vSC + 4 * m0), lsum(vSC + 4 * m1)))
                if not lq:
                    C(c_lwrite)
        if w2at == j:
            C(c_w2issue)
        if w2at is not None and w2at + 2 == j:
            C(c_w2use)
        if n == vpub:
            assert not lq
            C(c_mlpub)
        if n == vgat:
            C(c_mlpoll)
        if n == vgat + 1:
            C(c_mlcheck)
            C(c_mlscale)
        if n == vgat + 3:
            C(c_tail1)
            C(c_tail2)

    freed = set()

    def emit_chunk(q, block):
        need, free, fn = q[0]
        if need == "issued":
            if not block:
                return False
        elif need is not None:
            last = need * T + T - 1
            if last not in lidx:
                assert not block
                return False
            if lidx[last] > vm["known"]:
                if not block:
                    return False
                wait_vm(lidx[last])
        q.pop(0)
        fn()
        if free is not None:
            freed.add(free)
        return True

    def tagfix():
        A("s_waitcnt lgkmcnt(0)")
        mk_tag(f"{sTAG}")

    def stream(L0, L1, win, q, paced):
        for L in range(L0, L1):
            j, i = divmod(L, T)
            st["L"] = L
            Nw = win(L)
            if ext and X * T <= L < ext[0] and Nw < ext[1]:
                wait_vm(paced[-ext[1]])
                A(f"s_cmp_lt_u32 {sZ}, 92")
                A(f"s_cbranch_scc1 L_x{L}")
                A(f"s_waitcnt vmcnt({vm['n'] - paced[-Nw]})")
                A(f"L_x{L}:")
            elif st.get("rk_on") and Nw <= N + 1:
                if N2:
                    wait_vm(paced[-(Nw + N2 - N)])
                    A(f"s_cmp_gt_u32 {sNE}, {L}")
                    A(f"s_cbranch_scc1 L_x{L}")
                    A(f"s_waitcnt vmcnt({vm['n'] - paced[-(Nw + Nhi - N)]})")
                else:
                    wait_vm(paced[-(Nw + Nhi - N)])
                A(f"s_cmp_gt_u32 {sWE}, {L}")
                A(f"s_cbranch_scc1 L_x{L}")
                A(f"s_waitcnt vmcnt({vm['n'] - paced[-Nw]})")
                if not N2 and (any(r[3] for r in ctl) or (iw and iw[2])):
                    A(f"s_cmp_gt_u32 {sNE}, {L}")
                    A(f"s_cbranch_scc0 L_x{L}")
                    A(f"s_waitcnt vmcnt({vm['n'] - paced[-Nlo]})")
                A(f"L_x{L}:")
            elif len(paced) >= Nw:
                wait_vm(paced[-Nw])
            if L == NL - tail - T:
                st["rk_off"] = True
            if i == 0 and j >= R:
                while (j - R) not in freed:
                    emit_chunk(q, True)
            issue_load(L)
            paced.append(lidx[L])
            if iw and "tc" in st and not st.get("rk_off") and not st.get("rk_rd"):
                A(f"v_mov_b32 v{vPD}, {L}")
                A(f"ds_write_b32 v{vPW}, v{vPD}")
                st["iw_last"] = L
            if L == NL - 1 - tpos and touch is not None and tat is None:
                do_touch()
                if wtlb:
                    do_wtlb()
            if L == NL - 1 - wpos and not now and not wearly and not wafter and wat is None and not wdma and wlate is None:
                issue_weights()
            if wdma and L >= wdma[0] and (L - wdma[0]) % wdma[1] == 0 and (L - wdma[0]) // wdma[1] < 6:
                if wdma[2]:
                    wait_vm(paced[-Nw])
                    paced.append(issue_wdma((L - wdma[0]) // wdma[1]))
                else:
                    issue_wdma((L - wdma[0]) // wdma[1])
            did = False
            for c, r_ in enumerate(rk):
                if L == r_[0] and not st.get("rk_rd"):
                    c_rkprobe(c)
                    st["rk_pend"] = c
                    did = True
                elif L == r_[0]:
                    raise AssertionError("probe between a tile read and its wait")
            if st.get("rk_pend") is not None and vm["known"] > st["rk_n"] and not st.get("rk_rd") and not did:
                c_rkdecide(st["rk_pend"], L)
                st["rk_pend"] = None
                did = True
            if q and not did and (L < NL - tail or Nend <= N + 2):
                emit_chunk(q, False)

    def win_main(L):
        Nw = Nend if L >= NL - tail else N
        if kopen and NL // 2 - kopen[0] <= L < NL // 2:
            Nw = kopen[1]
        for b_ in bump:
            if b_[0] <= L < b_[1]:
                Nw = b_[2]
        if alt and Nw == N and (L // alt[1]) % alt[2] == (alt[3] if len(alt) > 3 else 0):
            Nw = alt[0]
        return Nw

    split = next(k for k, ch in enumerate(chunks) if ch[0] == X - 1)
    head_chunks, rest = chunks[:split], chunks[split:]
    assert X - 1 <= NP
    ends = []
    for path in ("n", "p"):
        vm.update(n=0, known=0)
        lidx.clear()
        freed.clear()
        paced = []
        stg = {"i": 0}

        def issue_stg():
            i = stg["i"]
            if rot:
                if i == 0:
                    A(f"s_mul_i32 {sT[3]}, {sZ}, 4682")
                    A(f"s_lshr_b32 {sT[3]}, {sT[3]}, 16")
                    A(f"s_mul_i32 {sT[3]}, {sT[3]}, 14")
                    A(f"s_sub_u32 {sT[3]}, {sZ}, {sT[3]}")
                else:
                    A(f"s_add_u32 {sT[3]}, {sT[3]}, 1")
                    A(f"s_cmp_eq_u32 {sT[3]}, 14")
                    A(f"s_cselect_b32 {sT[3]}, 0, {sT[3]}")
                A(f"s_lshl_b32 {sT[9]}, {sT[3]}, 10")
                A(f"s_add_u32 m0, {sT[6]}, {sT[9]}")
                A(f"s_mul_i32 {sT[9]}, {sT[3]}, {sT[4]}")
                A(f"s_add_u32 {sT[9]}, {sT[9]}, {sT[5]}")
                st["stg"] = VM(f"buffer_load_dwordx4 v21, {SRD_W}, {sT[9]} offen {wflags} lds")
            else:
                A(f"s_add_u32 m0, {sT[6]}, {i*1024}")
                if i:
                    A(f"s_add_u32 {sT[5]}, {sT[5]}, {sT[4]}")
                else:
                    A("s_nop 0")
                st["stg"] = VM(f"buffer_load_dwordx4 v21, {SRD_W}, {sT[5]} offen {wflags} lds")
            paced.append(st["stg"])
            stg["i"] += 1
            m0bad["v"] = True
        if path == "n":
            common0()
            A("s_waitcnt lgkmcnt(0)")
            if diag == 6:
                A("s_memrealtime s[86:87]")
            for L in range(N0):
                issue_load(L)
                paced.append(lidx[L])
            srd(52, 4, 896)
            common1()
            setup()
            if wearly:
                issue_weights()
            if ra:
                A(f"s_lshl_b32 {sT[2]}, s2, 2")
                A(f"s_add_u32 {sT[2]}, {sT[2]}, {sW}")
                A(f"s_cmp_eq_u32 {sT[2]}, 1023")
                A("s_cbranch_scc0 L_noclear")
                A(f"v_mul_u32_u24 v29, 4352, {vL}")
                A("v_mov_b32 v30, 0")
                A(f"s_mov_b32 {sT[2]}, {WS_CNT}")
                A(f"buffer_store_dword v30, v29, {SRD_WS}, {sT[2]} offen sc0 sc1")
                if len(ra) * ng > 64:
                    A(f"s_add_u32 {sT[2]}, {sT[2]}, {64*4352}")
                    A(f"buffer_store_dword v30, v29, {SRD_WS}, {sT[2]} offen sc0 sc1")
                A("s_waitcnt vmcnt(0) lgkmcnt(0)")
                mk_tag(f"{sT[2]}")
                A(f"v_mov_b32 v30, {sT[2]}")
                A(f"s_mov_b32 {sT[2]}, {WS_RDY}")
                A("s_mov_b64 exec, 1")
                A(f"buffer_store_dword v30, off, {SRD_WS}, {sT[2]} sc1")
                A("s_mov_b64 exec, -1")
                A("L_noclear:")
            if diag == 5:
                A(f"s_waitcnt vmcnt({N0-1})")
                A("s_memrealtime s[86:87]")
            q = list(head_chunks) + [(None, None, tagfix)]
            stream(N0, X * T, (lambda L: nn[1] if nn and L < nn[0] else win_main(L)), q, paced)
        else:
            A("; ---- workgroups 0..91: stage 448 x 64 weights, layer norm, publish q / h, then catch up")
            A("L_producer:")
            common0()
            producer0()
            st["x"] = VM(f"buffer_load_dwordx4 v[{vT}:{vT+3}], v29, {SRD_X}, 0 offen")
            A(f"s_mov_b32 m0, {sT[6]}")
            A("L_stg:")
            A(f"s_sub_u32 {sT[3]}, {sT[3]}, 1")
            A(f"buffer_load_dwordx4 v21, {SRD_W}, {sT[5]} offen {wflags} lds")
            A(f"s_add_u32 {sT[5]}, {sT[5]}, {sT[4]}")
            A("s_add_u32 m0, m0, 1024")
            A(f"s_cmp_lg_u32 {sT[3]}, 0")
            A("s_cbranch_scc1 L_stg")
            for _ in range(14):
                vm["n"] += 1
                st["stg"] = vm["n"]
                paced.append(vm["n"])
            for L in range(B0):
                issue_load(L)
                paced.append(lidx[L])
                if il and L % il == il - 1:
                    issue_stg()
            common1()
            setup()
            if wearly == 1:
                issue_weights()
            if not il:
                for fn in side_chunks[:4]:
                    fn()
                q = [(None, None, fn) for fn in side_chunks[4:]] + list(head_chunks) + [(None, None, tagfix)]
                stream(B0, X * T, lambda L: Np if L < Xp else N, q, paced)
            else:
                Ls = 14 * il
                q = [(None, None, fn) for fn in side_chunks[:5]] + list(head_chunks)
                for L in range(B0, Ls):
                    stream(L, L + 1, lambda L: Np, q, paced)
                    if L % il == il - 1:
                        if len(paced) >= Np:
                            wait_vm(paced[-Np])
                        issue_stg()
                w2 = Np2 or N
                L = Ls
                while st["stg"] > vm["known"]:
                    stream(L, L + 1, lambda L: w2, q, paced)
                    L += 1
                assert all(ch[2] not in side_chunks for ch in q)
                if q and q[0][1] is not None:
                    emit_chunk(q, True)
                q = [(None, None, fn) for fn in side_chunks[5:]] + ([(None, None, issue_weights)] if wearly == 2 else []) + q + [(None, None, tagfix)]
                stream(L, X * T, lambda L: w2 if L < Xp else N, q, paced)
        while q:
            emit_chunk(q, True)
        known_L = max([L for L in lidx if lidx[L] <= vm["known"]] + [-1])
        ends.append(({L: vm["n"] - lidx[L] for L in range(X * T - 16, X * T)}, known_L, set(freed)))
        if path == "n":
            A("s_branch L_join")
    for _ in range(pad):
        A("s_nop 0")
    A("L_join:")
    if jit:
        A(f"s_lshl_b32 {sT[0]}, s2, 2")
        A(f"s_add_u32 {sT[0]}, {sT[0]}, {sW}")
        A(f"s_xor_b32 {sT[0]}, {sT[0]}, {sTAG}")
        A(f"s_mul_i32 {sT[0]}, {sT[0]}, 0x9E3779B1")
        A(f"s_lshr_b32 {sT[0]}, {sT[0]}, 26")
        A(f"s_cmp_lg_u32 {sT[0]}, 0")
        A("s_cbranch_scc1 L_nojit")
        for _ in range(jit):
            A("s_sleep 127")
        A("L_nojit:")
    if diag == 2:
        A("s_memrealtime s[86:87]")
    st["tc"] = X - 1
    if iw:
        assert not rk
        st["rk_on"] = True
    stamp(1)
    assert ends[0][0] == ends[1][0] and ends[0][2] == ends[1][2], ends
    vm["known"] = lidx[min(ends[0][1], ends[1][1])]
    stream(X * T, NL, win_main, rest, [lidx[L] for L in range(X * T - 16, X * T)])
    while rest:
        emit_chunk(rest, True)

    def gather4(lbl, base, voff, soffs, d0, d1, first_issued, slp):
        def loads(set_):
            for k in range(4):
                r = base + 16 * set_ + 4 * k
                A(f"buffer_load_dwordx4 v[{r}:{r+3}], v{voff}, {SRD_WS}, {soffs[k]} offen sc1")

        def sums(r):
            A(f"v_add_f32 v{d0}, v{r}, v{r+4}")
            A(f"v_add_f32 v{d1}, v{r+2}, v{r+6}")
            A(f"v_add_f32 v{r+8}, v{r+8}, v{r+12}")
            A(f"v_add_f32 v{r+10}, v{r+10}, v{r+14}")
            A(f"v_add_f32 v{d0}, v{d0}, v{r+8}")
            A(f"v_add_f32 v{d1}, v{d1}, v{r+10}")
        if not first_issued:
            loads(0)
        if dry:
            A("s_mov_b64 exec, 0")
            A(f"s_branch L_{lbl}ok")
            A(f"L_{lbl}back:")
            A("s_mov_b64 exec, -1")
        A(f"L_{lbl}:")
        nset = 2 if pipe else 1
        for set_ in range(nset):
            r = base + 16 * set_
            if pipe:
                loads(1 - set_)
                A("s_waitcnt vmcnt(4)")
            else:
                A("s_waitcnt vmcnt(0)")
            tagcheck([r + 1 + 2 * i for i in range(8)], vT + 2, vT + 3)
            if pipe:
                sums(r)
            A(f"s_cbranch_vccz L_{lbl}ok")
        A(f"s_sub_u32 {sT[9]}, {sT[9]}, 1")
        if pipe:
            A(f"s_cbranch_scc0 L_{lbl}")
        else:
            A(f"s_cbranch_scc1 L_{lbl}ok")
            if slp:
                A(f"s_sleep {slp}")
            loads(0)
            A(f"s_branch L_{lbl}")
        A(f"L_{lbl}ok:")
        if not pipe:
            sums(base)

    O4, G = 32, 64
    if diag == 4:
        A("s_memrealtime s[86:87]")
    A(f"s_cmp_eq_u32 {sW}, 1")
    A("s_waitcnt lgkmcnt(0)")
    A("s_barrier")
    A("s_cbranch_scc0 L_not1")
    for hf in range(2):
        for k, w in enumerate((0, 2, 3)):
            r = O4 + 12 * hf + 4 * k
            A(f"ds_read_b128 v[{r}:{r+3}], v{vMR+w//2} offset:{(w%2)*R*tb + hf*1024}")
    A(f"s_cmp_eq_u32 {sLOC}, 1")
    A("s_cbranch_scc0 L_far1")
    for far in (0, 1):
        if far:
            A("L_far1:")
        for qd in range(4):
            r = O4 + 12 * (qd >> 1) + 2 * (qd & 1)
            own = vACC + 4 * qd
            if qd % 2 == 0:
                A(f"s_waitcnt lgkmcnt({3 - 3*(qd >> 1)})")
            A(f"v_pk_add_f32 v[{r}:{r+1}], v[{r}:{r+1}], v[{own}:{own+1}]")
            A(f"v_pk_add_f32 v[{r+4}:{r+5}], v[{r+4}:{r+5}], v[{r+8}:{r+9}]")
            A(f"v_add_f32 v{G+4*qd}, v{r}, v{r+4}")
            A(f"v_add_f32 v{G+4*qd+2}, v{r+1}, v{r+5}")
            A(f"buffer_store_dwordx4 v[{G+4*qd}:{G+4*qd+3}], v{vO1}, {SRD_WS}, {sP1} offen offset:{qd*1024}" + (" sc1" if far else ""))
        if stamps:
            A("s_memrealtime s[94:95]")
        if wlate:
            A("s_waitcnt vmcnt(4)")
            A("s_barrier")
        A("s_branch L_leave")
    nstamp["n"] += 1 if stamps else 0
    A("L_not1:")
    A(f"s_cmp_ge_u32 {sW}, 2")
    A("s_cbranch_scc1 L_bwave")
    if wlate:
        A("s_waitcnt vmcnt(0)")
        A("s_barrier")
    A(f"s_mov_b32 {sT[9]}, {spin}")
    A(f"s_cmp_lt_u32 {sP}, 28")
    A("s_cbranch_scc0 L_final")

    A("; ---- wave 0, p < 28: sum one 16-column line over the 32 workgroups of this head, send it on")
    YG = 112
    if gateA:
        A("s_barrier")
    gather4("h2", YG, vH2, sH2, G, G + 2, False, sleep2)
    if stamps:
        A("s_memrealtime s[96:97]")
    allreduce("v_add_f32", [G, G + 2], vT, [8, 16, 32])
    if dry:
        A("s_cbranch_execz L_h2back")
    A("s_mov_b64 exec, 0xff")
    A(f"buffer_store_dwordx4 v[{G}:{G+3}], v{vO1}, {SRD_WS}, {sH2[4]} offen {st3}")
    A("s_branch L_done")

    A("L_final:")
    A(f"s_cmp_eq_u32 {sCONS}, 1")
    A("s_cbranch_scc0 L_done")
    if dry:
        A("s_mov_b64 exec, 0")
        A("s_branch L_h3ok")
        A("L_h3back:")
        A("s_mov_b64 exec, -1")
    A(f"v_and_b32 v{vT+14}, 1, {vL}")
    A(f"v_mul_u32_u24 v{vT+14}, {WS_EP2}, v{vT+14}")
    A("s_barrier")
    A(f"buffer_load_dword v{vXR}, v{vT+17}, {SRD_X}, 0 offen")
    if outpf:
        A(f"buffer_load_dword v{vT+12}, v{vT+17}, {SRD_OUT}, 0 offen")
        if epfl != "sc1":
            A(f"buffer_load_dword v{vT+13}, v{vT+14}, {SRD_WS}, 0 offen")
    for d in range(depth3 - 1):
        A(f"buffer_load_dwordx4 v[{YG+4*d}:{YG+4*d+3}], v{vO1}, {SRD_WS}, {sH2[5]} offen {ld3}")
    A("L_h3:")
    for d in range(depth3):
        n = (d + depth3 - 1) % depth3
        A(f"buffer_load_dwordx4 v[{YG+4*n}:{YG+4*n+3}], v{vO1}, {SRD_WS}, {sH2[5]} offen {ld3}")
        A(f"s_waitcnt vmcnt({depth3 - 1})")
        A(f"v_mov_b32 v{G}, v{YG+4*d}")
        A(f"v_mov_b32 v{G+2}, v{YG+4*d+2}")
        tagcheck([YG + 4 * d + 1, YG + 4 * d + 3], vT, vT + 1)
        A("s_cbranch_vccz L_h3ok")
    A(f"s_sub_u32 {sT[9]}, {sT[9]}, 1")
    A("s_cbranch_scc0 L_h3")
    A("L_h3ok:")
    if stamps:
        A("s_memrealtime s[98:99]")
    allreduce("v_add_f32", [G, G + 2], vT, [8, 16, 32])
    A(f"v_lshlrev_b32 v{vT+2}, 16, v{vXR}")
    A(f"v_and_b32 v{vT+3}, 0xffff0000, v{vXR}")
    A(f"v_add_f32 v{G}, v{G}, v{vT+2}")
    A(f"v_add_f32 v{G+2}, v{G+2}, v{vT+3}")
    if dry:
        A("s_cbranch_execz L_h3back")
    A("s_mov_b64 exec, 0xff")
    A(f"v_cvt_pk_bf16_f32 v{G}, v{G}, v{G+2}")
    A(f"buffer_store_dword v{G}, v{vT+17}, {SRD_OUT}, 0 offen {outfl}")
    if diag and diag != 7:
        if diag == 1:
            A("s_memrealtime s[86:87]")
        A("s_memrealtime s[88:89]")
        A("s_waitcnt lgkmcnt(0)")
        A("s_sub_u32 s86, s86, s84")
        A(f"s_mul_i32 s86, s86, {dmul}")
        A("s_add_u32 s86, s86, s88")
        A("L_diag:")
        A("s_memrealtime s[88:89]")
        A("s_waitcnt lgkmcnt(0)")
        A("s_sub_u32 s90, s88, s86")
        A("s_cmp_lt_i32 s90, 0")
        A("s_cbranch_scc1 L_diag")
    A("s_cmp_eq_u32 s2, 224")
    A("s_cbranch_scc0 L_done")
    A("s_mov_b64 exec, 3")
    A(f"buffer_store_dword v{G+1}, v{vT+14}, {SRD_WS}, 0 offen {epfl}")
    A("s_branch L_done")

    A("L_bwave:")
    if wafter:
        issue_weights()
    OG = 112

    def hop1_loads(fl="sc1"):
        for k in range(4):
            A(f"buffer_load_dwordx4 v[{OG+4*k}:{OG+4*k+3}], v{vH1}, {SRD_WS}, {sT[2+k]} offen {fl}")
    if plain1:
        A(f"s_cmp_eq_u32 {sLOC}, 1")
        A("s_cbranch_scc0 L_h1far")
        hop1_loads("")
        A("s_branch L_h1first")
        A("L_h1far:")
    hop1_loads()
    A("L_h1first:")
    if lateprep:
        c_wprep()
    A(f"s_mov_b32 {sT[9]}, {spin}")
    oa, ob = vT, vT + 1
    gather4("h1", OG, vH1, sT[2:6], oa, ob, True, sleep1)
    stamp()
    allreduce("v_add_f32", [oa, ob], vT + 2, [8, 16, 32])
    A(f"v_cvt_pk_bf16_f32 v{oa}, v{oa}, v{ob}")
    A("s_nop 0")
    for k in range(8):
        A(f"v_readlane_b32 s{10+k}, v{oa}, {k}")
    for cp in range(2):
        for k in range(8):
            for c in (2 * cp, 2 * cp + 1):
                A(f"v_dot2_f32_bf16 v{Y+2*c}, s{10+k}, v{PW+4*k+c}, v{Y+2*c}")
    if dry:
        A("s_cbranch_execz L_h1back")
    A(f"s_cmp_eq_u32 {sLOC}, 1")
    A("s_cbranch_scc0 L_far2")
    A(f"buffer_store_dwordx4 v[{Y}:{Y+3}], v{vOO}, {SRD_WS}, {sP2} offen")
    A(f"buffer_store_dwordx4 v[{Y+4}:{Y+7}], v{vOO}, {SRD_WS}, {sP2} offen offset:1792")
    A("s_branch L_sent2")
    A("L_far2:")
    A(f"buffer_store_dwordx4 v[{Y}:{Y+3}], v{vOO}, {SRD_WS}, {sP2} offen sc1")
    A(f"buffer_store_dwordx4 v[{Y+4}:{Y+7}], v{vOO}, {SRD_WS}, {sP2} offen offset:1792 sc1")
    A("L_sent2:")
    stamp()
    A("L_leave:")
    if not gateA:
        A(f"s_cmp_eq_u32 {sCONS}, 1")
        A("s_cbranch_scc0 L_done")
    A("s_barrier")
    A("L_done:")
    if diag == 7:
        A("s_cmp_lt_u32 s2, 92")
        A("s_cbranch_scc0 L_end")
        A("s_memrealtime s[88:89]")
        A("s_waitcnt lgkmcnt(0)")
        A("s_sub_u32 s86, s86, s84")
        A(f"s_mul_i32 s86, s86, {dmul}")
        A("s_add_u32 s86, s86, s88")
        A("L_diag7:")
        A("s_memrealtime s[88:89]")
        A("s_waitcnt lgkmcnt(0)")
        A("s_sub_u32 s90, s88, s86")
        A("s_cmp_lt_i32 s90, 0")
        A("s_cbranch_scc1 L_diag7")
    if stamps:
        A("s_mov_b64 exec, -1")
        A("s_memrealtime s[100:101]")
        A("s_waitcnt lgkmcnt(0)")
        A(f"s_lshl_b32 {sT[0]}, s2, 2")
        A(f"s_add_u32 {sT[0]}, {sT[0]}, {sW}")
        A(f"s_lshl_b32 {sT[1]}, {sT[0]}, 8")
        A(f"s_lshl_b32 {sT[0]}, {sT[0]}, 6")
        A(f"s_add_u32 {sT[0]}, {sT[0]}, {WS_STAMP}")
        A(f"s_add_u32 {sT[1]}, {sT[1]}, {WS_STAMP + 0x10000}")
        A(f"v_lshlrev_b32 v2, 2, {vL}")
        A(f"buffer_store_dword v252, v2, {SRD_WS}, {sT[1]} offen")
        A("v_mov_b32 v2, 0")
        A("s_mov_b64 exec, 1")
        A("v_mov_b32 v3, s26")
        A(f"buffer_store_dword v3, v2, {SRD_WS}, {sT[0]} offen offset:44")
        for k in range(9):
            A(f"v_mov_b32 v3, s{84+2*k}")
            A(f"buffer_store_dword v3, v2, {SRD_WS}, {sT[0]} offen offset:{4*k}")
        A("s_getreg_b32 s84, hwreg(HW_REG_XCC_ID)")
        A("v_mov_b32 v3, s84")
        A(f"buffer_store_dword v3, v2, {SRD_WS}, {sT[0]} offen offset:36")
        A(f"v_mov_b32 v3, {sT[9]}")
        A(f"buffer_store_dword v3, v2, {SRD_WS}, {sT[0]} offen offset:40")
    A("L_end:")
    A("s_endpgm")
    body = "\n".join(("" if l.endswith(":") else "    ") + l for l in o)
    head = HEADER.format(lds=LDS, k=kern).replace("; One launch, 256 workgroups (one per CU), 4 waves each.  Generated by dev/gen.py.\n", DOC)
    return head + body + FOOTER.format(k=kern)


if __name__ == "__main__":
    out = sys.argv[1]
    kw = json.loads(sys.argv[2]) if len(sys.argv) > 2 else {}
    open(out, "w").write(gen(**kw))
```

```python
import sys, json, math, struct
from gen import HEADER, FOOTER, KERN, f2u, LOG2E_16

WS_QG = 0x1000
WS_HG = WS_QG + 0x4000
WS_ML = 0x8000
WS_RK = 0xA000
WS_RDY = 0xC000
WS_CNT = 0x200000
WS_P1O = 0x10000
WS_P2 = 0x110000
WS_P3 = 0x1F0000
WS_EP2 = 0x1FF000
WS_STAMP = 0x300000
WS_SIZE = 0x400000

DOC = '; ---------------------------------------------------------------------------------------------------------\n;\n; One launch, 256 workgroups (one per CU, LDS-limited), 4 waves each; head = wg & 7, p = wg >> 3.\n;  * Every wave streams 16 K tiles, then the 16 matching V tiles (16 keys = 8 KB each) with LDS-DMA into a\n;  * Hand-offs between workgroups go through d_ws as 8-byte {data, tag} granules; the tag is derived from two\n;    words the previous launch left, so stale contents never match.  Hand-offs inside a head use ordinary\n;    stores only when all 32 workgroups report the same XCC id, otherwise write-through (sc1) stores.\n; ---------------------------------------------------------------------------------------------------------\n'


def gen(R=3, N=5, N0=8, Nend=12, tail=7, NB=8, NP=6, bits="i0 w0 w1 i1 i2 g3 g4 t2 t3 x0 x1 x2 t0 t1",
        kflags="nt", vflags="nt", wflags="nt", stamps=0, spin=4000000, vpub=5, vgat=9, wpos=0, flat2=False, gate2=False, kopen=None, lateprep=True, pre1=None, pre2=None, plain1=False, touch="sc1", tpos=0, codepf=True, tlbpf=True, outpf=True, nn=None, ext=None, depth3=4, touch2=True, now=False, wafter=False, wat=None, tat=None, al12=True, pgpf=False, repf=(), dead=0, wtouch=False, jit=0, diag=0, dmul=1, dry=False, w2at=None, pad=0, gateA=False, st3="sc1", ld3="sc1", bb=None, N2=8, iw=None, ra=((8, 14, 6, 24, 6), (11, 14, 6, 24, 6), (14, 16, 6, 26, 6), (17, 18, 6, 26, 6), (20, 18, 6, 26, 6), (23, 18, 6, 26, 6), (26, 18, 6, 26, 6)), raws=True, nk=1, ng=8, bump=(), epfl="", outfl="", pipe=False, skipw=True, wlate=None, wtlb=None, wdma=None, rk=((64, 20, 4, 0, 0), (186, 18, 5, 0, 0)), rkw=1, Nhi=6, Nlo=4, sleep1=0, sleep2=0,
        alt=None, X=7, Np=12, B0=6, Xp=None, il=0, Np2=9, zmap="wg", rot=True, hmap="mod8", local=True,
        kern=KERN):
    noend = noml = False
    assert not wdma and wlate is None
    if ra:
        rk = ()
        assert len(ra) * ng <= 128 and raws
    ctl = list(rk) + list(ra)
    wearly = 0
    T = 8
    tb = T * 1024
    S = 16
    if "h" not in bits.split():
        bits = "h " + bits
    pos = {n: 9 + k for k, n in enumerate(bits.split())}
    genh = pos["h"] != 9
    RING = 4 * R * tb
    STG = RING
    QW = STG + 57344
    LML = QW + 4096
    FIN = LML + 128
    PRG = FIN + 256
    LDS = PRG + (1024 if iw else 0)
    assert LDS <= 163840 and LDS > 81920
    if Xp is None:
        Xp = X * T

    o = []
    A = o.append
    vm = {"n": 0, "known": 0}

    def VM(s):
        A(s)
        vm["n"] += 1
        return vm["n"]

    def wait_vm(idx, force=False):
        if idx <= vm["known"] and not force:
            return
        n = vm["n"] - idx
        assert 0 <= n <= 63, n
        A(f"s_waitcnt vmcnt({n})")
        if vm.get("opt") and idx < vm["optend"]:
            assert idx <= vm["optend"] - vm["opt"]
            vm["lbl"] = vm.get("lbl", 0) + 1
            A(f"s_cmp_ge_u32 s3, 2")
            A(f"s_cbranch_scc1 L_ow{vm['lbl']}")
            A(f"s_waitcnt vmcnt({n - vm['opt']})")
            A(f"L_ow{vm['lbl']}:")
        vm["known"] = max(vm["known"], idx)

    nstamp = {"n": 0}

    def stamp(mode=1):
        if stamps and (int(stamps) & mode):
            k = nstamp["n"]
            assert k < 8
            A(f"s_memrealtime s[{84+2*k}:{85+2*k}]")
            nstamp["n"] += 1

    SRD_K, SRD_V, SRD_W, SRD_WO, SRD_W2, SRD_WS, SRD_X, SRD_OUT = ("s[28:31]", "s[32:35]", "s[36:39]", "s[40:43]",
                                                                     "s[44:47]", "s[48:51]", "s[52:55]", "s[56:59]")
    sW, sH, sP, sTAG, sRING, sBASE, sC, sF = "s3", "s60", "s61", "s62", "s63", "s64", "s65", "s66"
    sOFF = "s67"
    sZ = "s27"
    sT = ["s72", "s73", "s74", "s75", "s76", "s77", "s78", "s79", "s80", "s81"]
    vL = "v1"
    vSRC = [2, 3, 4, 5]
    vKA = [6, 7, 8, 9]
    vVA = list(range(10, 18))
    vMAX, vMS = 18, 19
    vPF, vLS, vS, vE = 20, 24, 24, 28
    vVT = 32
    sLOC, sXCC = "s82", "s83"
    sWE, sNE = "s16", "s17"
    vPW, vPR, vPD = (22, 23, 255) if False else (252, 253, 255)
    if stamps and iw:
        vPW, vPR = 250, 251
    vQ, vTL, vACC, vSC, vT = 32, 64, 96, 160, 224
    vH = 244

    def mk_tag(dst):
        A(f"s_lshl1_add_u32 {dst}, s27, {sTAG}")
        A(f"s_mul_i32 {dst}, {dst}, 1664525")
        A(f"s_add_u32 {dst}, {dst}, 1013904223")

    def srd(base, lo, size):
        A(f"s_mov_b32 s{base}, s{lo}")
        A(f"s_mov_b32 s{base+1}, s{lo+1}")
        A(f"s_mov_b32 s{base+2}, {size}")
        A(f"s_mov_b32 s{base+3}, 0x20000")

    assert hmap == "mod8" and zmap == "wg" and not il
    sZ = "s2"
    A("L_c0:")
    A("s_load_dwordx2 s[28:29], s[0:1], 8")
    A("s_load_dwordx16 s[4:19], s[0:1], 0")
    A("s_load_dwordx4 s[20:23], s[0:1], 64")
    A("s_load_dwordx2 s[24:25], s[0:1], 80")
    stamp(3)
    if diag:
        A("s_memrealtime s[84:85]")
    A("v_lshrrev_b32 v30, 6, v0")
    A("s_cmp_lt_u32 s2, 92")
    A("s_cbranch_scc1 L_producer")
    A("s_cmp_ge_u32 s2, 256")
    A("s_cbranch_scc1 L_end")

    def put(src, names):
        k = 0
        while k < len(names):
            e = k
            while e + 1 < len(names) and pos[names[e + 1]] == pos[names[e]] + 1:
                e += 1
            if k == 0 and e == len(names) - 1:
                A(f"s_lshl_b32 {sT[2]}, {src}, {pos[names[0]]}")
            else:
                A(f"s_bfe_u32 {sT[2]}, {src}, {((e - k + 1) << 16) | k}")
                A(f"s_lshl_b32 {sT[2]}, {sT[2]}, {pos[names[k]]}")
            A(f"s_or_b32 {sBASE}, {sBASE}, {sT[2]}")
            k = e + 1

    def common0():
        A(f"v_and_b32 {vL}, 63, v0")
        A("v_readfirstlane_b32 s3, v30")
        A(f"s_and_b32 {sH}, s2, 7")
        A(f"s_lshr_b32 {sP}, s2, 3")
        A(f"s_and_b32 {sT[0]}, {sP}, 7")
        A(f"s_lshr_b32 {sT[1]}, s2, 6")
        A(f"s_lshl_b32 {sBASE}, {sH}, 24")
        put(sT[0], ["x0", "x1", "x2"])
        put(sT[1], ["g3", "g4"])
        put(sW, ["w0", "w1"])
        A(f"s_mul_i32 {sRING}, {sW}, {R*tb}")
        A("s_brev_b32 s30, 16")
        A("s_mov_b32 s31, 0x20000")
        A(f"v_lshlrev_b32 v29, 4, {vL}")
        A(f"v_and_b32 v31, 32, {vL}")
        A(f"v_xor_b32 v{vSRC[0]}, v29, v31")
        if genh:
            A(f"v_and_b32 v{vSRC[0]}, 0x1ff, v{vSRC[0]}")
            A(f"v_lshl_add_u32 v{vSRC[0]}, v31, {pos['h'] - 5}, v{vSRC[0]}")
        A(f"v_xor_b32 v{vSRC[1]}, 64, v{vSRC[0]}")
        A(f"v_xor_b32 v{vSRC[2]}, 0x80, v{vSRC[0]}")
        A(f"v_xor_b32 v{vSRC[3]}, 64, v{vSRC[2]}")

    def common1():
        A(f"s_mov_b32 {sC}, 0x{f2u(LOG2E_16):08x}")
        A(f"s_min_u32 {sF}, s2, 223")

    def producer0():
        A("s_mov_b32 s39, 0x20000")
        A(f"s_cmp_lt_u32 {sZ}, 64")
        A(f"s_mov_b32 s38, {448*1792*2}")
        A(f"s_cmov_b32 s38, {448*4096*2}")
        A(f"s_movk_i32 {sT[4]}, 3584")
        A(f"s_cmovk_i32 {sT[4]}, 8192")
        A(f"s_and_b32 {sT[5]}, {sZ}, 63")
        A(f"s_lshl_b32 {sT[5]}, {sT[5]}, 7")
        A(f"s_mul_i32 {sT[6]}, {sW}, {sT[4]}")
        A(f"s_mulk_i32 {sT[6]}, 112")
        A(f"s_add_u32 {sT[5]}, {sT[5]}, {sT[6]}")
        A(f"v_lshrrev_b32 v30, 3, {vL}")
        A(f"v_mul_u32_u24 v30, {sT[4]}, v30")
        A(f"v_and_b32 v31, 0x70, v29")
        A("v_add_u32 v21, v31, v30")
        A(f"s_lshl_b32 {sT[4]}, {sT[4]}, 3")
        A(f"s_mul_i32 {sT[6]}, {sW}, 14336")
        A(f"s_add_u32 {sT[6]}, {sT[6]}, {STG}")
        A("s_movk_i32 s54, 896")
        A("s_mov_b32 s55, s39")
        A(f"s_movk_i32 {sT[3]}, 14")
        A("s_waitcnt lgkmcnt(0)")
        A("s_mov_b64 s[52:53], s[4:5]")
        A(f"s_cmp_lt_u32 {sZ}, 64")
        A("s_cselect_b64 s[36:37], s[10:11], s[16:17]")
        if wtouch:
            A(f"s_load_dword {sLOC}, s[36:37], {sT[5]}")
            A(f"s_load_dword {sXCC}, s[28:29], {sBASE}")

    seq = [("K", n) for n in range(S)] + [("V", n) for n in range(S)]
    NL = len(seq) * T
    lidx = {}

    m0bad = {"v": False}

    def issue_load(L):
        j, i = divmod(L, T)
        kind, n = seq[j]
        if i % 4 and m0bad["v"]:
            A(f"s_add_u32 m0, {sRING}, {(j % R)*tb + (i // 4)*4096}")
            A("s_nop 0")
        m0bad["v"] = False
        def goff(i_):
            return (sum(((n >> k) & 1) << pos[f"t{k}"] for k in range(4)) +
                    sum(((i_ >> k) & 1) << pos[f"i{k}"] for k in range(3)) - (i_ % 4) * 1024)
        srd_, fl = (SRD_K, kflags) if kind == "K" else (SRD_V, vflags)
        if genh:
            A(f"s_add_u32 m0, {sRING}, {(j % R)*tb + i*1024}")
            A(f"s_add_u32 {sOFF}, {sBASE}, {goff(i) + (i % 4)*1024}")
            lidx[L] = VM(f"buffer_load_dwordx4 v{vSRC[i%4]}, {srd_}, {sOFF} offen {fl} lds")
            return
        if i % 4 == 0:
            A(f"s_add_u32 m0, {sRING}, {(j % R)*tb + i*1024}")
        if i % 4 == 0 or goff(i) != goff(i - 1):
            A(f"s_add_u32 {sOFF}, {sBASE}, {goff(i)}")
        lidx[L] = VM(f"buffer_load_dwordx4 v{vSRC[i%4]}, {srd_}, {sOFF} offen offset:{(i%4)*1024} {fl} lds")

    npf = {"n": 0}

    LFLAG = 0x600DF1A6

    def setup():
        A(f"s_lshl_b32 {sT[2]}, {sW}, 5")
        A(f"s_add_u32 {sT[2]}, {sT[2]}, {LML}")
        A(f"v_lshlrev_b32 v29, 2, {vL}")
        A(f"v_add_u32 v29, {sT[2]}, v29")
        A("v_mov_b32 v30, 0")
        A("s_mov_b64 exec, 0xff")
        A("ds_write_b32 v29, v30")
        if ctl:
            A("ds_write_b32 v29, v30 offset:128")
        A("s_mov_b64 exec, -1")
        if iw:
            A(f"v_lshlrev_b32 v{vPW}, 2, v0")
            A(f"v_add_u32 v{vPW}, {PRG}, v{vPW}")
            A(f"ds_write_b32 v{vPW}, v30")
            A(f"v_and_b32 v{vPR}, 3, {vL}")
            A(f"v_lshlrev_b32 v{vPR}, 8, v{vPR}")
            A(f"v_add_u32 v{vPR}, {PRG}, v{vPR}")
        A("s_waitcnt lgkmcnt(0)")
        A("s_barrier")
        A(f"s_load_dword {sTAG}, s[24:25], 0")
        A(f"s_mov_b32 {sT[2]}, {WS_EP2}")
        A(f"s_load_dword s27, s[24:25], {sT[2]}")
        if tlbpf:
            A(f"s_lshr_b32 {sT[2]}, s2, 3")
            A(f"s_lshl_b32 {sT[2]}, {sT[2]}, 2")
            A(f"s_add_u32 {sT[2]}, {sT[2]}, {sW}")
            A(f"s_bitcmp1_b32 {sT[2]}, 3")
            A("s_cselect_b32 s70, s8, s6")
            A("s_cselect_b32 s71, s9, s7")
            A(f"s_and_b32 {sT[7]}, {sT[2]}, 7")
            A(f"s_lshl_b32 {sT[7]}, {sT[7]}, 21")
            A(f"s_lshl_b32 {sT[8]}, {sH}, 24")
            A(f"s_add_u32 {sT[7]}, {sT[7]}, {sT[8]}")
            A(f"s_lshl_b32 {sT[8]}, {sT[2]}, 7")
            A(f"s_add_u32 {sT[7]}, {sT[7]}, {sT[8]}")
            A(f"s_add_u32 s70, s70, {sT[7]}")
            A("s_addc_u32 s71, s71, 0")
            A(f"s_load_dword {sLOC}, s[70:71], 0x0")
            A(f"s_bitcmp1_b32 {sW}, 0")
            A("s_cselect_b32 s70, s12, s18")
            A("s_cselect_b32 s71, s13, s19")
            A(f"s_mov_b32 {sT[7]}, 6272")
            A(f"s_cmov_b32 {sT[7]}, 14336")
            A(f"s_mul_i32 {sT[7]}, {sT[7]}, s2")
            A(f"s_add_u32 s70, s70, {sT[7]}")
            A("s_addc_u32 s71, s71, 0")
            A(f"s_load_dword s21, s[70:71], 0x0" if False else f"s_load_dword {sXCC}, s[70:71], 0x0")
        if codepf:
            k = npf["n"]
            npf["n"] += 1
            A(f"s_getpc_b64 s[68:69]")
            A(f"L_pf{k}:")
            A(f"s_lshr_b32 {sT[2]}, s2, 3")
            A(f"s_lshl_b32 {sT[2]}, {sT[2]}, 2")
            A(f"s_add_u32 {sT[2]}, {sT[2]}, {sW}")
            A(f"s_lshl_b32 {sT[2]}, {sT[2]}, 8")
            A(f"s_min_u32 {sT[2]}, {sT[2]}, L_end-L_c0-128")
            A(f"s_sub_u32 s68, s68, L_pf{k}-L_c0")
            A("s_subb_u32 s69, s69, 0")
            A(f"s_add_u32 s68, s68, {sT[2]}")
            A("s_addc_u32 s69, s69, 0")
            A(f"s_load_dword {sLOC}, s[68:69], 0x0")
            A(f"s_load_dword {sLOC}, s[68:69], 0x80")
            if pgpf:
                A(f"s_sub_u32 s68, s68, {sT[2]}")
                A("s_subb_u32 s69, s69, 0")
                A(f"s_lshl_b32 {sT[2]}, {sW}, 13")
                A(f"s_min_u32 {sT[2]}, {sT[2]}, L_end-L_c0-4096")
                A(f"s_add_u32 s68, s68, {sT[2]}")
                A("s_addc_u32 s69, s69, 0")
                A(f"s_load_dword {sLOC}, s[68:69], 0x0")
                A(f"s_load_dword {sLOC}, s[68:69], 0x1000")
        srd(32, 8, 128 << 20)
        srd(40, 12, 4096 * 448 * 2)
        srd(44, 18, 1792 * 448 * 2)
        srd(48, 24, WS_SIZE)
        srd(56, 20, 896)
        if stamps:
            A("s_mov_b32 s26, 0")
            A("v_mov_b32 v252, 0")
            for k in (5, 6, 7):
                A(f"s_mov_b32 s{84+2*k}, s84")
        A(f"v_and_b32 v29, 15, {vL}")
        A(f"v_lshrrev_b32 v30, 4, {vL}")
        A("v_and_b32 v31, 7, v29")
        A("v_lshlrev_b32 v31, 1, v31")
        A("v_xor_b32 v31, v31, v30")
        A("v_lshlrev_b32 v31, 4, v31")
        A("v_lshl_add_u32 v31, v29, 9, v31")
        for j in range(4):
            A(f"v_xor_b32 v{vKA[j]}, {j*64}, v31")
            A(f"v_add_u32 v{vKA[j]}, {sRING}, v{vKA[j]}")
        A(f"v_bfe_u32 v29, {vL}, 2, 2")
        A(f"v_lshrrev_b32 v30, 4, {vL}")
        A("v_xor_b32 v30, v30, v29")
        A(f"v_and_b32 v31, 3, {vL}")
        A("v_lshlrev_b32 v31, 3, v31")
        A("v_lshl_add_u32 v31, v30, 5, v31")
        A("v_lshl_add_u32 v31, v29, 9, v31")
        A(f"v_add_u32 v{vVA[0]}, {sRING}, v31")
        A(f"v_mov_b32 v{vMAX}, 0xff800000")
        if ra:
            A(f"s_and_b32 s14, {sP}, {nk-1}")
            if raws:
                A(f"s_and_b32 s15, {sP}, {ng-1}")
                A("s_mul_i32 s15, s15, 4352")
                A(f"s_add_u32 s15, s15, {WS_CNT}")
                A("s_add_u32 s22, s24, s15")
                A("s_addc_u32 s23, s25, 0")
            else:
                A(f"s_bfe_u32 s15, {sP}, 0x20002")
                A("s_lshl_b32 s15, s15, 4")
                A("s_add_u32 s15, s15, s14")
                A("s_lshl_b32 s15, s15, 2")
                A("s_add_u32 s22, s22, s15")
                A("s_addc_u32 s23, s23, 0")
            A(f"s_cmp_eq_u32 {sW}, {rkw}")
            A("s_cselect_b32 s14, s14, 15")
        if ctl:
            A(f"s_mov_b32 {sWE}, 0")
            A(f"s_mov_b32 {sNE}, 0")
            A(f"v_mov_b32 v254, {FIN}")

    def allreduce(op, regs, tmp, steps):
        for st in steps:
            if st <= 8:
                if len(regs) < 3:
                    A(f"s_nop {2-len(regs)}")
                for r in regs:
                    A(f"{op}_dpp v{r}, v{r}, v{r} row_ror:{st} row_mask:0xf bank_mask:0xf")
            else:
                for k, r in enumerate(regs):
                    A(f"v_mov_b32 v{tmp+k}, v{r}")
                if len(regs) < 3:
                    A(f"s_nop {2-len(regs)}")
                for k, r in enumerate(regs):
                    A(f"v_permlane{st}_swap_b32 v{r}, v{tmp+k}")
                if len(regs) < 2:
                    A("s_nop 0")
                for k, r in enumerate(regs):
                    A(f"{op} v{r}, v{r}, v{tmp+k}")

    XU = vT + 4
    a, b, c_, d_ = vT + 12, vT + 13, vT + 14, vT + 15
    XF, WF = 96, 152
    st = {}

    def side0():
        A("; layer norm with the reference rounding steps")
        wait_vm(st["x"])
        stamp(2)
        for i in range(4):
            A(f"v_lshlrev_b32 v{XU+2*i}, 16, v{vT+i}")
            A(f"v_and_b32 v{XU+2*i+1}, 0xffff0000, v{vT+i}")
        A(f"v_add_f32 v{a}, v{XU}, v{XU+1}")
        for i in range(2, 8):
            A(f"v_add_f32 v{a}, v{a}, v{XU+i}")
        allreduce("v_add_f32", [a], b, [1, 2, 4, 8, 16, 32])

    def side1():
        A(f"v_mul_f32 v{a}, 0x{f2u(1.0/448):08x}, v{a}")
        A(f"v_mov_b32 v{b}, 0")
        for i in range(8):
            A(f"v_sub_f32 v{c_}, v{XU+i}, v{a}")
            A(f"v_fmac_f32 v{b}, v{c_}, v{c_}")
        A(f"v_cmp_gt_u32 vcc, 56, {vL}")
        A("s_nop 1")
        A(f"v_cndmask_b32 v{b}, 0, v{b}, vcc")
        allreduce("v_add_f32", [b], c_, [1, 2, 4, 8, 16, 32])

    def side2():
        A(f"v_mul_f32 v{b}, 0x{f2u(1.0/448):08x}, v{b}")
        A(f"v_cvt_pk_bf16_f32 v{c_}, v{a}, v{b}")
        A(f"v_lshlrev_b32 v{a}, 16, v{c_}")
        A(f"v_and_b32 v{b}, 0xffff0000, v{c_}")
        A(f"v_add_f32 v{b}, 0x{f2u(1e-5):08x}, v{b}")
        A(f"v_cvt_pk_bf16_f32 v{b}, v{b}, v{b}")
        A(f"v_and_b32 v{b}, 0xffff0000, v{b}")
        A(f"v_sqrt_f32 v{b}, v{b}")
        A("s_nop 0")
        A(f"v_cvt_pk_bf16_f32 v{b}, v{b}, v{b}")
        A(f"v_and_b32 v{b}, 0xffff0000, v{b}")
        A(f"v_rcp_f32 v{b}, v{b}")

    def side3():
        for i in range(8):
            A(f"v_sub_f32 v{XU+i}, v{XU+i}, v{a}")
        for i in range(4):
            A(f"v_cvt_pk_bf16_f32 v{vT+i}, v{XU+2*i}, v{XU+2*i+1}")
        for i in range(4):
            A(f"v_lshlrev_b32 v{XU+2*i}, 16, v{vT+i}")
            A(f"v_and_b32 v{XU+2*i+1}, 0xffff0000, v{vT+i}")
        for i in range(8):
            A(f"v_mul_f32 v{XU+i}, v{XU+i}, v{b}")
        for i in range(4):
            A(f"v_cvt_pk_bf16_f32 v{vT+i}, v{XU+2*i}, v{XU+2*i+1}")
        A(f"s_lshl_b32 {sT[0]}, {sW}, 10")
        A(f"s_add_u32 {sT[0]}, {sT[0]}, {QW}")
        A(f"v_lshlrev_b32 v{a}, 4, {vL}")
        A(f"v_add_u32 v{a}, {sT[0]}, v{a}")
        A(f"ds_write_b128 v{a}, v[{vT}:{vT+3}]")
        A(f"v_lshrrev_b32 v{b}, 4, {vL}")
        A(f"v_lshlrev_b32 v{c_}, 4, v{b}")
        A(f"v_add_u32 v{c_}, {sT[0]}, v{c_}")

    def side4():
        A("s_waitcnt lgkmcnt(0)")
        for i in range(14):
            A(f"ds_read_b128 v[{XF+4*i}:{XF+4*i+3}], v{c_} offset:{i*64}")
        A(f"v_lshlrev_b32 v{b}, 10, v{b}")
        A(f"v_bfe_u32 v{d_}, {vL}, 2, 2")
        A(f"v_lshl_add_u32 v{b}, v{d_}, 7, v{b}")
        A(f"v_and_b32 v{d_}, 3, {vL}")
        A(f"v_lshl_add_u32 v{b}, v{d_}, 3, v{b}")
        A(f"s_lshl_b32 {sT[1]}, {sW}, 5")
        A(f"s_add_u32 {sT[1]}, {sT[1]}, {STG}")
        A(f"v_add_u32 v{b}, {sT[1]}, v{b}")
        mk_tag(f"{sT[2]}")

    def side5():
        stamp(2)
        wait_vm(st["stg"])
        A("s_waitcnt lgkmcnt(0)")
        A("s_barrier")
        if diag == 7:
            A("s_memrealtime s[86:87]")
        stamp(2)
        for i in range(14):
            A(f"ds_read_b64_tr_b16 v[{WF+4*i}:{WF+4*i+1}], v{b} offset:{i*4096}")
            A(f"ds_read_b64_tr_b16 v[{WF+4*i+2}:{WF+4*i+3}], v{b} offset:{i*4096+512}")

    def side6():
        A(f"v_and_b32 v{d_}, 15, {vL}")
        A(f"v_cmp_eq_u32 s[70:71], 0, v{d_}")
        A(f"v_lshrrev_b32 v{a}, 4, {vL}")
        A(f"v_lshlrev_b32 v{a}, 4, v{a}")
        A(f"v_mov_b32 v{vT+1}, {sT[2]}")
        A(f"v_mov_b32 v{vT+3}, {sT[2]}")
        A(f"s_lshl_b32 {sT[0]}, {sZ}, 2")
        A(f"s_add_u32 {sT[0]}, {sT[0]}, {sW}")
        A(f"s_lshl_b32 {sT[0]}, {sT[0]}, 6")
        A(f"s_add_u32 {sT[0]}, {sT[0]}, {WS_QG}")
        A(f"s_cmp_lt_u32 {sZ}, 64")
        A(f"s_cselect_b32 {sT[1]}, 0xff800000, 0")

    def side7():
        A("s_waitcnt lgkmcnt(0)")
        for i in range(14):
            A(f"v_mfma_f32_16x16x32_bf16 v[{vS}:{vS+3}], v[{WF+4*i}:{WF+4*i+3}], v[{XF+4*i}:{XF+4*i+3}], " +
              ("0" if i == 0 else f"v[{vS}:{vS+3}]"))

    def side8():
        A("s_nop 7")
        for i in range(4):
            A(f"v_max_f32 v{vS+i}, {sT[1]}, v{vS+i}")
        A(f"v_cvt_pk_bf16_f32 v{vT}, v{vS}, v{vS+1}")
        A(f"v_cvt_pk_bf16_f32 v{vT+2}, v{vS+2}, v{vS+3}")
        A("s_mov_b64 exec, s[70:71]")
        A(f"buffer_store_dwordx4 v[{vT}:{vT+3}], v{a}, {SRD_WS}, {sT[0]} offen sc1")
        A("s_mov_b64 exec, -1")

    side_chunks = [side0, side1, side2, side3, side4, side5, side6, side7, side8]

    def tile_stamp_a():
        if stamps:
            A("s_memrealtime s[100:101]")
        if st.get("rk_on") and not st.get("rk_off"):
            A(f"ds_read_b64 v[{vT+18}:{vT+19}], v254")
            if iw:
                A(f"ds_read_b32 v{vPD}, v{vPR}")
                st["iw_own"] = st["iw_last"]
            st["rk_rd"] = True

    def lds_wait(tile=False):
        A("s_waitcnt lgkmcnt(0)")
        if st.get("rk_rd"):
            A(f"v_readfirstlane_b32 {sWE}, v{vT+18}")
            A(f"v_readfirstlane_b32 {sNE}, v{vT+19}")
            if bb and st["tc"] >= bb[0]:
                A(f"s_cmp_ge_u32 {sW}, 2")
                A(f"s_cmovk_i32 {sWE if bb[1] == 1 else sNE}, 0x100")
            if iw:
                th, gain, thn, gn = iw
                A(f"v_add_u32_dpp v{vPD}, v{vPD}, v{vPD} quad_perm:[1,0,3,2] row_mask:0xf bank_mask:0xf")
                A("s_nop 1")
                A(f"v_add_u32_dpp v{vPD}, v{vPD}, v{vPD} quad_perm:[2,3,0,1] row_mask:0xf bank_mask:0xf")
                A("s_nop 0")
                A(f"v_readfirstlane_b32 s19, v{vPD}")
                A(f"s_sub_i32 s19, s19, {4*st['iw_own']}")
                A(f"s_mul_i32 s13, s19, {gain}")
                A(f"s_add_i32 s13, s13, {st['L']}")
                A(f"s_cmp_ge_i32 s19, {th}")
                A("s_cselect_b32 s13, s13, 0")
                A(f"s_max_u32 {sWE}, {sWE}, s13")
                if thn:
                    A(f"s_mul_i32 s13, s19, {-gn}")
                    A(f"s_add_i32 s13, s13, {st['L']}")
                    A(f"s_cmp_le_i32 s19, {-thn}")
                    A("s_cselect_b32 s13, s13, 0")
                    A(f"s_cselect_b32 {sWE}, 0, {sWE}")
                    A(f"s_max_u32 {sNE}, {sNE}, s13")
            st["rk_rd"] = False
        if tile and "tc" in st:
            j = st["tc"]
            st["tc"] += 1
            if j in repf:
                A(f"s_getpc_b64 s[12:13]")
                A(f"L_rp{j}:")
                A(f"s_lshl_b32 s19, {sP}, 2")
                A(f"s_add_u32 s19, s19, {sW}")
                A("s_lshl_b32 s19, s19, 7")
                A(f"s_min_u32 s19, s19, L_end-L_rp{j}")
                A("s_load_dword s15, s[12:13], s19")
            for c, r_ in enumerate(ra):
                if 1 <= j - r_[0] <= nk:
                    c_rkdecide(c, st["L"], j - r_[0] - 1)
            for c, r_ in enumerate(ra):
                if 0 <= j - r_[0] < nk:
                    assert st.get("rdy"), "probe before the ready check"
                    A(f"s_cmp_eq_u32 s14, {j - r_[0]}")
                    A(f"s_cbranch_scc0 L_ra{c}_{j}")
                    A("s_mov_b32 s18, 1")
                    A(f"s_atomic_add s18, s[22:23], {ng*4352*c} glc")
                    A(f"L_ra{c}_{j}:")
        if stamps and tile:
            A("v_mov_b32 v253, s100")
            A(f"v_cmp_eq_u32 vcc, s26, {vL}")
            A("s_add_u32 s26, s26, 1")
            A("s_nop 0")
            A("v_cndmask_b32 v252, v252, v253, vcc")

    def read_k(dst, slot_imm, acc=False):
        tile_stamp_a()
        p = "a" if acc else "v"
        for j in range(8):
            A(f"ds_read_b128 {p}[{dst+4*j}:{dst+4*j+3}], v{vKA[j%4]} offset:{slot_imm + (j//4)*256}")

    def qk_mfma(src, acc):
        p = "a" if acc else "v"
        for j in range(8):
            A(f"v_mfma_f32_16x16x32_bf16 v[{vS}:{vS+3}], {p}[{src+4*j}:{src+4*j+3}], v[{vQ+4*j}:{vQ+4*j+3}], " +
              ("0" if j == 0 else f"v[{vS}:{vS+3}]"))

    def qk_post(sc):
        A("s_nop 7")
        A(f"v_cvt_pk_bf16_f32 v{sc+1}, v{vS}, v{vS+1}")
        A(f"v_cvt_pk_bf16_f32 v{sc+3}, v{vS+2}, v{vS+3}")
        A(f"v_lshlrev_b32 v{sc}, 16, v{sc+1}")
        A(f"v_and_b32 v{sc+1}, 0xffff0000, v{sc+1}")
        A(f"v_lshlrev_b32 v{sc+2}, 16, v{sc+3}")
        A(f"v_and_b32 v{sc+3}, 0xffff0000, v{sc+3}")
        A(f"v_max3_f32 v{vMAX}, v{sc}, v{sc+1}, v{vMAX}")
        A(f"v_max3_f32 v{vMAX}, v{sc+2}, v{sc+3}, v{vMAX}")

    def q_poll(emit):
        emit(f"buffer_load_dwordx4 v[{vT}:{vT+3}], v{vT+8}, {SRD_WS}, {sT[8]} offen sc1")
        emit(f"buffer_load_dwordx4 v[{vT+4}:{vT+7}], v{vT+8}, {SRD_WS}, {sT[8]} offen offset:1024 sc1")
        emit(f"buffer_load_dwordx4 v[{vH}:{vH+3}], off, {SRD_WS}, {sT[7]} sc1")
        return emit(f"buffer_load_dwordx4 v[{vH+4}:{vH+7}], off, {SRD_WS}, {sT[7]} offset:16 sc1")

    def tagcheck(regs, acc0, acc1):
        A(f"v_xor_b32 v{acc0}, {sTAG}, v{regs[0]}")
        A(f"v_xor_b32 v{acc1}, {sTAG}, v{regs[1]}")
        for i, r in enumerate(regs[2:]):
            acc = acc0 if i % 2 == 0 else acc1
            A(f"v_bitop3_b32 v{acc}, v{acc}, v{r}, {sTAG} bitop3:0xf6")
        A(f"v_or_b32 v{acc0}, v{acc0}, v{acc1}")
        A(f"v_cmp_ne_u32 vcc, 0, v{acc0}")

    def c_qpoll():
        A("; fetch q (and h, counter-ready word)")
        A(f"s_lshl_b32 {sT[8]}, {sH}, 11")
        A(f"s_add_u32 {sT[8]}, {sT[8]}, {WS_QG}")
        A(f"s_lshl_b32 {sT[7]}, {sF}, 5")
        A(f"s_add_u32 {sT[7]}, {sT[7]}, {WS_HG}")
        A(f"v_lshlrev_b32 v{vT+8}, 4, {vL}")
        if ra:
            A(f"s_mov_b32 {sT[6]}, {WS_RDY}")
            VM(f"buffer_load_dword v255, off, {SRD_WS}, {sT[6]} sc1")
        st["q"] = q_poll(VM)

    def c_qcheck():
        A("; check the q tags, build the B fragments")
        wait_vm(st["q"])
        if ra:
            A(f"v_readfirstlane_b32 {sT[6]}, v255")
            A(f"s_cmp_eq_u32 {sT[6]}, {sTAG}")
            A("s_cselect_b32 s14, s14, 15")
            st["rdy"] = True
        A(f"s_mov_b32 {sT[0]}, {spin}")
        A("L_qchk:")
        tagcheck([vT + 1, vT + 3, vT + 5, vT + 7, vH + 1, vH + 3, vH + 5, vH + 7], vT + 9, vT + 10)
        A("s_cbranch_vccz L_qok")
        A(f"s_sub_u32 {sT[0]}, {sT[0]}, 1")
        A("s_cbranch_scc1 L_qok")
        q_poll(A)
        A("s_waitcnt vmcnt(0)")
        A("s_branch L_qchk")
        A("L_qok:")
        stamp()
        A(f"s_lshl_b32 {sT[0]}, {sW}, 10")
        A(f"s_add_u32 {sT[0]}, {sT[0]}, {QW}")
        A(f"v_lshlrev_b32 v{vT+9}, 3, {vL}")
        A(f"v_add_u32 v{vT+9}, {sT[0]}, v{vT+9}")
        A(f"ds_write2_b32 v{vT+9}, v{vT}, v{vT+2} offset0:0 offset1:1")
        A(f"ds_write2_b32 v{vT+9}, v{vT+4}, v{vT+6} offset0:128 offset1:129")
        A(f"v_and_b32 v{vT+10}, 1, {vL}")
        A(f"v_lshlrev_b32 v{vT+10}, 9, v{vT+10}")
        A(f"v_lshrrev_b32 v{vT+11}, 4, {vL}")
        A(f"v_lshl_add_u32 v{vT+10}, v{vT+11}, 4, v{vT+10}")
        A(f"v_add_u32 v{vT+10}, {sT[0]}, v{vT+10}")

    def c_qread():
        A("s_waitcnt lgkmcnt(0)")
        for j in range(8):
            A(f"ds_read_b128 v[{vQ+4*j}:{vQ+4*j+3}], v{vT+10} offset:{j*64}")

    def c_kmax():
        A("; end of the K pass: wave max")
        A(f"s_getreg_b32 {sXCC}, hwreg(HW_REG_XCC_ID, 0, 4)")
        allreduce("v_max_f32", [vMAX], vT, [16, 32])
        if diag == 3:
            A("s_memrealtime s[86:87]")
        A(f"v_mul_f32 v{vMS}, {sC}, v{vMAX}")
        A(f"v_mov_b32 v{vLS}, 0")
        A(f"v_mov_b32 v{vLS+1}, 0")
        stamp()

    def read_vg(slot_imm, g):
        for qd in range(4):
            r = vVT + 8 * g + 2 * qd
            A(f"ds_read_b64_tr_b16 v[{r}:{r+1}], v{vVA[0]} offset:{slot_imm + g*2048 + ((qd ^ g) & 1)*128 + (qd >> 1)*256}")

    def read_v(slot_imm, half):
        tile_stamp_a()
        for g in range(4):
            read_vg(slot_imm, g)

    def exps(sc):
        for r in range(4):
            A(f"v_fma_f32 v{vE+r}, v{sc+r}, {sC}, -v{vMS}")
        for r in range(4):
            A(f"v_exp_f32 v{vE+r}, v{vE+r}")
        A("s_nop 0")

    def make_p(n):
        exps(vSC + 4 * n)
        A(f"v_cvt_pk_bf16_f32 v{vPF+2*(n&1)}, v{vE}, v{vE+1}")
        A(f"v_cvt_pk_bf16_f32 v{vPF+2*(n&1)+1}, v{vE+2}, v{vE+3}")
        st["pdone"] = n

    def lsum(sc):
        exps(sc)
        A(f"v_add_f32 v{vLS}, v{vLS}, v{vE}")
        A(f"v_add_f32 v{vLS+1}, v{vLS+1}, v{vE+1}")
        A(f"v_add_f32 v{vLS}, v{vLS}, v{vE+2}")
        A(f"v_add_f32 v{vLS+1}, v{vLS+1}, v{vE+3}")

    def pvg(n, g):
        pf = vPF + 2 * (n & 1)
        for qd in range(4):
            r = vVT + 8 * g + 2 * qd
            A(f"v_mfma_f32_4x4x4_16b_bf16 v[{vACC+4*qd}:{vACC+4*qd+3}], v[{pf}:{pf+1}], v[{r}:{r+1}], " +
              ("0" if n == 0 and g == 0 else f"v[{vACC+4*qd}:{vACC+4*qd+3}]") + f" cbsz:4 abid:{4*g}")

    def pv(n):
        for g in range(4):
            pvg(n, g)

    def c_lwrite():
        A("; wave (max, sum) -> LDS")
        A(f"v_add_f32 v{vT+2}, v{vLS}, v{vLS+1}")
        allreduce("v_add_f32", [vT + 2], vT + 4, [16, 32])
        A(f"v_mov_b32 v{vT}, v{vMS}")
        A(f"v_mov_b32 v{vT+1}, 0x{LFLAG:x}")
        A(f"v_mov_b32 v{vT+3}, 0x{LFLAG:x}")
        A(f"s_lshl_b32 {sT[0]}, {sW}, 5")
        A(f"s_add_u32 {sT[0]}, {sT[0]}, {LML}")
        A(f"v_lshlrev_b32 v{vT+4}, 4, {vL}")
        A(f"v_add_u32 v{vT+4}, {sT[0]}, v{vT+4}")
        A("s_mov_b64 exec, 3")
        A(f"ds_write_b128 v{vT+4}, v[{vT}:{vT+3}]")
        A("s_mov_b64 exec, -1")

    def c_mlpub():
        A("; wave 0: workgroup (max, sum) -> d_ws")
        A(f"s_cmp_eq_u32 {sW}, 0")
        A("s_cbranch_scc0 L_nopub")
        A(f"v_and_b32 v{vT+4}, 7, {vL}")
        A(f"v_lshlrev_b32 v{vT+4}, 4, v{vT+4}")
        A(f"v_add_u32 v{vT+4}, {LML}, v{vT+4}")
        A(f"s_mov_b32 {sT[0]}, {spin*4}")
        A("L_lml:")
        A(f"ds_read_b128 v[{vT}:{vT+3}], v{vT+4}")
        A("s_waitcnt lgkmcnt(0)")
        A(f"v_and_b32 v{vT+5}, v{vT+1}, v{vT+3}")
        A(f"v_cmp_ne_u32 vcc, 0x{LFLAG:x}, v{vT+5}")
        A("s_cbranch_vccz L_lmlok")
        A(f"s_sub_u32 {sT[0]}, {sT[0]}, 1")
        A("s_cbranch_scc0 L_lml")
        A("L_lmlok:")
        A(f"v_mov_b32 v{vT+5}, v{vT}")
        allreduce("v_max_f32", [vT + 5], vT + 6, [2, 4])
        A(f"v_sub_f32 v{vT}, v{vT}, v{vT+5}")
        A(f"v_exp_f32 v{vT}, v{vT}")
        A("s_nop 0")
        A(f"v_mul_f32 v{vT+2}, v{vT+2}, v{vT}")
        allreduce("v_add_f32", [vT + 2], vT + 6, [2, 4])
        A(f"v_mov_b32 v{vT}, v{vT+5}")
        A(f"v_mov_b32 v{vT+1}, {sTAG}")
        A(f"v_xor_b32 v{vT+3}, {sXCC}, v{vT+1}")
        A(f"s_lshl_b32 {sT[0]}, {sH}, 10")
        A(f"s_lshl_b32 {sT[1]}, {sP}, 5")
        A(f"s_add_u32 {sT[0]}, {sT[0]}, {sT[1]}")
        A(f"s_add_u32 {sT[0]}, {sT[0]}, {WS_ML}")
        A(f"v_lshlrev_b32 v{vT+4}, 4, {vL}")
        A("s_mov_b64 exec, 3")
        A(f"buffer_store_dwordx4 v[{vT}:{vT+3}], v{vT+4}, {SRD_WS}, {sT[0]} offen sc1")
        A("s_mov_b64 exec, -1")
        A("L_nopub:")

    def c_mlpoll():
        A("; fetch the 32 (max, sum) records of this head")
        A(f"s_lshl_b32 {sT[8]}, {sH}, 10")
        A(f"s_add_u32 {sT[8]}, {sT[8]}, {WS_ML}")
        A(f"v_lshlrev_b32 v{vT+8}, 4, {vL}")
        st["ml"] = VM(f"buffer_load_dwordx4 v[{vT+12}:{vT+15}], v{vT+8}, {SRD_WS}, {sT[8]} offen sc1")

    def c_mlcheck():
        A("; head-wide max; same-die check")
        G = vT + 12
        wait_vm(st["ml"])
        A(f"s_mov_b32 {sT[0]}, {spin}")
        A("L_mlchk:")
        A(f"v_xor_b32 v{vT+9}, {sTAG}, v{G+1}")
        A(f"v_xor_b32 v{vT+10}, {sTAG}, v{G+3}")
        A(f"v_and_or_b32 v{vT+9}, v{vT+10}, -16, v{vT+9}")
        A(f"v_cmp_ne_u32 vcc, 0, v{vT+9}")
        A("s_cbranch_vccz L_mlok")
        A(f"s_sub_u32 {sT[0]}, {sT[0]}, 1")
        A("s_cbranch_scc1 L_mlok")
        A(f"buffer_load_dwordx4 v[{G}:{G+3}], v{vT+8}, {SRD_WS}, {sT[8]} offen sc1")
        A("s_waitcnt vmcnt(0)")
        A("s_branch L_mlchk")
        A("L_mlok:")
        st["mlok"] = True
        A(f"v_cmp_ne_u32 vcc, {sXCC}, v{vT+10}")
        A("s_cmp_eq_u64 vcc, 0")
        A(f"s_cselect_b32 {sLOC}, {1 if local else 0}, 0")
        A(f"v_mov_b32 v{vT+9}, v{G}")
        allreduce("v_max_f32", [vT + 9], vT + 10, [2, 4, 8, 16, 32])

    def c_mlscale():
        A("; head-wide sum -> global exponent offset")
        G = vT + 12
        A(f"v_sub_f32 v{G}, v{G}, v{vT+9}")
        A(f"v_exp_f32 v{G}, v{G}")
        A("s_nop 0")
        A(f"v_mul_f32 v{G+2}, v{G+2}, v{G}")
        allreduce("v_add_f32", [G + 2], vT + 10, [2, 4, 8, 16, 32])
        A(f"v_log_f32 v{G+2}, v{G+2}")
        A("s_nop 0")
        A(f"v_add_f32 v{vT+9}, v{vT+9}, v{G+2}")
        A(f"v_sub_f32 v{vT+10}, v{vMS}, v{vT+9}")
        A(f"v_exp_f32 v{vT+10}, v{vT+10}")

    def c_rescale():
        A("; move the accumulators to the global normalisation")
        A(f"v_mov_b32 v{vMS}, v{vT+9}")
        A("s_nop 0")
        A(f"v_mov_b32_dpp v{vT+2}, v{vT+10} quad_perm:[0,0,0,0] row_mask:0xf bank_mask:0xf")
        A(f"v_mov_b32_dpp v{vT+3}, v{vT+10} quad_perm:[1,1,1,1] row_mask:0xf bank_mask:0xf")
        A("s_nop 4")
        for t in range(4):
            A(f"v_pk_mul_f32 v[{vACC+4*t}:{vACC+4*t+1}], v[{vACC+4*t}:{vACC+4*t+1}], v[{vT+2}:{vT+3}]")

    vWO, vW2 = vSC + 4, vSC + 36

    def issue_weights():
        A("; waves 2,3: wo / w2 rows")
        assert st["pdone"] >= 12 and st.get("tail1")
        if skipw:
            A(f"s_cmp_lt_u32 {sW}, 2")
            A("s_cbranch_scc1 L_skipw")
        for i in range(16):
            hd, k = divmod(i, 8)
            if i % 4 == 0 and i:
                A(f"s_add_u32 {sT[0]}, {sT[0]}, {(252 if i == 8 else 4)*896}")
            r = vWO + 4 * k + 2 * hd
            VM(f"buffer_load_dwordx2 v[{r}:{r+1}], v{vT+16}, {SRD_WO}, {sT[0]} offen offset:{(i%4)*896} {wflags}")
        if w2at is None:
            for i in range(8):
                if i % 4 == 0 and i:
                    A(f"s_add_u32 {sT[1]}, {sT[1]}, {4*896}")
                st["w"] = VM(f"buffer_load_dwordx2 v[{vW2+2*i}:{vW2+2*i+1}], v{vT+16}, {SRD_W2}, {sT[1]} offen offset:{(i%4)*896} {wflags}")
        if skipw:
            A("L_skipw:")
            vm["opt"] = 24 if w2at is None else 16
            vm["optend"] = vm["n"]

    E2 = 144

    def c_w2issue():
        A(f"v_subrev_u32 v{vT}, 128, v0")
        A(f"v_cmp_gt_u32 vcc, 112, v{vT}")
        A(f"v_lshlrev_b32 v{vT+1}, 3, v{vT}")
        A(f"v_bfrev_b32 v{vT+2}, 2")
        A(f"s_mul_i32 {sT[1]}, {sF}, {8*896}")
        A(f"v_cndmask_b32 v11, v{vT+2}, v{vT+1}, vcc")
        for i in range(8):
            if i == 4:
                A(f"s_add_u32 {sT[1]}, {sT[1]}, {4*896}")
            st["w2"] = VM(f"buffer_load_dwordx2 v[{E2+2*i}:{E2+2*i+1}], v11, {SRD_W2}, {sT[1]} offen offset:{(i%4)*896} {wflags}")

    def c_w2use():
        wait_vm(st["w2"])
        A(f"s_mov_b32 {sT[6]}, 0x05040100")
        A(f"s_mov_b32 {sT[7]}, 0x07060302")
        for k in range(4):
            for cp in range(2):
                A(f"v_perm_b32 v{80+4*k+2*cp}, v{E2+4*k+2+cp}, v{E2+4*k+cp}, {sT[6]}")
                A(f"v_perm_b32 v{80+4*k+2*cp+1}, v{E2+4*k+2+cp}, v{E2+4*k+cp}, {sT[7]}")
        for c in range(4):
            A(f"v_mov_b32 v{E2+2*c}, 0")
            A(f"v_mov_b32 v{E2+2*c+1}, {sTAG}")
        A("s_cmp_lt_u32 s2, 224")
        A("s_cbranch_scc0 L_now2")
        for k in range(4):
            for c in range(4):
                A(f"v_dot2_f32_bf16 v{E2+2*c}, v{vH+2*k}, v{80+4*k+c}, v{E2+2*c}")
        A("L_now2:")

    def issue_wdma(k):
        assert st.get("mlok")
        if k == 0:
            A(f"v_lshlrev_b32 v{vMAX}, 4, {vL}")
            A(f"s_lshl_b32 s10, {sH}, 5")
            A(f"s_add_u32 s10, s10, {sP}")
            A(f"s_mul_i32 s10, s10, {16*896}")
            A(f"s_mul_i32 s11, {sF}, {8*896}")
        wo = k < 4
        A(f"s_add_u32 s12, {sW}, {4*k if wo else 4*(k-4)}")
        A(f"s_min_u32 s12, s12, {13 if wo else 6}")
        A("s_lshl_b32 s12, s12, 10")
        A(f"s_add_u32 m0, s12, {STG if wo else STG + 14336}")
        A(f"s_add_u32 s12, s12, {'s10' if wo else 's11'}")
        idx = VM(f"buffer_load_dwordx4 v{vMAX}, {SRD_WO if wo else SRD_W2}, s12 offen {wflags} lds")
        m0bad["v"] = True
        st["w"] = idx
        return idx

    MO = ((2 * S) % R) * tb
    vMW, vMR, vO1, vH1, vH2, vXR, vOO = 6, 8, vT + 4, vT + 5, vT + 6, vT + 7, vT + 11
    sH2 = [f"s{4+k}" for k in range(16)]
    sP1, sP2, sCONS = "s68", "s69", "s70"

    def c_tail1():
        A("; addresses for the end phase")
        st["tail1"] = True
        A(f"s_add_u32 {sT[2]}, {sRING}, {MO}")
        A(f"v_lshlrev_b32 v{vMW}, 4, {vL}")
        A(f"v_add_u32 v{vMW}, {sT[2]}, v{vMW}")
        A(f"v_lshlrev_b32 v{vMR}, 4, {vL}")
        A(f"v_add_u32 v{vMR}, {MO}, v{vMR}")
        A(f"v_add_u32 v{vMR+1}, {2*R*tb}, v{vMR}")
        A(f"s_lshl_b32 {sP1}, {sH}, 5")
        A(f"s_add_u32 {sP1}, {sP1}, {sP}")
        A(f"s_lshl_b32 {sT[0]}, {sH}, 6")
        A(f"s_add_u32 {sT[0]}, {sT[0]}, {sP}")
        A(f"s_mul_i32 {sT[0]}, {sT[0]}, {8*896}")
        A(f"s_mul_i32 {sT[1]}, {sF}, {8*896}")
        A(f"s_lshl_b32 {sP1}, {sP1}, 12")
        A(f"s_add_u32 {sP1}, {sP1}, {WS_P1O}")
        A(f"v_lshlrev_b32 v{vO1}, 4, {vL}")
        for k in range(1, 16, 2):
            A(f"v_mov_b32 v{64+k}, {sTAG}")
        A(f"v_subrev_u32 v{vT}, 128, v0")
        A(f"v_cmp_gt_u32 vcc, 112, v{vT}")
        A(f"v_lshlrev_b32 v{vT+1}, 3, v{vT}")
        A(f"v_lshlrev_b32 v{vOO}, 4, v{vT}")
        A(f"v_bfrev_b32 v{vT+2}, 2")
        A(f"v_cndmask_b32 v{vT+16}, v{vT+2}, v{vT+1}, vcc")
        A(f"v_cndmask_b32 v{vOO}, v{vT+2}, v{vOO}, vcc")

    def c_tail2():
        A(f"v_lshrrev_b32 v{vT}, 3, {vL}")
        A(f"v_and_b32 v{vT+1}, 7, {vL}")
        A(f"v_lshlrev_b32 v{vT+1}, 4, v{vT+1}")
        A(f"v_lshl_add_u32 v{vH1}, v{vT}, 12, v{vT+1}")
        A(f"s_lshl_b32 {sT[2]}, {sH}, 17")
        A(f"s_lshl_b32 {sT[3]}, {sP}, 7")
        A(f"s_add_u32 {sT[2]}, {sT[2]}, {sT[3]}")
        A(f"s_add_u32 {sT[2]}, {sT[2]}, {WS_P1O}")
        for k in range(1, 4):
            A(f"s_add_u32 {sT[2+k]}, {sT[2]}, {k*32768}")
        A(f"s_lshl_b32 {sP2}, {sH}, 5")
        A(f"s_add_u32 {sP2}, {sP2}, {sP}")
        A(f"s_mul_i32 {sP2}, {sP2}, 3584")
        A(f"s_add_u32 {sP2}, {sP2}, {WS_P2}")
        A(f"v_mul_u32_u24 v{vT}, 3584, v{vT}")
        A(f"v_add_u32 v{vH2}, v{vT}, v{vT+1}")
        A(f"s_min_u32 {sT[6]}, {sP}, 27")
        A(f"s_lshl_b32 {sT[7]}, {sT[6]}, 7")
        A(f"s_mul_i32 {sH2[0]}, {sH}, {32*3584}")
        A(f"s_add_u32 {sH2[0]}, {sH2[0]}, {sT[7]}")
        A(f"s_add_u32 {sH2[0]}, {sH2[0]}, {WS_P2}")
        for k in range(1, 4):
            A(f"s_add_u32 {sH2[k]}, {sH2[0]}, {k*8*3584}")
        A(f"s_lshl_b32 {sH2[4]}, {sT[6]}, 3")
        A(f"s_add_u32 {sH2[4]}, {sH2[4]}, {sH}")
        A(f"s_lshl_b32 {sH2[4]}, {sH2[4]}, 7")
        A(f"s_add_u32 {sH2[4]}, {sH2[4]}, {WS_P3}")
        A(f"s_sub_u32 {sT[6]}, s2, 224")
        A(f"s_cmp_lt_u32 {sT[6]}, 28")
        A(f"s_cselect_b32 {sCONS}, 1, 0")
        A(f"s_cselect_b32 {sT[6]}, {sT[6]}, 0")
        A(f"s_lshl_b32 {sH2[5]}, {sT[6]}, 10")
        A(f"s_add_u32 {sH2[5]}, {sH2[5]}, {WS_P3}")
        A(f"s_cmp_ge_u32 {sT[6]}, 14")
        A(f"s_cselect_b32 {sT[8]}, {4 - 14*64}, 0")
        A(f"s_lshl_b32 {sT[6]}, {sT[6]}, 6")
        A(f"s_add_u32 {sT[6]}, {sT[6]}, {sT[8]}")
        A(f"v_lshrrev_b32 v{vT+1}, 1, v{vT+1}")
        A(f"v_add_u32 v{vT+17}, {sT[6]}, v{vT+1}")
        if pre1 is not None or pre2 is not None:
            A(f"s_lshl_b32 {sT[8]}, {sW}, 10")
            A(f"v_lshlrev_b32 v{vT}, 4, v0")
        if pre1 is not None:
            A(f"s_lshl_b32 {sT[7]}, {sW}, 11")
            A(f"s_sub_u32 {sT[7]}, {sP1}, {sT[7]}")
            if pre1.startswith("ld"):
                VM(f"buffer_load_dwordx4 v[{vT+12}:{vT+15}], v{vT}, {SRD_WS}, {sT[7]} offen {pre1[2:]}")
            else:
                for k in range(4):
                    A(f"v_mov_b32 v{vT+12+k}, 0")
                A(f"v_not_b32 v{vT+13}, {sTAG}")
                A(f"v_not_b32 v{vT+15}, {sTAG}")
                VM(f"buffer_store_dwordx4 v[{vT+12}:{vT+15}], v{vT}, {SRD_WS}, {sT[7]} offen {pre1[2:]}")
        if pre2 is not None:
            VM(f"buffer_load_dwordx4 v[{vT+12}:{vT+15}], v{vT}, {SRD_WS}, {sP2} offen {pre2[2:]}")

    PW, PW2, Y = vSC, vSC + 32, (vSC + 48 if w2at is None else E2)

    def c_wprep():
        assert st["pdone"] >= 13
        if wdma or wlate:
            if wlate:
                A("s_waitcnt vmcnt(4)")
                A("s_barrier")
            else:
                assert lateprep and st["w"] <= vm["known"]
            A(f"v_subrev_u32 v{vT+16}, 128, v0")
            A(f"v_min_u32 v{vT+16}, 111, v{vT+16}")
            A(f"v_lshlrev_b32 v{vT+16}, 3, v{vT+16}")
            A(f"v_add_u32 v{vT+16}, {STG}, v{vT+16}")
            for i in range(24):
                A(f"ds_read_b64 v[{vWO+2*i}:{vWO+2*i+1}], v{vT+16} offset:{i*896}")
            A("s_waitcnt lgkmcnt(0)")
        elif lateprep:
            A("s_waitcnt vmcnt(4)")
        else:
            wait_vm(st["w"])
            A(f"s_cmp_lt_u32 {sW}, 2")
            A("s_cbranch_scc1 L_noprep")
        A(f"s_mov_b32 {sT[6]}, 0x05040100")
        A(f"s_mov_b32 {sT[7]}, 0x07060302")
        for k in range(12 if w2at is None else 8):
            for cp in range(2):
                A(f"v_perm_b32 v{PW+4*k+2*cp}, v{vWO+4*k+2+cp}, v{vWO+4*k+cp}, {sT[6]}")
                A(f"v_perm_b32 v{PW+4*k+2*cp+1}, v{vWO+4*k+2+cp}, v{vWO+4*k+cp}, {sT[7]}")
        if w2at is not None:
            return
        for c in range(4):
            A(f"v_mov_b32 v{Y+2*c}, 0")
            A(f"v_mov_b32 v{Y+2*c+1}, {sTAG}")
        A("s_cmp_lt_u32 s2, 224")
        A("s_cbranch_scc0 L_noprep")
        for k in range(4):
            for c in range(4):
                A(f"v_dot2_f32_bf16 v{Y+2*c}, v{vH+2*k}, v{PW2+4*k+c}, v{Y+2*c}")
        A("L_noprep:")

    def do_touch():
        A("; bring the inbox lines of the final hand-offs into L2")
        A(f"s_lshl_b32 {sT[8]}, {sW}, 15")
        A(f"s_add_u32 {sT[8]}, {sT[8]}, {sT[2]}")
        if touch == "sc1":
            VM(f"buffer_load_dword v{vT+12}, v{vH1}, {SRD_WS}, {sT[8]} offen sc1")
        elif touch == "one":
            VM(f"buffer_load_dword v{vT+12}, off, {SRD_WS}, {sT[2]} sc1")
        else:
            A(f"s_cmp_eq_u32 {sLOC}, 1")
            A("s_cbranch_scc0 L_tfar")
            A(f"buffer_load_dword v{vT+12}, v{vH1}, {SRD_WS}, {sT[8]} offen")
            A("s_branch L_tdone")
            A("L_tfar:")
            VM(f"buffer_load_dword v{vT+12}, v{vH1}, {SRD_WS}, {sT[8]} offen sc1")
            A("L_tdone:")
        if touch2:
            A(f"s_mul_i32 {sT[8]}, {sW}, {8*3584}")
            A(f"s_add_u32 {sT[8]}, {sT[8]}, {sH2[0]}")
            VM(f"buffer_load_dword v{vT+13}, v{vH2}, {SRD_WS}, {sT[8]} offen sc1")

    def do_wtlb():
        VM(f"buffer_load_dword v{vT+14}, off, {SRD_WO}, {sT[0]} nt")
        VM(f"buffer_load_dword v{vT+15}, off, {SRD_W2}, {sT[1]} nt")

    def c_rkprobe(c):
        A(f"s_cmp_eq_u32 {sW}, {rkw}")
        A(f"s_cbranch_scc0 L_rkp{c}")
        A(f"s_lshl_b32 s18, {sH}, 7")
        A(f"s_add_u32 s18, s18, {WS_RK + c*1024}")
        A(f"s_lshl_b32 s19, {sP}, 2")
        A(f"s_add_u32 s19, s19, s18")
        A(f"v_lshlrev_b32 v{vT+18}, 2, {vL}")
        A(f"v_mov_b32 v{vT+19}, {sTAG}")
        A("s_mov_b32 exec_hi, 0")
        A(f"buffer_load_dword v255, v{vT+18}, {SRD_WS}, s18 offen sc1")
        A("s_mov_b32 exec_lo, 1")
        A(f"buffer_store_dword v{vT+19}, off, {SRD_WS}, s19")
        A("s_mov_b64 exec, -1")
        A(f"L_rkp{c}:")
        st["rk_n"] = vm["n"]

    def c_rkdecide(c, L, k=None):
        _, hi, gh, lo, gl = ctl[c]
        if k is None:
            A(f"s_cmp_eq_u32 {sW}, {rkw}")
            A(f"s_cbranch_scc0 L_rkd{c}")
            A(f"v_cmp_eq_u32 vcc, {sTAG}, v255")
            A("s_bcnt1_i32_b32 s18, vcc_lo")
        else:
            A(f"s_cmp_eq_u32 s14, {k}")
            c = f"{c}_{k}"
            A(f"s_cbranch_scc0 L_rkd{c}")
        A(f"s_sub_u32 {sWE}, s18, {hi}")
        A(f"s_mul_i32 {sWE}, {sWE}, {gh}")
        A(f"s_add_u32 {sWE}, {sWE}, {L + 5}")
        A(f"s_cmp_gt_u32 s18, {hi}")
        A(f"s_cselect_b32 {sWE}, {sWE}, 0")
        if N2:
            A(f"s_sub_u32 {sNE}, s18, {lo}")
            A(f"s_mul_i32 {sNE}, {sNE}, {gl}")
            A(f"s_add_u32 {sNE}, {sNE}, {L + 5}")
            A(f"s_cmp_gt_u32 s18, {lo}")
            A(f"s_cselect_b32 {sNE}, {sNE}, 0")
        elif lo:
            A(f"s_min_u32 {sNE}, s18, {lo}")
            A(f"s_sub_u32 {sNE}, {lo}, {sNE}")
            A(f"s_mul_i32 {sNE}, {sNE}, {gl}")
            A(f"s_add_u32 {sNE}, {sNE}, {L + 5}")
            A(f"s_cmp_lt_u32 s18, {lo}")
            A(f"s_cselect_b32 {sNE}, {sNE}, 0")
        else:
            A(f"s_mov_b32 {sNE}, 0")
        A(f"v_mov_b32 v{vT+18}, {sWE}")
        A(f"v_mov_b32 v{vT+19}, {sNE}")
        A(f"ds_write_b64 v254, v[{vT+18}:{vT+19}]")
        A(f"L_rkd{c}:")
        st["rk_on"] = True

    def c_last():
        A("; last V tile, four keys at a time")
        slot = ((2 * S - 1) % R) * tb
        tile_stamp_a()
        for g in range(4):
            wait_vm(lidx[NL - T + 2 * g + 1])
            read_vg(slot, g)
            if g:
                A("s_waitcnt lgkmcnt(4)")
                pvg(S - 1, g - 1)
        A("s_waitcnt lgkmcnt(0)")
        pvg(S - 1, 3)
        if stamps:
            lds_wait(True)
        stamp()
        A("s_nop 1")
        A("s_nop 0")
        for hf in range(2):
            r = vACC + 8 * hf
            A(f"ds_write2_b64 v{vMW}, v[{r}:{r+1}], v[{r+4}:{r+5}] offset0:{128*hf} offset1:{128*hf+1}")
            if hf == 0:
                A("s_nop 0")

    chunks = []
    C = lambda fn, need=None, free=None: chunks.append((need, free, fn))
    backlog = list(range(NB))
    for n in range(S):
        slot = (n % R) * tb
        if n < NB:
            C(lambda n=n, slot=slot: read_k(32 * n, slot, True), need=n)
            C(lambda: lds_wait(True), free=n)
            if n == NP:
                C(c_qpoll)
            if n == NB - 1:
                C(c_qcheck)
                C(c_qread)
        else:
            C(lambda slot=slot: read_k(vTL, slot), need=n)
            C(lambda: (lds_wait(True), qk_mfma(vTL, False)), free=n)
            C(lambda n=n: qk_post(vSC + 4 * n))
            for _ in range(2):
                if backlog:
                    m = backlog.pop(0)
                    C(lambda m=m: qk_mfma(32 * m, True))
                    C(lambda m=m: qk_post(vSC + 4 * m))
    assert not backlog
    C(c_kmax)
    lq = list(range(S))
    assert vgat % 2 == 1 and vpub % 2 == 1
    for n in range(S):
        j = S + n
        slot = (j % R) * tb
        if n == vgat + 3:
            C(c_rescale)
        if n == S - 2:
            C(lambda: make_p(S - 2))
            C(lambda: make_p(S - 1))
            if not lateprep:
                C(c_wprep)
        elif n < S - 2:
            C(lambda n=n: make_p(n))
        if n < S - 1:
            C(lambda slot=slot, n=n: read_v(slot, n & 1), need=j)
        if tat == j:
            C(do_touch)
        if wat == j:
            C(issue_weights)
        if n == S - 1:
            C(c_last, need="issued")
        else:
            C(lambda n=n: (lds_wait(True), pv(n)), free=j)
        for _ in range(3 if n % 2 == 0 else 2):
            if lq:
                m0, m1 = lq.pop(0), lq.pop(0)
                C(lambda m0=m0, m1=m1: (lsum(vSC + 4 * m0), lsum(vSC + 4 * m1)))
                if not lq:
                    C(c_lwrite)
        if w2at == j:
            C(c_w2issue)
        if w2at is not None and w2at + 2 == j:
            C(c_w2use)
        if n == vpub:
            assert not lq
            C(c_mlpub)
        if n == vgat:
            C(c_mlpoll)
        if n == vgat + 1:
            C(c_mlcheck)
            C(c_mlscale)
        if n == vgat + 3:
            C(c_tail1)
            C(c_tail2)

    freed = set()

    def emit_chunk(q, block):
        need, free, fn = q[0]
        if need == "issued":
            if not block:
                return False
        elif need is not None:
            last = need * T + T - 1
            if last not in lidx:
                assert not block
                return False
            if lidx[last] > vm["known"]:
                if not block:
                    return False
                wait_vm(lidx[last])
        q.pop(0)
        fn()
        if free is not None:
            freed.add(free)
        return True

    def tagfix():
        A("s_waitcnt lgkmcnt(0)")
        mk_tag(f"{sTAG}")

    def stream(L0, L1, win, q, paced):
        for L in range(L0, L1):
            j, i = divmod(L, T)
            st["L"] = L
            Nw = win(L)
            if ext and X * T <= L < ext[0] and Nw < ext[1]:
                wait_vm(paced[-ext[1]])
                A(f"s_cmp_lt_u32 {sZ}, 92")
                A(f"s_cbranch_scc1 L_x{L}")
                A(f"s_waitcnt vmcnt({vm['n'] - paced[-Nw]})")
                A(f"L_x{L}:")
            elif st.get("rk_on") and Nw <= N + 1:
                if N2:
                    wait_vm(paced[-(Nw + N2 - N)])
                    A(f"s_cmp_gt_u32 {sNE}, {L}")
                    A(f"s_cbranch_scc1 L_x{L}")
                    A(f"s_waitcnt vmcnt({vm['n'] - paced[-(Nw + Nhi - N)]})")
                else:
                    wait_vm(paced[-(Nw + Nhi - N)])
                A(f"s_cmp_gt_u32 {sWE}, {L}")
                A(f"s_cbranch_scc1 L_x{L}")
                A(f"s_waitcnt vmcnt({vm['n'] - paced[-Nw]})")
                if not N2 and (any(r[3] for r in ctl) or (iw and iw[2])):
                    A(f"s_cmp_gt_u32 {sNE}, {L}")
                    A(f"s_cbranch_scc0 L_x{L}")
                    A(f"s_waitcnt vmcnt({vm['n'] - paced[-Nlo]})")
                A(f"L_x{L}:")
            elif len(paced) >= Nw:
                wait_vm(paced[-Nw])
            if L == NL - tail - T:
                st["rk_off"] = True
            if i == 0 and j >= R:
                while (j - R) not in freed:
                    emit_chunk(q, True)
            issue_load(L)
            paced.append(lidx[L])
            if iw and "tc" in st and not st.get("rk_off") and not st.get("rk_rd"):
                A(f"v_mov_b32 v{vPD}, {L}")
                A(f"ds_write_b32 v{vPW}, v{vPD}")
                st["iw_last"] = L
            if L == NL - 1 - tpos and touch is not None and tat is None:
                do_touch()
                if wtlb:
                    do_wtlb()
            if L == NL - 1 - wpos and not now and not wearly and not wafter and wat is None and not wdma and wlate is None:
                issue_weights()
            if wdma and L >= wdma[0] and (L - wdma[0]) % wdma[1] == 0 and (L - wdma[0]) // wdma[1] < 6:
                if wdma[2]:
                    wait_vm(paced[-Nw])
                    paced.append(issue_wdma((L - wdma[0]) // wdma[1]))
                else:
                    issue_wdma((L - wdma[0]) // wdma[1])
            did = False
            for c, r_ in enumerate(rk):
                if L == r_[0] and not st.get("rk_rd"):
                    c_rkprobe(c)
                    st["rk_pend"] = c
                    did = True
                elif L == r_[0]:
                    raise AssertionError("probe between a tile read and its wait")
            if st.get("rk_pend") is not None and vm["known"] > st["rk_n"] and not st.get("rk_rd") and not did:
                c_rkdecide(st["rk_pend"], L)
                st["rk_pend"] = None
                did = True
            if q and not did and (L < NL - tail or Nend <= N + 2):
                emit_chunk(q, False)

    def win_main(L):
        Nw = Nend if L >= NL - tail else N
        if kopen and NL // 2 - kopen[0] <= L < NL // 2:
            Nw = kopen[1]
        for b_ in bump:
            if b_[0] <= L < b_[1]:
                Nw = b_[2]
        if alt and Nw == N and (L // alt[1]) % alt[2] == (alt[3] if len(alt) > 3 else 0):
            Nw = alt[0]
        return Nw

    split = next(k for k, ch in enumerate(chunks) if ch[0] == X - 1)
    head_chunks, rest = chunks[:split], chunks[split:]
    assert X - 1 <= NP
    ends = []
    for path in ("n", "p"):
        vm.update(n=0, known=0)
        lidx.clear()
        freed.clear()
        paced = []
        stg = {"i": 0}

        def issue_stg():
            i = stg["i"]
            if rot:
                if i == 0:
                    A(f"s_mul_i32 {sT[3]}, {sZ}, 4682")
                    A(f"s_lshr_b32 {sT[3]}, {sT[3]}, 16")
                    A(f"s_mul_i32 {sT[3]}, {sT[3]}, 14")
                    A(f"s_sub_u32 {sT[3]}, {sZ}, {sT[3]}")
                else:
                    A(f"s_add_u32 {sT[3]}, {sT[3]}, 1")
                    A(f"s_cmp_eq_u32 {sT[3]}, 14")
                    A(f"s_cselect_b32 {sT[3]}, 0, {sT[3]}")
                A(f"s_lshl_b32 {sT[9]}, {sT[3]}, 10")
                A(f"s_add_u32 m0, {sT[6]}, {sT[9]}")
                A(f"s_mul_i32 {sT[9]}, {sT[3]}, {sT[4]}")
                A(f"s_add_u32 {sT[9]}, {sT[9]}, {sT[5]}")
                st["stg"] = VM(f"buffer_load_dwordx4 v21, {SRD_W}, {sT[9]} offen {wflags} lds")
            else:
                A(f"s_add_u32 m0, {sT[6]}, {i*1024}")
                if i:
                    A(f"s_add_u32 {sT[5]}, {sT[5]}, {sT[4]}")
                else:
                    A("s_nop 0")
                st["stg"] = VM(f"buffer_load_dwordx4 v21, {SRD_W}, {sT[5]} offen {wflags} lds")
            paced.append(st["stg"])
            stg["i"] += 1
            m0bad["v"] = True
        if path == "n":
            common0()
            A("s_waitcnt lgkmcnt(0)")
            if diag == 6:
                A("s_memrealtime s[86:87]")
            for L in range(N0):
                issue_load(L)
                paced.append(lidx[L])
            srd(52, 4, 896)
            common1()
            setup()
            if wearly:
                issue_weights()
            if ra:
                A(f"s_lshl_b32 {sT[2]}, s2, 2")
                A(f"s_add_u32 {sT[2]}, {sT[2]}, {sW}")
                A(f"s_cmp_eq_u32 {sT[2]}, 1023")
                A("s_cbranch_scc0 L_noclear")
                A(f"v_mul_u32_u24 v29, 4352, {vL}")
                A("v_mov_b32 v30, 0")
                A(f"s_mov_b32 {sT[2]}, {WS_CNT}")
                A(f"buffer_store_dword v30, v29, {SRD_WS}, {sT[2]} offen sc0 sc1")
                if len(ra) * ng > 64:
                    A(f"s_add_u32 {sT[2]}, {sT[2]}, {64*4352}")
                    A(f"buffer_store_dword v30, v29, {SRD_WS}, {sT[2]} offen sc0 sc1")
                A("s_waitcnt vmcnt(0) lgkmcnt(0)")
                mk_tag(f"{sT[2]}")
                A(f"v_mov_b32 v30, {sT[2]}")
                A(f"s_mov_b32 {sT[2]}, {WS_RDY}")
                A("s_mov_b64 exec, 1")
                A(f"buffer_store_dword v30, off, {SRD_WS}, {sT[2]} sc1")
                A("s_mov_b64 exec, -1")
                A("L_noclear:")
            if diag == 5:
                A(f"s_waitcnt vmcnt({N0-1})")
                A("s_memrealtime s[86:87]")
            q = list(head_chunks) + [(None, None, tagfix)]
            stream(N0, X * T, (lambda L: nn[1] if nn and L < nn[0] else win_main(L)), q, paced)
        else:
            A("; ---- workgroups 0..91: stage 448 x 64 weights, layer norm, publish q / h, then catch up")
            A("L_producer:")
            common0()
            producer0()
            st["x"] = VM(f"buffer_load_dwordx4 v[{vT}:{vT+3}], v29, {SRD_X}, 0 offen")
            A(f"s_mov_b32 m0, {sT[6]}")
            A("L_stg:")
            A(f"s_sub_u32 {sT[3]}, {sT[3]}, 1")
            A(f"buffer_load_dwordx4 v21, {SRD_W}, {sT[5]} offen {wflags} lds")
            A(f"s_add_u32 {sT[5]}, {sT[5]}, {sT[4]}")
            A("s_add_u32 m0, m0, 1024")
            A(f"s_cmp_lg_u32 {sT[3]}, 0")
            A("s_cbranch_scc1 L_stg")
            for _ in range(14):
                vm["n"] += 1
                st["stg"] = vm["n"]
                paced.append(vm["n"])
            for L in range(B0):
                issue_load(L)
                paced.append(lidx[L])
                if il and L % il == il - 1:
                    issue_stg()
            common1()
            setup()
            if wearly == 1:
                issue_weights()
            if not il:
                for fn in side_chunks[:4]:
                    fn()
                q = [(None, None, fn) for fn in side_chunks[4:]] + list(head_chunks) + [(None, None, tagfix)]
                stream(B0, X * T, lambda L: Np if L < Xp else N, q, paced)
            else:
                Ls = 14 * il
                q = [(None, None, fn) for fn in side_chunks[:5]] + list(head_chunks)
                for L in range(B0, Ls):
                    stream(L, L + 1, lambda L: Np, q, paced)
                    if L % il == il - 1:
                        if len(paced) >= Np:
                            wait_vm(paced[-Np])
                        issue_stg()
                w2 = Np2 or N
                L = Ls
                while st["stg"] > vm["known"]:
                    stream(L, L + 1, lambda L: w2, q, paced)
                    L += 1
                assert all(ch[2] not in side_chunks for ch in q)
                if q and q[0][1] is not None:
                    emit_chunk(q, True)
                q = [(None, None, fn) for fn in side_chunks[5:]] + ([(None, None, issue_weights)] if wearly == 2 else []) + q + [(None, None, tagfix)]
                stream(L, X * T, lambda L: w2 if L < Xp else N, q, paced)
        while q:
            emit_chunk(q, True)
        known_L = max([L for L in lidx if lidx[L] <= vm["known"]] + [-1])
        ends.append(({L: vm["n"] - lidx[L] for L in range(X * T - 16, X * T)}, known_L, set(freed)))
        if path == "n":
            A("s_branch L_join")
            for _ in range(dead // 4):
                A("s_nop 0")
    for _ in range(pad):
        A("s_nop 0")
    A("L_join:")
    if jit:
        A(f"s_lshl_b32 {sT[0]}, s2, 2")
        A(f"s_add_u32 {sT[0]}, {sT[0]}, {sW}")
        A(f"s_xor_b32 {sT[0]}, {sT[0]}, {sTAG}")
        A(f"s_mul_i32 {sT[0]}, {sT[0]}, 0x9E3779B1")
        A(f"s_lshr_b32 {sT[0]}, {sT[0]}, 26")
        A(f"s_cmp_lg_u32 {sT[0]}, 0")
        A("s_cbranch_scc1 L_nojit")
        for _ in range(jit):
            A("s_sleep 127")
        A("L_nojit:")
    if diag == 2:
        A("s_memrealtime s[86:87]")
    st["tc"] = X - 1
    if iw:
        assert not rk
        st["rk_on"] = True
    stamp(1)
    assert ends[0][0] == ends[1][0] and ends[0][2] == ends[1][2], ends
    vm["known"] = lidx[min(ends[0][1], ends[1][1])]
    stream(X * T, NL, win_main, rest, [lidx[L] for L in range(X * T - 16, X * T)])
    while rest:
        emit_chunk(rest, True)

    def gather4(lbl, base, voff, soffs, d0, d1, first_issued, slp):
        def loads(set_):
            for k in range(4):
                r = base + 16 * set_ + 4 * k
                A(f"buffer_load_dwordx4 v[{r}:{r+3}], v{voff}, {SRD_WS}, {soffs[k]} offen sc1")

        def sums(r):
            A(f"v_add_f32 v{d0}, v{r}, v{r+4}")
            A(f"v_add_f32 v{d1}, v{r+2}, v{r+6}")
            A(f"v_add_f32 v{r+8}, v{r+8}, v{r+12}")
            A(f"v_add_f32 v{r+10}, v{r+10}, v{r+14}")
            A(f"v_add_f32 v{d0}, v{d0}, v{r+8}")
            A(f"v_add_f32 v{d1}, v{d1}, v{r+10}")
        if not first_issued:
            loads(0)
        if dry == 1:
            A("s_mov_b64 exec, 0")
            A(f"s_branch L_{lbl}ok")
        if dry:
            A(f"L_{lbl}back:")
            A("s_mov_b64 exec, -1")
        A(f"L_{lbl}:")
        nset = 2 if pipe else 1
        for set_ in range(nset):
            r = base + 16 * set_
            if pipe:
                loads(1 - set_)
                A("s_waitcnt vmcnt(4)")
            else:
                A("s_waitcnt vmcnt(0)")
            tagcheck([r + 1 + 2 * i for i in range(8)], vT + 2, vT + 3)
            if pipe:
                sums(r)
            A(f"s_cbranch_vccz L_{lbl}ok")
        A(f"s_sub_u32 {sT[9]}, {sT[9]}, 1")
        if pipe:
            A(f"s_cbranch_scc0 L_{lbl}")
        else:
            A(f"s_cbranch_scc1 L_{lbl}ok")
            if slp:
                A(f"s_sleep {slp}")
            loads(0)
            if dry > 1:
                A(f"s_cmp_eq_u32 {sT[9]}, {spin - dry}")
                A(f"s_cbranch_scc0 L_{lbl}")
                A("s_mov_b64 exec, 0")
            else:
                A(f"s_branch L_{lbl}")
        A(f"L_{lbl}ok:")
        if not pipe:
            sums(base)

    O4, G = 32, 64
    if diag == 4:
        A("s_memrealtime s[86:87]")
    A(f"s_cmp_eq_u32 {sW}, 1")
    A("s_waitcnt lgkmcnt(0)")
    A("s_barrier")
    A("s_cbranch_scc0 L_not1")
    for hf in range(2):
        for k, w in enumerate((0, 2, 3)):
            r = O4 + 12 * hf + 4 * k
            A(f"ds_read_b128 v[{r}:{r+3}], v{vMR+w//2} offset:{(w%2)*R*tb + hf*1024}")
    A(f"s_cmp_eq_u32 {sLOC}, 1")
    A("s_cbranch_scc0 L_far1")
    for far in (0, 1):
        if far:
            A("L_far1:")
        for qd in range(4):
            r = O4 + 12 * (qd >> 1) + 2 * (qd & 1)
            own = vACC + 4 * qd
            if qd % 2 == 0:
                A(f"s_waitcnt lgkmcnt({3 - 3*(qd >> 1)})")
            A(f"v_pk_add_f32 v[{r}:{r+1}], v[{r}:{r+1}], v[{own}:{own+1}]")
            A(f"v_pk_add_f32 v[{r+4}:{r+5}], v[{r+4}:{r+5}], v[{r+8}:{r+9}]")
            A(f"v_add_f32 v{G+4*qd}, v{r}, v{r+4}")
            A(f"v_add_f32 v{G+4*qd+2}, v{r+1}, v{r+5}")
            A(f"buffer_store_dwordx4 v[{G+4*qd}:{G+4*qd+3}], v{vO1}, {SRD_WS}, {sP1} offen offset:{qd*1024}" + (" sc1" if far else ""))
        if stamps:
            A("s_memrealtime s[94:95]")
        if wlate:
            A("s_waitcnt vmcnt(4)")
            A("s_barrier")
        A("s_branch L_leave")
    nstamp["n"] += 1 if stamps else 0
    A("L_not1:")
    A(f"s_cmp_ge_u32 {sW}, 2")
    A("s_cbranch_scc1 L_bwave")
    if wlate:
        A("s_waitcnt vmcnt(0)")
        A("s_barrier")
    A(f"s_mov_b32 {sT[9]}, {spin}")
    A(f"s_cmp_lt_u32 {sP}, 28")
    A("s_cbranch_scc0 L_final")

    A("; ---- wave 0, p < 28: sum one 16-column line over the 32 workgroups of this head, send it on")
    YG = 112
    if gateA:
        A("s_barrier")
    gather4("h2", YG, vH2, sH2, G, G + 2, False, sleep2)
    if stamps:
        A("s_memrealtime s[96:97]")
    allreduce("v_add_f32", [G, G + 2], vT, [8, 16, 32])
    if dry:
        A("s_cbranch_execz L_h2back")
    A("s_mov_b64 exec, 0xff")
    A(f"buffer_store_dwordx4 v[{G}:{G+3}], v{vO1}, {SRD_WS}, {sH2[4]} offen {st3}")
    A("s_branch L_done")

    A("L_final:")
    A(f"s_cmp_eq_u32 {sCONS}, 1")
    A("s_cbranch_scc0 L_done")
    if dry:
        A("s_mov_b64 exec, 0")
        A("s_branch L_h3ok")
        A("L_h3back:")
        A("s_mov_b64 exec, -1")
    A(f"v_and_b32 v{vT+14}, 1, {vL}")
    A(f"v_mul_u32_u24 v{vT+14}, {WS_EP2}, v{vT+14}")
    A("s_barrier")
    A(f"buffer_load_dword v{vXR}, v{vT+17}, {SRD_X}, 0 offen")
    if outpf:
        A(f"buffer_load_dword v{vT+12}, v{vT+17}, {SRD_OUT}, 0 offen")
        if epfl != "sc1":
            A(f"buffer_load_dword v{vT+13}, v{vT+14}, {SRD_WS}, 0 offen")
    for d in range(depth3 - 1):
        A(f"buffer_load_dwordx4 v[{YG+4*d}:{YG+4*d+3}], v{vO1}, {SRD_WS}, {sH2[5]} offen {ld3}")
    A("L_h3:")
    for d in range(depth3):
        n = (d + depth3 - 1) % depth3
        A(f"buffer_load_dwordx4 v[{YG+4*n}:{YG+4*n+3}], v{vO1}, {SRD_WS}, {sH2[5]} offen {ld3}")
        A(f"s_waitcnt vmcnt({depth3 - 1})")
        A(f"v_mov_b32 v{G}, v{YG+4*d}")
        A(f"v_mov_b32 v{G+2}, v{YG+4*d+2}")
        tagcheck([YG + 4 * d + 1, YG + 4 * d + 3], vT, vT + 1)
        A("s_cbranch_vccz L_h3ok")
    A(f"s_sub_u32 {sT[9]}, {sT[9]}, 1")
    A("s_cbranch_scc0 L_h3")
    A("L_h3ok:")
    if stamps:
        A("s_memrealtime s[98:99]")
    allreduce("v_add_f32", [G, G + 2], vT, [8, 16, 32])
    A(f"v_lshlrev_b32 v{vT+2}, 16, v{vXR}")
    A(f"v_and_b32 v{vT+3}, 0xffff0000, v{vXR}")
    A(f"v_add_f32 v{G}, v{G}, v{vT+2}")
    A(f"v_add_f32 v{G+2}, v{G+2}, v{vT+3}")
    if dry:
        A("s_cbranch_execz L_h3back")
    A("s_mov_b64 exec, 0xff")
    A(f"v_cvt_pk_bf16_f32 v{G}, v{G}, v{G+2}")
    A(f"buffer_store_dword v{G}, v{vT+17}, {SRD_OUT}, 0 offen {outfl}")
    if diag and diag != 7:
        if diag == 1:
            A("s_memrealtime s[86:87]")
        A("s_memrealtime s[88:89]")
        A("s_waitcnt lgkmcnt(0)")
        A("s_sub_u32 s86, s86, s84")
        A(f"s_mul_i32 s86, s86, {dmul}")
        A("s_add_u32 s86, s86, s88")
        A("L_diag:")
        A("s_memrealtime s[88:89]")
        A("s_waitcnt lgkmcnt(0)")
        A("s_sub_u32 s90, s88, s86")
        A("s_cmp_lt_i32 s90, 0")
        A("s_cbranch_scc1 L_diag")
    A("s_cmp_eq_u32 s2, 224")
    A("s_cbranch_scc0 L_done")
    A("s_mov_b64 exec, 3")
    A(f"buffer_store_dword v{G+1}, v{vT+14}, {SRD_WS}, 0 offen {epfl}")
    A("s_branch L_done")

    A("L_bwave:")
    if wafter:
        issue_weights()
    OG = 112

    def hop1_loads(fl="sc1"):
        for k in range(4):
            A(f"buffer_load_dwordx4 v[{OG+4*k}:{OG+4*k+3}], v{vH1}, {SRD_WS}, {sT[2+k]} offen {fl}")
    if plain1:
        A(f"s_cmp_eq_u32 {sLOC}, 1")
        A("s_cbranch_scc0 L_h1far")
        hop1_loads("")
        A("s_branch L_h1first")
        A("L_h1far:")
    hop1_loads()
    A("L_h1first:")
    if lateprep:
        c_wprep()
    A(f"s_mov_b32 {sT[9]}, {spin}")
    oa, ob = vT, vT + 1
    gather4("h1", OG, vH1, sT[2:6], oa, ob, True, sleep1)
    stamp()
    allreduce("v_add_f32", [oa, ob], vT + 2, [8, 16, 32])
    A(f"v_cvt_pk_bf16_f32 v{oa}, v{oa}, v{ob}")
    A("s_nop 0")
    for k in range(8):
        A(f"v_readlane_b32 s{10+k}, v{oa}, {k}")
    for cp in range(2):
        for k in range(8):
            for c in (2 * cp, 2 * cp + 1):
                A(f"v_dot2_f32_bf16 v{Y+2*c}, s{10+k}, v{PW+4*k+c}, v{Y+2*c}")
    if dry:
        A("s_cbranch_execz L_h1back")
    A(f"s_cmp_eq_u32 {sLOC}, 1")
    A("s_cbranch_scc0 L_far2")
    A(f"buffer_store_dwordx4 v[{Y}:{Y+3}], v{vOO}, {SRD_WS}, {sP2} offen")
    A(f"buffer_store_dwordx4 v[{Y+4}:{Y+7}], v{vOO}, {SRD_WS}, {sP2} offen offset:1792")
    A("s_branch L_sent2")
    A("L_far2:")
    A(f"buffer_store_dwordx4 v[{Y}:{Y+3}], v{vOO}, {SRD_WS}, {sP2} offen sc1")
    A(f"buffer_store_dwordx4 v[{Y+4}:{Y+7}], v{vOO}, {SRD_WS}, {sP2} offen offset:1792 sc1")
    A("L_sent2:")
    stamp()
    A("L_leave:")
    if not gateA:
        A(f"s_cmp_eq_u32 {sCONS}, 1")
        A("s_cbranch_scc0 L_done")
    A("s_barrier")
    A("L_done:")
    if diag == 7:
        A("s_cmp_lt_u32 s2, 92")
        A("s_cbranch_scc0 L_end")
        A("s_memrealtime s[88:89]")
        A("s_waitcnt lgkmcnt(0)")
        A("s_sub_u32 s86, s86, s84")
        A(f"s_mul_i32 s86, s86, {dmul}")
        A("s_add_u32 s86, s86, s88")
        A("L_diag7:")
        A("s_memrealtime s[88:89]")
        A("s_waitcnt lgkmcnt(0)")
        A("s_sub_u32 s90, s88, s86")
        A("s_cmp_lt_i32 s90, 0")
        A("s_cbranch_scc1 L_diag7")
    if stamps:
        A("s_mov_b64 exec, -1")
        A("s_memrealtime s[100:101]")
        A("s_waitcnt lgkmcnt(0)")
        A(f"s_lshl_b32 {sT[0]}, s2, 2")
        A(f"s_add_u32 {sT[0]}, {sT[0]}, {sW}")
        A(f"s_lshl_b32 {sT[1]}, {sT[0]}, 8")
        A(f"s_lshl_b32 {sT[0]}, {sT[0]}, 6")
        A(f"s_add_u32 {sT[0]}, {sT[0]}, {WS_STAMP}")
        A(f"s_add_u32 {sT[1]}, {sT[1]}, {WS_STAMP + 0x10000}")
        A(f"v_lshlrev_b32 v2, 2, {vL}")
        A(f"buffer_store_dword v252, v2, {SRD_WS}, {sT[1]} offen")
        A("v_mov_b32 v2, 0")
        A("s_mov_b64 exec, 1")
        A("v_mov_b32 v3, s26")
        A(f"buffer_store_dword v3, v2, {SRD_WS}, {sT[0]} offen offset:44")
        for k in range(9):
            A(f"v_mov_b32 v3, s{84+2*k}")
            A(f"buffer_store_dword v3, v2, {SRD_WS}, {sT[0]} offen offset:{4*k}")
        A("s_getreg_b32 s84, hwreg(HW_REG_XCC_ID)")
        A("v_mov_b32 v3, s84")
        A(f"buffer_store_dword v3, v2, {SRD_WS}, {sT[0]} offen offset:36")
        A(f"v_mov_b32 v3, {sT[9]}")
        A(f"buffer_store_dword v3, v2, {SRD_WS}, {sT[0]} offen offset:40")
    A("L_end:")
    A("s_endpgm")
    body = "\n".join(("" if l.endswith(":") else "    ") + l for l in o)
    head = HEADER.format(lds=LDS, k=kern).replace("; One launch, 256 workgroups (one per CU), 4 waves each.  Generated by dev/gen.py.\n", DOC)
    if al12:
        head = head.replace(".p2align 8\n", ".p2align 12\n.p2align 8\n")
    return head + body + FOOTER.format(k=kern)


if __name__ == "__main__":
    out = sys.argv[1]
    kw = json.loads(sys.argv[2]) if len(sys.argv) > 2 else {}
    open(out, "w").write(gen(**kw))
```

```python
import sys, json, math, struct
from gen import HEADER, FOOTER, KERN, f2u, LOG2E_16

WS_QG = 0x1000
WS_HG = WS_QG + 0x4000
WS_ML = 0x8000
WS_RK = 0xA000
WS_RDY = 0xC000
WS_CNT = 0x200000
WS_P1O = 0x10000
WS_P2 = 0x110000
WS_P3 = 0x1F0000
WS_EP2 = 0x1FF000
WS_STAMP = 0x300000
WS_SIZE = 0x400000

DOC = '; ---------------------------------------------------------------------------------------------------------\n;\n; One launch, 256 workgroups (one per CU, LDS-limited), 4 waves each; head = wg & 7, p = wg >> 3.\n;  * Every wave streams 16 K tiles, then the 16 matching V tiles (16 keys = 8 KB each) with LDS-DMA into a\n;  * Hand-offs between workgroups go through d_ws as 8-byte {data, tag} granules; the tag is derived from two\n;    words the previous launch left, so stale contents never match.  Hand-offs inside a head use ordinary\n;    stores only when all 32 workgroups report the same XCC id, otherwise write-through (sc1) stores.\n; ---------------------------------------------------------------------------------------------------------\n'


def gen(R=3, N=5, N0=8, Nend=12, tail=7, NB=8, NP=6, bits="i0 w0 w1 i1 i2 g3 g4 t2 t3 x0 x1 x2 t0 t1",
        kflags="nt", vflags="nt", wflags="nt", stamps=0, spin=4000000, vpub=5, vgat=9, wpos=0, flat2=False, gate2=False, kopen=None, lateprep=True, pre1=None, pre2=None, plain1=False, touch="sc1", tpos=0, codepf=True, tlbpf=True, outpf=True, nn=None, ext=None, depth3=4, touch2=True, now=False, wafter=False, wat=None, tat=None, reuse=True, al12=True, pgpf=False, repf=(), dead=0, wtouch=False, jit=0, diag=0, dmul=1, dry=False, w2at=None, pad=0, gateA=False, st3="sc1", ld3="sc1", bb=None, N2=8, iw=None, ra=((8, 14, 6, 24, 6), (11, 14, 6, 24, 6), (14, 16, 6, 26, 6), (17, 18, 6, 26, 6), (20, 18, 6, 26, 6), (23, 18, 6, 26, 6), (26, 18, 6, 26, 6)), raws=True, nk=1, ng=8, bump=(), epfl="", outfl="", pipe=False, skipw=True, wlate=None, wtlb=None, wdma=None, rk=((64, 20, 4, 0, 0), (186, 18, 5, 0, 0)), rkw=1, Nhi=6, Nlo=4, sleep1=0, sleep2=0,
        alt=None, X=7, Np=12, B0=6, Xp=None, il=0, Np2=9, zmap="wg", rot=True, hmap="mod8", local=True,
        kern=KERN):
    noend = noml = False
    assert not wdma and wlate is None
    if ra:
        rk = ()
        assert len(ra) * ng <= 128 and raws
    ctl = list(rk) + list(ra)
    wearly = 0
    T = 8
    tb = T * 1024
    S = 16
    if "h" not in bits.split():
        bits = "h " + bits
    pos = {n: 9 + k for k, n in enumerate(bits.split())}
    genh = pos["h"] != 9
    RING = 4 * R * tb
    STG = RING
    QW = STG + 57344
    LML = QW + 4096
    FIN = LML + 128
    PRG = FIN + 256
    LDS = PRG + (1024 if iw else 0)
    assert LDS <= 163840 and LDS > 81920
    if Xp is None:
        Xp = X * T

    o = []
    A = o.append
    vm = {"n": 0, "known": 0}

    def VM(s):
        A(s)
        vm["n"] += 1
        return vm["n"]

    def wait_vm(idx, force=False):
        if idx <= vm["known"] and not force:
            return
        n = vm["n"] - idx
        assert 0 <= n <= 63, n
        A(f"s_waitcnt vmcnt({n})")
        if vm.get("opt") and idx < vm["optend"]:
            assert idx <= vm["optend"] - vm["opt"]
            vm["lbl"] = vm.get("lbl", 0) + 1
            A(f"s_cmp_ge_u32 s3, 2")
            A(f"s_cbranch_scc1 L_ow{vm['lbl']}")
            A(f"s_waitcnt vmcnt({n - vm['opt']})")
            A(f"L_ow{vm['lbl']}:")
        vm["known"] = max(vm["known"], idx)

    nstamp = {"n": 0}

    def stamp(mode=1):
        if stamps and (int(stamps) & mode):
            k = nstamp["n"]
            assert k < 8
            A(f"s_memrealtime s[{84+2*k}:{85+2*k}]")
            nstamp["n"] += 1

    SRD_K, SRD_V, SRD_W, SRD_WO, SRD_W2, SRD_WS, SRD_X, SRD_OUT = ("s[28:31]", "s[32:35]", "s[36:39]", "s[40:43]",
                                                                     "s[44:47]", "s[48:51]", "s[52:55]", "s[56:59]")
    sW, sH, sP, sTAG, sRING, sBASE, sC, sF = "s3", "s60", "s61", "s62", "s63", "s64", "s65", "s66"
    sOFF = "s67"
    sZ = "s27"
    sT = ["s72", "s73", "s74", "s75", "s76", "s77", "s78", "s79", "s80", "s81"]
    vL = "v1"
    vSRC = [2, 3, 4, 5]
    vKA = [6, 7, 8, 9]
    vVA = list(range(10, 18))
    vMAX, vMS = 18, 19
    vPF, vLS, vS, vE = 20, 24, 24, 28
    vVT = 32
    sLOC, sXCC = "s82", "s83"
    sWE, sNE = "s16", "s17"
    vPW, vPR, vPD = (22, 23, 255) if False else (252, 253, 255)
    if stamps and iw:
        vPW, vPR = 250, 251
    vQ, vTL, vACC, vSC, vT = 32, 64, 96, 160, 224
    vH = 244

    def mk_tag(dst):
        A(f"s_lshl1_add_u32 {dst}, s27, {sTAG}")
        A(f"s_mul_i32 {dst}, {dst}, 1664525")
        A(f"s_add_u32 {dst}, {dst}, 1013904223")

    def srd(base, lo, size):
        A(f"s_mov_b32 s{base}, s{lo}")
        A(f"s_mov_b32 s{base+1}, s{lo+1}")
        A(f"s_mov_b32 s{base+2}, {size}")
        A(f"s_mov_b32 s{base+3}, 0x20000")

    assert hmap == "mod8" and zmap == "wg" and not il
    sZ = "s2"
    A("L_c0:")
    A("s_load_dwordx2 s[28:29], s[0:1], 8")
    A("s_load_dwordx16 s[4:19], s[0:1], 0")
    A("s_load_dwordx4 s[20:23], s[0:1], 64")
    A("s_load_dwordx2 s[24:25], s[0:1], 80")
    stamp(3)
    if diag:
        A("s_memrealtime s[84:85]")
    A("v_lshrrev_b32 v30, 6, v0")
    A("s_cmp_lt_u32 s2, 92")
    A("s_cbranch_scc1 L_producer")
    A("s_cmp_ge_u32 s2, 256")
    A("s_cbranch_scc1 L_end")

    def put(src, names):
        k = 0
        while k < len(names):
            e = k
            while e + 1 < len(names) and pos[names[e + 1]] == pos[names[e]] + 1:
                e += 1
            if k == 0 and e == len(names) - 1:
                A(f"s_lshl_b32 {sT[2]}, {src}, {pos[names[0]]}")
            else:
                A(f"s_bfe_u32 {sT[2]}, {src}, {((e - k + 1) << 16) | k}")
                A(f"s_lshl_b32 {sT[2]}, {sT[2]}, {pos[names[k]]}")
            A(f"s_or_b32 {sBASE}, {sBASE}, {sT[2]}")
            k = e + 1

    def common0():
        A(f"v_and_b32 {vL}, 63, v0")
        A("v_readfirstlane_b32 s3, v30")
        A(f"s_and_b32 {sH}, s2, 7")
        A(f"s_lshr_b32 {sP}, s2, 3")
        A(f"s_and_b32 {sT[0]}, {sP}, 7")
        A(f"s_lshr_b32 {sT[1]}, s2, 6")
        A(f"s_lshl_b32 {sBASE}, {sH}, 24")
        put(sT[0], ["x0", "x1", "x2"])
        put(sT[1], ["g3", "g4"])
        put(sW, ["w0", "w1"])
        A(f"s_mul_i32 {sRING}, {sW}, {R*tb}")
        A("s_brev_b32 s30, 16")
        A("s_mov_b32 s31, 0x20000")
        A(f"v_lshlrev_b32 v29, 4, {vL}")
        A(f"v_and_b32 v31, 32, {vL}")
        A(f"v_xor_b32 v{vSRC[0]}, v29, v31")
        if genh:
            A(f"v_and_b32 v{vSRC[0]}, 0x1ff, v{vSRC[0]}")
            A(f"v_lshl_add_u32 v{vSRC[0]}, v31, {pos['h'] - 5}, v{vSRC[0]}")
        A(f"v_xor_b32 v{vSRC[1]}, 64, v{vSRC[0]}")
        A(f"v_xor_b32 v{vSRC[2]}, 0x80, v{vSRC[0]}")
        A(f"v_xor_b32 v{vSRC[3]}, 64, v{vSRC[2]}")

    def common1():
        A(f"s_mov_b32 {sC}, 0x{f2u(LOG2E_16):08x}")
        A(f"s_min_u32 {sF}, s2, 223")

    def producer0():
        A("s_mov_b32 s39, 0x20000")
        A(f"s_cmp_lt_u32 {sZ}, 64")
        A(f"s_mov_b32 s38, {448*1792*2}")
        A(f"s_cmov_b32 s38, {448*4096*2}")
        A(f"s_movk_i32 {sT[4]}, 3584")
        A(f"s_cmovk_i32 {sT[4]}, 8192")
        A(f"s_and_b32 {sT[5]}, {sZ}, 63")
        A(f"s_lshl_b32 {sT[5]}, {sT[5]}, 7")
        A(f"s_mul_i32 {sT[6]}, {sW}, {sT[4]}")
        A(f"s_mulk_i32 {sT[6]}, 112")
        A(f"s_add_u32 {sT[5]}, {sT[5]}, {sT[6]}")
        A(f"v_lshrrev_b32 v30, 3, {vL}")
        A(f"v_mul_u32_u24 v30, {sT[4]}, v30")
        A(f"v_and_b32 v31, 0x70, v29")
        A("v_add_u32 v21, v31, v30")
        A(f"s_lshl_b32 {sT[4]}, {sT[4]}, 3")
        A(f"s_mul_i32 {sT[6]}, {sW}, 14336")
        A(f"s_add_u32 {sT[6]}, {sT[6]}, {STG}")
        A("s_movk_i32 s54, 896")
        A("s_mov_b32 s55, s39")
        A(f"s_movk_i32 {sT[3]}, 14")
        A("s_waitcnt lgkmcnt(0)")
        A("s_mov_b64 s[52:53], s[4:5]")
        A(f"s_cmp_lt_u32 {sZ}, 64")
        A("s_cselect_b64 s[36:37], s[10:11], s[16:17]")
        if wtouch:
            A(f"s_load_dword {sLOC}, s[36:37], {sT[5]}")
            A(f"s_load_dword {sXCC}, s[28:29], {sBASE}")

    seq = [("K", n) for n in range(S)] + [("V", n) for n in range(S)]
    NL = len(seq) * T
    lidx = {}

    m0bad = {"v": False}

    def issue_load(L):
        j, i = divmod(L, T)
        kind, n = seq[j]
        if i % 4 and m0bad["v"]:
            A(f"s_add_u32 m0, {sRING}, {(j % R)*tb + (i // 4)*4096}")
            A("s_nop 0")
        m0bad["v"] = False
        def goff(i_):
            return (sum(((n >> k) & 1) << pos[f"t{k}"] for k in range(4)) +
                    sum(((i_ >> k) & 1) << pos[f"i{k}"] for k in range(3)) - (i_ % 4) * 1024)
        srd_, fl = (SRD_K, kflags) if kind == "K" else (SRD_V, vflags)
        if genh:
            A(f"s_add_u32 m0, {sRING}, {(j % R)*tb + i*1024}")
            A(f"s_add_u32 {sOFF}, {sBASE}, {goff(i) + (i % 4)*1024}")
            lidx[L] = VM(f"buffer_load_dwordx4 v{vSRC[i%4]}, {srd_}, {sOFF} offen {fl} lds")
            return
        if i % 4 == 0:
            A(f"s_add_u32 m0, {sRING}, {(j % R)*tb + i*1024}")
        if i % 4 == 0 or goff(i) != goff(i - 1):
            A(f"s_add_u32 {sOFF}, {sBASE}, {goff(i)}")
        lidx[L] = VM(f"buffer_load_dwordx4 v{vSRC[i%4]}, {srd_}, {sOFF} offen offset:{(i%4)*1024} {fl} lds")

    npf = {"n": 0}

    LFLAG = 0x600DF1A6

    def setup():
        A(f"s_lshl_b32 {sT[2]}, {sW}, 5")
        A(f"s_add_u32 {sT[2]}, {sT[2]}, {LML}")
        A(f"v_lshlrev_b32 v29, 2, {vL}")
        A(f"v_add_u32 v29, {sT[2]}, v29")
        A("v_mov_b32 v30, 0")
        A("s_mov_b64 exec, 0xff")
        A("ds_write_b32 v29, v30")
        if ctl:
            A("ds_write_b32 v29, v30 offset:128")
        A("s_mov_b64 exec, -1")
        if iw:
            A(f"v_lshlrev_b32 v{vPW}, 2, v0")
            A(f"v_add_u32 v{vPW}, {PRG}, v{vPW}")
            A(f"ds_write_b32 v{vPW}, v30")
            A(f"v_and_b32 v{vPR}, 3, {vL}")
            A(f"v_lshlrev_b32 v{vPR}, 8, v{vPR}")
            A(f"v_add_u32 v{vPR}, {PRG}, v{vPR}")
        A("s_waitcnt lgkmcnt(0)")
        A("s_barrier")
        A(f"s_load_dword {sTAG}, s[24:25], 0")
        A(f"s_mov_b32 {sT[2]}, {WS_EP2}")
        A(f"s_load_dword s27, s[24:25], {sT[2]}")
        if tlbpf:
            A(f"s_lshr_b32 {sT[2]}, s2, 3")
            A(f"s_lshl_b32 {sT[2]}, {sT[2]}, 2")
            A(f"s_add_u32 {sT[2]}, {sT[2]}, {sW}")
            A(f"s_bitcmp1_b32 {sT[2]}, 3")
            A("s_cselect_b32 s70, s8, s6")
            A("s_cselect_b32 s71, s9, s7")
            A(f"s_and_b32 {sT[7]}, {sT[2]}, 7")
            A(f"s_lshl_b32 {sT[7]}, {sT[7]}, 21")
            A(f"s_lshl_b32 {sT[8]}, {sH}, 24")
            A(f"s_add_u32 {sT[7]}, {sT[7]}, {sT[8]}")
            A(f"s_lshl_b32 {sT[8]}, {sT[2]}, 7")
            A(f"s_add_u32 {sT[7]}, {sT[7]}, {sT[8]}")
            A(f"s_add_u32 s70, s70, {sT[7]}")
            A("s_addc_u32 s71, s71, 0")
            A(f"s_load_dword {sLOC}, s[70:71], 0x0")
            A(f"s_bitcmp1_b32 {sW}, 0")
            A("s_cselect_b32 s70, s12, s18")
            A("s_cselect_b32 s71, s13, s19")
            A(f"s_mov_b32 {sT[7]}, 6272")
            A(f"s_cmov_b32 {sT[7]}, 14336")
            A(f"s_mul_i32 {sT[7]}, {sT[7]}, s2")
            A(f"s_add_u32 s70, s70, {sT[7]}")
            A("s_addc_u32 s71, s71, 0")
            A(f"s_load_dword s21, s[70:71], 0x0" if False else f"s_load_dword {sXCC}, s[70:71], 0x0")
        if codepf:
            k = npf["n"]
            npf["n"] += 1
            A(f"s_getpc_b64 s[68:69]")
            A(f"L_pf{k}:")
            A(f"s_lshr_b32 {sT[2]}, s2, 3")
            A(f"s_lshl_b32 {sT[2]}, {sT[2]}, 2")
            A(f"s_add_u32 {sT[2]}, {sT[2]}, {sW}")
            A(f"s_lshl_b32 {sT[2]}, {sT[2]}, 8")
            A(f"s_min_u32 {sT[2]}, {sT[2]}, L_end-L_c0-128")
            A(f"s_sub_u32 s68, s68, L_pf{k}-L_c0")
            A("s_subb_u32 s69, s69, 0")
            A(f"s_add_u32 s68, s68, {sT[2]}")
            A("s_addc_u32 s69, s69, 0")
            A(f"s_load_dword {sLOC}, s[68:69], 0x0")
            A(f"s_load_dword {sLOC}, s[68:69], 0x80")
            if pgpf:
                A(f"s_sub_u32 s68, s68, {sT[2]}")
                A("s_subb_u32 s69, s69, 0")
                A(f"s_lshl_b32 {sT[2]}, {sW}, 13")
                A(f"s_min_u32 {sT[2]}, {sT[2]}, L_end-L_c0-4096")
                A(f"s_add_u32 s68, s68, {sT[2]}")
                A("s_addc_u32 s69, s69, 0")
                A(f"s_load_dword {sLOC}, s[68:69], 0x0")
                A(f"s_load_dword {sLOC}, s[68:69], 0x1000")
        srd(32, 8, 128 << 20)
        srd(40, 12, 4096 * 448 * 2)
        srd(44, 18, 1792 * 448 * 2)
        srd(48, 24, WS_SIZE)
        srd(56, 20, 896)
        if stamps:
            A("s_mov_b32 s26, 0")
            A("v_mov_b32 v252, 0")
            for k in (5, 6, 7):
                A(f"s_mov_b32 s{84+2*k}, s84")
        A(f"v_and_b32 v29, 15, {vL}")
        A(f"v_lshrrev_b32 v30, 4, {vL}")
        A("v_and_b32 v31, 7, v29")
        A("v_lshlrev_b32 v31, 1, v31")
        A("v_xor_b32 v31, v31, v30")
        A("v_lshlrev_b32 v31, 4, v31")
        A("v_lshl_add_u32 v31, v29, 9, v31")
        for j in range(4):
            A(f"v_xor_b32 v{vKA[j]}, {j*64}, v31")
            A(f"v_add_u32 v{vKA[j]}, {sRING}, v{vKA[j]}")
        A(f"v_bfe_u32 v29, {vL}, 2, 2")
        A(f"v_lshrrev_b32 v30, 4, {vL}")
        A("v_xor_b32 v30, v30, v29")
        A(f"v_and_b32 v31, 3, {vL}")
        A("v_lshlrev_b32 v31, 3, v31")
        A("v_lshl_add_u32 v31, v30, 5, v31")
        A("v_lshl_add_u32 v31, v29, 9, v31")
        A(f"v_add_u32 v{vVA[0]}, {sRING}, v31")
        A(f"v_mov_b32 v{vMAX}, 0xff800000")
        if ra:
            A(f"s_and_b32 s14, {sP}, {nk-1}")
            if raws:
                A(f"s_and_b32 s15, {sP}, {ng-1}")
                A("s_mul_i32 s15, s15, 4352")
                A(f"s_add_u32 s15, s15, {WS_CNT}")
                A("s_add_u32 s22, s24, s15")
                A("s_addc_u32 s23, s25, 0")
            else:
                A(f"s_bfe_u32 s15, {sP}, 0x20002")
                A("s_lshl_b32 s15, s15, 4")
                A("s_add_u32 s15, s15, s14")
                A("s_lshl_b32 s15, s15, 2")
                A("s_add_u32 s22, s22, s15")
                A("s_addc_u32 s23, s23, 0")
            A(f"s_cmp_eq_u32 {sW}, {rkw}")
            A("s_cselect_b32 s14, s14, 15")
        if ctl:
            A(f"s_mov_b32 {sWE}, 0")
            A(f"s_mov_b32 {sNE}, 0")
            A(f"v_mov_b32 v254, {FIN}")

    def allreduce(op, regs, tmp, steps):
        for st in steps:
            if st <= 8:
                if len(regs) < 3:
                    A(f"s_nop {2-len(regs)}")
                for r in regs:
                    A(f"{op}_dpp v{r}, v{r}, v{r} row_ror:{st} row_mask:0xf bank_mask:0xf")
            else:
                for k, r in enumerate(regs):
                    A(f"v_mov_b32 v{tmp+k}, v{r}")
                if len(regs) < 3:
                    A(f"s_nop {2-len(regs)}")
                for k, r in enumerate(regs):
                    A(f"v_permlane{st}_swap_b32 v{r}, v{tmp+k}")
                if len(regs) < 2:
                    A("s_nop 0")
                for k, r in enumerate(regs):
                    A(f"{op} v{r}, v{r}, v{tmp+k}")

    XU = vT + 4
    a, b, c_, d_ = vT + 12, vT + 13, vT + 14, vT + 15
    XF, WF = 96, 152
    st = {}

    def side0():
        A("; layer norm with the reference rounding steps")
        wait_vm(st["x"])
        stamp(2)
        for i in range(4):
            A(f"v_lshlrev_b32 v{XU+2*i}, 16, v{vT+i}")
            A(f"v_and_b32 v{XU+2*i+1}, 0xffff0000, v{vT+i}")
        A(f"v_add_f32 v{a}, v{XU}, v{XU+1}")
        for i in range(2, 8):
            A(f"v_add_f32 v{a}, v{a}, v{XU+i}")
        allreduce("v_add_f32", [a], b, [1, 2, 4, 8, 16, 32])

    def side1():
        A(f"v_mul_f32 v{a}, 0x{f2u(1.0/448):08x}, v{a}")
        A(f"v_mov_b32 v{b}, 0")
        for i in range(8):
            A(f"v_sub_f32 v{c_}, v{XU+i}, v{a}")
            A(f"v_fmac_f32 v{b}, v{c_}, v{c_}")
        A(f"v_cmp_gt_u32 vcc, 56, {vL}")
        A("s_nop 1")
        A(f"v_cndmask_b32 v{b}, 0, v{b}, vcc")
        allreduce("v_add_f32", [b], c_, [1, 2, 4, 8, 16, 32])

    def side2():
        A(f"v_mul_f32 v{b}, 0x{f2u(1.0/448):08x}, v{b}")
        A(f"v_cvt_pk_bf16_f32 v{c_}, v{a}, v{b}")
        A(f"v_lshlrev_b32 v{a}, 16, v{c_}")
        A(f"v_and_b32 v{b}, 0xffff0000, v{c_}")
        A(f"v_add_f32 v{b}, 0x{f2u(1e-5):08x}, v{b}")
        A(f"v_cvt_pk_bf16_f32 v{b}, v{b}, v{b}")
        A(f"v_and_b32 v{b}, 0xffff0000, v{b}")
        A(f"v_sqrt_f32 v{b}, v{b}")
        A("s_nop 0")
        A(f"v_cvt_pk_bf16_f32 v{b}, v{b}, v{b}")
        A(f"v_and_b32 v{b}, 0xffff0000, v{b}")
        A(f"v_rcp_f32 v{b}, v{b}")

    def side3():
        for i in range(8):
            A(f"v_sub_f32 v{XU+i}, v{XU+i}, v{a}")
        for i in range(4):
            A(f"v_cvt_pk_bf16_f32 v{vT+i}, v{XU+2*i}, v{XU+2*i+1}")
        for i in range(4):
            A(f"v_lshlrev_b32 v{XU+2*i}, 16, v{vT+i}")
            A(f"v_and_b32 v{XU+2*i+1}, 0xffff0000, v{vT+i}")
        for i in range(8):
            A(f"v_mul_f32 v{XU+i}, v{XU+i}, v{b}")
        for i in range(4):
            A(f"v_cvt_pk_bf16_f32 v{vT+i}, v{XU+2*i}, v{XU+2*i+1}")
        A(f"s_lshl_b32 {sT[0]}, {sW}, 10")
        A(f"s_add_u32 {sT[0]}, {sT[0]}, {QW}")
        A(f"v_lshlrev_b32 v{a}, 4, {vL}")
        A(f"v_add_u32 v{a}, {sT[0]}, v{a}")
        A(f"ds_write_b128 v{a}, v[{vT}:{vT+3}]")
        A(f"v_lshrrev_b32 v{b}, 4, {vL}")
        A(f"v_lshlrev_b32 v{c_}, 4, v{b}")
        A(f"v_add_u32 v{c_}, {sT[0]}, v{c_}")

    def side4():
        A("s_waitcnt lgkmcnt(0)")
        for i in range(14):
            A(f"ds_read_b128 v[{XF+4*i}:{XF+4*i+3}], v{c_} offset:{i*64}")
        A(f"v_lshlrev_b32 v{b}, 10, v{b}")
        A(f"v_bfe_u32 v{d_}, {vL}, 2, 2")
        A(f"v_lshl_add_u32 v{b}, v{d_}, 7, v{b}")
        A(f"v_and_b32 v{d_}, 3, {vL}")
        A(f"v_lshl_add_u32 v{b}, v{d_}, 3, v{b}")
        A(f"s_lshl_b32 {sT[1]}, {sW}, 5")
        A(f"s_add_u32 {sT[1]}, {sT[1]}, {STG}")
        A(f"v_add_u32 v{b}, {sT[1]}, v{b}")
        mk_tag(f"{sT[2]}")

    def side5():
        stamp(2)
        wait_vm(st["stg"])
        A("s_waitcnt lgkmcnt(0)")
        A("s_barrier")
        if diag == 7:
            A("s_memrealtime s[86:87]")
        stamp(2)
        for i in range(14):
            A(f"ds_read_b64_tr_b16 v[{WF+4*i}:{WF+4*i+1}], v{b} offset:{i*4096}")
            A(f"ds_read_b64_tr_b16 v[{WF+4*i+2}:{WF+4*i+3}], v{b} offset:{i*4096+512}")

    def side6():
        A(f"v_and_b32 v{d_}, 15, {vL}")
        A(f"v_cmp_eq_u32 s[70:71], 0, v{d_}")
        A(f"v_lshrrev_b32 v{a}, 4, {vL}")
        A(f"v_lshlrev_b32 v{a}, 4, v{a}")
        A(f"v_mov_b32 v{vT+1}, {sT[2]}")
        A(f"v_mov_b32 v{vT+3}, {sT[2]}")
        A(f"s_lshl_b32 {sT[0]}, {sZ}, 2")
        A(f"s_add_u32 {sT[0]}, {sT[0]}, {sW}")
        A(f"s_lshl_b32 {sT[0]}, {sT[0]}, 6")
        A(f"s_add_u32 {sT[0]}, {sT[0]}, {WS_QG}")
        A(f"s_cmp_lt_u32 {sZ}, 64")
        A(f"s_cselect_b32 {sT[1]}, 0xff800000, 0")

    def side7():
        A("s_waitcnt lgkmcnt(0)")
        for i in range(14):
            A(f"v_mfma_f32_16x16x32_bf16 v[{vS}:{vS+3}], v[{WF+4*i}:{WF+4*i+3}], v[{XF+4*i}:{XF+4*i+3}], " +
              ("0" if i == 0 else f"v[{vS}:{vS+3}]"))

    def side8():
        A("s_nop 7")
        for i in range(4):
            A(f"v_max_f32 v{vS+i}, {sT[1]}, v{vS+i}")
        A(f"v_cvt_pk_bf16_f32 v{vT}, v{vS}, v{vS+1}")
        A(f"v_cvt_pk_bf16_f32 v{vT+2}, v{vS+2}, v{vS+3}")
        A("s_mov_b64 exec, s[70:71]")
        A(f"buffer_store_dwordx4 v[{vT}:{vT+3}], v{a}, {SRD_WS}, {sT[0]} offen sc1")
        A("s_mov_b64 exec, -1")

    side_chunks = [side0, side1, side2, side3, side4, side5, side6, side7, side8]

    def tile_stamp_a():
        if stamps:
            A("s_memrealtime s[100:101]")
        if st.get("rk_on") and not st.get("rk_off"):
            A(f"ds_read_b64 v[{vT+18}:{vT+19}], v254")
            if iw:
                A(f"ds_read_b32 v{vPD}, v{vPR}")
                st["iw_own"] = st["iw_last"]
            st["rk_rd"] = True

    def lds_wait(tile=False):
        A("s_waitcnt lgkmcnt(0)")
        if st.get("rk_rd"):
            A(f"v_readfirstlane_b32 {sWE}, v{vT+18}")
            A(f"v_readfirstlane_b32 {sNE}, v{vT+19}")
            if bb and st["tc"] >= bb[0]:
                A(f"s_cmp_ge_u32 {sW}, 2")
                A(f"s_cmovk_i32 {sWE if bb[1] == 1 else sNE}, 0x100")
            if iw:
                th, gain, thn, gn = iw
                A(f"v_add_u32_dpp v{vPD}, v{vPD}, v{vPD} quad_perm:[1,0,3,2] row_mask:0xf bank_mask:0xf")
                A("s_nop 1")
                A(f"v_add_u32_dpp v{vPD}, v{vPD}, v{vPD} quad_perm:[2,3,0,1] row_mask:0xf bank_mask:0xf")
                A("s_nop 0")
                A(f"v_readfirstlane_b32 s19, v{vPD}")
                A(f"s_sub_i32 s19, s19, {4*st['iw_own']}")
                A(f"s_mul_i32 s13, s19, {gain}")
                A(f"s_add_i32 s13, s13, {st['L']}")
                A(f"s_cmp_ge_i32 s19, {th}")
                A("s_cselect_b32 s13, s13, 0")
                A(f"s_max_u32 {sWE}, {sWE}, s13")
                if thn:
                    A(f"s_mul_i32 s13, s19, {-gn}")
                    A(f"s_add_i32 s13, s13, {st['L']}")
                    A(f"s_cmp_le_i32 s19, {-thn}")
                    A("s_cselect_b32 s13, s13, 0")
                    A(f"s_cselect_b32 {sWE}, 0, {sWE}")
                    A(f"s_max_u32 {sNE}, {sNE}, s13")
            st["rk_rd"] = False
        if tile and "tc" in st:
            j = st["tc"]
            st["tc"] += 1
            if j in repf:
                A(f"s_getpc_b64 s[12:13]")
                A(f"L_rp{j}:")
                A(f"s_lshl_b32 s19, {sP}, 2")
                A(f"s_add_u32 s19, s19, {sW}")
                A("s_lshl_b32 s19, s19, 7")
                A(f"s_min_u32 s19, s19, L_end-L_rp{j}")
                A("s_load_dword s15, s[12:13], s19")
            for c, r_ in enumerate(ra):
                if 1 <= j - r_[0] <= nk:
                    c_rkdecide(c, st["L"], j - r_[0] - 1)
            for c, r_ in enumerate(ra):
                if 0 <= j - r_[0] < nk:
                    assert st.get("rdy"), "probe before the ready check"
                    A(f"s_cmp_eq_u32 s14, {j - r_[0]}")
                    A(f"s_cbranch_scc0 L_ra{c}_{j}")
                    A("s_mov_b32 s18, 1")
                    A(f"s_atomic_add s18, s[22:23], {ng*4352*c} glc")
                    A(f"L_ra{c}_{j}:")
        if stamps and tile:
            A("v_mov_b32 v253, s100")
            A(f"v_cmp_eq_u32 vcc, s26, {vL}")
            A("s_add_u32 s26, s26, 1")
            A("s_nop 0")
            A("v_cndmask_b32 v252, v252, v253, vcc")

    def read_k(dst, slot_imm, acc=False):
        tile_stamp_a()
        p = "a" if acc else "v"
        for j in range(8):
            A(f"ds_read_b128 {p}[{dst+4*j}:{dst+4*j+3}], v{vKA[j%4]} offset:{slot_imm + (j//4)*256}")

    def qk_mfma(src, acc):
        p = "a" if acc else "v"
        for j in range(8):
            A(f"v_mfma_f32_16x16x32_bf16 v[{vS}:{vS+3}], {p}[{src+4*j}:{src+4*j+3}], v[{vQ+4*j}:{vQ+4*j+3}], " +
              ("0" if j == 0 else f"v[{vS}:{vS+3}]"))

    def qk_post(sc):
        A("s_nop 7")
        A(f"v_cvt_pk_bf16_f32 v{sc+1}, v{vS}, v{vS+1}")
        A(f"v_cvt_pk_bf16_f32 v{sc+3}, v{vS+2}, v{vS+3}")
        A(f"v_lshlrev_b32 v{sc}, 16, v{sc+1}")
        A(f"v_and_b32 v{sc+1}, 0xffff0000, v{sc+1}")
        A(f"v_lshlrev_b32 v{sc+2}, 16, v{sc+3}")
        A(f"v_and_b32 v{sc+3}, 0xffff0000, v{sc+3}")
        A(f"v_max3_f32 v{vMAX}, v{sc}, v{sc+1}, v{vMAX}")
        A(f"v_max3_f32 v{vMAX}, v{sc+2}, v{sc+3}, v{vMAX}")

    def q_poll(emit):
        emit(f"buffer_load_dwordx4 v[{vT}:{vT+3}], v{vT+8}, {SRD_WS}, {sT[8]} offen sc1")
        emit(f"buffer_load_dwordx4 v[{vT+4}:{vT+7}], v{vT+8}, {SRD_WS}, {sT[8]} offen offset:1024 sc1")
        emit(f"buffer_load_dwordx4 v[{vH}:{vH+3}], off, {SRD_WS}, {sT[7]} sc1")
        return emit(f"buffer_load_dwordx4 v[{vH+4}:{vH+7}], off, {SRD_WS}, {sT[7]} offset:16 sc1")

    def tagcheck(regs, acc0, acc1, sTAG=sTAG):
        A(f"v_xor_b32 v{acc0}, {sTAG}, v{regs[0]}")
        A(f"v_xor_b32 v{acc1}, {sTAG}, v{regs[1]}")
        for i, r in enumerate(regs[2:]):
            acc = acc0 if i % 2 == 0 else acc1
            A(f"v_bitop3_b32 v{acc}, v{acc}, v{r}, {sTAG} bitop3:0xf6")
        A(f"v_or_b32 v{acc0}, v{acc0}, v{acc1}")
        A(f"v_cmp_ne_u32 vcc, 0, v{acc0}")

    def c_qpoll():
        A("; fetch q (and h, counter-ready word)")
        A(f"s_lshl_b32 {sT[8]}, {sH}, 11")
        A(f"s_add_u32 {sT[8]}, {sT[8]}, {WS_QG}")
        A(f"s_lshl_b32 {sT[7]}, {sF}, 5")
        A(f"s_add_u32 {sT[7]}, {sT[7]}, {WS_HG}")
        A(f"v_lshlrev_b32 v{vT+8}, 4, {vL}")
        if ra:
            A(f"s_mov_b32 {sT[6]}, {WS_RDY}")
            VM(f"buffer_load_dword v255, off, {SRD_WS}, {sT[6]} sc1")
        st["q"] = q_poll(VM)

    def c_qcheck():
        A("; check the q tags, build the B fragments")
        wait_vm(st["q"])
        if ra:
            A(f"v_readfirstlane_b32 {sT[6]}, v255")
            A(f"s_cmp_eq_u32 {sT[6]}, {sTAG}")
            A("s_cselect_b32 s14, s14, 15")
            st["rdy"] = True
        A(f"s_mov_b32 {sT[0]}, {spin}")
        A("L_qchk:")
        tagcheck([vT + 1, vT + 3, vT + 5, vT + 7, vH + 1, vH + 3, vH + 5, vH + 7], vT + 9, vT + 10)
        A("s_cbranch_vccz L_qok")
        A(f"s_sub_u32 {sT[0]}, {sT[0]}, 1")
        A("s_cbranch_scc1 L_qok")
        q_poll(A)
        A("s_waitcnt vmcnt(0)")
        A("s_branch L_qchk")
        A("L_qok:")
        stamp()
        A(f"s_lshl_b32 {sT[0]}, {sW}, 10")
        A(f"s_add_u32 {sT[0]}, {sT[0]}, {QW}")
        A(f"v_lshlrev_b32 v{vT+9}, 3, {vL}")
        A(f"v_add_u32 v{vT+9}, {sT[0]}, v{vT+9}")
        A(f"ds_write2_b32 v{vT+9}, v{vT}, v{vT+2} offset0:0 offset1:1")
        A(f"ds_write2_b32 v{vT+9}, v{vT+4}, v{vT+6} offset0:128 offset1:129")
        A(f"v_and_b32 v{vT+10}, 1, {vL}")
        A(f"v_lshlrev_b32 v{vT+10}, 9, v{vT+10}")
        A(f"v_lshrrev_b32 v{vT+11}, 4, {vL}")
        A(f"v_lshl_add_u32 v{vT+10}, v{vT+11}, 4, v{vT+10}")
        A(f"v_add_u32 v{vT+10}, {sT[0]}, v{vT+10}")

    def c_qread():
        A("s_waitcnt lgkmcnt(0)")
        for j in range(8):
            A(f"ds_read_b128 v[{vQ+4*j}:{vQ+4*j+3}], v{vT+10} offset:{j*64}")

    def c_kmax():
        A("; end of the K pass: wave max")
        A(f"s_getreg_b32 {sXCC}, hwreg(HW_REG_XCC_ID, 0, 4)")
        allreduce("v_max_f32", [vMAX], vT, [16, 32])
        if diag == 3:
            A("s_memrealtime s[86:87]")
        A(f"v_mul_f32 v{vMS}, {sC}, v{vMAX}")
        A(f"v_mov_b32 v{vLS}, 0")
        A(f"v_mov_b32 v{vLS+1}, 0")
        stamp()

    def read_vg(slot_imm, g):
        for qd in range(4):
            r = vVT + 8 * g + 2 * qd
            A(f"ds_read_b64_tr_b16 v[{r}:{r+1}], v{vVA[0]} offset:{slot_imm + g*2048 + ((qd ^ g) & 1)*128 + (qd >> 1)*256}")

    def read_v(slot_imm, half):
        tile_stamp_a()
        for g in range(4):
            read_vg(slot_imm, g)

    def exps(sc):
        for r in range(4):
            A(f"v_fma_f32 v{vE+r}, v{sc+r}, {sC}, -v{vMS}")
        for r in range(4):
            A(f"v_exp_f32 v{vE+r}, v{vE+r}")
        A("s_nop 0")

    def make_p(n):
        exps(vSC + 4 * n)
        A(f"v_cvt_pk_bf16_f32 v{vPF+2*(n&1)}, v{vE}, v{vE+1}")
        A(f"v_cvt_pk_bf16_f32 v{vPF+2*(n&1)+1}, v{vE+2}, v{vE+3}")
        st["pdone"] = n

    def lsum(sc):
        exps(sc)
        A(f"v_add_f32 v{vLS}, v{vLS}, v{vE}")
        A(f"v_add_f32 v{vLS+1}, v{vLS+1}, v{vE+1}")
        A(f"v_add_f32 v{vLS}, v{vLS}, v{vE+2}")
        A(f"v_add_f32 v{vLS+1}, v{vLS+1}, v{vE+3}")

    def pvg(n, g):
        pf = vPF + 2 * (n & 1)
        for qd in range(4):
            r = vVT + 8 * g + 2 * qd
            A(f"v_mfma_f32_4x4x4_16b_bf16 v[{vACC+4*qd}:{vACC+4*qd+3}], v[{pf}:{pf+1}], v[{r}:{r+1}], " +
              ("0" if n == 0 and g == 0 else f"v[{vACC+4*qd}:{vACC+4*qd+3}]") + f" cbsz:4 abid:{4*g}")

    def pv(n):
        for g in range(4):
            pvg(n, g)

    def c_lwrite():
        A("; wave (max, sum) -> LDS")
        A(f"v_add_f32 v{vT+2}, v{vLS}, v{vLS+1}")
        allreduce("v_add_f32", [vT + 2], vT + 4, [16, 32])
        A(f"v_mov_b32 v{vT}, v{vMS}")
        A(f"v_mov_b32 v{vT+1}, 0x{LFLAG:x}")
        A(f"v_mov_b32 v{vT+3}, 0x{LFLAG:x}")
        A(f"s_lshl_b32 {sT[0]}, {sW}, 5")
        A(f"s_add_u32 {sT[0]}, {sT[0]}, {LML}")
        A(f"v_lshlrev_b32 v{vT+4}, 4, {vL}")
        A(f"v_add_u32 v{vT+4}, {sT[0]}, v{vT+4}")
        A("s_mov_b64 exec, 3")
        A(f"ds_write_b128 v{vT+4}, v[{vT}:{vT+3}]")
        A("s_mov_b64 exec, -1")

    def c_mlpub():
        A("; wave 0: workgroup (max, sum) -> d_ws")
        A(f"s_cmp_eq_u32 {sW}, 0")
        A("s_cbranch_scc0 L_nopub")
        A(f"v_and_b32 v{vT+4}, 7, {vL}")
        A(f"v_lshlrev_b32 v{vT+4}, 4, v{vT+4}")
        A(f"v_add_u32 v{vT+4}, {LML}, v{vT+4}")
        A(f"s_mov_b32 {sT[0]}, {spin*4}")
        A("L_lml:")
        A(f"ds_read_b128 v[{vT}:{vT+3}], v{vT+4}")
        A("s_waitcnt lgkmcnt(0)")
        A(f"v_and_b32 v{vT+5}, v{vT+1}, v{vT+3}")
        A(f"v_cmp_ne_u32 vcc, 0x{LFLAG:x}, v{vT+5}")
        A("s_cbranch_vccz L_lmlok")
        A(f"s_sub_u32 {sT[0]}, {sT[0]}, 1")
        A("s_cbranch_scc0 L_lml")
        A("L_lmlok:")
        A(f"v_mov_b32 v{vT+5}, v{vT}")
        allreduce("v_max_f32", [vT + 5], vT + 6, [2, 4])
        A(f"v_sub_f32 v{vT}, v{vT}, v{vT+5}")
        A(f"v_exp_f32 v{vT}, v{vT}")
        A("s_nop 0")
        A(f"v_mul_f32 v{vT+2}, v{vT+2}, v{vT}")
        allreduce("v_add_f32", [vT + 2], vT + 6, [2, 4])
        A(f"v_mov_b32 v{vT}, v{vT+5}")
        A(f"v_mov_b32 v{vT+1}, {sTAG}")
        A(f"v_xor_b32 v{vT+3}, {sXCC}, v{vT+1}")
        A(f"s_lshl_b32 {sT[0]}, {sH}, 10")
        A(f"s_lshl_b32 {sT[1]}, {sP}, 5")
        A(f"s_add_u32 {sT[0]}, {sT[0]}, {sT[1]}")
        A(f"s_add_u32 {sT[0]}, {sT[0]}, {WS_ML}")
        A(f"v_lshlrev_b32 v{vT+4}, 4, {vL}")
        A("s_mov_b64 exec, 3")
        A(f"buffer_store_dwordx4 v[{vT}:{vT+3}], v{vT+4}, {SRD_WS}, {sT[0]} offen sc1")
        A("s_mov_b64 exec, -1")
        A("L_nopub:")

    def c_mlpoll():
        A("; fetch the 32 (max, sum) records of this head")
        A(f"s_lshl_b32 {sT[8]}, {sH}, 10")
        A(f"s_add_u32 {sT[8]}, {sT[8]}, {WS_ML}")
        A(f"v_lshlrev_b32 v{vT+8}, 4, {vL}")
        st["ml"] = VM(f"buffer_load_dwordx4 v[{vT+12}:{vT+15}], v{vT+8}, {SRD_WS}, {sT[8]} offen sc1")

    def c_mlcheck():
        A("; head-wide max; same-die check")
        G = vT + 12
        wait_vm(st["ml"])
        A(f"s_mov_b32 {sT[0]}, {spin}")
        A("L_mlchk:")
        A(f"v_xor_b32 v{vT+9}, {sTAG}, v{G+1}")
        A(f"v_xor_b32 v{vT+10}, {sTAG}, v{G+3}")
        A(f"v_and_or_b32 v{vT+9}, v{vT+10}, -16, v{vT+9}")
        A(f"v_cmp_ne_u32 vcc, 0, v{vT+9}")
        A("s_cbranch_vccz L_mlok")
        A(f"s_sub_u32 {sT[0]}, {sT[0]}, 1")
        A("s_cbranch_scc1 L_mlok")
        A(f"buffer_load_dwordx4 v[{G}:{G+3}], v{vT+8}, {SRD_WS}, {sT[8]} offen sc1")
        A("s_waitcnt vmcnt(0)")
        A("s_branch L_mlchk")
        A("L_mlok:")
        st["mlok"] = True
        A(f"v_cmp_ne_u32 vcc, {sXCC}, v{vT+10}")
        A("s_cmp_eq_u64 vcc, 0")
        A(f"s_cselect_b32 {sLOC}, {1 if local else 0}, 0")
        A(f"v_mov_b32 v{vT+9}, v{G}")
        allreduce("v_max_f32", [vT + 9], vT + 10, [2, 4, 8, 16, 32])

    def c_mlscale():
        A("; head-wide sum -> global exponent offset")
        G = vT + 12
        A(f"v_sub_f32 v{G}, v{G}, v{vT+9}")
        A(f"v_exp_f32 v{G}, v{G}")
        A("s_nop 0")
        A(f"v_mul_f32 v{G+2}, v{G+2}, v{G}")
        allreduce("v_add_f32", [G + 2], vT + 10, [2, 4, 8, 16, 32])
        A(f"v_log_f32 v{G+2}, v{G+2}")
        A("s_nop 0")
        A(f"v_add_f32 v{vT+9}, v{vT+9}, v{G+2}")
        A(f"v_sub_f32 v{vT+10}, v{vMS}, v{vT+9}")
        A(f"v_exp_f32 v{vT+10}, v{vT+10}")

    def c_rescale():
        A("; move the accumulators to the global normalisation")
        A(f"v_mov_b32 v{vMS}, v{vT+9}")
        A("s_nop 0")
        A(f"v_mov_b32_dpp v{vT+2}, v{vT+10} quad_perm:[0,0,0,0] row_mask:0xf bank_mask:0xf")
        A(f"v_mov_b32_dpp v{vT+3}, v{vT+10} quad_perm:[1,1,1,1] row_mask:0xf bank_mask:0xf")
        A("s_nop 4")
        for t in range(4):
            A(f"v_pk_mul_f32 v[{vACC+4*t}:{vACC+4*t+1}], v[{vACC+4*t}:{vACC+4*t+1}], v[{vT+2}:{vT+3}]")

    vWO, vW2 = vSC + 4, vSC + 36

    def issue_weights():
        A("; waves 2,3: wo / w2 rows")
        assert st["pdone"] >= 12 and st.get("tail1")
        if skipw:
            A(f"s_cmp_lt_u32 {sW}, 2")
            A("s_cbranch_scc1 L_skipw")
        for i in range(16):
            hd, k = divmod(i, 8)
            if i % 4 == 0 and i:
                A(f"s_add_u32 {sT[0]}, {sT[0]}, {(252 if i == 8 else 4)*896}")
            r = vWO + 4 * k + 2 * hd
            VM(f"buffer_load_dwordx2 v[{r}:{r+1}], v{vT+16}, {SRD_WO}, {sT[0]} offen offset:{(i%4)*896} {wflags}")
        if w2at is None:
            for i in range(8):
                if i % 4 == 0 and i:
                    A(f"s_add_u32 {sT[1]}, {sT[1]}, {4*896}")
                st["w"] = VM(f"buffer_load_dwordx2 v[{vW2+2*i}:{vW2+2*i+1}], v{vT+16}, {SRD_W2}, {sT[1]} offen offset:{(i%4)*896} {wflags}")
        if skipw:
            A("L_skipw:")
            vm["opt"] = 24 if w2at is None else 16
            vm["optend"] = vm["n"]

    E2 = 144

    def c_w2issue():
        A(f"v_subrev_u32 v{vT}, 128, v0")
        A(f"v_cmp_gt_u32 vcc, 112, v{vT}")
        A(f"v_lshlrev_b32 v{vT+1}, 3, v{vT}")
        A(f"v_bfrev_b32 v{vT+2}, 2")
        A(f"s_mul_i32 {sT[1]}, {sF}, {8*896}")
        A(f"v_cndmask_b32 v11, v{vT+2}, v{vT+1}, vcc")
        for i in range(8):
            if i == 4:
                A(f"s_add_u32 {sT[1]}, {sT[1]}, {4*896}")
            st["w2"] = VM(f"buffer_load_dwordx2 v[{E2+2*i}:{E2+2*i+1}], v11, {SRD_W2}, {sT[1]} offen offset:{(i%4)*896} {wflags}")

    def c_w2use():
        wait_vm(st["w2"])
        A(f"s_mov_b32 {sT[6]}, 0x05040100")
        A(f"s_mov_b32 {sT[7]}, 0x07060302")
        for k in range(4):
            for cp in range(2):
                A(f"v_perm_b32 v{80+4*k+2*cp}, v{E2+4*k+2+cp}, v{E2+4*k+cp}, {sT[6]}")
                A(f"v_perm_b32 v{80+4*k+2*cp+1}, v{E2+4*k+2+cp}, v{E2+4*k+cp}, {sT[7]}")
        for c in range(4):
            A(f"v_mov_b32 v{E2+2*c}, 0")
            A(f"v_mov_b32 v{E2+2*c+1}, {sTAG}")
        A("s_cmp_lt_u32 s2, 224")
        A("s_cbranch_scc0 L_now2")
        for k in range(4):
            for c in range(4):
                A(f"v_dot2_f32_bf16 v{E2+2*c}, v{vH+2*k}, v{80+4*k+c}, v{E2+2*c}")
        A("L_now2:")

    def issue_wdma(k):
        assert st.get("mlok")
        if k == 0:
            A(f"v_lshlrev_b32 v{vMAX}, 4, {vL}")
            A(f"s_lshl_b32 s10, {sH}, 5")
            A(f"s_add_u32 s10, s10, {sP}")
            A(f"s_mul_i32 s10, s10, {16*896}")
            A(f"s_mul_i32 s11, {sF}, {8*896}")
        wo = k < 4
        A(f"s_add_u32 s12, {sW}, {4*k if wo else 4*(k-4)}")
        A(f"s_min_u32 s12, s12, {13 if wo else 6}")
        A("s_lshl_b32 s12, s12, 10")
        A(f"s_add_u32 m0, s12, {STG if wo else STG + 14336}")
        A(f"s_add_u32 s12, s12, {'s10' if wo else 's11'}")
        idx = VM(f"buffer_load_dwordx4 v{vMAX}, {SRD_WO if wo else SRD_W2}, s12 offen {wflags} lds")
        m0bad["v"] = True
        st["w"] = idx
        return idx

    MO = ((2 * S) % R) * tb
    vMW, vMR, vO1, vH1, vH2, vXR, vOO = 6, 8, vT + 4, vT + 5, vT + 6, vT + 7, vT + 11
    sH2 = [f"s{4+k}" for k in range(16)]
    sP1, sP2, sCONS = "s68", "s69", "s70"

    def c_tail1():
        A("; addresses for the end phase")
        st["tail1"] = True
        A(f"s_add_u32 {sT[2]}, {sRING}, {MO}")
        A(f"v_lshlrev_b32 v{vMW}, 4, {vL}")
        A(f"v_add_u32 v{vMW}, {sT[2]}, v{vMW}")
        A(f"v_lshlrev_b32 v{vMR}, 4, {vL}")
        A(f"v_add_u32 v{vMR}, {MO}, v{vMR}")
        A(f"v_add_u32 v{vMR+1}, {2*R*tb}, v{vMR}")
        A(f"s_lshl_b32 {sP1}, {sH}, 5")
        A(f"s_add_u32 {sP1}, {sP1}, {sP}")
        A(f"s_lshl_b32 {sT[0]}, {sH}, 6")
        A(f"s_add_u32 {sT[0]}, {sT[0]}, {sP}")
        A(f"s_mul_i32 {sT[0]}, {sT[0]}, {8*896}")
        A(f"s_mul_i32 {sT[1]}, {sF}, {8*896}")
        A(f"s_lshl_b32 {sP1}, {sP1}, 12")
        A(f"s_add_u32 {sP1}, {sP1}, {WS_P1O}")
        A(f"v_lshlrev_b32 v{vO1}, 4, {vL}")
        for k in range(1, 16, 2):
            A(f"v_mov_b32 v{64+k}, {sTAG}")
        A(f"v_subrev_u32 v{vT}, 128, v0")
        A(f"v_cmp_gt_u32 vcc, 112, v{vT}")
        A(f"v_lshlrev_b32 v{vT+1}, 3, v{vT}")
        if reuse:
            A(f"v_lshrrev_b32 v{vOO}, 3, v{vT}")
            A(f"v_and_b32 v{vT+2}, 7, v{vT}")
            A(f"v_lshlrev_b32 v{vT+2}, 4, v{vT+2}")
            A(f"v_lshl_add_u32 v{vOO}, v{vOO}, 12, v{vT+2}")
            A(f"s_add_u32 s71, {sTAG}, 2")
        else:
            A(f"v_lshlrev_b32 v{vOO}, 4, v{vT}")
        A(f"v_bfrev_b32 v{vT+2}, 2")
        A(f"v_cndmask_b32 v{vT+16}, v{vT+2}, v{vT+1}, vcc")
        A(f"v_cndmask_b32 v{vOO}, v{vT+2}, v{vOO}, vcc")

    def c_tail2():
        A(f"v_lshrrev_b32 v{vT}, 3, {vL}")
        A(f"v_and_b32 v{vT+1}, 7, {vL}")
        A(f"v_lshlrev_b32 v{vT+1}, 4, v{vT+1}")
        A(f"v_lshl_add_u32 v{vH1}, v{vT}, 12, v{vT+1}")
        A(f"s_lshl_b32 {sT[2]}, {sH}, 17")
        A(f"s_lshl_b32 {sT[3]}, {sP}, 7")
        A(f"s_add_u32 {sT[2]}, {sT[2]}, {sT[3]}")
        A(f"s_add_u32 {sT[2]}, {sT[2]}, {WS_P1O}")
        for k in range(1, 4):
            A(f"s_add_u32 {sT[2+k]}, {sT[2]}, {k*32768}")
        A(f"s_lshl_b32 {sP2}, {sH}, 5")
        A(f"s_add_u32 {sP2}, {sP2}, {sP}")
        A(f"s_mul_i32 {sP2}, {sP2}, 3584")
        A(f"s_add_u32 {sP2}, {sP2}, {WS_P2}")
        if reuse:
            A(f"s_add_u32 {sP2}, {sT[2]}, {14*4096}")
        A(f"v_mul_u32_u24 v{vT}, 3584, v{vT}")
        A(f"v_add_u32 v{vH2}, v{vT}, v{vT+1}")
        A(f"s_min_u32 {sT[6]}, {sP}, 27")
        A(f"s_lshl_b32 {sT[7]}, {sT[6]}, 7")
        A(f"s_mul_i32 {sH2[0]}, {sH}, {32*3584}")
        A(f"s_add_u32 {sH2[0]}, {sH2[0]}, {sT[7]}")
        A(f"s_add_u32 {sH2[0]}, {sH2[0]}, {WS_P2}")
        for k in range(1, 4):
            A(f"s_add_u32 {sH2[k]}, {sH2[0]}, {k*8*3584}")
        if reuse:
            for k in range(4):
                A(f"s_add_u32 {sH2[k]}, {sP1}, {k*1024}")
        A(f"s_lshl_b32 {sH2[4]}, {sT[6]}, 3")
        A(f"s_add_u32 {sH2[4]}, {sH2[4]}, {sH}")
        A(f"s_lshl_b32 {sH2[4]}, {sH2[4]}, 7")
        A(f"s_add_u32 {sH2[4]}, {sH2[4]}, {WS_P3}")
        A(f"s_sub_u32 {sT[6]}, s2, 224")
        A(f"s_cmp_lt_u32 {sT[6]}, 28")
        A(f"s_cselect_b32 {sCONS}, 1, 0")
        A(f"s_cselect_b32 {sT[6]}, {sT[6]}, 0")
        A(f"s_lshl_b32 {sH2[5]}, {sT[6]}, 10")
        A(f"s_add_u32 {sH2[5]}, {sH2[5]}, {WS_P3}")
        A(f"s_cmp_ge_u32 {sT[6]}, 14")
        A(f"s_cselect_b32 {sT[8]}, {4 - 14*64}, 0")
        A(f"s_lshl_b32 {sT[6]}, {sT[6]}, 6")
        A(f"s_add_u32 {sT[6]}, {sT[6]}, {sT[8]}")
        A(f"v_lshrrev_b32 v{vT+1}, 1, v{vT+1}")
        A(f"v_add_u32 v{vT+17}, {sT[6]}, v{vT+1}")
        if pre1 is not None or pre2 is not None:
            A(f"s_lshl_b32 {sT[8]}, {sW}, 10")
            A(f"v_lshlrev_b32 v{vT}, 4, v0")
        if pre1 is not None:
            A(f"s_lshl_b32 {sT[7]}, {sW}, 11")
            A(f"s_sub_u32 {sT[7]}, {sP1}, {sT[7]}")
            if pre1.startswith("ld"):
                VM(f"buffer_load_dwordx4 v[{vT+12}:{vT+15}], v{vT}, {SRD_WS}, {sT[7]} offen {pre1[2:]}")
            else:
                for k in range(4):
                    A(f"v_mov_b32 v{vT+12+k}, 0")
                A(f"v_not_b32 v{vT+13}, {sTAG}")
                A(f"v_not_b32 v{vT+15}, {sTAG}")
                VM(f"buffer_store_dwordx4 v[{vT+12}:{vT+15}], v{vT}, {SRD_WS}, {sT[7]} offen {pre1[2:]}")
        if pre2 is not None:
            VM(f"buffer_load_dwordx4 v[{vT+12}:{vT+15}], v{vT}, {SRD_WS}, {sP2} offen {pre2[2:]}")

    PW, PW2, Y = vSC, vSC + 32, (vSC + 48 if w2at is None else E2)

    def c_wprep():
        assert st["pdone"] >= 13
        if wdma or wlate:
            if wlate:
                A("s_waitcnt vmcnt(4)")
                A("s_barrier")
            else:
                assert lateprep and st["w"] <= vm["known"]
            A(f"v_subrev_u32 v{vT+16}, 128, v0")
            A(f"v_min_u32 v{vT+16}, 111, v{vT+16}")
            A(f"v_lshlrev_b32 v{vT+16}, 3, v{vT+16}")
            A(f"v_add_u32 v{vT+16}, {STG}, v{vT+16}")
            for i in range(24):
                A(f"ds_read_b64 v[{vWO+2*i}:{vWO+2*i+1}], v{vT+16} offset:{i*896}")
            A("s_waitcnt lgkmcnt(0)")
        elif lateprep:
            A("s_waitcnt vmcnt(4)")
        else:
            wait_vm(st["w"])
            A(f"s_cmp_lt_u32 {sW}, 2")
            A("s_cbranch_scc1 L_noprep")
        A(f"s_mov_b32 {sT[6]}, 0x05040100")
        A(f"s_mov_b32 {sT[7]}, 0x07060302")
        for k in range(12 if w2at is None else 8):
            for cp in range(2):
                A(f"v_perm_b32 v{PW+4*k+2*cp}, v{vWO+4*k+2+cp}, v{vWO+4*k+cp}, {sT[6]}")
                A(f"v_perm_b32 v{PW+4*k+2*cp+1}, v{vWO+4*k+2+cp}, v{vWO+4*k+cp}, {sT[7]}")
        if w2at is not None:
            return
        for c in range(4):
            A(f"v_mov_b32 v{Y+2*c}, 0")
            A(f"v_mov_b32 v{Y+2*c+1}, {'s71' if reuse else sTAG}")
        A("s_cmp_lt_u32 s2, 224")
        A("s_cbranch_scc0 L_noprep")
        for k in range(4):
            for c in range(4):
                A(f"v_dot2_f32_bf16 v{Y+2*c}, v{vH+2*k}, v{PW2+4*k+c}, v{Y+2*c}")
        A("L_noprep:")

    def do_touch():
        A("; bring the inbox lines of the final hand-offs into L2")
        A(f"s_lshl_b32 {sT[8]}, {sW}, 15")
        A(f"s_add_u32 {sT[8]}, {sT[8]}, {sT[2]}")
        if touch == "sc1":
            VM(f"buffer_load_dword v{vT+12}, v{vH1}, {SRD_WS}, {sT[8]} offen sc1")
        elif touch == "one":
            VM(f"buffer_load_dword v{vT+12}, off, {SRD_WS}, {sT[2]} sc1")
        else:
            A(f"s_cmp_eq_u32 {sLOC}, 1")
            A("s_cbranch_scc0 L_tfar")
            A(f"buffer_load_dword v{vT+12}, v{vH1}, {SRD_WS}, {sT[8]} offen")
            A("s_branch L_tdone")
            A("L_tfar:")
            VM(f"buffer_load_dword v{vT+12}, v{vH1}, {SRD_WS}, {sT[8]} offen sc1")
            A("L_tdone:")
        if touch2 and not reuse:
            A(f"s_mul_i32 {sT[8]}, {sW}, {8*3584}")
            A(f"s_add_u32 {sT[8]}, {sT[8]}, {sH2[0]}")
            VM(f"buffer_load_dword v{vT+13}, v{vH2}, {SRD_WS}, {sT[8]} offen sc1")

    def do_wtlb():
        VM(f"buffer_load_dword v{vT+14}, off, {SRD_WO}, {sT[0]} nt")
        VM(f"buffer_load_dword v{vT+15}, off, {SRD_W2}, {sT[1]} nt")

    def c_rkprobe(c):
        A(f"s_cmp_eq_u32 {sW}, {rkw}")
        A(f"s_cbranch_scc0 L_rkp{c}")
        A(f"s_lshl_b32 s18, {sH}, 7")
        A(f"s_add_u32 s18, s18, {WS_RK + c*1024}")
        A(f"s_lshl_b32 s19, {sP}, 2")
        A(f"s_add_u32 s19, s19, s18")
        A(f"v_lshlrev_b32 v{vT+18}, 2, {vL}")
        A(f"v_mov_b32 v{vT+19}, {sTAG}")
        A("s_mov_b32 exec_hi, 0")
        A(f"buffer_load_dword v255, v{vT+18}, {SRD_WS}, s18 offen sc1")
        A("s_mov_b32 exec_lo, 1")
        A(f"buffer_store_dword v{vT+19}, off, {SRD_WS}, s19")
        A("s_mov_b64 exec, -1")
        A(f"L_rkp{c}:")
        st["rk_n"] = vm["n"]

    def c_rkdecide(c, L, k=None):
        _, hi, gh, lo, gl = ctl[c]
        if k is None:
            A(f"s_cmp_eq_u32 {sW}, {rkw}")
            A(f"s_cbranch_scc0 L_rkd{c}")
            A(f"v_cmp_eq_u32 vcc, {sTAG}, v255")
            A("s_bcnt1_i32_b32 s18, vcc_lo")
        else:
            A(f"s_cmp_eq_u32 s14, {k}")
            c = f"{c}_{k}"
            A(f"s_cbranch_scc0 L_rkd{c}")
        A(f"s_sub_u32 {sWE}, s18, {hi}")
        A(f"s_mul_i32 {sWE}, {sWE}, {gh}")
        A(f"s_add_u32 {sWE}, {sWE}, {L + 5}")
        A(f"s_cmp_gt_u32 s18, {hi}")
        A(f"s_cselect_b32 {sWE}, {sWE}, 0")
        if N2:
            A(f"s_sub_u32 {sNE}, s18, {lo}")
            A(f"s_mul_i32 {sNE}, {sNE}, {gl}")
            A(f"s_add_u32 {sNE}, {sNE}, {L + 5}")
            A(f"s_cmp_gt_u32 s18, {lo}")
            A(f"s_cselect_b32 {sNE}, {sNE}, 0")
        elif lo:
            A(f"s_min_u32 {sNE}, s18, {lo}")
            A(f"s_sub_u32 {sNE}, {lo}, {sNE}")
            A(f"s_mul_i32 {sNE}, {sNE}, {gl}")
            A(f"s_add_u32 {sNE}, {sNE}, {L + 5}")
            A(f"s_cmp_lt_u32 s18, {lo}")
            A(f"s_cselect_b32 {sNE}, {sNE}, 0")
        else:
            A(f"s_mov_b32 {sNE}, 0")
        A(f"v_mov_b32 v{vT+18}, {sWE}")
        A(f"v_mov_b32 v{vT+19}, {sNE}")
        A(f"ds_write_b64 v254, v[{vT+18}:{vT+19}]")
        A(f"L_rkd{c}:")
        st["rk_on"] = True

    def c_last():
        A("; last V tile, four keys at a time")
        slot = ((2 * S - 1) % R) * tb
        tile_stamp_a()
        for g in range(4):
            wait_vm(lidx[NL - T + 2 * g + 1])
            read_vg(slot, g)
            if g:
                A("s_waitcnt lgkmcnt(4)")
                pvg(S - 1, g - 1)
        A("s_waitcnt lgkmcnt(0)")
        pvg(S - 1, 3)
        if stamps:
            lds_wait(True)
        stamp()
        A("s_nop 1")
        A("s_nop 0")
        for hf in range(2):
            r = vACC + 8 * hf
            A(f"ds_write2_b64 v{vMW}, v[{r}:{r+1}], v[{r+4}:{r+5}] offset0:{128*hf} offset1:{128*hf+1}")
            if hf == 0:
                A("s_nop 0")

    chunks = []
    C = lambda fn, need=None, free=None: chunks.append((need, free, fn))
    backlog = list(range(NB))
    for n in range(S):
        slot = (n % R) * tb
        if n < NB:
            C(lambda n=n, slot=slot: read_k(32 * n, slot, True), need=n)
            C(lambda: lds_wait(True), free=n)
            if n == NP:
                C(c_qpoll)
            if n == NB - 1:
                C(c_qcheck)
                C(c_qread)
        else:
            C(lambda slot=slot: read_k(vTL, slot), need=n)
            C(lambda: (lds_wait(True), qk_mfma(vTL, False)), free=n)
            C(lambda n=n: qk_post(vSC + 4 * n))
            for _ in range(2):
                if backlog:
                    m = backlog.pop(0)
                    C(lambda m=m: qk_mfma(32 * m, True))
                    C(lambda m=m: qk_post(vSC + 4 * m))
    assert not backlog
    C(c_kmax)
    lq = list(range(S))
    assert vgat % 2 == 1 and vpub % 2 == 1
    for n in range(S):
        j = S + n
        slot = (j % R) * tb
        if n == vgat + 3:
            C(c_rescale)
        if n == S - 2:
            C(lambda: make_p(S - 2))
            C(lambda: make_p(S - 1))
            if not lateprep:
                C(c_wprep)
        elif n < S - 2:
            C(lambda n=n: make_p(n))
        if n < S - 1:
            C(lambda slot=slot, n=n: read_v(slot, n & 1), need=j)
        if tat == j:
            C(do_touch)
        if wat == j:
            C(issue_weights)
        if n == S - 1:
            C(c_last, need="issued")
        else:
            C(lambda n=n: (lds_wait(True), pv(n)), free=j)
        for _ in range(3 if n % 2 == 0 else 2):
            if lq:
                m0, m1 = lq.pop(0), lq.pop(0)
                C(lambda m0=m0, m1=m1: (lsum(vSC + 4 * m0), lsum(vSC + 4 * m1)))
                if not lq:
                    C(c_lwrite)
        if w2at == j:
            C(c_w2issue)
        if w2at is not None and w2at + 2 == j:
            C(c_w2use)
        if n == vpub:
            assert not lq
            C(c_mlpub)
        if n == vgat:
            C(c_mlpoll)
        if n == vgat + 1:
            C(c_mlcheck)
            C(c_mlscale)
        if n == vgat + 3:
            C(c_tail1)
            C(c_tail2)

    freed = set()

    def emit_chunk(q, block):
        need, free, fn = q[0]
        if need == "issued":
            if not block:
                return False
        elif need is not None:
            last = need * T + T - 1
            if last not in lidx:
                assert not block
                return False
            if lidx[last] > vm["known"]:
                if not block:
                    return False
                wait_vm(lidx[last])
        q.pop(0)
        fn()
        if free is not None:
            freed.add(free)
        return True

    def tagfix():
        A("s_waitcnt lgkmcnt(0)")
        mk_tag(f"{sTAG}")

    def stream(L0, L1, win, q, paced):
        for L in range(L0, L1):
            j, i = divmod(L, T)
            st["L"] = L
            Nw = win(L)
            if ext and X * T <= L < ext[0] and Nw < ext[1]:
                wait_vm(paced[-ext[1]])
                A(f"s_cmp_lt_u32 {sZ}, 92")
                A(f"s_cbranch_scc1 L_x{L}")
                A(f"s_waitcnt vmcnt({vm['n'] - paced[-Nw]})")
                A(f"L_x{L}:")
            elif st.get("rk_on") and Nw <= N + 1:
                if N2:
                    wait_vm(paced[-(Nw + N2 - N)])
                    A(f"s_cmp_gt_u32 {sNE}, {L}")
                    A(f"s_cbranch_scc1 L_x{L}")
                    A(f"s_waitcnt vmcnt({vm['n'] - paced[-(Nw + Nhi - N)]})")
                else:
                    wait_vm(paced[-(Nw + Nhi - N)])
                A(f"s_cmp_gt_u32 {sWE}, {L}")
                A(f"s_cbranch_scc1 L_x{L}")
                A(f"s_waitcnt vmcnt({vm['n'] - paced[-Nw]})")
                if not N2 and (any(r[3] for r in ctl) or (iw and iw[2])):
                    A(f"s_cmp_gt_u32 {sNE}, {L}")
                    A(f"s_cbranch_scc0 L_x{L}")
                    A(f"s_waitcnt vmcnt({vm['n'] - paced[-Nlo]})")
                A(f"L_x{L}:")
            elif len(paced) >= Nw:
                wait_vm(paced[-Nw])
            if L == NL - tail - T:
                st["rk_off"] = True
            if i == 0 and j >= R:
                while (j - R) not in freed:
                    emit_chunk(q, True)
            issue_load(L)
            paced.append(lidx[L])
            if iw and "tc" in st and not st.get("rk_off") and not st.get("rk_rd"):
                A(f"v_mov_b32 v{vPD}, {L}")
                A(f"ds_write_b32 v{vPW}, v{vPD}")
                st["iw_last"] = L
            if L == NL - 1 - tpos and touch is not None and tat is None:
                do_touch()
                if wtlb:
                    do_wtlb()
            if L == NL - 1 - wpos and not now and not wearly and not wafter and wat is None and not wdma and wlate is None:
                issue_weights()
            if wdma and L >= wdma[0] and (L - wdma[0]) % wdma[1] == 0 and (L - wdma[0]) // wdma[1] < 6:
                if wdma[2]:
                    wait_vm(paced[-Nw])
                    paced.append(issue_wdma((L - wdma[0]) // wdma[1]))
                else:
                    issue_wdma((L - wdma[0]) // wdma[1])
            did = False
            for c, r_ in enumerate(rk):
                if L == r_[0] and not st.get("rk_rd"):
                    c_rkprobe(c)
                    st["rk_pend"] = c
                    did = True
                elif L == r_[0]:
                    raise AssertionError("probe between a tile read and its wait")
            if st.get("rk_pend") is not None and vm["known"] > st["rk_n"] and not st.get("rk_rd") and not did:
                c_rkdecide(st["rk_pend"], L)
                st["rk_pend"] = None
                did = True
            if q and not did and (L < NL - tail or Nend <= N + 2):
                emit_chunk(q, False)

    def win_main(L):
        Nw = Nend if L >= NL - tail else N
        if kopen and NL // 2 - kopen[0] <= L < NL // 2:
            Nw = kopen[1]
        for b_ in bump:
            if b_[0] <= L < b_[1]:
                Nw = b_[2]
        if alt and Nw == N and (L // alt[1]) % alt[2] == (alt[3] if len(alt) > 3 else 0):
            Nw = alt[0]
        return Nw

    split = next(k for k, ch in enumerate(chunks) if ch[0] == X - 1)
    head_chunks, rest = chunks[:split], chunks[split:]
    assert X - 1 <= NP
    ends = []
    for path in ("n", "p"):
        vm.update(n=0, known=0)
        lidx.clear()
        freed.clear()
        paced = []
        stg = {"i": 0}

        def issue_stg():
            i = stg["i"]
            if rot:
                if i == 0:
                    A(f"s_mul_i32 {sT[3]}, {sZ}, 4682")
                    A(f"s_lshr_b32 {sT[3]}, {sT[3]}, 16")
                    A(f"s_mul_i32 {sT[3]}, {sT[3]}, 14")
                    A(f"s_sub_u32 {sT[3]}, {sZ}, {sT[3]}")
                else:
                    A(f"s_add_u32 {sT[3]}, {sT[3]}, 1")
                    A(f"s_cmp_eq_u32 {sT[3]}, 14")
                    A(f"s_cselect_b32 {sT[3]}, 0, {sT[3]}")
                A(f"s_lshl_b32 {sT[9]}, {sT[3]}, 10")
                A(f"s_add_u32 m0, {sT[6]}, {sT[9]}")
                A(f"s_mul_i32 {sT[9]}, {sT[3]}, {sT[4]}")
                A(f"s_add_u32 {sT[9]}, {sT[9]}, {sT[5]}")
                st["stg"] = VM(f"buffer_load_dwordx4 v21, {SRD_W}, {sT[9]} offen {wflags} lds")
            else:
                A(f"s_add_u32 m0, {sT[6]}, {i*1024}")
                if i:
                    A(f"s_add_u32 {sT[5]}, {sT[5]}, {sT[4]}")
                else:
                    A("s_nop 0")
                st["stg"] = VM(f"buffer_load_dwordx4 v21, {SRD_W}, {sT[5]} offen {wflags} lds")
            paced.append(st["stg"])
            stg["i"] += 1
            m0bad["v"] = True
        if path == "n":
            common0()
            A("s_waitcnt lgkmcnt(0)")
            if diag == 6:
                A("s_memrealtime s[86:87]")
            for L in range(N0):
                issue_load(L)
                paced.append(lidx[L])
            srd(52, 4, 896)
            common1()
            setup()
            if wearly:
                issue_weights()
            if ra:
                A(f"s_lshl_b32 {sT[2]}, s2, 2")
                A(f"s_add_u32 {sT[2]}, {sT[2]}, {sW}")
                A(f"s_cmp_eq_u32 {sT[2]}, 1023")
                A("s_cbranch_scc0 L_noclear")
                A(f"v_mul_u32_u24 v29, 4352, {vL}")
                A("v_mov_b32 v30, 0")
                A(f"s_mov_b32 {sT[2]}, {WS_CNT}")
                A(f"buffer_store_dword v30, v29, {SRD_WS}, {sT[2]} offen sc0 sc1")
                if len(ra) * ng > 64:
                    A(f"s_add_u32 {sT[2]}, {sT[2]}, {64*4352}")
                    A(f"buffer_store_dword v30, v29, {SRD_WS}, {sT[2]} offen sc0 sc1")
                A("s_waitcnt vmcnt(0) lgkmcnt(0)")
                mk_tag(f"{sT[2]}")
                A(f"v_mov_b32 v30, {sT[2]}")
                A(f"s_mov_b32 {sT[2]}, {WS_RDY}")
                A("s_mov_b64 exec, 1")
                A(f"buffer_store_dword v30, off, {SRD_WS}, {sT[2]} sc1")
                A("s_mov_b64 exec, -1")
                A("L_noclear:")
            if diag == 5:
                A(f"s_waitcnt vmcnt({N0-1})")
                A("s_memrealtime s[86:87]")
            q = list(head_chunks) + [(None, None, tagfix)]
            stream(N0, X * T, (lambda L: nn[1] if nn and L < nn[0] else win_main(L)), q, paced)
        else:
            A("; ---- workgroups 0..91: stage 448 x 64 weights, layer norm, publish q / h, then catch up")
            A("L_producer:")
            common0()
            producer0()
            st["x"] = VM(f"buffer_load_dwordx4 v[{vT}:{vT+3}], v29, {SRD_X}, 0 offen")
            A(f"s_mov_b32 m0, {sT[6]}")
            A("L_stg:")
            A(f"s_sub_u32 {sT[3]}, {sT[3]}, 1")
            A(f"buffer_load_dwordx4 v21, {SRD_W}, {sT[5]} offen {wflags} lds")
            A(f"s_add_u32 {sT[5]}, {sT[5]}, {sT[4]}")
            A("s_add_u32 m0, m0, 1024")
            A(f"s_cmp_lg_u32 {sT[3]}, 0")
            A("s_cbranch_scc1 L_stg")
            for _ in range(14):
                vm["n"] += 1
                st["stg"] = vm["n"]
                paced.append(vm["n"])
            for L in range(B0):
                issue_load(L)
                paced.append(lidx[L])
                if il and L % il == il - 1:
                    issue_stg()
            common1()
            setup()
            if wearly == 1:
                issue_weights()
            if not il:
                for fn in side_chunks[:4]:
                    fn()
                q = [(None, None, fn) for fn in side_chunks[4:]] + list(head_chunks) + [(None, None, tagfix)]
                stream(B0, X * T, lambda L: Np if L < Xp else N, q, paced)
            else:
                Ls = 14 * il
                q = [(None, None, fn) for fn in side_chunks[:5]] + list(head_chunks)
                for L in range(B0, Ls):
                    stream(L, L + 1, lambda L: Np, q, paced)
                    if L % il == il - 1:
                        if len(paced) >= Np:
                            wait_vm(paced[-Np])
                        issue_stg()
                w2 = Np2 or N
                L = Ls
                while st["stg"] > vm["known"]:
                    stream(L, L + 1, lambda L: w2, q, paced)
                    L += 1
                assert all(ch[2] not in side_chunks for ch in q)
                if q and q[0][1] is not None:
                    emit_chunk(q, True)
                q = [(None, None, fn) for fn in side_chunks[5:]] + ([(None, None, issue_weights)] if wearly == 2 else []) + q + [(None, None, tagfix)]
                stream(L, X * T, lambda L: w2 if L < Xp else N, q, paced)
        while q:
            emit_chunk(q, True)
        known_L = max([L for L in lidx if lidx[L] <= vm["known"]] + [-1])
        ends.append(({L: vm["n"] - lidx[L] for L in range(X * T - 16, X * T)}, known_L, set(freed)))
        if path == "n":
            A("s_branch L_join")
            for _ in range(dead // 4):
                A("s_nop 0")
    for _ in range(pad):
        A("s_nop 0")
    A("L_join:")
    if jit:
        A(f"s_lshl_b32 {sT[0]}, s2, 2")
        A(f"s_add_u32 {sT[0]}, {sT[0]}, {sW}")
        A(f"s_xor_b32 {sT[0]}, {sT[0]}, {sTAG}")
        A(f"s_mul_i32 {sT[0]}, {sT[0]}, 0x9E3779B1")
        A(f"s_lshr_b32 {sT[0]}, {sT[0]}, 26")
        A(f"s_cmp_lg_u32 {sT[0]}, 0")
        A("s_cbranch_scc1 L_nojit")
        for _ in range(jit):
            A("s_sleep 127")
        A("L_nojit:")
    if diag == 2:
        A("s_memrealtime s[86:87]")
    st["tc"] = X - 1
    if iw:
        assert not rk
        st["rk_on"] = True
    stamp(1)
    assert ends[0][0] == ends[1][0] and ends[0][2] == ends[1][2], ends
    vm["known"] = lidx[min(ends[0][1], ends[1][1])]
    stream(X * T, NL, win_main, rest, [lidx[L] for L in range(X * T - 16, X * T)])
    while rest:
        emit_chunk(rest, True)

    def gather4(lbl, base, voff, soffs, d0, d1, first_issued, slp, tg=sTAG):
        def loads(set_):
            for k in range(4):
                r = base + 16 * set_ + 4 * k
                A(f"buffer_load_dwordx4 v[{r}:{r+3}], v{voff}, {SRD_WS}, {soffs[k]} offen sc1")

        def sums(r):
            A(f"v_add_f32 v{d0}, v{r}, v{r+4}")
            A(f"v_add_f32 v{d1}, v{r+2}, v{r+6}")
            A(f"v_add_f32 v{r+8}, v{r+8}, v{r+12}")
            A(f"v_add_f32 v{r+10}, v{r+10}, v{r+14}")
            A(f"v_add_f32 v{d0}, v{d0}, v{r+8}")
            A(f"v_add_f32 v{d1}, v{d1}, v{r+10}")
        if not first_issued:
            loads(0)
        if dry == 1:
            A("s_mov_b64 exec, 0")
            A(f"s_branch L_{lbl}ok")
        if dry:
            A(f"L_{lbl}back:")
            A("s_mov_b64 exec, -1")
        A(f"L_{lbl}:")
        nset = 2 if pipe else 1
        for set_ in range(nset):
            r = base + 16 * set_
            if pipe:
                loads(1 - set_)
                A("s_waitcnt vmcnt(4)")
            else:
                A("s_waitcnt vmcnt(0)")
            tagcheck([r + 1 + 2 * i for i in range(8)], vT + 2, vT + 3, tg)
            if pipe:
                sums(r)
            A(f"s_cbranch_vccz L_{lbl}ok")
        A(f"s_sub_u32 {sT[9]}, {sT[9]}, 1")
        if pipe:
            A(f"s_cbranch_scc0 L_{lbl}")
        else:
            A(f"s_cbranch_scc1 L_{lbl}ok")
            if slp:
                A(f"s_sleep {slp}")
            loads(0)
            if dry > 1:
                A(f"s_cmp_eq_u32 {sT[9]}, {spin - dry}")
                A(f"s_cbranch_scc0 L_{lbl}")
                A("s_mov_b64 exec, 0")
            else:
                A(f"s_branch L_{lbl}")
        A(f"L_{lbl}ok:")
        if not pipe:
            sums(base)

    O4, G = 32, 64
    if diag == 4:
        A("s_memrealtime s[86:87]")
    A(f"s_cmp_eq_u32 {sW}, 1")
    A("s_waitcnt lgkmcnt(0)")
    A("s_barrier")
    A("s_cbranch_scc0 L_not1")
    for hf in range(2):
        for k, w in enumerate((0, 2, 3)):
            r = O4 + 12 * hf + 4 * k
            A(f"ds_read_b128 v[{r}:{r+3}], v{vMR+w//2} offset:{(w%2)*R*tb + hf*1024}")
    A(f"s_cmp_eq_u32 {sLOC}, 1")
    A("s_cbranch_scc0 L_far1")
    for far in (0, 1):
        if far:
            A("L_far1:")
        for qd in range(4):
            r = O4 + 12 * (qd >> 1) + 2 * (qd & 1)
            own = vACC + 4 * qd
            if qd % 2 == 0:
                A(f"s_waitcnt lgkmcnt({3 - 3*(qd >> 1)})")
            A(f"v_pk_add_f32 v[{r}:{r+1}], v[{r}:{r+1}], v[{own}:{own+1}]")
            A(f"v_pk_add_f32 v[{r+4}:{r+5}], v[{r+4}:{r+5}], v[{r+8}:{r+9}]")
            A(f"v_add_f32 v{G+4*qd}, v{r}, v{r+4}")
            A(f"v_add_f32 v{G+4*qd+2}, v{r+1}, v{r+5}")
            A(f"buffer_store_dwordx4 v[{G+4*qd}:{G+4*qd+3}], v{vO1}, {SRD_WS}, {sP1} offen offset:{qd*1024}" + (" sc1" if far else ""))
        if stamps:
            A("s_memrealtime s[94:95]")
        if wlate:
            A("s_waitcnt vmcnt(4)")
            A("s_barrier")
        A("s_branch L_leave")
    nstamp["n"] += 1 if stamps else 0
    A("L_not1:")
    A(f"s_cmp_ge_u32 {sW}, 2")
    A("s_cbranch_scc1 L_bwave")
    if wlate:
        A("s_waitcnt vmcnt(0)")
        A("s_barrier")
    A(f"s_mov_b32 {sT[9]}, {spin}")
    A(f"s_cmp_lt_u32 {sP}, 28")
    A("s_cbranch_scc0 L_final")

    A("; ---- wave 0, p < 28: sum one 16-column line over the 32 workgroups of this head, send it on")
    YG = 112
    if gateA:
        A("s_barrier")
    gather4("h2", YG, vO1 if reuse else vH2, sH2, G, G + 2, False, sleep2, "s71" if reuse else sTAG)
    if stamps:
        A("s_memrealtime s[96:97]")
    allreduce("v_add_f32", [G, G + 2], vT, [8, 16, 32])
    if dry:
        A("s_cbranch_execz L_h2back")
    A("s_mov_b64 exec, 0xff")
    A(f"buffer_store_dwordx4 v[{G}:{G+3}], v{vO1}, {SRD_WS}, {sH2[4]} offen {st3}")
    A("s_branch L_done" if stamps or diag == 7 else "s_endpgm")

    A("L_final:")
    A(f"s_cmp_eq_u32 {sCONS}, 1")
    A("s_cbranch_scc0 L_done")
    if dry:
        A("s_mov_b64 exec, 0")
        A("s_branch L_h3ok")
        A("L_h3back:")
        A("s_mov_b64 exec, -1")
    A(f"v_and_b32 v{vT+14}, 1, {vL}")
    A(f"v_mul_u32_u24 v{vT+14}, {WS_EP2}, v{vT+14}")
    A("s_barrier")
    A(f"buffer_load_dword v{vXR}, v{vT+17}, {SRD_X}, 0 offen")
    if outpf:
        A(f"buffer_load_dword v{vT+12}, v{vT+17}, {SRD_OUT}, 0 offen")
        if epfl != "sc1":
            A(f"buffer_load_dword v{vT+13}, v{vT+14}, {SRD_WS}, 0 offen")
    for d in range(depth3 - 1):
        A(f"buffer_load_dwordx4 v[{YG+4*d}:{YG+4*d+3}], v{vO1}, {SRD_WS}, {sH2[5]} offen {ld3}")
    A("L_h3:")
    for d in range(depth3):
        n = (d + depth3 - 1) % depth3
        A(f"buffer_load_dwordx4 v[{YG+4*n}:{YG+4*n+3}], v{vO1}, {SRD_WS}, {sH2[5]} offen {ld3}")
        A(f"s_waitcnt vmcnt({depth3 - 1})")
        A(f"v_mov_b32 v{G}, v{YG+4*d}")
        A(f"v_mov_b32 v{G+2}, v{YG+4*d+2}")
        tagcheck([YG + 4 * d + 1, YG + 4 * d + 3], vT, vT + 1)
        A("s_cbranch_vccz L_h3ok")
    A(f"s_sub_u32 {sT[9]}, {sT[9]}, 1")
    A("s_cbranch_scc0 L_h3")
    A("L_h3ok:")
    if stamps:
        A("s_memrealtime s[98:99]")
    allreduce("v_add_f32", [G, G + 2], vT, [8, 16, 32])
    A(f"v_lshlrev_b32 v{vT+2}, 16, v{vXR}")
    A(f"v_and_b32 v{vT+3}, 0xffff0000, v{vXR}")
    A(f"v_add_f32 v{G}, v{G}, v{vT+2}")
    A(f"v_add_f32 v{G+2}, v{G+2}, v{vT+3}")
    if dry:
        A("s_cbranch_execz L_h3back")
    A("s_mov_b64 exec, 0xff")
    A(f"v_cvt_pk_bf16_f32 v{G}, v{G}, v{G+2}")
    A(f"buffer_store_dword v{G}, v{vT+17}, {SRD_OUT}, 0 offen {outfl}")
    if diag and diag != 7:
        if diag == 1:
            A("s_memrealtime s[86:87]")
        A("s_memrealtime s[88:89]")
        A("s_waitcnt lgkmcnt(0)")
        A("s_sub_u32 s86, s86, s84")
        A(f"s_mul_i32 s86, s86, {dmul}")
        A("s_add_u32 s86, s86, s88")
        A("L_diag:")
        A("s_memrealtime s[88:89]")
        A("s_waitcnt lgkmcnt(0)")
        A("s_sub_u32 s90, s88, s86")
        A("s_cmp_lt_i32 s90, 0")
        A("s_cbranch_scc1 L_diag")
    A("s_cmp_eq_u32 s2, 224")
    A("s_cbranch_scc0 L_fin_end")
    A("s_mov_b64 exec, 3")
    A(f"buffer_store_dword v{G+1}, v{vT+14}, {SRD_WS}, 0 offen {epfl}")
    A("L_fin_end:")
    A("s_branch L_done" if stamps or diag == 7 else "s_endpgm")

    A("L_bwave:")
    if wafter:
        issue_weights()
    OG = 112

    def hop1_loads(fl="sc1"):
        for k in range(4):
            A(f"buffer_load_dwordx4 v[{OG+4*k}:{OG+4*k+3}], v{vH1}, {SRD_WS}, {sT[2+k]} offen {fl}")
    if plain1:
        A(f"s_cmp_eq_u32 {sLOC}, 1")
        A("s_cbranch_scc0 L_h1far")
        hop1_loads("")
        A("s_branch L_h1first")
        A("L_h1far:")
    hop1_loads()
    A("L_h1first:")
    if lateprep:
        c_wprep()
    A(f"s_mov_b32 {sT[9]}, {spin}")
    oa, ob = vT, vT + 1
    if reuse:
        assert ctl and w2at is None
        A(f"s_lshl_b32 {sT[6]}, {sW}, 5")
        A(f"s_add_u32 {sT[6]}, {sT[6]}, {FIN}")
        A(f"v_mov_b32 v{vT+8}, {sT[6]}")
        A(f"v_xor_b32 v{vT+9}, 32, v{vT+8}")
    gather4("h1", OG, vH1, sT[2:6], oa, ob, True, sleep1)
    if reuse:
        A(f"ds_write_b32 v{vT+8}, v{vT+8}")
    stamp()
    allreduce("v_add_f32", [oa, ob], vT + 2, [8, 16, 32])
    A(f"v_cvt_pk_bf16_f32 v{oa}, v{oa}, v{ob}")
    A("s_nop 0")
    for k in range(8):
        A(f"v_readlane_b32 s{10+k}, v{oa}, {k}")
    for cp in range(2):
        if reuse and cp == 1:
            A(f"ds_read_b32 v{vT+10}, v{vT+9}")
        for k in range(8):
            for c in (2 * cp, 2 * cp + 1):
                A(f"v_dot2_f32_bf16 v{Y+2*c}, s{10+k}, v{PW+4*k+c}, v{Y+2*c}")
    if dry:
        A("s_cbranch_execz L_h1back")
    if reuse:
        A("L_both:")
        A("s_waitcnt lgkmcnt(0)")
        A(f"v_cmp_ne_u32 vcc, 0, v{vT+10}")
        A("s_cbranch_vccnz L_bothok")
        A(f"ds_read_b32 v{vT+10}, v{vT+9}")
        A(f"s_sub_u32 {sT[9]}, {sT[9]}, 1")
        A("s_cbranch_scc0 L_both")
        A("L_bothok:")
    A(f"s_cmp_eq_u32 {sLOC}, 1")
    A("s_cbranch_scc0 L_far2")
    for fl in ("", " sc1"):
        if fl:
            A("L_far2:")
        if reuse:
            A(f"buffer_store_dwordx4 v[{Y}:{Y+3}], v{vOO}, {SRD_WS}, {sT[2]} offen{fl}")
            A(f"buffer_store_dwordx4 v[{Y+4}:{Y+7}], v{vOO}, {SRD_WS}, {sP2} offen{fl}")
        else:
            A(f"buffer_store_dwordx4 v[{Y}:{Y+3}], v{vOO}, {SRD_WS}, {sP2} offen{fl}")
            A(f"buffer_store_dwordx4 v[{Y+4}:{Y+7}], v{vOO}, {SRD_WS}, {sP2} offen offset:1792{fl}")
        if not fl:
            A("s_branch L_sent2")
    A("L_sent2:")
    stamp()
    A("L_leave:")
    if not gateA:
        A(f"s_cmp_eq_u32 {sCONS}, 1")
        A("s_cbranch_scc0 L_done")
    A("s_barrier")
    A("L_done:")
    if diag == 7:
        A("s_cmp_lt_u32 s2, 92")
        A("s_cbranch_scc0 L_end")
        A("s_memrealtime s[88:89]")
        A("s_waitcnt lgkmcnt(0)")
        A("s_sub_u32 s86, s86, s84")
        A(f"s_mul_i32 s86, s86, {dmul}")
        A("s_add_u32 s86, s86, s88")
        A("L_diag7:")
        A("s_memrealtime s[88:89]")
        A("s_waitcnt lgkmcnt(0)")
        A("s_sub_u32 s90, s88, s86")
        A("s_cmp_lt_i32 s90, 0")
        A("s_cbranch_scc1 L_diag7")
    if stamps:
        A("s_mov_b64 exec, -1")
        A("s_memrealtime s[100:101]")
        A("s_waitcnt lgkmcnt(0)")
        A(f"s_lshl_b32 {sT[0]}, s2, 2")
        A(f"s_add_u32 {sT[0]}, {sT[0]}, {sW}")
        A(f"s_lshl_b32 {sT[1]}, {sT[0]}, 8")
        A(f"s_lshl_b32 {sT[0]}, {sT[0]}, 6")
        A(f"s_add_u32 {sT[0]}, {sT[0]}, {WS_STAMP}")
        A(f"s_add_u32 {sT[1]}, {sT[1]}, {WS_STAMP + 0x10000}")
        A(f"v_lshlrev_b32 v2, 2, {vL}")
        A(f"buffer_store_dword v252, v2, {SRD_WS}, {sT[1]} offen")
        A("v_mov_b32 v2, 0")
        A("s_mov_b64 exec, 1")
        A("v_mov_b32 v3, s26")
        A(f"buffer_store_dword v3, v2, {SRD_WS}, {sT[0]} offen offset:44")
        for k in range(9):
            A(f"v_mov_b32 v3, s{84+2*k}")
            A(f"buffer_store_dword v3, v2, {SRD_WS}, {sT[0]} offen offset:{4*k}")
        A("s_getreg_b32 s84, hwreg(HW_REG_XCC_ID)")
        A("v_mov_b32 v3, s84")
        A(f"buffer_store_dword v3, v2, {SRD_WS}, {sT[0]} offen offset:36")
        A(f"v_mov_b32 v3, {sT[9]}")
        A(f"buffer_store_dword v3, v2, {SRD_WS}, {sT[0]} offen offset:40")
    A("L_end:")
    A("s_endpgm")
    body = "\n".join(("" if l.endswith(":") else "    ") + l for l in o)
    head = HEADER.format(lds=LDS, k=kern).replace("; One launch, 256 workgroups (one per CU), 4 waves each.  Generated by dev/gen.py.\n", DOC)
    if al12:
        head = head.replace(".p2align 8\n", ".p2align 12\n.p2align 8\n")
    return head + body + FOOTER.format(k=kern)


if __name__ == "__main__":
    out = sys.argv[1]
    kw = json.loads(sys.argv[2]) if len(sys.argv) > 2 else {}
    open(out, "w").write(gen(**kw))
```

```python
import sys, json, math, struct
from gen import HEADER, FOOTER, KERN, f2u, LOG2E_16

WS_QG = 0x1000
WS_HG = WS_QG + 0x4000
WS_ML = 0x8000
WS_RK = 0xA000
WS_RDY = 0xC000
WS_CNT = 0x200000
WS_P1O = 0x10000
WS_P2 = 0x110000
WS_P3 = 0x1F0000
WS_EP2 = 0x1FF000
WS_STAMP = 0x300000
WS_SIZE = 0x400000

DOC = '; ---------------------------------------------------------------------------------------------------------\n;\n; One launch, 256 workgroups (one per CU, LDS-limited), 4 waves each; head = wg & 7, p = wg >> 3.\n;  * Every wave streams 16 K tiles, then the 16 matching V tiles (16 keys = 8 KB each) with LDS-DMA into a\n;  * Hand-offs between workgroups go through d_ws as 8-byte {data, tag} granules; the tag is derived from two\n;    words the previous launch left, so stale contents never match.  Hand-offs inside a head use ordinary\n;    stores only when all 32 workgroups report the same XCC id, otherwise write-through (sc1) stores.\n; ---------------------------------------------------------------------------------------------------------\n'


def gen(R=3, N=5, N0=8, Nend=12, tail=7, NB=8, NP=6, bits="i0 w0 w1 i1 i2 g3 g4 t2 t3 x0 x1 x2 t0 t1",
        kflags="nt", vflags="nt", wflags="nt", stamps=0, spin=4000000, vpub=5, vgat=9, wpos=0, flat2=False, gate2=False, kopen=None, lateprep=True, pre1=None, pre2=None, plain1=False, touch="sc1", tpos=0, codepf=True, tlbpf=True, outpf=True, nn=None, ext=None, depth3=4, touch2=True, now=False, wafter=False, wat=None, tat=None, who=3, reuse=True, al12=True, pgpf=False, repf=(), dead=0, wtouch=False, jit=0, diag=0, dmul=1, dry=False, w2at=None, pad=0, gateA=False, st3="sc1", ld3="sc1", bb=None, N2=8, iw=None, ra=((8, 14, 6, 24, 6), (11, 14, 6, 24, 6), (14, 16, 6, 26, 6), (17, 18, 6, 26, 6), (20, 18, 6, 26, 6), (23, 18, 6, 26, 6), (26, 18, 6, 26, 6)), raws=True, nk=1, ng=8, bump=(), epfl="", outfl="", pipe=False, skipw=True, wlate=None, wtlb=None, wdma=None, rk=((64, 20, 4, 0, 0), (186, 18, 5, 0, 0)), rkw=1, Nhi=6, Nlo=4, sleep1=0, sleep2=0,
        alt=None, X=7, Np=12, B0=6, Xp=None, il=0, Np2=9, zmap="wg", rot=True, hmap="mod8", local=True,
        kern=KERN):
    noend = noml = False
    assert not wdma and wlate is None
    if ra:
        rk = ()
        assert len(ra) * ng <= 128 and raws
    ctl = list(rk) + list(ra)
    wearly = 0
    T = 8
    tb = T * 1024
    S = 16
    if "h" not in bits.split():
        bits = "h " + bits
    pos = {n: 9 + k for k, n in enumerate(bits.split())}
    genh = pos["h"] != 9
    RING = 4 * R * tb
    STG = RING
    QW = STG + 57344
    LML = QW + 4096
    FIN = LML + 128
    PRG = FIN + 256
    LDS = PRG + (1024 if iw else 0)
    assert LDS <= 163840 and LDS > 81920
    if Xp is None:
        Xp = X * T

    o = []
    A = o.append
    vm = {"n": 0, "known": 0}

    def VM(s):
        A(s)
        vm["n"] += 1
        return vm["n"]

    def wait_vm(idx, force=False):
        if idx <= vm["known"] and not force:
            return
        n = vm["n"] - idx
        assert 0 <= n <= 63, n
        A(f"s_waitcnt vmcnt({n})")
        if vm.get("opt") and idx < vm["optend"]:
            assert idx <= vm["optend"] - vm["opt"]
            vm["lbl"] = vm.get("lbl", 0) + 1
            A(f"s_cmp_ge_u32 s3, 2")
            A(f"s_cbranch_scc1 L_ow{vm['lbl']}")
            A(f"s_waitcnt vmcnt({n - vm['opt']})")
            A(f"L_ow{vm['lbl']}:")
        vm["known"] = max(vm["known"], idx)

    nstamp = {"n": 0}

    def stamp(mode=1):
        if stamps and (int(stamps) & mode):
            k = nstamp["n"]
            assert k < 8
            A(f"s_memrealtime s[{84+2*k}:{85+2*k}]")
            nstamp["n"] += 1

    SRD_K, SRD_V, SRD_W, SRD_WO, SRD_W2, SRD_WS, SRD_X, SRD_OUT = ("s[28:31]", "s[32:35]", "s[36:39]", "s[40:43]",
                                                                     "s[44:47]", "s[48:51]", "s[52:55]", "s[56:59]")
    sW, sH, sP, sTAG, sRING, sBASE, sC, sF = "s3", "s60", "s61", "s62", "s63", "s64", "s65", "s66"
    sOFF = "s67"
    sZ = "s27"
    sT = ["s72", "s73", "s74", "s75", "s76", "s77", "s78", "s79", "s80", "s81"]
    vL = "v1"
    vSRC = [2, 3, 4, 5]
    vKA = [6, 7, 8, 9]
    vVA = list(range(10, 18))
    vMAX, vMS = 18, 19
    vPF, vLS, vS, vE = 20, 24, 24, 28
    vVT = 32
    sLOC, sXCC = "s82", "s83"
    sWE, sNE = "s16", "s17"
    vPW, vPR, vPD = (22, 23, 255) if False else (252, 253, 255)
    if stamps and iw:
        vPW, vPR = 250, 251
    vQ, vTL, vACC, vSC, vT = 32, 64, 96, 160, 224
    vH = 244

    def mk_tag(dst):
        A(f"s_lshl1_add_u32 {dst}, s27, {sTAG}")
        A(f"s_mul_i32 {dst}, {dst}, 1664525")
        A(f"s_add_u32 {dst}, {dst}, 1013904223")

    def srd(base, lo, size):
        A(f"s_mov_b32 s{base}, s{lo}")
        A(f"s_mov_b32 s{base+1}, s{lo+1}")
        A(f"s_mov_b32 s{base+2}, {size}")
        A(f"s_mov_b32 s{base+3}, 0x20000")

    assert hmap == "mod8" and zmap == "wg" and not il
    sZ = "s2"
    A("L_c0:")
    A("s_load_dwordx2 s[28:29], s[0:1], 8")
    A("s_load_dwordx16 s[4:19], s[0:1], 0")
    A("s_load_dwordx4 s[20:23], s[0:1], 64")
    A("s_load_dwordx2 s[24:25], s[0:1], 80")
    stamp(3)
    if diag:
        A("s_memrealtime s[84:85]")
    A("v_lshrrev_b32 v30, 6, v0")
    A("s_cmp_lt_u32 s2, 92")
    A("s_cbranch_scc1 L_producer")
    A("s_cmp_ge_u32 s2, 256")
    A("s_cbranch_scc1 L_end")

    def put(src, names):
        k = 0
        while k < len(names):
            e = k
            while e + 1 < len(names) and pos[names[e + 1]] == pos[names[e]] + 1:
                e += 1
            if k == 0 and e == len(names) - 1:
                A(f"s_lshl_b32 {sT[2]}, {src}, {pos[names[0]]}")
            else:
                A(f"s_bfe_u32 {sT[2]}, {src}, {((e - k + 1) << 16) | k}")
                A(f"s_lshl_b32 {sT[2]}, {sT[2]}, {pos[names[k]]}")
            A(f"s_or_b32 {sBASE}, {sBASE}, {sT[2]}")
            k = e + 1

    def common0():
        A(f"v_and_b32 {vL}, 63, v0")
        A("v_readfirstlane_b32 s3, v30")
        A(f"s_and_b32 {sH}, s2, 7")
        A(f"s_lshr_b32 {sP}, s2, 3")
        A(f"s_and_b32 {sT[0]}, {sP}, 7")
        A(f"s_lshr_b32 {sT[1]}, s2, 6")
        A(f"s_lshl_b32 {sBASE}, {sH}, 24")
        put(sT[0], ["x0", "x1", "x2"])
        put(sT[1], ["g3", "g4"])
        put(sW, ["w0", "w1"])
        A(f"s_mul_i32 {sRING}, {sW}, {R*tb}")
        A("s_brev_b32 s30, 16")
        A("s_mov_b32 s31, 0x20000")
        A(f"v_lshlrev_b32 v29, 4, {vL}")
        A(f"v_and_b32 v31, 32, {vL}")
        A(f"v_xor_b32 v{vSRC[0]}, v29, v31")
        if genh:
            A(f"v_and_b32 v{vSRC[0]}, 0x1ff, v{vSRC[0]}")
            A(f"v_lshl_add_u32 v{vSRC[0]}, v31, {pos['h'] - 5}, v{vSRC[0]}")
        A(f"v_xor_b32 v{vSRC[1]}, 64, v{vSRC[0]}")
        A(f"v_xor_b32 v{vSRC[2]}, 0x80, v{vSRC[0]}")
        A(f"v_xor_b32 v{vSRC[3]}, 64, v{vSRC[2]}")

    def common1():
        A(f"s_mov_b32 {sC}, 0x{f2u(LOG2E_16):08x}")
        A(f"s_min_u32 {sF}, s2, 223")

    def producer0():
        A("s_mov_b32 s39, 0x20000")
        A(f"s_cmp_lt_u32 {sZ}, 64")
        A(f"s_mov_b32 s38, {448*1792*2}")
        A(f"s_cmov_b32 s38, {448*4096*2}")
        A(f"s_movk_i32 {sT[4]}, 3584")
        A(f"s_cmovk_i32 {sT[4]}, 8192")
        A(f"s_and_b32 {sT[5]}, {sZ}, 63")
        A(f"s_lshl_b32 {sT[5]}, {sT[5]}, 7")
        A(f"s_mul_i32 {sT[6]}, {sW}, {sT[4]}")
        A(f"s_mulk_i32 {sT[6]}, 112")
        A(f"s_add_u32 {sT[5]}, {sT[5]}, {sT[6]}")
        A(f"v_lshrrev_b32 v30, 3, {vL}")
        A(f"v_mul_u32_u24 v30, {sT[4]}, v30")
        A(f"v_and_b32 v31, 0x70, v29")
        A("v_add_u32 v21, v31, v30")
        A(f"s_lshl_b32 {sT[4]}, {sT[4]}, 3")
        A(f"s_mul_i32 {sT[6]}, {sW}, 14336")
        A(f"s_add_u32 {sT[6]}, {sT[6]}, {STG}")
        A("s_movk_i32 s54, 896")
        A("s_mov_b32 s55, s39")
        A(f"s_movk_i32 {sT[3]}, 14")
        A("s_waitcnt lgkmcnt(0)")
        A("s_mov_b64 s[52:53], s[4:5]")
        A(f"s_cmp_lt_u32 {sZ}, 64")
        A("s_cselect_b64 s[36:37], s[10:11], s[16:17]")
        if wtouch:
            A(f"s_load_dword {sLOC}, s[36:37], {sT[5]}")
            A(f"s_load_dword {sXCC}, s[28:29], {sBASE}")

    seq = [("K", n) for n in range(S)] + [("V", n) for n in range(S)]
    NL = len(seq) * T
    lidx = {}

    m0bad = {"v": False}

    def issue_load(L):
        j, i = divmod(L, T)
        kind, n = seq[j]
        if i % 4 and m0bad["v"]:
            A(f"s_add_u32 m0, {sRING}, {(j % R)*tb + (i // 4)*4096}")
            A("s_nop 0")
        m0bad["v"] = False
        def goff(i_):
            return (sum(((n >> k) & 1) << pos[f"t{k}"] for k in range(4)) +
                    sum(((i_ >> k) & 1) << pos[f"i{k}"] for k in range(3)) - (i_ % 4) * 1024)
        srd_, fl = (SRD_K, kflags) if kind == "K" else (SRD_V, vflags)
        if genh:
            A(f"s_add_u32 m0, {sRING}, {(j % R)*tb + i*1024}")
            A(f"s_add_u32 {sOFF}, {sBASE}, {goff(i) + (i % 4)*1024}")
            lidx[L] = VM(f"buffer_load_dwordx4 v{vSRC[i%4]}, {srd_}, {sOFF} offen {fl} lds")
            return
        if i % 4 == 0:
            A(f"s_add_u32 m0, {sRING}, {(j % R)*tb + i*1024}")
        if i % 4 == 0 or goff(i) != goff(i - 1):
            A(f"s_add_u32 {sOFF}, {sBASE}, {goff(i)}")
        lidx[L] = VM(f"buffer_load_dwordx4 v{vSRC[i%4]}, {srd_}, {sOFF} offen offset:{(i%4)*1024} {fl} lds")

    npf = {"n": 0}

    LFLAG = 0x600DF1A6

    def setup():
        A(f"s_lshl_b32 {sT[2]}, {sW}, 5")
        A(f"s_add_u32 {sT[2]}, {sT[2]}, {LML}")
        A(f"v_lshlrev_b32 v29, 2, {vL}")
        A(f"v_add_u32 v29, {sT[2]}, v29")
        A("v_mov_b32 v30, 0")
        A("s_mov_b64 exec, 0xff")
        A("ds_write_b32 v29, v30")
        if ctl:
            A("ds_write_b32 v29, v30 offset:128")
        A("s_mov_b64 exec, -1")
        if iw:
            A(f"v_lshlrev_b32 v{vPW}, 2, v0")
            A(f"v_add_u32 v{vPW}, {PRG}, v{vPW}")
            A(f"ds_write_b32 v{vPW}, v30")
            A(f"v_and_b32 v{vPR}, 3, {vL}")
            A(f"v_lshlrev_b32 v{vPR}, 8, v{vPR}")
            A(f"v_add_u32 v{vPR}, {PRG}, v{vPR}")
        A("s_waitcnt lgkmcnt(0)")
        A("s_barrier")
        A(f"s_load_dword {sTAG}, s[24:25], 0")
        A(f"s_mov_b32 {sT[2]}, {WS_EP2}")
        A(f"s_load_dword s27, s[24:25], {sT[2]}")
        if tlbpf:
            A(f"s_lshr_b32 {sT[2]}, s2, 3")
            A(f"s_lshl_b32 {sT[2]}, {sT[2]}, 2")
            A(f"s_add_u32 {sT[2]}, {sT[2]}, {sW}")
            A(f"s_bitcmp1_b32 {sT[2]}, 3")
            A("s_cselect_b32 s70, s8, s6")
            A("s_cselect_b32 s71, s9, s7")
            A(f"s_and_b32 {sT[7]}, {sT[2]}, 7")
            A(f"s_lshl_b32 {sT[7]}, {sT[7]}, 21")
            A(f"s_lshl_b32 {sT[8]}, {sH}, 24")
            A(f"s_add_u32 {sT[7]}, {sT[7]}, {sT[8]}")
            A(f"s_lshl_b32 {sT[8]}, {sT[2]}, 7")
            A(f"s_add_u32 {sT[7]}, {sT[7]}, {sT[8]}")
            A(f"s_add_u32 s70, s70, {sT[7]}")
            A("s_addc_u32 s71, s71, 0")
            A(f"s_load_dword {sLOC}, s[70:71], 0x0")
            A(f"s_bitcmp1_b32 {sW}, 0")
            A("s_cselect_b32 s70, s12, s18")
            A("s_cselect_b32 s71, s13, s19")
            A(f"s_mov_b32 {sT[7]}, 6272")
            A(f"s_cmov_b32 {sT[7]}, 14336")
            A(f"s_mul_i32 {sT[7]}, {sT[7]}, s2")
            A(f"s_add_u32 s70, s70, {sT[7]}")
            A("s_addc_u32 s71, s71, 0")
            A(f"s_load_dword s21, s[70:71], 0x0" if False else f"s_load_dword {sXCC}, s[70:71], 0x0")
        if codepf:
            k = npf["n"]
            npf["n"] += 1
            A(f"s_getpc_b64 s[68:69]")
            A(f"L_pf{k}:")
            A(f"s_lshr_b32 {sT[2]}, s2, 3")
            A(f"s_lshl_b32 {sT[2]}, {sT[2]}, 2")
            A(f"s_add_u32 {sT[2]}, {sT[2]}, {sW}")
            A(f"s_lshl_b32 {sT[2]}, {sT[2]}, 8")
            A(f"s_min_u32 {sT[2]}, {sT[2]}, L_end-L_c0-128")
            A(f"s_sub_u32 s68, s68, L_pf{k}-L_c0")
            A("s_subb_u32 s69, s69, 0")
            A(f"s_add_u32 s68, s68, {sT[2]}")
            A("s_addc_u32 s69, s69, 0")
            A(f"s_load_dword {sLOC}, s[68:69], 0x0")
            A(f"s_load_dword {sLOC}, s[68:69], 0x80")
            if pgpf:
                A(f"s_sub_u32 s68, s68, {sT[2]}")
                A("s_subb_u32 s69, s69, 0")
                A(f"s_lshl_b32 {sT[2]}, {sW}, 13")
                A(f"s_min_u32 {sT[2]}, {sT[2]}, L_end-L_c0-4096")
                A(f"s_add_u32 s68, s68, {sT[2]}")
                A("s_addc_u32 s69, s69, 0")
                A(f"s_load_dword {sLOC}, s[68:69], 0x0")
                A(f"s_load_dword {sLOC}, s[68:69], 0x1000")
        srd(32, 8, 128 << 20)
        srd(40, 12, 4096 * 448 * 2)
        srd(44, 18, 1792 * 448 * 2)
        srd(48, 24, WS_SIZE)
        srd(56, 20, 896)
        if stamps:
            A("s_mov_b32 s26, 0")
            A("v_mov_b32 v252, 0")
            for k in (5, 6, 7):
                A(f"s_mov_b32 s{84+2*k}, s84")
        A(f"v_and_b32 v29, 15, {vL}")
        A(f"v_lshrrev_b32 v30, 4, {vL}")
        A("v_and_b32 v31, 7, v29")
        A("v_lshlrev_b32 v31, 1, v31")
        A("v_xor_b32 v31, v31, v30")
        A("v_lshlrev_b32 v31, 4, v31")
        A("v_lshl_add_u32 v31, v29, 9, v31")
        for j in range(4):
            A(f"v_xor_b32 v{vKA[j]}, {j*64}, v31")
            A(f"v_add_u32 v{vKA[j]}, {sRING}, v{vKA[j]}")
        A(f"v_bfe_u32 v29, {vL}, 2, 2")
        A(f"v_lshrrev_b32 v30, 4, {vL}")
        A("v_xor_b32 v30, v30, v29")
        A(f"v_and_b32 v31, 3, {vL}")
        A("v_lshlrev_b32 v31, 3, v31")
        A("v_lshl_add_u32 v31, v30, 5, v31")
        A("v_lshl_add_u32 v31, v29, 9, v31")
        A(f"v_add_u32 v{vVA[0]}, {sRING}, v31")
        A(f"v_mov_b32 v{vMAX}, 0xff800000")
        if ra:
            A(f"s_and_b32 s14, {sP}, {nk-1}")
            if raws:
                A(f"s_and_b32 s15, {sP}, {ng-1}")
                A("s_mul_i32 s15, s15, 4352")
                A(f"s_add_u32 s15, s15, {WS_CNT}")
                A("s_add_u32 s22, s24, s15")
                A("s_addc_u32 s23, s25, 0")
            else:
                A(f"s_bfe_u32 s15, {sP}, 0x20002")
                A("s_lshl_b32 s15, s15, 4")
                A("s_add_u32 s15, s15, s14")
                A("s_lshl_b32 s15, s15, 2")
                A("s_add_u32 s22, s22, s15")
                A("s_addc_u32 s23, s23, 0")
            A(f"s_cmp_eq_u32 {sW}, {rkw}")
            A("s_cselect_b32 s14, s14, 15")
        if ctl:
            A(f"s_mov_b32 {sWE}, 0")
            A(f"s_mov_b32 {sNE}, 0")
            A(f"v_mov_b32 v254, {FIN}")

    def allreduce(op, regs, tmp, steps):
        for st in steps:
            if st <= 8:
                if len(regs) < 3:
                    A(f"s_nop {2-len(regs)}")
                for r in regs:
                    A(f"{op}_dpp v{r}, v{r}, v{r} row_ror:{st} row_mask:0xf bank_mask:0xf")
            else:
                for k, r in enumerate(regs):
                    A(f"v_mov_b32 v{tmp+k}, v{r}")
                if len(regs) < 3:
                    A(f"s_nop {2-len(regs)}")
                for k, r in enumerate(regs):
                    A(f"v_permlane{st}_swap_b32 v{r}, v{tmp+k}")
                if len(regs) < 2:
                    A("s_nop 0")
                for k, r in enumerate(regs):
                    A(f"{op} v{r}, v{r}, v{tmp+k}")

    XU = vT + 4
    a, b, c_, d_ = vT + 12, vT + 13, vT + 14, vT + 15
    XF, WF = 96, 152
    st = {}

    def side0():
        A("; layer norm with the reference rounding steps")
        wait_vm(st["x"])
        stamp(2)
        for i in range(4):
            A(f"v_lshlrev_b32 v{XU+2*i}, 16, v{vT+i}")
            A(f"v_and_b32 v{XU+2*i+1}, 0xffff0000, v{vT+i}")
        A(f"v_add_f32 v{a}, v{XU}, v{XU+1}")
        for i in range(2, 8):
            A(f"v_add_f32 v{a}, v{a}, v{XU+i}")
        allreduce("v_add_f32", [a], b, [1, 2, 4, 8, 16, 32])

    def side1():
        A(f"v_mul_f32 v{a}, 0x{f2u(1.0/448):08x}, v{a}")
        A(f"v_mov_b32 v{b}, 0")
        for i in range(8):
            A(f"v_sub_f32 v{c_}, v{XU+i}, v{a}")
            A(f"v_fmac_f32 v{b}, v{c_}, v{c_}")
        A(f"v_cmp_gt_u32 vcc, 56, {vL}")
        A("s_nop 1")
        A(f"v_cndmask_b32 v{b}, 0, v{b}, vcc")
        allreduce("v_add_f32", [b], c_, [1, 2, 4, 8, 16, 32])

    def side2():
        A(f"v_mul_f32 v{b}, 0x{f2u(1.0/448):08x}, v{b}")
        A(f"v_cvt_pk_bf16_f32 v{c_}, v{a}, v{b}")
        A(f"v_lshlrev_b32 v{a}, 16, v{c_}")
        A(f"v_and_b32 v{b}, 0xffff0000, v{c_}")
        A(f"v_add_f32 v{b}, 0x{f2u(1e-5):08x}, v{b}")
        A(f"v_cvt_pk_bf16_f32 v{b}, v{b}, v{b}")
        A(f"v_and_b32 v{b}, 0xffff0000, v{b}")
        A(f"v_sqrt_f32 v{b}, v{b}")
        A("s_nop 0")
        A(f"v_cvt_pk_bf16_f32 v{b}, v{b}, v{b}")
        A(f"v_and_b32 v{b}, 0xffff0000, v{b}")
        A(f"v_rcp_f32 v{b}, v{b}")

    def side3():
        for i in range(8):
            A(f"v_sub_f32 v{XU+i}, v{XU+i}, v{a}")
        for i in range(4):
            A(f"v_cvt_pk_bf16_f32 v{vT+i}, v{XU+2*i}, v{XU+2*i+1}")
        for i in range(4):
            A(f"v_lshlrev_b32 v{XU+2*i}, 16, v{vT+i}")
            A(f"v_and_b32 v{XU+2*i+1}, 0xffff0000, v{vT+i}")
        for i in range(8):
            A(f"v_mul_f32 v{XU+i}, v{XU+i}, v{b}")
        for i in range(4):
            A(f"v_cvt_pk_bf16_f32 v{vT+i}, v{XU+2*i}, v{XU+2*i+1}")
        A(f"s_lshl_b32 {sT[0]}, {sW}, 10")
        A(f"s_add_u32 {sT[0]}, {sT[0]}, {QW}")
        A(f"v_lshlrev_b32 v{a}, 4, {vL}")
        A(f"v_add_u32 v{a}, {sT[0]}, v{a}")
        A(f"ds_write_b128 v{a}, v[{vT}:{vT+3}]")
        A(f"v_lshrrev_b32 v{b}, 4, {vL}")
        A(f"v_lshlrev_b32 v{c_}, 4, v{b}")
        A(f"v_add_u32 v{c_}, {sT[0]}, v{c_}")

    def side4():
        A("s_waitcnt lgkmcnt(0)")
        for i in range(14):
            A(f"ds_read_b128 v[{XF+4*i}:{XF+4*i+3}], v{c_} offset:{i*64}")
        A(f"v_lshlrev_b32 v{b}, 10, v{b}")
        A(f"v_bfe_u32 v{d_}, {vL}, 2, 2")
        A(f"v_lshl_add_u32 v{b}, v{d_}, 7, v{b}")
        A(f"v_and_b32 v{d_}, 3, {vL}")
        A(f"v_lshl_add_u32 v{b}, v{d_}, 3, v{b}")
        A(f"s_lshl_b32 {sT[1]}, {sW}, 5")
        A(f"s_add_u32 {sT[1]}, {sT[1]}, {STG}")
        A(f"v_add_u32 v{b}, {sT[1]}, v{b}")
        mk_tag(f"{sT[2]}")

    def side5():
        stamp(2)
        wait_vm(st["stg"])
        A("s_waitcnt lgkmcnt(0)")
        A("s_barrier")
        if diag == 7:
            A("s_memrealtime s[86:87]")
        stamp(2)
        for i in range(14):
            A(f"ds_read_b64_tr_b16 v[{WF+4*i}:{WF+4*i+1}], v{b} offset:{i*4096}")
            A(f"ds_read_b64_tr_b16 v[{WF+4*i+2}:{WF+4*i+3}], v{b} offset:{i*4096+512}")

    def side6():
        A(f"v_and_b32 v{d_}, 15, {vL}")
        A(f"v_cmp_eq_u32 s[70:71], 0, v{d_}")
        A(f"v_lshrrev_b32 v{a}, 4, {vL}")
        A(f"v_lshlrev_b32 v{a}, 4, v{a}")
        A(f"v_mov_b32 v{vT+1}, {sT[2]}")
        A(f"v_mov_b32 v{vT+3}, {sT[2]}")
        A(f"s_lshl_b32 {sT[0]}, {sZ}, 2")
        A(f"s_add_u32 {sT[0]}, {sT[0]}, {sW}")
        A(f"s_lshl_b32 {sT[0]}, {sT[0]}, 6")
        A(f"s_add_u32 {sT[0]}, {sT[0]}, {WS_QG}")
        A(f"s_cmp_lt_u32 {sZ}, 64")
        A(f"s_cselect_b32 {sT[1]}, 0xff800000, 0")

    def side7():
        A("s_waitcnt lgkmcnt(0)")
        for i in range(14):
            A(f"v_mfma_f32_16x16x32_bf16 v[{vS}:{vS+3}], v[{WF+4*i}:{WF+4*i+3}], v[{XF+4*i}:{XF+4*i+3}], " +
              ("0" if i == 0 else f"v[{vS}:{vS+3}]"))

    def side8():
        A("s_nop 7")
        for i in range(4):
            A(f"v_max_f32 v{vS+i}, {sT[1]}, v{vS+i}")
        A(f"v_cvt_pk_bf16_f32 v{vT}, v{vS}, v{vS+1}")
        A(f"v_cvt_pk_bf16_f32 v{vT+2}, v{vS+2}, v{vS+3}")
        A("s_mov_b64 exec, s[70:71]")
        A(f"buffer_store_dwordx4 v[{vT}:{vT+3}], v{a}, {SRD_WS}, {sT[0]} offen sc1")
        A("s_mov_b64 exec, -1")

    side_chunks = [side0, side1, side2, side3, side4, side5, side6, side7, side8]

    def tile_stamp_a():
        if stamps:
            A("s_memrealtime s[100:101]")
        if isinstance(who, int) and "tc" in st:
            for c, r_ in enumerate(ra):
                if st["tc"] == r_[0]:
                    A("v_mov_b32 v255, 1")
                    A("s_mov_b64 exec, 1")
                    A(f"ds_add_rtn_u32 v255, v254, v255 offset:{8 + 4*c}")
                    A("s_mov_b64 exec, -1")
        if st.get("rk_on") and not st.get("rk_off"):
            A(f"ds_read_b64 v[{vT+18}:{vT+19}], v254")
            if iw:
                A(f"ds_read_b32 v{vPD}, v{vPR}")
                st["iw_own"] = st["iw_last"]
            st["rk_rd"] = True

    def lds_wait(tile=False):
        A("s_waitcnt lgkmcnt(0)")
        if st.get("rk_rd"):
            A(f"v_readfirstlane_b32 {sWE}, v{vT+18}")
            A(f"v_readfirstlane_b32 {sNE}, v{vT+19}")
            if bb and st["tc"] >= bb[0]:
                A(f"s_cmp_ge_u32 {sW}, 2")
                A(f"s_cmovk_i32 {sWE if bb[1] == 1 else sNE}, 0x100")
            if iw:
                th, gain, thn, gn = iw
                A(f"v_add_u32_dpp v{vPD}, v{vPD}, v{vPD} quad_perm:[1,0,3,2] row_mask:0xf bank_mask:0xf")
                A("s_nop 1")
                A(f"v_add_u32_dpp v{vPD}, v{vPD}, v{vPD} quad_perm:[2,3,0,1] row_mask:0xf bank_mask:0xf")
                A("s_nop 0")
                A(f"v_readfirstlane_b32 s19, v{vPD}")
                A(f"s_sub_i32 s19, s19, {4*st['iw_own']}")
                A(f"s_mul_i32 s13, s19, {gain}")
                A(f"s_add_i32 s13, s13, {st['L']}")
                A(f"s_cmp_ge_i32 s19, {th}")
                A("s_cselect_b32 s13, s13, 0")
                A(f"s_max_u32 {sWE}, {sWE}, s13")
                if thn:
                    A(f"s_mul_i32 s13, s19, {-gn}")
                    A(f"s_add_i32 s13, s13, {st['L']}")
                    A(f"s_cmp_le_i32 s19, {-thn}")
                    A("s_cselect_b32 s13, s13, 0")
                    A(f"s_cselect_b32 {sWE}, 0, {sWE}")
                    A(f"s_max_u32 {sNE}, {sNE}, s13")
            st["rk_rd"] = False
        if tile and "tc" in st:
            j = st["tc"]
            st["tc"] += 1
            if j in repf:
                A(f"s_getpc_b64 s[12:13]")
                A(f"L_rp{j}:")
                A(f"s_lshl_b32 s19, {sP}, 2")
                A(f"s_add_u32 s19, s19, {sW}")
                A("s_lshl_b32 s19, s19, 7")
                A(f"s_min_u32 s19, s19, L_end-L_rp{j}")
                A("s_load_dword s15, s[12:13], s19")
            for c, r_ in enumerate(ra):
                if 1 <= j - r_[0] <= nk:
                    c_rkdecide(c, st["L"], j - r_[0] - 1)
            for c, r_ in enumerate(ra):
                if 0 <= j - r_[0] < nk:
                    assert st.get("rdy"), "probe before the ready check"
                    if isinstance(who, int):
                        A("v_readfirstlane_b32 s14, v255")
                        A(f"s_sub_u32 s14, s14, s15")
                    elif who == "rot":
                        A(f"s_sub_u32 s14, s15, {c & 3}")
                    A(f"s_cmp_eq_u32 s14, {j - r_[0]}")
                    A(f"s_cbranch_scc0 L_ra{c}_{j}")
                    A("s_mov_b32 s18, 1")
                    A(f"s_atomic_add s18, s[22:23], {ng*4352*c} glc")
                    A(f"L_ra{c}_{j}:")
        if stamps and tile:
            A("v_mov_b32 v253, s100")
            A(f"v_cmp_eq_u32 vcc, s26, {vL}")
            A("s_add_u32 s26, s26, 1")
            A("s_nop 0")
            A("v_cndmask_b32 v252, v252, v253, vcc")

    def read_k(dst, slot_imm, acc=False):
        tile_stamp_a()
        p = "a" if acc else "v"
        for j in range(8):
            A(f"ds_read_b128 {p}[{dst+4*j}:{dst+4*j+3}], v{vKA[j%4]} offset:{slot_imm + (j//4)*256}")

    def qk_mfma(src, acc):
        p = "a" if acc else "v"
        for j in range(8):
            A(f"v_mfma_f32_16x16x32_bf16 v[{vS}:{vS+3}], {p}[{src+4*j}:{src+4*j+3}], v[{vQ+4*j}:{vQ+4*j+3}], " +
              ("0" if j == 0 else f"v[{vS}:{vS+3}]"))

    def qk_post(sc):
        A("s_nop 7")
        A(f"v_cvt_pk_bf16_f32 v{sc+1}, v{vS}, v{vS+1}")
        A(f"v_cvt_pk_bf16_f32 v{sc+3}, v{vS+2}, v{vS+3}")
        A(f"v_lshlrev_b32 v{sc}, 16, v{sc+1}")
        A(f"v_and_b32 v{sc+1}, 0xffff0000, v{sc+1}")
        A(f"v_lshlrev_b32 v{sc+2}, 16, v{sc+3}")
        A(f"v_and_b32 v{sc+3}, 0xffff0000, v{sc+3}")
        A(f"v_max3_f32 v{vMAX}, v{sc}, v{sc+1}, v{vMAX}")
        A(f"v_max3_f32 v{vMAX}, v{sc+2}, v{sc+3}, v{vMAX}")

    def q_poll(emit):
        emit(f"buffer_load_dwordx4 v[{vT}:{vT+3}], v{vT+8}, {SRD_WS}, {sT[8]} offen sc1")
        emit(f"buffer_load_dwordx4 v[{vT+4}:{vT+7}], v{vT+8}, {SRD_WS}, {sT[8]} offen offset:1024 sc1")
        emit(f"buffer_load_dwordx4 v[{vH}:{vH+3}], off, {SRD_WS}, {sT[7]} sc1")
        return emit(f"buffer_load_dwordx4 v[{vH+4}:{vH+7}], off, {SRD_WS}, {sT[7]} offset:16 sc1")

    def tagcheck(regs, acc0, acc1, sTAG=sTAG):
        A(f"v_xor_b32 v{acc0}, {sTAG}, v{regs[0]}")
        A(f"v_xor_b32 v{acc1}, {sTAG}, v{regs[1]}")
        for i, r in enumerate(regs[2:]):
            acc = acc0 if i % 2 == 0 else acc1
            A(f"v_bitop3_b32 v{acc}, v{acc}, v{r}, {sTAG} bitop3:0xf6")
        A(f"v_or_b32 v{acc0}, v{acc0}, v{acc1}")
        A(f"v_cmp_ne_u32 vcc, 0, v{acc0}")

    def c_qpoll():
        A("; fetch q (and h, counter-ready word)")
        A(f"s_lshl_b32 {sT[8]}, {sH}, 11")
        A(f"s_add_u32 {sT[8]}, {sT[8]}, {WS_QG}")
        A(f"s_lshl_b32 {sT[7]}, {sF}, 5")
        A(f"s_add_u32 {sT[7]}, {sT[7]}, {WS_HG}")
        A(f"v_lshlrev_b32 v{vT+8}, 4, {vL}")
        if ra:
            A(f"s_mov_b32 {sT[6]}, {WS_RDY}")
            VM(f"buffer_load_dword v255, off, {SRD_WS}, {sT[6]} sc1")
        st["q"] = q_poll(VM)

    def c_qcheck():
        A("; check the q tags, build the B fragments")
        wait_vm(st["q"])
        if ra:
            A(f"v_readfirstlane_b32 {sT[6]}, v255")
            A(f"s_cmp_eq_u32 {sT[6]}, {sTAG}")
            if who is None:
                A("s_cselect_b32 s14, s14, 15")
            else:
                A(f"s_cselect_b32 s15, {who if isinstance(who, int) else sW}, 15")
            st["rdy"] = True
        A(f"s_mov_b32 {sT[0]}, {spin}")
        A("L_qchk:")
        tagcheck([vT + 1, vT + 3, vT + 5, vT + 7, vH + 1, vH + 3, vH + 5, vH + 7], vT + 9, vT + 10)
        A("s_cbranch_vccz L_qok")
        A(f"s_sub_u32 {sT[0]}, {sT[0]}, 1")
        A("s_cbranch_scc1 L_qok")
        q_poll(A)
        A("s_waitcnt vmcnt(0)")
        A("s_branch L_qchk")
        A("L_qok:")
        stamp()
        A(f"s_lshl_b32 {sT[0]}, {sW}, 10")
        A(f"s_add_u32 {sT[0]}, {sT[0]}, {QW}")
        A(f"v_lshlrev_b32 v{vT+9}, 3, {vL}")
        A(f"v_add_u32 v{vT+9}, {sT[0]}, v{vT+9}")
        A(f"ds_write2_b32 v{vT+9}, v{vT}, v{vT+2} offset0:0 offset1:1")
        A(f"ds_write2_b32 v{vT+9}, v{vT+4}, v{vT+6} offset0:128 offset1:129")
        A(f"v_and_b32 v{vT+10}, 1, {vL}")
        A(f"v_lshlrev_b32 v{vT+10}, 9, v{vT+10}")
        A(f"v_lshrrev_b32 v{vT+11}, 4, {vL}")
        A(f"v_lshl_add_u32 v{vT+10}, v{vT+11}, 4, v{vT+10}")
        A(f"v_add_u32 v{vT+10}, {sT[0]}, v{vT+10}")

    def c_qread():
        A("s_waitcnt lgkmcnt(0)")
        for j in range(8):
            A(f"ds_read_b128 v[{vQ+4*j}:{vQ+4*j+3}], v{vT+10} offset:{j*64}")

    def c_kmax():
        A("; end of the K pass: wave max")
        A(f"s_getreg_b32 {sXCC}, hwreg(HW_REG_XCC_ID, 0, 4)")
        allreduce("v_max_f32", [vMAX], vT, [16, 32])
        if diag == 3:
            A("s_memrealtime s[86:87]")
        A(f"v_mul_f32 v{vMS}, {sC}, v{vMAX}")
        A(f"v_mov_b32 v{vLS}, 0")
        A(f"v_mov_b32 v{vLS+1}, 0")
        stamp()

    def read_vg(slot_imm, g):
        for qd in range(4):
            r = vVT + 8 * g + 2 * qd
            A(f"ds_read_b64_tr_b16 v[{r}:{r+1}], v{vVA[0]} offset:{slot_imm + g*2048 + ((qd ^ g) & 1)*128 + (qd >> 1)*256}")

    def read_v(slot_imm, half):
        tile_stamp_a()
        for g in range(4):
            read_vg(slot_imm, g)

    def exps(sc):
        for r in range(4):
            A(f"v_fma_f32 v{vE+r}, v{sc+r}, {sC}, -v{vMS}")
        for r in range(4):
            A(f"v_exp_f32 v{vE+r}, v{vE+r}")
        A("s_nop 0")

    def make_p(n):
        exps(vSC + 4 * n)
        A(f"v_cvt_pk_bf16_f32 v{vPF+2*(n&1)}, v{vE}, v{vE+1}")
        A(f"v_cvt_pk_bf16_f32 v{vPF+2*(n&1)+1}, v{vE+2}, v{vE+3}")
        st["pdone"] = n

    def lsum(sc):
        exps(sc)
        A(f"v_add_f32 v{vLS}, v{vLS}, v{vE}")
        A(f"v_add_f32 v{vLS+1}, v{vLS+1}, v{vE+1}")
        A(f"v_add_f32 v{vLS}, v{vLS}, v{vE+2}")
        A(f"v_add_f32 v{vLS+1}, v{vLS+1}, v{vE+3}")

    def pvg(n, g):
        pf = vPF + 2 * (n & 1)
        for qd in range(4):
            r = vVT + 8 * g + 2 * qd
            A(f"v_mfma_f32_4x4x4_16b_bf16 v[{vACC+4*qd}:{vACC+4*qd+3}], v[{pf}:{pf+1}], v[{r}:{r+1}], " +
              ("0" if n == 0 and g == 0 else f"v[{vACC+4*qd}:{vACC+4*qd+3}]") + f" cbsz:4 abid:{4*g}")

    def pv(n):
        for g in range(4):
            pvg(n, g)

    def c_lwrite():
        A("; wave (max, sum) -> LDS")
        A(f"v_add_f32 v{vT+2}, v{vLS}, v{vLS+1}")
        allreduce("v_add_f32", [vT + 2], vT + 4, [16, 32])
        A(f"v_mov_b32 v{vT}, v{vMS}")
        A(f"v_mov_b32 v{vT+1}, 0x{LFLAG:x}")
        A(f"v_mov_b32 v{vT+3}, 0x{LFLAG:x}")
        A(f"s_lshl_b32 {sT[0]}, {sW}, 5")
        A(f"s_add_u32 {sT[0]}, {sT[0]}, {LML}")
        A(f"v_lshlrev_b32 v{vT+4}, 4, {vL}")
        A(f"v_add_u32 v{vT+4}, {sT[0]}, v{vT+4}")
        A("s_mov_b64 exec, 3")
        A(f"ds_write_b128 v{vT+4}, v[{vT}:{vT+3}]")
        A("s_mov_b64 exec, -1")

    def c_mlpub():
        A("; wave 0: workgroup (max, sum) -> d_ws")
        A(f"s_cmp_eq_u32 {sW}, 0")
        A("s_cbranch_scc0 L_nopub")
        A(f"v_and_b32 v{vT+4}, 7, {vL}")
        A(f"v_lshlrev_b32 v{vT+4}, 4, v{vT+4}")
        A(f"v_add_u32 v{vT+4}, {LML}, v{vT+4}")
        A(f"s_mov_b32 {sT[0]}, {spin*4}")
        A("L_lml:")
        A(f"ds_read_b128 v[{vT}:{vT+3}], v{vT+4}")
        A("s_waitcnt lgkmcnt(0)")
        A(f"v_and_b32 v{vT+5}, v{vT+1}, v{vT+3}")
        A(f"v_cmp_ne_u32 vcc, 0x{LFLAG:x}, v{vT+5}")
        A("s_cbranch_vccz L_lmlok")
        A(f"s_sub_u32 {sT[0]}, {sT[0]}, 1")
        A("s_cbranch_scc0 L_lml")
        A("L_lmlok:")
        A(f"v_mov_b32 v{vT+5}, v{vT}")
        allreduce("v_max_f32", [vT + 5], vT + 6, [2, 4])
        A(f"v_sub_f32 v{vT}, v{vT}, v{vT+5}")
        A(f"v_exp_f32 v{vT}, v{vT}")
        A("s_nop 0")
        A(f"v_mul_f32 v{vT+2}, v{vT+2}, v{vT}")
        allreduce("v_add_f32", [vT + 2], vT + 6, [2, 4])
        A(f"v_mov_b32 v{vT}, v{vT+5}")
        A(f"v_mov_b32 v{vT+1}, {sTAG}")
        A(f"v_xor_b32 v{vT+3}, {sXCC}, v{vT+1}")
        A(f"s_lshl_b32 {sT[0]}, {sH}, 10")
        A(f"s_lshl_b32 {sT[1]}, {sP}, 5")
        A(f"s_add_u32 {sT[0]}, {sT[0]}, {sT[1]}")
        A(f"s_add_u32 {sT[0]}, {sT[0]}, {WS_ML}")
        A(f"v_lshlrev_b32 v{vT+4}, 4, {vL}")
        A("s_mov_b64 exec, 3")
        A(f"buffer_store_dwordx4 v[{vT}:{vT+3}], v{vT+4}, {SRD_WS}, {sT[0]} offen sc1")
        A("s_mov_b64 exec, -1")
        A("L_nopub:")

    def c_mlpoll():
        A("; fetch the 32 (max, sum) records of this head")
        A(f"s_lshl_b32 {sT[8]}, {sH}, 10")
        A(f"s_add_u32 {sT[8]}, {sT[8]}, {WS_ML}")
        A(f"v_lshlrev_b32 v{vT+8}, 4, {vL}")
        st["ml"] = VM(f"buffer_load_dwordx4 v[{vT+12}:{vT+15}], v{vT+8}, {SRD_WS}, {sT[8]} offen sc1")

    def c_mlcheck():
        A("; head-wide max; same-die check")
        G = vT + 12
        wait_vm(st["ml"])
        A(f"s_mov_b32 {sT[0]}, {spin}")
        A("L_mlchk:")
        A(f"v_xor_b32 v{vT+9}, {sTAG}, v{G+1}")
        A(f"v_xor_b32 v{vT+10}, {sTAG}, v{G+3}")
        A(f"v_and_or_b32 v{vT+9}, v{vT+10}, -16, v{vT+9}")
        A(f"v_cmp_ne_u32 vcc, 0, v{vT+9}")
        A("s_cbranch_vccz L_mlok")
        A(f"s_sub_u32 {sT[0]}, {sT[0]}, 1")
        A("s_cbranch_scc1 L_mlok")
        A(f"buffer_load_dwordx4 v[{G}:{G+3}], v{vT+8}, {SRD_WS}, {sT[8]} offen sc1")
        A("s_waitcnt vmcnt(0)")
        A("s_branch L_mlchk")
        A("L_mlok:")
        st["mlok"] = True
        A(f"v_cmp_ne_u32 vcc, {sXCC}, v{vT+10}")
        A("s_cmp_eq_u64 vcc, 0")
        A(f"s_cselect_b32 {sLOC}, {1 if local else 0}, 0")
        A(f"v_mov_b32 v{vT+9}, v{G}")
        allreduce("v_max_f32", [vT + 9], vT + 10, [2, 4, 8, 16, 32])

    def c_mlscale():
        A("; head-wide sum -> global exponent offset")
        G = vT + 12
        A(f"v_sub_f32 v{G}, v{G}, v{vT+9}")
        A(f"v_exp_f32 v{G}, v{G}")
        A("s_nop 0")
        A(f"v_mul_f32 v{G+2}, v{G+2}, v{G}")
        allreduce("v_add_f32", [G + 2], vT + 10, [2, 4, 8, 16, 32])
        A(f"v_log_f32 v{G+2}, v{G+2}")
        A("s_nop 0")
        A(f"v_add_f32 v{vT+9}, v{vT+9}, v{G+2}")
        A(f"v_sub_f32 v{vT+10}, v{vMS}, v{vT+9}")
        A(f"v_exp_f32 v{vT+10}, v{vT+10}")

    def c_rescale():
        A("; move the accumulators to the global normalisation")
        A(f"v_mov_b32 v{vMS}, v{vT+9}")
        A("s_nop 0")
        A(f"v_mov_b32_dpp v{vT+2}, v{vT+10} quad_perm:[0,0,0,0] row_mask:0xf bank_mask:0xf")
        A(f"v_mov_b32_dpp v{vT+3}, v{vT+10} quad_perm:[1,1,1,1] row_mask:0xf bank_mask:0xf")
        A("s_nop 4")
        for t in range(4):
            A(f"v_pk_mul_f32 v[{vACC+4*t}:{vACC+4*t+1}], v[{vACC+4*t}:{vACC+4*t+1}], v[{vT+2}:{vT+3}]")

    vWO, vW2 = vSC + 4, vSC + 36

    def issue_weights():
        A("; waves 2,3: wo / w2 rows")
        assert st["pdone"] >= 12 and st.get("tail1")
        if skipw:
            A(f"s_cmp_lt_u32 {sW}, 2")
            A("s_cbranch_scc1 L_skipw")
        for i in range(16):
            hd, k = divmod(i, 8)
            if i % 4 == 0 and i:
                A(f"s_add_u32 {sT[0]}, {sT[0]}, {(252 if i == 8 else 4)*896}")
            r = vWO + 4 * k + 2 * hd
            VM(f"buffer_load_dwordx2 v[{r}:{r+1}], v{vT+16}, {SRD_WO}, {sT[0]} offen offset:{(i%4)*896} {wflags}")
        if w2at is None:
            for i in range(8):
                if i % 4 == 0 and i:
                    A(f"s_add_u32 {sT[1]}, {sT[1]}, {4*896}")
                st["w"] = VM(f"buffer_load_dwordx2 v[{vW2+2*i}:{vW2+2*i+1}], v{vT+16}, {SRD_W2}, {sT[1]} offen offset:{(i%4)*896} {wflags}")
        if skipw:
            A("L_skipw:")
            vm["opt"] = 24 if w2at is None else 16
            vm["optend"] = vm["n"]

    E2 = 144

    def c_w2issue():
        A(f"v_subrev_u32 v{vT}, 128, v0")
        A(f"v_cmp_gt_u32 vcc, 112, v{vT}")
        A(f"v_lshlrev_b32 v{vT+1}, 3, v{vT}")
        A(f"v_bfrev_b32 v{vT+2}, 2")
        A(f"s_mul_i32 {sT[1]}, {sF}, {8*896}")
        A(f"v_cndmask_b32 v11, v{vT+2}, v{vT+1}, vcc")
        for i in range(8):
            if i == 4:
                A(f"s_add_u32 {sT[1]}, {sT[1]}, {4*896}")
            st["w2"] = VM(f"buffer_load_dwordx2 v[{E2+2*i}:{E2+2*i+1}], v11, {SRD_W2}, {sT[1]} offen offset:{(i%4)*896} {wflags}")

    def c_w2use():
        wait_vm(st["w2"])
        A(f"s_mov_b32 {sT[6]}, 0x05040100")
        A(f"s_mov_b32 {sT[7]}, 0x07060302")
        for k in range(4):
            for cp in range(2):
                A(f"v_perm_b32 v{80+4*k+2*cp}, v{E2+4*k+2+cp}, v{E2+4*k+cp}, {sT[6]}")
                A(f"v_perm_b32 v{80+4*k+2*cp+1}, v{E2+4*k+2+cp}, v{E2+4*k+cp}, {sT[7]}")
        for c in range(4):
            A(f"v_mov_b32 v{E2+2*c}, 0")
            A(f"v_mov_b32 v{E2+2*c+1}, {sTAG}")
        A("s_cmp_lt_u32 s2, 224")
        A("s_cbranch_scc0 L_now2")
        for k in range(4):
            for c in range(4):
                A(f"v_dot2_f32_bf16 v{E2+2*c}, v{vH+2*k}, v{80+4*k+c}, v{E2+2*c}")
        A("L_now2:")

    def issue_wdma(k):
        assert st.get("mlok")
        if k == 0:
            A(f"v_lshlrev_b32 v{vMAX}, 4, {vL}")
            A(f"s_lshl_b32 s10, {sH}, 5")
            A(f"s_add_u32 s10, s10, {sP}")
            A(f"s_mul_i32 s10, s10, {16*896}")
            A(f"s_mul_i32 s11, {sF}, {8*896}")
        wo = k < 4
        A(f"s_add_u32 s12, {sW}, {4*k if wo else 4*(k-4)}")
        A(f"s_min_u32 s12, s12, {13 if wo else 6}")
        A("s_lshl_b32 s12, s12, 10")
        A(f"s_add_u32 m0, s12, {STG if wo else STG + 14336}")
        A(f"s_add_u32 s12, s12, {'s10' if wo else 's11'}")
        idx = VM(f"buffer_load_dwordx4 v{vMAX}, {SRD_WO if wo else SRD_W2}, s12 offen {wflags} lds")
        m0bad["v"] = True
        st["w"] = idx
        return idx

    MO = ((2 * S) % R) * tb
    vMW, vMR, vO1, vH1, vH2, vXR, vOO = 6, 8, vT + 4, vT + 5, vT + 6, vT + 7, vT + 11
    sH2 = [f"s{4+k}" for k in range(16)]
    sP1, sP2, sCONS = "s68", "s69", "s70"

    def c_tail1():
        A("; addresses for the end phase")
        st["tail1"] = True
        A(f"s_add_u32 {sT[2]}, {sRING}, {MO}")
        A(f"v_lshlrev_b32 v{vMW}, 4, {vL}")
        A(f"v_add_u32 v{vMW}, {sT[2]}, v{vMW}")
        A(f"v_lshlrev_b32 v{vMR}, 4, {vL}")
        A(f"v_add_u32 v{vMR}, {MO}, v{vMR}")
        A(f"v_add_u32 v{vMR+1}, {2*R*tb}, v{vMR}")
        A(f"s_lshl_b32 {sP1}, {sH}, 5")
        A(f"s_add_u32 {sP1}, {sP1}, {sP}")
        A(f"s_lshl_b32 {sT[0]}, {sH}, 6")
        A(f"s_add_u32 {sT[0]}, {sT[0]}, {sP}")
        A(f"s_mul_i32 {sT[0]}, {sT[0]}, {8*896}")
        A(f"s_mul_i32 {sT[1]}, {sF}, {8*896}")
        A(f"s_lshl_b32 {sP1}, {sP1}, 12")
        A(f"s_add_u32 {sP1}, {sP1}, {WS_P1O}")
        A(f"v_lshlrev_b32 v{vO1}, 4, {vL}")
        for k in range(1, 16, 2):
            A(f"v_mov_b32 v{64+k}, {sTAG}")
        A(f"v_subrev_u32 v{vT}, 128, v0")
        A(f"v_cmp_gt_u32 vcc, 112, v{vT}")
        A(f"v_lshlrev_b32 v{vT+1}, 3, v{vT}")
        if reuse:
            A(f"v_lshrrev_b32 v{vOO}, 3, v{vT}")
            A(f"v_and_b32 v{vT+2}, 7, v{vT}")
            A(f"v_lshlrev_b32 v{vT+2}, 4, v{vT+2}")
            A(f"v_lshl_add_u32 v{vOO}, v{vOO}, 12, v{vT+2}")
            A(f"s_add_u32 s71, {sTAG}, 2")
        else:
            A(f"v_lshlrev_b32 v{vOO}, 4, v{vT}")
        A(f"v_bfrev_b32 v{vT+2}, 2")
        A(f"v_cndmask_b32 v{vT+16}, v{vT+2}, v{vT+1}, vcc")
        A(f"v_cndmask_b32 v{vOO}, v{vT+2}, v{vOO}, vcc")

    def c_tail2():
        A(f"v_lshrrev_b32 v{vT}, 3, {vL}")
        A(f"v_and_b32 v{vT+1}, 7, {vL}")
        A(f"v_lshlrev_b32 v{vT+1}, 4, v{vT+1}")
        A(f"v_lshl_add_u32 v{vH1}, v{vT}, 12, v{vT+1}")
        A(f"s_lshl_b32 {sT[2]}, {sH}, 17")
        A(f"s_lshl_b32 {sT[3]}, {sP}, 7")
        A(f"s_add_u32 {sT[2]}, {sT[2]}, {sT[3]}")
        A(f"s_add_u32 {sT[2]}, {sT[2]}, {WS_P1O}")
        for k in range(1, 4):
            A(f"s_add_u32 {sT[2+k]}, {sT[2]}, {k*32768}")
        A(f"s_lshl_b32 {sP2}, {sH}, 5")
        A(f"s_add_u32 {sP2}, {sP2}, {sP}")
        A(f"s_mul_i32 {sP2}, {sP2}, 3584")
        A(f"s_add_u32 {sP2}, {sP2}, {WS_P2}")
        if reuse:
            A(f"s_add_u32 {sP2}, {sT[2]}, {14*4096}")
        A(f"v_mul_u32_u24 v{vT}, 3584, v{vT}")
        A(f"v_add_u32 v{vH2}, v{vT}, v{vT+1}")
        A(f"s_min_u32 {sT[6]}, {sP}, 27")
        A(f"s_lshl_b32 {sT[7]}, {sT[6]}, 7")
        A(f"s_mul_i32 {sH2[0]}, {sH}, {32*3584}")
        A(f"s_add_u32 {sH2[0]}, {sH2[0]}, {sT[7]}")
        A(f"s_add_u32 {sH2[0]}, {sH2[0]}, {WS_P2}")
        for k in range(1, 4):
            A(f"s_add_u32 {sH2[k]}, {sH2[0]}, {k*8*3584}")
        if reuse:
            for k in range(4):
                A(f"s_add_u32 {sH2[k]}, {sP1}, {k*1024}")
        A(f"s_lshl_b32 {sH2[4]}, {sT[6]}, 3")
        A(f"s_add_u32 {sH2[4]}, {sH2[4]}, {sH}")
        A(f"s_lshl_b32 {sH2[4]}, {sH2[4]}, 7")
        A(f"s_add_u32 {sH2[4]}, {sH2[4]}, {WS_P3}")
        A(f"s_sub_u32 {sT[6]}, s2, 224")
        A(f"s_cmp_lt_u32 {sT[6]}, 28")
        A(f"s_cselect_b32 {sCONS}, 1, 0")
        A(f"s_cselect_b32 {sT[6]}, {sT[6]}, 0")
        A(f"s_lshl_b32 {sH2[5]}, {sT[6]}, 10")
        A(f"s_add_u32 {sH2[5]}, {sH2[5]}, {WS_P3}")
        A(f"s_cmp_ge_u32 {sT[6]}, 14")
        A(f"s_cselect_b32 {sT[8]}, {4 - 14*64}, 0")
        A(f"s_lshl_b32 {sT[6]}, {sT[6]}, 6")
        A(f"s_add_u32 {sT[6]}, {sT[6]}, {sT[8]}")
        A(f"v_lshrrev_b32 v{vT+1}, 1, v{vT+1}")
        A(f"v_add_u32 v{vT+17}, {sT[6]}, v{vT+1}")
        if pre1 is not None or pre2 is not None:
            A(f"s_lshl_b32 {sT[8]}, {sW}, 10")
            A(f"v_lshlrev_b32 v{vT}, 4, v0")
        if pre1 is not None:
            A(f"s_lshl_b32 {sT[7]}, {sW}, 11")
            A(f"s_sub_u32 {sT[7]}, {sP1}, {sT[7]}")
            if pre1.startswith("ld"):
                VM(f"buffer_load_dwordx4 v[{vT+12}:{vT+15}], v{vT}, {SRD_WS}, {sT[7]} offen {pre1[2:]}")
            else:
                for k in range(4):
                    A(f"v_mov_b32 v{vT+12+k}, 0")
                A(f"v_not_b32 v{vT+13}, {sTAG}")
                A(f"v_not_b32 v{vT+15}, {sTAG}")
                VM(f"buffer_store_dwordx4 v[{vT+12}:{vT+15}], v{vT}, {SRD_WS}, {sT[7]} offen {pre1[2:]}")
        if pre2 is not None:
            VM(f"buffer_load_dwordx4 v[{vT+12}:{vT+15}], v{vT}, {SRD_WS}, {sP2} offen {pre2[2:]}")

    PW, PW2, Y = vSC, vSC + 32, (vSC + 48 if w2at is None else E2)

    def c_wprep():
        assert st["pdone"] >= 13
        if wdma or wlate:
            if wlate:
                A("s_waitcnt vmcnt(4)")
                A("s_barrier")
            else:
                assert lateprep and st["w"] <= vm["known"]
            A(f"v_subrev_u32 v{vT+16}, 128, v0")
            A(f"v_min_u32 v{vT+16}, 111, v{vT+16}")
            A(f"v_lshlrev_b32 v{vT+16}, 3, v{vT+16}")
            A(f"v_add_u32 v{vT+16}, {STG}, v{vT+16}")
            for i in range(24):
                A(f"ds_read_b64 v[{vWO+2*i}:{vWO+2*i+1}], v{vT+16} offset:{i*896}")
            A("s_waitcnt lgkmcnt(0)")
        elif lateprep:
            A("s_waitcnt vmcnt(4)")
        else:
            wait_vm(st["w"])
            A(f"s_cmp_lt_u32 {sW}, 2")
            A("s_cbranch_scc1 L_noprep")
        A(f"s_mov_b32 {sT[6]}, 0x05040100")
        A(f"s_mov_b32 {sT[7]}, 0x07060302")
        for k in range(12 if w2at is None else 8):
            for cp in range(2):
                A(f"v_perm_b32 v{PW+4*k+2*cp}, v{vWO+4*k+2+cp}, v{vWO+4*k+cp}, {sT[6]}")
                A(f"v_perm_b32 v{PW+4*k+2*cp+1}, v{vWO+4*k+2+cp}, v{vWO+4*k+cp}, {sT[7]}")
        if w2at is not None:
            return
        for c in range(4):
            A(f"v_mov_b32 v{Y+2*c}, 0")
            A(f"v_mov_b32 v{Y+2*c+1}, {'s71' if reuse else sTAG}")
        A("s_cmp_lt_u32 s2, 224")
        A("s_cbranch_scc0 L_noprep")
        for k in range(4):
            for c in range(4):
                A(f"v_dot2_f32_bf16 v{Y+2*c}, v{vH+2*k}, v{PW2+4*k+c}, v{Y+2*c}")
        A("L_noprep:")

    def do_touch():
        A("; bring the inbox lines of the final hand-offs into L2")
        A(f"s_lshl_b32 {sT[8]}, {sW}, 15")
        A(f"s_add_u32 {sT[8]}, {sT[8]}, {sT[2]}")
        if touch == "sc1":
            VM(f"buffer_load_dword v{vT+12}, v{vH1}, {SRD_WS}, {sT[8]} offen sc1")
        elif touch == "one":
            VM(f"buffer_load_dword v{vT+12}, off, {SRD_WS}, {sT[2]} sc1")
        else:
            A(f"s_cmp_eq_u32 {sLOC}, 1")
            A("s_cbranch_scc0 L_tfar")
            A(f"buffer_load_dword v{vT+12}, v{vH1}, {SRD_WS}, {sT[8]} offen")
            A("s_branch L_tdone")
            A("L_tfar:")
            VM(f"buffer_load_dword v{vT+12}, v{vH1}, {SRD_WS}, {sT[8]} offen sc1")
            A("L_tdone:")
        if touch2 and not reuse:
            A(f"s_mul_i32 {sT[8]}, {sW}, {8*3584}")
            A(f"s_add_u32 {sT[8]}, {sT[8]}, {sH2[0]}")
            VM(f"buffer_load_dword v{vT+13}, v{vH2}, {SRD_WS}, {sT[8]} offen sc1")

    def do_wtlb():
        VM(f"buffer_load_dword v{vT+14}, off, {SRD_WO}, {sT[0]} nt")
        VM(f"buffer_load_dword v{vT+15}, off, {SRD_W2}, {sT[1]} nt")

    def c_rkprobe(c):
        A(f"s_cmp_eq_u32 {sW}, {rkw}")
        A(f"s_cbranch_scc0 L_rkp{c}")
        A(f"s_lshl_b32 s18, {sH}, 7")
        A(f"s_add_u32 s18, s18, {WS_RK + c*1024}")
        A(f"s_lshl_b32 s19, {sP}, 2")
        A(f"s_add_u32 s19, s19, s18")
        A(f"v_lshlrev_b32 v{vT+18}, 2, {vL}")
        A(f"v_mov_b32 v{vT+19}, {sTAG}")
        A("s_mov_b32 exec_hi, 0")
        A(f"buffer_load_dword v255, v{vT+18}, {SRD_WS}, s18 offen sc1")
        A("s_mov_b32 exec_lo, 1")
        A(f"buffer_store_dword v{vT+19}, off, {SRD_WS}, s19")
        A("s_mov_b64 exec, -1")
        A(f"L_rkp{c}:")
        st["rk_n"] = vm["n"]

    def c_rkdecide(c, L, k=None):
        _, hi, gh, lo, gl = ctl[c]
        if k is None:
            A(f"s_cmp_eq_u32 {sW}, {rkw}")
            A(f"s_cbranch_scc0 L_rkd{c}")
            A(f"v_cmp_eq_u32 vcc, {sTAG}, v255")
            A("s_bcnt1_i32_b32 s18, vcc_lo")
        else:
            A(f"s_cmp_eq_u32 s14, {k}")
            c = f"{c}_{k}"
            A(f"s_cbranch_scc0 L_rkd{c}")
        A(f"s_sub_u32 {sWE}, s18, {hi}")
        A(f"s_mul_i32 {sWE}, {sWE}, {gh}")
        A(f"s_add_u32 {sWE}, {sWE}, {L + 5}")
        A(f"s_cmp_gt_u32 s18, {hi}")
        A(f"s_cselect_b32 {sWE}, {sWE}, 0")
        if N2:
            A(f"s_sub_u32 {sNE}, s18, {lo}")
            A(f"s_mul_i32 {sNE}, {sNE}, {gl}")
            A(f"s_add_u32 {sNE}, {sNE}, {L + 5}")
            A(f"s_cmp_gt_u32 s18, {lo}")
            A(f"s_cselect_b32 {sNE}, {sNE}, 0")
        elif lo:
            A(f"s_min_u32 {sNE}, s18, {lo}")
            A(f"s_sub_u32 {sNE}, {lo}, {sNE}")
            A(f"s_mul_i32 {sNE}, {sNE}, {gl}")
            A(f"s_add_u32 {sNE}, {sNE}, {L + 5}")
            A(f"s_cmp_lt_u32 s18, {lo}")
            A(f"s_cselect_b32 {sNE}, {sNE}, 0")
        else:
            A(f"s_mov_b32 {sNE}, 0")
        A(f"v_mov_b32 v{vT+18}, {sWE}")
        A(f"v_mov_b32 v{vT+19}, {sNE}")
        A(f"ds_write_b64 v254, v[{vT+18}:{vT+19}]")
        A(f"L_rkd{c}:")
        st["rk_on"] = True

    def c_last():
        A("; last V tile, four keys at a time")
        slot = ((2 * S - 1) % R) * tb
        tile_stamp_a()
        for g in range(4):
            wait_vm(lidx[NL - T + 2 * g + 1])
            read_vg(slot, g)
            if g:
                A("s_waitcnt lgkmcnt(4)")
                pvg(S - 1, g - 1)
        A("s_waitcnt lgkmcnt(0)")
        pvg(S - 1, 3)
        if stamps:
            lds_wait(True)
        stamp()
        A("s_nop 1")
        A("s_nop 0")
        for hf in range(2):
            r = vACC + 8 * hf
            A(f"ds_write2_b64 v{vMW}, v[{r}:{r+1}], v[{r+4}:{r+5}] offset0:{128*hf} offset1:{128*hf+1}")
            if hf == 0:
                A("s_nop 0")

    chunks = []
    C = lambda fn, need=None, free=None: chunks.append((need, free, fn))
    backlog = list(range(NB))
    for n in range(S):
        slot = (n % R) * tb
        if n < NB:
            C(lambda n=n, slot=slot: read_k(32 * n, slot, True), need=n)
            C(lambda: lds_wait(True), free=n)
            if n == NP:
                C(c_qpoll)
            if n == NB - 1:
                C(c_qcheck)
                C(c_qread)
        else:
            C(lambda slot=slot: read_k(vTL, slot), need=n)
            C(lambda: (lds_wait(True), qk_mfma(vTL, False)), free=n)
            C(lambda n=n: qk_post(vSC + 4 * n))
            for _ in range(2):
                if backlog:
                    m = backlog.pop(0)
                    C(lambda m=m: qk_mfma(32 * m, True))
                    C(lambda m=m: qk_post(vSC + 4 * m))
    assert not backlog
    C(c_kmax)
    lq = list(range(S))
    assert vgat % 2 == 1 and vpub % 2 == 1
    for n in range(S):
        j = S + n
        slot = (j % R) * tb
        if n == vgat + 3:
            C(c_rescale)
        if n == S - 2:
            C(lambda: make_p(S - 2))
            C(lambda: make_p(S - 1))
            if not lateprep:
                C(c_wprep)
        elif n < S - 2:
            C(lambda n=n: make_p(n))
        if n < S - 1:
            C(lambda slot=slot, n=n: read_v(slot, n & 1), need=j)
        if tat == j:
            C(do_touch)
        if wat == j:
            C(issue_weights)
        if n == S - 1:
            C(c_last, need="issued")
        else:
            C(lambda n=n: (lds_wait(True), pv(n)), free=j)
        for _ in range(3 if n % 2 == 0 else 2):
            if lq:
                m0, m1 = lq.pop(0), lq.pop(0)
                C(lambda m0=m0, m1=m1: (lsum(vSC + 4 * m0), lsum(vSC + 4 * m1)))
                if not lq:
                    C(c_lwrite)
        if w2at == j:
            C(c_w2issue)
        if w2at is not None and w2at + 2 == j:
            C(c_w2use)
        if n == vpub:
            assert not lq
            C(c_mlpub)
        if n == vgat:
            C(c_mlpoll)
        if n == vgat + 1:
            C(c_mlcheck)
            C(c_mlscale)
        if n == vgat + 3:
            C(c_tail1)
            C(c_tail2)

    freed = set()

    def emit_chunk(q, block):
        need, free, fn = q[0]
        if need == "issued":
            if not block:
                return False
        elif need is not None:
            last = need * T + T - 1
            if last not in lidx:
                assert not block
                return False
            if lidx[last] > vm["known"]:
                if not block:
                    return False
                wait_vm(lidx[last])
        q.pop(0)
        fn()
        if free is not None:
            freed.add(free)
        return True

    def tagfix():
        A("s_waitcnt lgkmcnt(0)")
        mk_tag(f"{sTAG}")

    def stream(L0, L1, win, q, paced):
        for L in range(L0, L1):
            j, i = divmod(L, T)
            st["L"] = L
            Nw = win(L)
            if ext and X * T <= L < ext[0] and Nw < ext[1]:
                wait_vm(paced[-ext[1]])
                A(f"s_cmp_lt_u32 {sZ}, 92")
                A(f"s_cbranch_scc1 L_x{L}")
                A(f"s_waitcnt vmcnt({vm['n'] - paced[-Nw]})")
                A(f"L_x{L}:")
            elif st.get("rk_on") and Nw <= N + 1:
                if N2:
                    wait_vm(paced[-(Nw + N2 - N)])
                    A(f"s_cmp_gt_u32 {sNE}, {L}")
                    A(f"s_cbranch_scc1 L_x{L}")
                    A(f"s_waitcnt vmcnt({vm['n'] - paced[-(Nw + Nhi - N)]})")
                else:
                    wait_vm(paced[-(Nw + Nhi - N)])
                A(f"s_cmp_gt_u32 {sWE}, {L}")
                A(f"s_cbranch_scc1 L_x{L}")
                A(f"s_waitcnt vmcnt({vm['n'] - paced[-Nw]})")
                if not N2 and (any(r[3] for r in ctl) or (iw and iw[2])):
                    A(f"s_cmp_gt_u32 {sNE}, {L}")
                    A(f"s_cbranch_scc0 L_x{L}")
                    A(f"s_waitcnt vmcnt({vm['n'] - paced[-Nlo]})")
                A(f"L_x{L}:")
            elif len(paced) >= Nw:
                wait_vm(paced[-Nw])
            if L == NL - tail - T:
                st["rk_off"] = True
            if i == 0 and j >= R:
                while (j - R) not in freed:
                    emit_chunk(q, True)
            issue_load(L)
            paced.append(lidx[L])
            if iw and "tc" in st and not st.get("rk_off") and not st.get("rk_rd"):
                A(f"v_mov_b32 v{vPD}, {L}")
                A(f"ds_write_b32 v{vPW}, v{vPD}")
                st["iw_last"] = L
            if L == NL - 1 - tpos and touch is not None and tat is None:
                do_touch()
                if wtlb:
                    do_wtlb()
            if L == NL - 1 - wpos and not now and not wearly and not wafter and wat is None and not wdma and wlate is None:
                issue_weights()
            if wdma and L >= wdma[0] and (L - wdma[0]) % wdma[1] == 0 and (L - wdma[0]) // wdma[1] < 6:
                if wdma[2]:
                    wait_vm(paced[-Nw])
                    paced.append(issue_wdma((L - wdma[0]) // wdma[1]))
                else:
                    issue_wdma((L - wdma[0]) // wdma[1])
            did = False
            for c, r_ in enumerate(rk):
                if L == r_[0] and not st.get("rk_rd"):
                    c_rkprobe(c)
                    st["rk_pend"] = c
                    did = True
                elif L == r_[0]:
                    raise AssertionError("probe between a tile read and its wait")
            if st.get("rk_pend") is not None and vm["known"] > st["rk_n"] and not st.get("rk_rd") and not did:
                c_rkdecide(st["rk_pend"], L)
                st["rk_pend"] = None
                did = True
            if q and not did and (L < NL - tail or Nend <= N + 2):
                emit_chunk(q, False)

    def win_main(L):
        Nw = Nend if L >= NL - tail else N
        if kopen and NL // 2 - kopen[0] <= L < NL // 2:
            Nw = kopen[1]
        for b_ in bump:
            if b_[0] <= L < b_[1]:
                Nw = b_[2]
        if alt and Nw == N and (L // alt[1]) % alt[2] == (alt[3] if len(alt) > 3 else 0):
            Nw = alt[0]
        return Nw

    split = next(k for k, ch in enumerate(chunks) if ch[0] == X - 1)
    head_chunks, rest = chunks[:split], chunks[split:]
    assert X - 1 <= NP
    ends = []
    for path in ("n", "p"):
        vm.update(n=0, known=0)
        lidx.clear()
        freed.clear()
        paced = []
        stg = {"i": 0}

        def issue_stg():
            i = stg["i"]
            if rot:
                if i == 0:
                    A(f"s_mul_i32 {sT[3]}, {sZ}, 4682")
                    A(f"s_lshr_b32 {sT[3]}, {sT[3]}, 16")
                    A(f"s_mul_i32 {sT[3]}, {sT[3]}, 14")
                    A(f"s_sub_u32 {sT[3]}, {sZ}, {sT[3]}")
                else:
                    A(f"s_add_u32 {sT[3]}, {sT[3]}, 1")
                    A(f"s_cmp_eq_u32 {sT[3]}, 14")
                    A(f"s_cselect_b32 {sT[3]}, 0, {sT[3]}")
                A(f"s_lshl_b32 {sT[9]}, {sT[3]}, 10")
                A(f"s_add_u32 m0, {sT[6]}, {sT[9]}")
                A(f"s_mul_i32 {sT[9]}, {sT[3]}, {sT[4]}")
                A(f"s_add_u32 {sT[9]}, {sT[9]}, {sT[5]}")
                st["stg"] = VM(f"buffer_load_dwordx4 v21, {SRD_W}, {sT[9]} offen {wflags} lds")
            else:
                A(f"s_add_u32 m0, {sT[6]}, {i*1024}")
                if i:
                    A(f"s_add_u32 {sT[5]}, {sT[5]}, {sT[4]}")
                else:
                    A("s_nop 0")
                st["stg"] = VM(f"buffer_load_dwordx4 v21, {SRD_W}, {sT[5]} offen {wflags} lds")
            paced.append(st["stg"])
            stg["i"] += 1
            m0bad["v"] = True
        if path == "n":
            common0()
            A("s_waitcnt lgkmcnt(0)")
            if diag == 6:
                A("s_memrealtime s[86:87]")
            for L in range(N0):
                issue_load(L)
                paced.append(lidx[L])
            srd(52, 4, 896)
            common1()
            setup()
            if wearly:
                issue_weights()
            if ra:
                A(f"s_lshl_b32 {sT[2]}, s2, 2")
                A(f"s_add_u32 {sT[2]}, {sT[2]}, {sW}")
                A(f"s_cmp_eq_u32 {sT[2]}, 1023")
                A("s_cbranch_scc0 L_noclear")
                A(f"v_mul_u32_u24 v29, 4352, {vL}")
                A("v_mov_b32 v30, 0")
                A(f"s_mov_b32 {sT[2]}, {WS_CNT}")
                A(f"buffer_store_dword v30, v29, {SRD_WS}, {sT[2]} offen sc0 sc1")
                if len(ra) * ng > 64:
                    A(f"s_add_u32 {sT[2]}, {sT[2]}, {64*4352}")
                    A(f"buffer_store_dword v30, v29, {SRD_WS}, {sT[2]} offen sc0 sc1")
                A("s_waitcnt vmcnt(0) lgkmcnt(0)")
                mk_tag(f"{sT[2]}")
                A(f"v_mov_b32 v30, {sT[2]}")
                A(f"s_mov_b32 {sT[2]}, {WS_RDY}")
                A("s_mov_b64 exec, 1")
                A(f"buffer_store_dword v30, off, {SRD_WS}, {sT[2]} sc1")
                A("s_mov_b64 exec, -1")
                A("L_noclear:")
            if diag == 5:
                A(f"s_waitcnt vmcnt({N0-1})")
                A("s_memrealtime s[86:87]")
            q = list(head_chunks) + [(None, None, tagfix)]
            stream(N0, X * T, (lambda L: nn[1] if nn and L < nn[0] else win_main(L)), q, paced)
        else:
            A("; ---- workgroups 0..91: stage 448 x 64 weights, layer norm, publish q / h, then catch up")
            A("L_producer:")
            common0()
            producer0()
            st["x"] = VM(f"buffer_load_dwordx4 v[{vT}:{vT+3}], v29, {SRD_X}, 0 offen")
            A(f"s_mov_b32 m0, {sT[6]}")
            A("L_stg:")
            A(f"s_sub_u32 {sT[3]}, {sT[3]}, 1")
            A(f"buffer_load_dwordx4 v21, {SRD_W}, {sT[5]} offen {wflags} lds")
            A(f"s_add_u32 {sT[5]}, {sT[5]}, {sT[4]}")
            A("s_add_u32 m0, m0, 1024")
            A(f"s_cmp_lg_u32 {sT[3]}, 0")
            A("s_cbranch_scc1 L_stg")
            for _ in range(14):
                vm["n"] += 1
                st["stg"] = vm["n"]
                paced.append(vm["n"])
            for L in range(B0):
                issue_load(L)
                paced.append(lidx[L])
                if il and L % il == il - 1:
                    issue_stg()
            common1()
            setup()
            if wearly == 1:
                issue_weights()
            if not il:
                for fn in side_chunks[:4]:
                    fn()
                q = [(None, None, fn) for fn in side_chunks[4:]] + list(head_chunks) + [(None, None, tagfix)]
                stream(B0, X * T, lambda L: Np if L < Xp else N, q, paced)
            else:
                Ls = 14 * il
                q = [(None, None, fn) for fn in side_chunks[:5]] + list(head_chunks)
                for L in range(B0, Ls):
                    stream(L, L + 1, lambda L: Np, q, paced)
                    if L % il == il - 1:
                        if len(paced) >= Np:
                            wait_vm(paced[-Np])
                        issue_stg()
                w2 = Np2 or N
                L = Ls
                while st["stg"] > vm["known"]:
                    stream(L, L + 1, lambda L: w2, q, paced)
                    L += 1
                assert all(ch[2] not in side_chunks for ch in q)
                if q and q[0][1] is not None:
                    emit_chunk(q, True)
                q = [(None, None, fn) for fn in side_chunks[5:]] + ([(None, None, issue_weights)] if wearly == 2 else []) + q + [(None, None, tagfix)]
                stream(L, X * T, lambda L: w2 if L < Xp else N, q, paced)
        while q:
            emit_chunk(q, True)
        known_L = max([L for L in lidx if lidx[L] <= vm["known"]] + [-1])
        ends.append(({L: vm["n"] - lidx[L] for L in range(X * T - 16, X * T)}, known_L, set(freed)))
        if path == "n":
            A("s_branch L_join")
            for _ in range(dead // 4):
                A("s_nop 0")
    for _ in range(pad):
        A("s_nop 0")
    A("L_join:")
    if jit:
        A(f"s_lshl_b32 {sT[0]}, s2, 2")
        A(f"s_add_u32 {sT[0]}, {sT[0]}, {sW}")
        A(f"s_xor_b32 {sT[0]}, {sT[0]}, {sTAG}")
        A(f"s_mul_i32 {sT[0]}, {sT[0]}, 0x9E3779B1")
        A(f"s_lshr_b32 {sT[0]}, {sT[0]}, 26")
        A(f"s_cmp_lg_u32 {sT[0]}, 0")
        A("s_cbranch_scc1 L_nojit")
        for _ in range(jit):
            A("s_sleep 127")
        A("L_nojit:")
    if diag == 2:
        A("s_memrealtime s[86:87]")
    st["tc"] = X - 1
    if iw:
        assert not rk
        st["rk_on"] = True
    stamp(1)
    assert ends[0][0] == ends[1][0] and ends[0][2] == ends[1][2], ends
    vm["known"] = lidx[min(ends[0][1], ends[1][1])]
    stream(X * T, NL, win_main, rest, [lidx[L] for L in range(X * T - 16, X * T)])
    while rest:
        emit_chunk(rest, True)

    def gather4(lbl, base, voff, soffs, d0, d1, first_issued, slp, tg=sTAG):
        def loads(set_):
            for k in range(4):
                r = base + 16 * set_ + 4 * k
                A(f"buffer_load_dwordx4 v[{r}:{r+3}], v{voff}, {SRD_WS}, {soffs[k]} offen sc1")

        def sums(r):
            A(f"v_add_f32 v{d0}, v{r}, v{r+4}")
            A(f"v_add_f32 v{d1}, v{r+2}, v{r+6}")
            A(f"v_add_f32 v{r+8}, v{r+8}, v{r+12}")
            A(f"v_add_f32 v{r+10}, v{r+10}, v{r+14}")
            A(f"v_add_f32 v{d0}, v{d0}, v{r+8}")
            A(f"v_add_f32 v{d1}, v{d1}, v{r+10}")
        if not first_issued:
            loads(0)
        if dry == 1:
            A("s_mov_b64 exec, 0")
            A(f"s_branch L_{lbl}ok")
        if dry:
            A(f"L_{lbl}back:")
            A("s_mov_b64 exec, -1")
        A(f"L_{lbl}:")
        nset = 2 if pipe else 1
        for set_ in range(nset):
            r = base + 16 * set_
            if pipe:
                loads(1 - set_)
                A("s_waitcnt vmcnt(4)")
            else:
                A("s_waitcnt vmcnt(0)")
            tagcheck([r + 1 + 2 * i for i in range(8)], vT + 2, vT + 3, tg)
            if pipe:
                sums(r)
            A(f"s_cbranch_vccz L_{lbl}ok")
        A(f"s_sub_u32 {sT[9]}, {sT[9]}, 1")
        if pipe:
            A(f"s_cbranch_scc0 L_{lbl}")
        else:
            A(f"s_cbranch_scc1 L_{lbl}ok")
            if slp:
                A(f"s_sleep {slp}")
            loads(0)
            if dry > 1:
                A(f"s_cmp_eq_u32 {sT[9]}, {spin - dry}")
                A(f"s_cbranch_scc0 L_{lbl}")
                A("s_mov_b64 exec, 0")
            else:
                A(f"s_branch L_{lbl}")
        A(f"L_{lbl}ok:")
        if not pipe:
            sums(base)

    O4, G = 32, 64
    if diag == 4:
        A("s_memrealtime s[86:87]")
    A(f"s_cmp_eq_u32 {sW}, 1")
    A("s_waitcnt lgkmcnt(0)")
    A("s_barrier")
    A("s_cbranch_scc0 L_not1")
    for hf in range(2):
        for k, w in enumerate((0, 2, 3)):
            r = O4 + 12 * hf + 4 * k
            A(f"ds_read_b128 v[{r}:{r+3}], v{vMR+w//2} offset:{(w%2)*R*tb + hf*1024}")
    A(f"s_cmp_eq_u32 {sLOC}, 1")
    A("s_cbranch_scc0 L_far1")
    for far in (0, 1):
        if far:
            A("L_far1:")
        for qd in range(4):
            r = O4 + 12 * (qd >> 1) + 2 * (qd & 1)
            own = vACC + 4 * qd
            if qd % 2 == 0:
                A(f"s_waitcnt lgkmcnt({3 - 3*(qd >> 1)})")
            A(f"v_pk_add_f32 v[{r}:{r+1}], v[{r}:{r+1}], v[{own}:{own+1}]")
            A(f"v_pk_add_f32 v[{r+4}:{r+5}], v[{r+4}:{r+5}], v[{r+8}:{r+9}]")
            A(f"v_add_f32 v{G+4*qd}, v{r}, v{r+4}")
            A(f"v_add_f32 v{G+4*qd+2}, v{r+1}, v{r+5}")
            A(f"buffer_store_dwordx4 v[{G+4*qd}:{G+4*qd+3}], v{vO1}, {SRD_WS}, {sP1} offen offset:{qd*1024}" + (" sc1" if far else ""))
        if stamps:
            A("s_memrealtime s[94:95]")
        if wlate:
            A("s_waitcnt vmcnt(4)")
            A("s_barrier")
        A("s_branch L_leave")
    nstamp["n"] += 1 if stamps else 0
    A("L_not1:")
    A(f"s_cmp_ge_u32 {sW}, 2")
    A("s_cbranch_scc1 L_bwave")
    if wlate:
        A("s_waitcnt vmcnt(0)")
        A("s_barrier")
    A(f"s_mov_b32 {sT[9]}, {spin}")
    A(f"s_cmp_lt_u32 {sP}, 28")
    A("s_cbranch_scc0 L_final")

    A("; ---- wave 0, p < 28: sum one 16-column line over the 32 workgroups of this head, send it on")
    YG = 112
    if gateA:
        A("s_barrier")
    gather4("h2", YG, vO1 if reuse else vH2, sH2, G, G + 2, False, sleep2, "s71" if reuse else sTAG)
    if stamps:
        A("s_memrealtime s[96:97]")
    allreduce("v_add_f32", [G, G + 2], vT, [8, 16, 32])
    if dry:
        A("s_cbranch_execz L_h2back")
    A("s_mov_b64 exec, 0xff")
    A(f"buffer_store_dwordx4 v[{G}:{G+3}], v{vO1}, {SRD_WS}, {sH2[4]} offen {st3}")
    A("s_branch L_done" if stamps or diag == 7 else "s_endpgm")

    A("L_final:")
    A(f"s_cmp_eq_u32 {sCONS}, 1")
    A("s_cbranch_scc0 L_done")
    if dry:
        A("s_mov_b64 exec, 0")
        A("s_branch L_h3ok")
        A("L_h3back:")
        A("s_mov_b64 exec, -1")
    A(f"v_and_b32 v{vT+14}, 1, {vL}")
    A(f"v_mul_u32_u24 v{vT+14}, {WS_EP2}, v{vT+14}")
    A("s_barrier")
    A(f"buffer_load_dword v{vXR}, v{vT+17}, {SRD_X}, 0 offen")
    if outpf:
        A(f"buffer_load_dword v{vT+12}, v{vT+17}, {SRD_OUT}, 0 offen")
        if epfl != "sc1":
            A(f"buffer_load_dword v{vT+13}, v{vT+14}, {SRD_WS}, 0 offen")
    for d in range(depth3 - 1):
        A(f"buffer_load_dwordx4 v[{YG+4*d}:{YG+4*d+3}], v{vO1}, {SRD_WS}, {sH2[5]} offen {ld3}")
    A("L_h3:")
    for d in range(depth3):
        n = (d + depth3 - 1) % depth3
        A(f"buffer_load_dwordx4 v[{YG+4*n}:{YG+4*n+3}], v{vO1}, {SRD_WS}, {sH2[5]} offen {ld3}")
        A(f"s_waitcnt vmcnt({depth3 - 1})")
        A(f"v_mov_b32 v{G}, v{YG+4*d}")
        A(f"v_mov_b32 v{G+2}, v{YG+4*d+2}")
        tagcheck([YG + 4 * d + 1, YG + 4 * d + 3], vT, vT + 1)
        A("s_cbranch_vccz L_h3ok")
    A(f"s_sub_u32 {sT[9]}, {sT[9]}, 1")
    A("s_cbranch_scc0 L_h3")
    A("L_h3ok:")
    if stamps:
        A("s_memrealtime s[98:99]")
    allreduce("v_add_f32", [G, G + 2], vT, [8, 16, 32])
    A(f"v_lshlrev_b32 v{vT+2}, 16, v{vXR}")
    A(f"v_and_b32 v{vT+3}, 0xffff0000, v{vXR}")
    A(f"v_add_f32 v{G}, v{G}, v{vT+2}")
    A(f"v_add_f32 v{G+2}, v{G+2}, v{vT+3}")
    if dry:
        A("s_cbranch_execz L_h3back")
    A("s_mov_b64 exec, 0xff")
    A(f"v_cvt_pk_bf16_f32 v{G}, v{G}, v{G+2}")
    A(f"buffer_store_dword v{G}, v{vT+17}, {SRD_OUT}, 0 offen {outfl}")
    if diag and diag != 7:
        if diag == 1:
            A("s_memrealtime s[86:87]")
        A("s_memrealtime s[88:89]")
        A("s_waitcnt lgkmcnt(0)")
        A("s_sub_u32 s86, s86, s84")
        A(f"s_mul_i32 s86, s86, {dmul}")
        A("s_add_u32 s86, s86, s88")
        A("L_diag:")
        A("s_memrealtime s[88:89]")
        A("s_waitcnt lgkmcnt(0)")
        A("s_sub_u32 s90, s88, s86")
        A("s_cmp_lt_i32 s90, 0")
        A("s_cbranch_scc1 L_diag")
    A("s_cmp_eq_u32 s2, 224")
    A("s_cbranch_scc0 L_fin_end")
    A("s_mov_b64 exec, 3")
    A(f"buffer_store_dword v{G+1}, v{vT+14}, {SRD_WS}, 0 offen {epfl}")
    A("L_fin_end:")
    A("s_branch L_done" if stamps or diag == 7 else "s_endpgm")

    A("L_bwave:")
    if wafter:
        issue_weights()
    OG = 112

    def hop1_loads(fl="sc1"):
        for k in range(4):
            A(f"buffer_load_dwordx4 v[{OG+4*k}:{OG+4*k+3}], v{vH1}, {SRD_WS}, {sT[2+k]} offen {fl}")
    if plain1:
        A(f"s_cmp_eq_u32 {sLOC}, 1")
        A("s_cbranch_scc0 L_h1far")
        hop1_loads("")
        A("s_branch L_h1first")
        A("L_h1far:")
    hop1_loads()
    A("L_h1first:")
    if lateprep:
        c_wprep()
    A(f"s_mov_b32 {sT[9]}, {spin}")
    oa, ob = vT, vT + 1
    if reuse:
        assert ctl and w2at is None
        A(f"s_lshl_b32 {sT[6]}, {sW}, 5")
        A(f"s_add_u32 {sT[6]}, {sT[6]}, {FIN}")
        A(f"v_mov_b32 v{vT+8}, {sT[6]}")
        A(f"v_xor_b32 v{vT+9}, 32, v{vT+8}")
    gather4("h1", OG, vH1, sT[2:6], oa, ob, True, sleep1)
    if reuse:
        A(f"ds_write_b32 v{vT+8}, v{vT+8}")
    stamp()
    allreduce("v_add_f32", [oa, ob], vT + 2, [8, 16, 32])
    A(f"v_cvt_pk_bf16_f32 v{oa}, v{oa}, v{ob}")
    A("s_nop 0")
    for k in range(8):
        A(f"v_readlane_b32 s{10+k}, v{oa}, {k}")
    for cp in range(2):
        if reuse and cp == 1:
            A(f"ds_read_b32 v{vT+10}, v{vT+9}")
        for k in range(8):
            for c in (2 * cp, 2 * cp + 1):
                A(f"v_dot2_f32_bf16 v{Y+2*c}, s{10+k}, v{PW+4*k+c}, v{Y+2*c}")
    if dry:
        A("s_cbranch_execz L_h1back")
    if reuse:
        A("L_both:")
        A("s_waitcnt lgkmcnt(0)")
        A(f"v_cmp_ne_u32 vcc, 0, v{vT+10}")
        A("s_cbranch_vccnz L_bothok")
        A(f"ds_read_b32 v{vT+10}, v{vT+9}")
        A(f"s_sub_u32 {sT[9]}, {sT[9]}, 1")
        A("s_cbranch_scc0 L_both")
        A("L_bothok:")
    A(f"s_cmp_eq_u32 {sLOC}, 1")
    A("s_cbranch_scc0 L_far2")
    for fl in ("", " sc1"):
        if fl:
            A("L_far2:")
        if reuse:
            A(f"buffer_store_dwordx4 v[{Y}:{Y+3}], v{vOO}, {SRD_WS}, {sT[2]} offen{fl}")
            A(f"buffer_store_dwordx4 v[{Y+4}:{Y+7}], v{vOO}, {SRD_WS}, {sP2} offen{fl}")
        else:
            A(f"buffer_store_dwordx4 v[{Y}:{Y+3}], v{vOO}, {SRD_WS}, {sP2} offen{fl}")
            A(f"buffer_store_dwordx4 v[{Y+4}:{Y+7}], v{vOO}, {SRD_WS}, {sP2} offen offset:1792{fl}")
        if not fl:
            A("s_branch L_sent2")
    A("L_sent2:")
    stamp()
    A("L_leave:")
    if not gateA:
        A(f"s_cmp_eq_u32 {sCONS}, 1")
        A("s_cbranch_scc0 L_done")
    A("s_barrier")
    A("L_done:")
    if diag == 7:
        A("s_cmp_lt_u32 s2, 92")
        A("s_cbranch_scc0 L_end")
        A("s_memrealtime s[88:89]")
        A("s_waitcnt lgkmcnt(0)")
        A("s_sub_u32 s86, s86, s84")
        A(f"s_mul_i32 s86, s86, {dmul}")
        A("s_add_u32 s86, s86, s88")
        A("L_diag7:")
        A("s_memrealtime s[88:89]")
        A("s_waitcnt lgkmcnt(0)")
        A("s_sub_u32 s90, s88, s86")
        A("s_cmp_lt_i32 s90, 0")
        A("s_cbranch_scc1 L_diag7")
    if stamps:
        A("s_mov_b64 exec, -1")
        A("s_memrealtime s[100:101]")
        A("s_waitcnt lgkmcnt(0)")
        A(f"s_lshl_b32 {sT[0]}, s2, 2")
        A(f"s_add_u32 {sT[0]}, {sT[0]}, {sW}")
        A(f"s_lshl_b32 {sT[1]}, {sT[0]}, 8")
        A(f"s_lshl_b32 {sT[0]}, {sT[0]}, 6")
        A(f"s_add_u32 {sT[0]}, {sT[0]}, {WS_STAMP}")
        A(f"s_add_u32 {sT[1]}, {sT[1]}, {WS_STAMP + 0x10000}")
        A(f"v_lshlrev_b32 v2, 2, {vL}")
        A(f"buffer_store_dword v252, v2, {SRD_WS}, {sT[1]} offen")
        A("v_mov_b32 v2, 0")
        A("s_mov_b64 exec, 1")
        A("v_mov_b32 v3, s26")
        A(f"buffer_store_dword v3, v2, {SRD_WS}, {sT[0]} offen offset:44")
        for k in range(9):
            A(f"v_mov_b32 v3, s{84+2*k}")
            A(f"buffer_store_dword v3, v2, {SRD_WS}, {sT[0]} offen offset:{4*k}")
        A("s_getreg_b32 s84, hwreg(HW_REG_XCC_ID)")
        A("v_mov_b32 v3, s84")
        A(f"buffer_store_dword v3, v2, {SRD_WS}, {sT[0]} offen offset:36")
        A(f"v_mov_b32 v3, {sT[9]}")
        A(f"buffer_store_dword v3, v2, {SRD_WS}, {sT[0]} offen offset:40")
    A("L_end:")
    A("s_endpgm")
    body = "\n".join(("" if l.endswith(":") else "    ") + l for l in o)
    head = HEADER.format(lds=LDS, k=kern).replace("; One launch, 256 workgroups (one per CU), 4 waves each.  Generated by dev/gen.py.\n", DOC)
    if al12:
        head = head.replace(".p2align 8\n", ".p2align 12\n.p2align 8\n")
    return head + body + FOOTER.format(k=kern)


if __name__ == "__main__":
    out = sys.argv[1]
    kw = json.loads(sys.argv[2]) if len(sys.argv) > 2 else {}
    open(out, "w").write(gen(**kw))
```

```python
import sys, json, math, struct
from gen import HEADER, FOOTER, KERN, f2u, LOG2E_16

WS_QG = 0x1000
WS_HG = WS_QG + 0x4000
WS_ML = 0x8000
WS_RK = 0xA000
WS_RDY = 0xC000
WS_CNT = 0x200000
WS_P1O = 0x10000
WS_P2 = 0x110000
WS_P3 = 0x1F0000
WS_EP2 = 0x1FF000
WS_STAMP = 0x300000
WS_SIZE = 0x400000

DOC = '; ---------------------------------------------------------------------------------------------------------\n;\n; One launch, 256 workgroups (one per CU, LDS-limited), 4 waves each; head = wg & 7, p = wg >> 3.\n;  * Every wave streams 16 K tiles, then the 16 matching V tiles (16 keys = 8 KB each) with LDS-DMA into a\n;  * Hand-offs between workgroups go through d_ws as 8-byte {data, tag} granules; the tag is derived from two\n;    words the previous launch left, so stale contents never match.  Hand-offs inside a head use ordinary\n;    stores only when all 32 workgroups report the same XCC id, otherwise write-through (sc1) stores.\n; ---------------------------------------------------------------------------------------------------------\n'


def gen(R=3, N=5, N0=8, Nend=12, tail=7, NB=8, NP=6, bits="i0 w0 w1 i1 i2 g3 g4 t2 t3 x0 x1 x2 t0 t1",
        kflags="nt", vflags="nt", wflags="nt", stamps=0, spin=4000000, vpub=5, vgat=9, wpos=0, flat2=False, gate2=False, kopen=None, lateprep=True, pre1=None, pre2=None, plain1=False, touch="sc1", tpos=0, codepf=True, tlbpf=True, outpf=True, nn=None, ext=None, depth3=4, touch2=True, now=False, wafter=False, wat=30, tat=None, wg_=None, deep=(), msplit=4, fast=True, who=3, reuse=True, al12=True, pgpf=False, repf=(), dead=0, wtouch=False, jit=0, diag=0, dmul=1, dry=False, w2at=None, pad=0, gateA=False, st3="sc1", ld3="sc1", bb=None, N2=8, iw=None, ra=((8, 14, 8, 24, 8), (12, 16, 8, 26, 8), (16, 18, 8, 26, 8), (20, 18, 8, 26, 8), (23, 18, 6, 26, 6), (26, 14, 8, 22, 8)), raws=True, nk=1, ng=8, bump=(), epfl="", outfl="", pipe=False, skipw=False, wlate=None, wtlb=None, wdma=None, rk=((64, 20, 4, 0, 0), (186, 18, 5, 0, 0)), rkw=1, Nhi=6, Nlo=4, sleep1=0, sleep2=0,
        alt=None, X=7, Np=12, B0=6, Xp=None, il=0, Np2=9, zmap="wg", rot=True, hmap="mod8", local=True,
        kern=KERN):
    noend = noml = False
    assert not wdma and wlate is None
    if ra:
        rk = ()
        assert len(ra) * ng <= 128 and raws
    ctl = list(rk) + list(ra)
    wearly = 0
    T = 8
    tb = T * 1024
    S = 16
    if "h" not in bits.split():
        bits = "h " + bits
    pos = {n: 9 + k for k, n in enumerate(bits.split())}
    genh = pos["h"] != 9
    RING = 4 * R * tb
    STG = RING
    QW = STG + 57344
    LML = QW + 4096
    FIN = LML + 128
    PRG = FIN + 256
    LDS = PRG + (1024 if iw else 0)
    assert LDS <= 163840 and LDS > 81920
    if Xp is None:
        Xp = X * T

    o = []
    A = o.append
    vm = {"n": 0, "known": 0}

    def VM(s):
        A(s)
        vm["n"] += 1
        return vm["n"]

    def wait_vm(idx, force=False):
        if idx <= vm["known"] and not force:
            return
        n = vm["n"] - idx
        assert 0 <= n <= 63, n
        A(f"s_waitcnt vmcnt({n})")
        if vm.get("opt") and idx < vm["optend"]:
            assert idx <= vm["optend"] - vm["opt"]
            vm["lbl"] = vm.get("lbl", 0) + 1
            A(f"s_cmp_ge_u32 s3, 2")
            A(f"s_cbranch_scc1 L_ow{vm['lbl']}")
            A(f"s_waitcnt vmcnt({n - vm['opt']})")
            A(f"L_ow{vm['lbl']}:")
        vm["known"] = max(vm["known"], idx)

    nstamp = {"n": 0}

    def stamp(mode=1):
        if stamps and (int(stamps) & mode):
            k = nstamp["n"]
            assert k < 8
            A(f"s_memrealtime s[{84+2*k}:{85+2*k}]")
            nstamp["n"] += 1

    SRD_K, SRD_V, SRD_W, SRD_WO, SRD_W2, SRD_WS, SRD_X, SRD_OUT = ("s[28:31]", "s[32:35]", "s[36:39]", "s[40:43]",
                                                                     "s[44:47]", "s[48:51]", "s[52:55]", "s[56:59]")
    sW, sH, sP, sTAG, sRING, sBASE, sC, sF = "s3", "s60", "s61", "s62", "s63", "s64", "s65", "s66"
    sOFF = "s67"
    sZ = "s27"
    sT = ["s72", "s73", "s74", "s75", "s76", "s77", "s78", "s79", "s80", "s81"]
    vL = "v1"
    vSRC = [2, 3, 4, 5]
    vKA = [6, 7, 8, 9]
    vVA = list(range(10, 18))
    vMAX, vMS = 18, 19
    vPF, vLS, vS, vE = 20, 24, 24, 28
    vVT = 32
    sLOC, sXCC = "s82", "s83"
    sWE, sNE = "s16", "s17"
    vPW, vPR, vPD = (22, 23, 255) if False else (252, 253, 255)
    if stamps and iw:
        vPW, vPR = 250, 251
    vQ, vTL, vACC, vSC, vT = 32, 64, 96, 160, 224
    vH = 244

    def mk_tag(dst):
        A(f"s_lshl1_add_u32 {dst}, s27, {sTAG}")
        A(f"s_mul_i32 {dst}, {dst}, 1664525")
        A(f"s_add_u32 {dst}, {dst}, 1013904223")

    def srd(base, lo, size):
        A(f"s_mov_b32 s{base}, s{lo}")
        A(f"s_mov_b32 s{base+1}, s{lo+1}")
        A(f"s_mov_b32 s{base+2}, {size}")
        A(f"s_mov_b32 s{base+3}, 0x20000")

    assert hmap == "mod8" and zmap == "wg" and not il
    sZ = "s2"
    A("L_c0:")
    A("s_load_dwordx2 s[28:29], s[0:1], 8")
    A("s_load_dwordx16 s[4:19], s[0:1], 0")
    A("s_load_dwordx4 s[20:23], s[0:1], 64")
    A("s_load_dwordx2 s[24:25], s[0:1], 80")
    stamp(3)
    if diag:
        A("s_memrealtime s[84:85]")
    A("v_lshrrev_b32 v30, 6, v0")
    A("s_cmp_lt_u32 s2, 92")
    A("s_cbranch_scc1 L_producer")
    A("s_cmp_ge_u32 s2, 256")
    A("s_cbranch_scc1 L_end")

    def put(src, names):
        k = 0
        while k < len(names):
            e = k
            while e + 1 < len(names) and pos[names[e + 1]] == pos[names[e]] + 1:
                e += 1
            if k == 0 and e == len(names) - 1:
                A(f"s_lshl_b32 {sT[2]}, {src}, {pos[names[0]]}")
            else:
                A(f"s_bfe_u32 {sT[2]}, {src}, {((e - k + 1) << 16) | k}")
                A(f"s_lshl_b32 {sT[2]}, {sT[2]}, {pos[names[k]]}")
            A(f"s_or_b32 {sBASE}, {sBASE}, {sT[2]}")
            k = e + 1

    def common0():
        A(f"v_and_b32 {vL}, 63, v0")
        A("v_readfirstlane_b32 s3, v30")
        A(f"s_and_b32 {sH}, s2, 7")
        A(f"s_lshr_b32 {sP}, s2, 3")
        A(f"s_and_b32 {sT[0]}, {sP}, 7")
        A(f"s_lshr_b32 {sT[1]}, s2, 6")
        A(f"s_lshl_b32 {sBASE}, {sH}, 24")
        put(sT[0], ["x0", "x1", "x2"])
        put(sT[1], ["g3", "g4"])
        put(sW, ["w0", "w1"])
        A(f"s_mul_i32 {sRING}, {sW}, {R*tb}")
        A("s_brev_b32 s30, 16")
        A("s_mov_b32 s31, 0x20000")
        A(f"v_lshlrev_b32 v29, 4, {vL}")
        A(f"v_and_b32 v31, 32, {vL}")
        A(f"v_xor_b32 v{vSRC[0]}, v29, v31")
        if genh:
            A(f"v_and_b32 v{vSRC[0]}, 0x1ff, v{vSRC[0]}")
            A(f"v_lshl_add_u32 v{vSRC[0]}, v31, {pos['h'] - 5}, v{vSRC[0]}")
        A(f"v_xor_b32 v{vSRC[1]}, 64, v{vSRC[0]}")
        A(f"v_xor_b32 v{vSRC[2]}, 0x80, v{vSRC[0]}")
        A(f"v_xor_b32 v{vSRC[3]}, 64, v{vSRC[2]}")

    def common1():
        A(f"s_mov_b32 {sC}, 0x{f2u(LOG2E_16):08x}")
        A(f"s_min_u32 {sF}, s2, 223")

    def producer0():
        A("s_mov_b32 s39, 0x20000")
        A(f"s_cmp_lt_u32 {sZ}, 64")
        A(f"s_mov_b32 s38, {448*1792*2}")
        A(f"s_cmov_b32 s38, {448*4096*2}")
        A(f"s_movk_i32 {sT[4]}, 3584")
        A(f"s_cmovk_i32 {sT[4]}, 8192")
        A(f"s_and_b32 {sT[5]}, {sZ}, 63")
        A(f"s_lshl_b32 {sT[5]}, {sT[5]}, 7")
        A(f"s_mul_i32 {sT[6]}, {sW}, {sT[4]}")
        A(f"s_mulk_i32 {sT[6]}, 112")
        A(f"s_add_u32 {sT[5]}, {sT[5]}, {sT[6]}")
        A(f"v_lshrrev_b32 v30, 3, {vL}")
        A(f"v_mul_u32_u24 v30, {sT[4]}, v30")
        A(f"v_and_b32 v31, 0x70, v29")
        A("v_add_u32 v21, v31, v30")
        A(f"s_lshl_b32 {sT[4]}, {sT[4]}, 3")
        A(f"s_mul_i32 {sT[6]}, {sW}, 14336")
        A(f"s_add_u32 {sT[6]}, {sT[6]}, {STG}")
        A("s_movk_i32 s54, 896")
        A("s_mov_b32 s55, s39")
        A(f"s_movk_i32 {sT[3]}, 14")
        A("s_waitcnt lgkmcnt(0)")
        A("s_mov_b64 s[52:53], s[4:5]")
        A(f"s_cmp_lt_u32 {sZ}, 64")
        A("s_cselect_b64 s[36:37], s[10:11], s[16:17]")
        if wtouch:
            A(f"s_load_dword {sLOC}, s[36:37], {sT[5]}")
            A(f"s_load_dword {sXCC}, s[28:29], {sBASE}")

    seq = [("K", n) for n in range(S)] + [("V", n) for n in range(S)]
    NL = len(seq) * T
    lidx = {}

    m0bad = {"v": False}

    def issue_load(L):
        j, i = divmod(L, T)
        kind, n = seq[j]
        if i % 4 and m0bad["v"]:
            A(f"s_add_u32 m0, {sRING}, {(j % R)*tb + (i // 4)*4096}")
            A("s_nop 0")
        m0bad["v"] = False
        def goff(i_):
            return (sum(((n >> k) & 1) << pos[f"t{k}"] for k in range(4)) +
                    sum(((i_ >> k) & 1) << pos[f"i{k}"] for k in range(3)) - (i_ % 4) * 1024)
        srd_, fl = (SRD_K, kflags) if kind == "K" else (SRD_V, vflags)
        if genh:
            A(f"s_add_u32 m0, {sRING}, {(j % R)*tb + i*1024}")
            A(f"s_add_u32 {sOFF}, {sBASE}, {goff(i) + (i % 4)*1024}")
            lidx[L] = VM(f"buffer_load_dwordx4 v{vSRC[i%4]}, {srd_}, {sOFF} offen {fl} lds")
            return
        if i % 4 == 0:
            A(f"s_add_u32 m0, {sRING}, {(j % R)*tb + i*1024}")
        if i % 4 == 0 or goff(i) != goff(i - 1):
            A(f"s_add_u32 {sOFF}, {sBASE}, {goff(i)}")
        lidx[L] = VM(f"buffer_load_dwordx4 v{vSRC[i%4]}, {srd_}, {sOFF} offen offset:{(i%4)*1024} {fl} lds")

    npf = {"n": 0}

    LFLAG = 0x600DF1A6

    def setup():
        A(f"s_lshl_b32 {sT[2]}, {sW}, 5")
        A(f"s_add_u32 {sT[2]}, {sT[2]}, {LML}")
        A(f"v_lshlrev_b32 v29, 2, {vL}")
        A(f"v_add_u32 v29, {sT[2]}, v29")
        A("v_mov_b32 v30, 0")
        A("s_mov_b64 exec, 0xff")
        A("ds_write_b32 v29, v30")
        if ctl:
            A("ds_write_b32 v29, v30 offset:128")
        A("s_mov_b64 exec, -1")
        if iw:
            A(f"v_lshlrev_b32 v{vPW}, 2, v0")
            A(f"v_add_u32 v{vPW}, {PRG}, v{vPW}")
            A(f"ds_write_b32 v{vPW}, v30")
            A(f"v_and_b32 v{vPR}, 3, {vL}")
            A(f"v_lshlrev_b32 v{vPR}, 8, v{vPR}")
            A(f"v_add_u32 v{vPR}, {PRG}, v{vPR}")
        A("s_waitcnt lgkmcnt(0)")
        A("s_barrier")
        A(f"s_load_dword {sTAG}, s[24:25], 0")
        A(f"s_mov_b32 {sT[2]}, {WS_EP2}")
        A(f"s_load_dword s27, s[24:25], {sT[2]}")
        if tlbpf:
            A(f"s_lshr_b32 {sT[2]}, s2, 3")
            A(f"s_lshl_b32 {sT[2]}, {sT[2]}, 2")
            A(f"s_add_u32 {sT[2]}, {sT[2]}, {sW}")
            A(f"s_bitcmp1_b32 {sT[2]}, 3")
            A("s_cselect_b32 s70, s8, s6")
            A("s_cselect_b32 s71, s9, s7")
            A(f"s_and_b32 {sT[7]}, {sT[2]}, 7")
            A(f"s_lshl_b32 {sT[7]}, {sT[7]}, 21")
            A(f"s_lshl_b32 {sT[8]}, {sH}, 24")
            A(f"s_add_u32 {sT[7]}, {sT[7]}, {sT[8]}")
            A(f"s_lshl_b32 {sT[8]}, {sT[2]}, 7")
            A(f"s_add_u32 {sT[7]}, {sT[7]}, {sT[8]}")
            A(f"s_add_u32 s70, s70, {sT[7]}")
            A("s_addc_u32 s71, s71, 0")
            A(f"s_load_dword {sLOC}, s[70:71], 0x0")
            A(f"s_bitcmp1_b32 {sW}, 0")
            A("s_cselect_b32 s70, s12, s18")
            A("s_cselect_b32 s71, s13, s19")
            A(f"s_mov_b32 {sT[7]}, 6272")
            A(f"s_cmov_b32 {sT[7]}, 14336")
            A(f"s_mul_i32 {sT[7]}, {sT[7]}, s2")
            A(f"s_add_u32 s70, s70, {sT[7]}")
            A("s_addc_u32 s71, s71, 0")
            A(f"s_load_dword s21, s[70:71], 0x0" if False else f"s_load_dword {sXCC}, s[70:71], 0x0")
        if codepf:
            k = npf["n"]
            npf["n"] += 1
            A(f"s_getpc_b64 s[68:69]")
            A(f"L_pf{k}:")
            A(f"s_lshr_b32 {sT[2]}, s2, 3")
            A(f"s_lshl_b32 {sT[2]}, {sT[2]}, 2")
            A(f"s_add_u32 {sT[2]}, {sT[2]}, {sW}")
            A(f"s_lshl_b32 {sT[2]}, {sT[2]}, 8")
            A(f"s_min_u32 {sT[2]}, {sT[2]}, L_end-L_c0-128")
            A(f"s_sub_u32 s68, s68, L_pf{k}-L_c0")
            A("s_subb_u32 s69, s69, 0")
            A(f"s_add_u32 s68, s68, {sT[2]}")
            A("s_addc_u32 s69, s69, 0")
            A(f"s_load_dword {sLOC}, s[68:69], 0x0")
            A(f"s_load_dword {sLOC}, s[68:69], 0x80")
            if pgpf:
                A(f"s_sub_u32 s68, s68, {sT[2]}")
                A("s_subb_u32 s69, s69, 0")
                A(f"s_lshl_b32 {sT[2]}, {sW}, 13")
                A(f"s_min_u32 {sT[2]}, {sT[2]}, L_end-L_c0-4096")
                A(f"s_add_u32 s68, s68, {sT[2]}")
                A("s_addc_u32 s69, s69, 0")
                A(f"s_load_dword {sLOC}, s[68:69], 0x0")
                A(f"s_load_dword {sLOC}, s[68:69], 0x1000")
        srd(32, 8, 128 << 20)
        srd(40, 12, 4096 * 448 * 2)
        srd(44, 18, 1792 * 448 * 2)
        srd(48, 24, WS_SIZE)
        srd(56, 20, 896)
        if stamps:
            A("s_mov_b32 s26, 0")
            A("v_mov_b32 v252, 0")
            for k in (5, 6, 7):
                A(f"s_mov_b32 s{84+2*k}, s84")
        A(f"v_and_b32 v29, 15, {vL}")
        A(f"v_lshrrev_b32 v30, 4, {vL}")
        A("v_and_b32 v31, 7, v29")
        A("v_lshlrev_b32 v31, 1, v31")
        A("v_xor_b32 v31, v31, v30")
        A("v_lshlrev_b32 v31, 4, v31")
        A("v_lshl_add_u32 v31, v29, 9, v31")
        for j in range(4):
            A(f"v_xor_b32 v{vKA[j]}, {j*64}, v31")
            A(f"v_add_u32 v{vKA[j]}, {sRING}, v{vKA[j]}")
        A(f"v_bfe_u32 v29, {vL}, 2, 2")
        A(f"v_lshrrev_b32 v30, 4, {vL}")
        A("v_xor_b32 v30, v30, v29")
        A(f"v_and_b32 v31, 3, {vL}")
        A("v_lshlrev_b32 v31, 3, v31")
        A("v_lshl_add_u32 v31, v30, 5, v31")
        A("v_lshl_add_u32 v31, v29, 9, v31")
        A(f"v_add_u32 v{vVA[0]}, {sRING}, v31")
        A(f"v_mov_b32 v{vMAX}, 0xff800000")
        if ra:
            A(f"s_and_b32 s14, {sP}, {nk-1}")
            if raws:
                A(f"s_and_b32 s15, {sP}, {ng-1}")
                A("s_mul_i32 s15, s15, 4352")
                A(f"s_add_u32 s15, s15, {WS_CNT}")
                A("s_add_u32 s22, s24, s15")
                A("s_addc_u32 s23, s25, 0")
            else:
                A(f"s_bfe_u32 s15, {sP}, 0x20002")
                A("s_lshl_b32 s15, s15, 4")
                A("s_add_u32 s15, s15, s14")
                A("s_lshl_b32 s15, s15, 2")
                A("s_add_u32 s22, s22, s15")
                A("s_addc_u32 s23, s23, 0")
            A(f"s_cmp_eq_u32 {sW}, {rkw}")
            A("s_cselect_b32 s14, s14, 15")
        if ctl:
            A(f"s_mov_b32 {sWE}, 0")
            A(f"s_mov_b32 {sNE}, 0")
            A(f"v_mov_b32 v254, {FIN}")

    def allreduce(op, regs, tmp, steps):
        for st in steps:
            if st <= 8:
                if len(regs) < 3:
                    A(f"s_nop {2-len(regs)}")
                for r in regs:
                    A(f"{op}_dpp v{r}, v{r}, v{r} row_ror:{st} row_mask:0xf bank_mask:0xf")
            else:
                for k, r in enumerate(regs):
                    A(f"v_mov_b32 v{tmp+k}, v{r}")
                if len(regs) < 3:
                    A(f"s_nop {2-len(regs)}")
                for k, r in enumerate(regs):
                    A(f"v_permlane{st}_swap_b32 v{r}, v{tmp+k}")
                if len(regs) < 2:
                    A("s_nop 0")
                for k, r in enumerate(regs):
                    A(f"{op} v{r}, v{r}, v{tmp+k}")

    XU = vT + 4
    a, b, c_, d_ = vT + 12, vT + 13, vT + 14, vT + 15
    XF, WF = 96, 152
    st = {}

    def side0():
        A("; layer norm with the reference rounding steps")
        wait_vm(st["x"])
        stamp(2)
        for i in range(4):
            A(f"v_lshlrev_b32 v{XU+2*i}, 16, v{vT+i}")
            A(f"v_and_b32 v{XU+2*i+1}, 0xffff0000, v{vT+i}")
        A(f"v_add_f32 v{a}, v{XU}, v{XU+1}")
        for i in range(2, 8):
            A(f"v_add_f32 v{a}, v{a}, v{XU+i}")
        allreduce("v_add_f32", [a], b, [1, 2, 4, 8, 16, 32])

    def side1():
        A(f"v_mul_f32 v{a}, 0x{f2u(1.0/448):08x}, v{a}")
        A(f"v_mov_b32 v{b}, 0")
        for i in range(8):
            A(f"v_sub_f32 v{c_}, v{XU+i}, v{a}")
            A(f"v_fmac_f32 v{b}, v{c_}, v{c_}")
        A(f"v_cmp_gt_u32 vcc, 56, {vL}")
        A("s_nop 1")
        A(f"v_cndmask_b32 v{b}, 0, v{b}, vcc")
        allreduce("v_add_f32", [b], c_, [1, 2, 4, 8, 16, 32])

    def side2():
        A(f"v_mul_f32 v{b}, 0x{f2u(1.0/448):08x}, v{b}")
        A(f"v_cvt_pk_bf16_f32 v{c_}, v{a}, v{b}")
        A(f"v_lshlrev_b32 v{a}, 16, v{c_}")
        A(f"v_and_b32 v{b}, 0xffff0000, v{c_}")
        A(f"v_add_f32 v{b}, 0x{f2u(1e-5):08x}, v{b}")
        A(f"v_cvt_pk_bf16_f32 v{b}, v{b}, v{b}")
        A(f"v_and_b32 v{b}, 0xffff0000, v{b}")
        A(f"v_sqrt_f32 v{b}, v{b}")
        A("s_nop 0")
        A(f"v_cvt_pk_bf16_f32 v{b}, v{b}, v{b}")
        A(f"v_and_b32 v{b}, 0xffff0000, v{b}")
        A(f"v_rcp_f32 v{b}, v{b}")

    def side3():
        for i in range(8):
            A(f"v_sub_f32 v{XU+i}, v{XU+i}, v{a}")
        for i in range(4):
            A(f"v_cvt_pk_bf16_f32 v{vT+i}, v{XU+2*i}, v{XU+2*i+1}")
        for i in range(4):
            A(f"v_lshlrev_b32 v{XU+2*i}, 16, v{vT+i}")
            A(f"v_and_b32 v{XU+2*i+1}, 0xffff0000, v{vT+i}")
        for i in range(8):
            A(f"v_mul_f32 v{XU+i}, v{XU+i}, v{b}")
        for i in range(4):
            A(f"v_cvt_pk_bf16_f32 v{vT+i}, v{XU+2*i}, v{XU+2*i+1}")
        A(f"s_lshl_b32 {sT[0]}, {sW}, 10")
        A(f"s_add_u32 {sT[0]}, {sT[0]}, {QW}")
        A(f"v_lshlrev_b32 v{a}, 4, {vL}")
        A(f"v_add_u32 v{a}, {sT[0]}, v{a}")
        A(f"ds_write_b128 v{a}, v[{vT}:{vT+3}]")
        A(f"v_lshrrev_b32 v{b}, 4, {vL}")
        A(f"v_lshlrev_b32 v{c_}, 4, v{b}")
        A(f"v_add_u32 v{c_}, {sT[0]}, v{c_}")

    def side4():
        A("s_waitcnt lgkmcnt(0)")
        for i in range(14):
            A(f"ds_read_b128 v[{XF+4*i}:{XF+4*i+3}], v{c_} offset:{i*64}")
        A(f"v_lshlrev_b32 v{b}, 10, v{b}")
        A(f"v_bfe_u32 v{d_}, {vL}, 2, 2")
        A(f"v_lshl_add_u32 v{b}, v{d_}, 7, v{b}")
        A(f"v_and_b32 v{d_}, 3, {vL}")
        A(f"v_lshl_add_u32 v{b}, v{d_}, 3, v{b}")
        A(f"s_lshl_b32 {sT[1]}, {sW}, 5")
        A(f"s_add_u32 {sT[1]}, {sT[1]}, {STG}")
        A(f"v_add_u32 v{b}, {sT[1]}, v{b}")
        mk_tag(f"{sT[2]}")

    def side5():
        stamp(2)
        wait_vm(st["stg"])
        A("s_waitcnt lgkmcnt(0)")
        A("s_barrier")
        if diag == 7:
            A("s_memrealtime s[86:87]")
        stamp(2)
        for i in range(14):
            A(f"ds_read_b64_tr_b16 v[{WF+4*i}:{WF+4*i+1}], v{b} offset:{i*4096}")
            A(f"ds_read_b64_tr_b16 v[{WF+4*i+2}:{WF+4*i+3}], v{b} offset:{i*4096+512}")

    def side6():
        A(f"v_and_b32 v{d_}, 15, {vL}")
        A(f"v_cmp_eq_u32 s[70:71], 0, v{d_}")
        A(f"v_lshrrev_b32 v{a}, 4, {vL}")
        A(f"v_lshlrev_b32 v{a}, 4, v{a}")
        A(f"v_mov_b32 v{vT+1}, {sT[2]}")
        A(f"v_mov_b32 v{vT+3}, {sT[2]}")
        A(f"s_lshl_b32 {sT[0]}, {sZ}, 2")
        A(f"s_add_u32 {sT[0]}, {sT[0]}, {sW}")
        A(f"s_lshl_b32 {sT[0]}, {sT[0]}, 6")
        A(f"s_add_u32 {sT[0]}, {sT[0]}, {WS_QG}")
        A(f"s_cmp_lt_u32 {sZ}, 64")
        A(f"s_cselect_b32 {sT[1]}, 0xff800000, 0")

    def side7():
        A("s_waitcnt lgkmcnt(0)")
        for i in range(14):
            A(f"v_mfma_f32_16x16x32_bf16 v[{vS}:{vS+3}], v[{WF+4*i}:{WF+4*i+3}], v[{XF+4*i}:{XF+4*i+3}], " +
              ("0" if i == 0 else f"v[{vS}:{vS+3}]"))

    def side8():
        A("s_nop 7")
        for i in range(4):
            A(f"v_max_f32 v{vS+i}, {sT[1]}, v{vS+i}")
        A(f"v_cvt_pk_bf16_f32 v{vT}, v{vS}, v{vS+1}")
        A(f"v_cvt_pk_bf16_f32 v{vT+2}, v{vS+2}, v{vS+3}")
        A("s_mov_b64 exec, s[70:71]")
        A(f"buffer_store_dwordx4 v[{vT}:{vT+3}], v{a}, {SRD_WS}, {sT[0]} offen sc1")
        A("s_mov_b64 exec, -1")

    side_chunks = [side0, side1, side2, side3, side4, side5, side6, side7, side8]

    def tile_stamp_a():
        if stamps:
            A("s_memrealtime s[100:101]")
        if isinstance(who, int) and "tc" in st:
            for c, r_ in enumerate(ra):
                if st["tc"] == r_[0]:
                    A("v_mov_b32 v255, 1")
                    A("s_mov_b64 exec, 1")
                    A(f"ds_add_rtn_u32 v255, v254, v255 offset:{8 + 4*c}")
                    A("s_mov_b64 exec, -1")
        if st.get("rk_on") and not st.get("rk_off"):
            A(f"ds_read_b64 v[{vT+18}:{vT+19}], v254")
            if iw:
                A(f"ds_read_b32 v{vPD}, v{vPR}")
                st["iw_own"] = st["iw_last"]
            st["rk_rd"] = True

    def lds_wait(tile=False):
        A("s_waitcnt lgkmcnt(0)")
        if st.get("rk_rd"):
            A(f"v_readfirstlane_b32 {sWE}, v{vT+18}")
            A(f"v_readfirstlane_b32 {sNE}, v{vT+19}")
            if bb and st["tc"] >= bb[0]:
                A(f"s_cmp_ge_u32 {sW}, 2")
                A(f"s_cmovk_i32 {sWE if bb[1] == 1 else sNE}, 0x100")
            if iw:
                th, gain, thn, gn = iw
                A(f"v_add_u32_dpp v{vPD}, v{vPD}, v{vPD} quad_perm:[1,0,3,2] row_mask:0xf bank_mask:0xf")
                A("s_nop 1")
                A(f"v_add_u32_dpp v{vPD}, v{vPD}, v{vPD} quad_perm:[2,3,0,1] row_mask:0xf bank_mask:0xf")
                A("s_nop 0")
                A(f"v_readfirstlane_b32 s19, v{vPD}")
                A(f"s_sub_i32 s19, s19, {4*st['iw_own']}")
                A(f"s_mul_i32 s13, s19, {gain}")
                A(f"s_add_i32 s13, s13, {st['L']}")
                A(f"s_cmp_ge_i32 s19, {th}")
                A("s_cselect_b32 s13, s13, 0")
                A(f"s_max_u32 {sWE}, {sWE}, s13")
                if thn:
                    A(f"s_mul_i32 s13, s19, {-gn}")
                    A(f"s_add_i32 s13, s13, {st['L']}")
                    A(f"s_cmp_le_i32 s19, {-thn}")
                    A("s_cselect_b32 s13, s13, 0")
                    A(f"s_cselect_b32 {sWE}, 0, {sWE}")
                    A(f"s_max_u32 {sNE}, {sNE}, s13")
            st["rk_rd"] = False
        if tile and "tc" in st:
            j = st["tc"]
            st["tc"] += 1
            if j in repf:
                A(f"s_getpc_b64 s[12:13]")
                A(f"L_rp{j}:")
                A(f"s_lshl_b32 s19, {sP}, 2")
                A(f"s_add_u32 s19, s19, {sW}")
                A("s_lshl_b32 s19, s19, 7")
                A(f"s_min_u32 s19, s19, L_end-L_rp{j}")
                A("s_load_dword s11, s[12:13], s19")
            for c, r_ in enumerate(ra):
                if 1 <= j - r_[0] <= nk:
                    c_rkdecide(c, st["L"], j - r_[0] - 1)
            for c, r_ in enumerate(ra):
                if 0 <= j - r_[0] < nk:
                    assert st.get("rdy"), "probe before the ready check"
                    if isinstance(who, int):
                        A("v_readfirstlane_b32 s14, v255")
                        A(f"s_sub_u32 s14, s14, s15")
                    elif who == "rot":
                        A(f"s_sub_u32 s14, s15, {c & 3}")
                    A(f"s_cmp_eq_u32 s14, {j - r_[0]}")
                    A(f"s_cbranch_scc0 L_ra{c}_{j}")
                    A("s_mov_b32 s18, 1")
                    A(f"s_atomic_add s18, s[22:23], {ng*4352*c} glc")
                    A(f"L_ra{c}_{j}:")
        if stamps and tile:
            A("v_mov_b32 v253, s100")
            A(f"v_cmp_eq_u32 vcc, s26, {vL}")
            A("s_add_u32 s26, s26, 1")
            A("s_nop 0")
            A("v_cndmask_b32 v252, v252, v253, vcc")

    def read_k(dst, slot_imm, acc=False):
        tile_stamp_a()
        p = "a" if acc else "v"
        for j in range(8):
            A(f"ds_read_b128 {p}[{dst+4*j}:{dst+4*j+3}], v{vKA[j%4]} offset:{slot_imm + (j//4)*256}")

    def qk_mfma(src, acc):
        p = "a" if acc else "v"
        for j in range(8):
            A(f"v_mfma_f32_16x16x32_bf16 v[{vS}:{vS+3}], {p}[{src+4*j}:{src+4*j+3}], v[{vQ+4*j}:{vQ+4*j+3}], " +
              ("0" if j == 0 else f"v[{vS}:{vS+3}]"))

    def qk_post(sc):
        A("s_nop 7")
        A(f"v_cvt_pk_bf16_f32 v{sc+1}, v{vS}, v{vS+1}")
        A(f"v_cvt_pk_bf16_f32 v{sc+3}, v{vS+2}, v{vS+3}")
        A(f"v_lshlrev_b32 v{sc}, 16, v{sc+1}")
        A(f"v_and_b32 v{sc+1}, 0xffff0000, v{sc+1}")
        A(f"v_lshlrev_b32 v{sc+2}, 16, v{sc+3}")
        A(f"v_and_b32 v{sc+3}, 0xffff0000, v{sc+3}")
        A(f"v_max3_f32 v{vMAX}, v{sc}, v{sc+1}, v{vMAX}")
        A(f"v_max3_f32 v{vMAX}, v{sc+2}, v{sc+3}, v{vMAX}")

    def q_poll(emit):
        emit(f"buffer_load_dwordx4 v[{vT}:{vT+3}], v{vT+8}, {SRD_WS}, {sT[8]} offen sc1")
        emit(f"buffer_load_dwordx4 v[{vT+4}:{vT+7}], v{vT+8}, {SRD_WS}, {sT[8]} offen offset:1024 sc1")
        emit(f"buffer_load_dwordx4 v[{vH}:{vH+3}], off, {SRD_WS}, {sT[7]} sc1")
        return emit(f"buffer_load_dwordx4 v[{vH+4}:{vH+7}], off, {SRD_WS}, {sT[7]} offset:16 sc1")

    def tagcheck(regs, acc0, acc1, sTAG=sTAG):
        A(f"v_xor_b32 v{acc0}, {sTAG}, v{regs[0]}")
        A(f"v_xor_b32 v{acc1}, {sTAG}, v{regs[1]}")
        for i, r in enumerate(regs[2:]):
            acc = acc0 if i % 2 == 0 else acc1
            A(f"v_bitop3_b32 v{acc}, v{acc}, v{r}, {sTAG} bitop3:0xf6")
        A(f"v_or_b32 v{acc0}, v{acc0}, v{acc1}")
        A(f"v_cmp_ne_u32 vcc, 0, v{acc0}")

    def c_qpoll():
        A("; fetch q (and h, counter-ready word)")
        A(f"s_lshl_b32 {sT[8]}, {sH}, 11")
        A(f"s_add_u32 {sT[8]}, {sT[8]}, {WS_QG}")
        A(f"s_lshl_b32 {sT[7]}, {sF}, 5")
        A(f"s_add_u32 {sT[7]}, {sT[7]}, {WS_HG}")
        A(f"v_lshlrev_b32 v{vT+8}, 4, {vL}")
        if ra:
            A(f"s_mov_b32 {sT[6]}, {WS_RDY}")
            VM(f"buffer_load_dword v255, off, {SRD_WS}, {sT[6]} sc1")
        st["q"] = q_poll(VM)

    def c_qcheck():
        A("; check the q tags, build the B fragments")
        wait_vm(st["q"])
        if ra:
            A(f"v_readfirstlane_b32 {sT[6]}, v255")
            A(f"s_cmp_eq_u32 {sT[6]}, {sTAG}")
            if who is None:
                A("s_cselect_b32 s14, s14, 15")
            else:
                A(f"s_cselect_b32 s15, {who if isinstance(who, int) else sW}, 15")
            st["rdy"] = True
        A(f"s_mov_b32 {sT[0]}, {spin}")
        A("L_qchk:")
        tagcheck([vT + 1, vT + 3, vT + 5, vT + 7, vH + 1, vH + 3, vH + 5, vH + 7], vT + 9, vT + 10)
        A("s_cbranch_vccz L_qok")
        A(f"s_sub_u32 {sT[0]}, {sT[0]}, 1")
        A("s_cbranch_scc1 L_qok")
        q_poll(A)
        A("s_waitcnt vmcnt(0)")
        A("s_branch L_qchk")
        A("L_qok:")
        stamp()
        A(f"s_lshl_b32 {sT[0]}, {sW}, 10")
        A(f"s_add_u32 {sT[0]}, {sT[0]}, {QW}")
        A(f"v_lshlrev_b32 v{vT+9}, 3, {vL}")
        A(f"v_add_u32 v{vT+9}, {sT[0]}, v{vT+9}")
        A(f"ds_write2_b32 v{vT+9}, v{vT}, v{vT+2} offset0:0 offset1:1")
        A(f"ds_write2_b32 v{vT+9}, v{vT+4}, v{vT+6} offset0:128 offset1:129")
        A(f"v_and_b32 v{vT+10}, 1, {vL}")
        A(f"v_lshlrev_b32 v{vT+10}, 9, v{vT+10}")
        A(f"v_lshrrev_b32 v{vT+11}, 4, {vL}")
        A(f"v_lshl_add_u32 v{vT+10}, v{vT+11}, 4, v{vT+10}")
        A(f"v_add_u32 v{vT+10}, {sT[0]}, v{vT+10}")

    def c_qread():
        A("s_waitcnt lgkmcnt(0)")
        for j in range(8):
            A(f"ds_read_b128 v[{vQ+4*j}:{vQ+4*j+3}], v{vT+10} offset:{j*64}")

    def c_kmax():
        A("; end of the K pass: wave max")
        A(f"s_getreg_b32 {sXCC}, hwreg(HW_REG_XCC_ID, 0, 4)")
        allreduce("v_max_f32", [vMAX], vT, [16, 32])
        if diag == 3:
            A("s_memrealtime s[86:87]")
        A(f"v_mul_f32 v{vMS}, {sC}, v{vMAX}")
        A(f"v_mov_b32 v{vLS}, 0")
        A(f"v_mov_b32 v{vLS+1}, 0")
        stamp()

    def read_vg(slot_imm, g):
        for qd in range(4):
            r = vVT + 8 * g + 2 * qd
            A(f"ds_read_b64_tr_b16 v[{r}:{r+1}], v{vVA[0]} offset:{slot_imm + g*2048 + ((qd ^ g) & 1)*128 + (qd >> 1)*256}")

    def read_v(slot_imm, half):
        tile_stamp_a()
        for g in range(4):
            read_vg(slot_imm, g)

    def exps(sc):
        for r in range(4):
            A(f"v_fma_f32 v{vE+r}, v{sc+r}, {sC}, -v{vMS}")
        for r in range(4):
            A(f"v_exp_f32 v{vE+r}, v{vE+r}")
        A("s_nop 0")

    def make_p(n):
        exps(vSC + 4 * n)
        A(f"v_cvt_pk_bf16_f32 v{vPF+2*(n&1)}, v{vE}, v{vE+1}")
        A(f"v_cvt_pk_bf16_f32 v{vPF+2*(n&1)+1}, v{vE+2}, v{vE+3}")
        st["pdone"] = n

    def lsum(sc):
        exps(sc)
        A(f"v_add_f32 v{vLS}, v{vLS}, v{vE}")
        A(f"v_add_f32 v{vLS+1}, v{vLS+1}, v{vE+1}")
        A(f"v_add_f32 v{vLS}, v{vLS}, v{vE+2}")
        A(f"v_add_f32 v{vLS+1}, v{vLS+1}, v{vE+3}")

    def pvg(n, g):
        pf = vPF + 2 * (n & 1)
        for qd in range(4):
            r = vVT + 8 * g + 2 * qd
            A(f"v_mfma_f32_4x4x4_16b_bf16 v[{vACC+4*qd}:{vACC+4*qd+3}], v[{pf}:{pf+1}], v[{r}:{r+1}], " +
              ("0" if n == 0 and g == 0 else f"v[{vACC+4*qd}:{vACC+4*qd+3}]") + f" cbsz:4 abid:{4*g}")

    def pv(n):
        for g in range(4):
            pvg(n, g)

    def c_lwrite():
        A("; wave (max, sum) -> LDS")
        A(f"v_add_f32 v{vT+2}, v{vLS}, v{vLS+1}")
        allreduce("v_add_f32", [vT + 2], vT + 4, [16, 32])
        A(f"v_mov_b32 v{vT}, v{vMS}")
        A(f"v_mov_b32 v{vT+1}, 0x{LFLAG:x}")
        A(f"v_mov_b32 v{vT+3}, 0x{LFLAG:x}")
        A(f"s_lshl_b32 {sT[0]}, {sW}, 5")
        A(f"s_add_u32 {sT[0]}, {sT[0]}, {LML}")
        A(f"v_lshlrev_b32 v{vT+4}, 4, {vL}")
        A(f"v_add_u32 v{vT+4}, {sT[0]}, v{vT+4}")
        A("s_mov_b64 exec, 3")
        A(f"ds_write_b128 v{vT+4}, v[{vT}:{vT+3}]")
        A("s_mov_b64 exec, -1")

    def c_mlpub():
        A("; wave 0: workgroup (max, sum) -> d_ws")
        A(f"s_cmp_eq_u32 {sW}, 0")
        A("s_cbranch_scc0 L_nopub")
        A(f"v_and_b32 v{vT+4}, 7, {vL}")
        A(f"v_lshlrev_b32 v{vT+4}, 4, v{vT+4}")
        A(f"v_add_u32 v{vT+4}, {LML}, v{vT+4}")
        A(f"s_mov_b32 {sT[0]}, {spin*4}")
        A("L_lml:")
        A(f"ds_read_b128 v[{vT}:{vT+3}], v{vT+4}")
        A("s_waitcnt lgkmcnt(0)")
        A(f"v_and_b32 v{vT+5}, v{vT+1}, v{vT+3}")
        A(f"v_cmp_ne_u32 vcc, 0x{LFLAG:x}, v{vT+5}")
        A("s_cbranch_vccz L_lmlok")
        A(f"s_sub_u32 {sT[0]}, {sT[0]}, 1")
        A("s_cbranch_scc0 L_lml")
        A("L_lmlok:")
        A(f"v_mov_b32 v{vT+5}, v{vT}")
        allreduce("v_max_f32", [vT + 5], vT + 6, [2, 4])
        A(f"v_sub_f32 v{vT}, v{vT}, v{vT+5}")
        A(f"v_exp_f32 v{vT}, v{vT}")
        A("s_nop 0")
        A(f"v_mul_f32 v{vT+2}, v{vT+2}, v{vT}")
        allreduce("v_add_f32", [vT + 2], vT + 6, [2, 4])
        A(f"v_mov_b32 v{vT}, v{vT+5}")
        A(f"v_mov_b32 v{vT+1}, {sTAG}")
        A(f"v_xor_b32 v{vT+3}, {sXCC}, v{vT+1}")
        A(f"s_lshl_b32 {sT[0]}, {sH}, 10")
        A(f"s_lshl_b32 {sT[1]}, {sP}, 5")
        A(f"s_add_u32 {sT[0]}, {sT[0]}, {sT[1]}")
        A(f"s_add_u32 {sT[0]}, {sT[0]}, {WS_ML}")
        A(f"v_lshlrev_b32 v{vT+4}, 4, {vL}")
        A("s_mov_b64 exec, 3")
        A(f"buffer_store_dwordx4 v[{vT}:{vT+3}], v{vT+4}, {SRD_WS}, {sT[0]} offen sc1")
        A("s_mov_b64 exec, -1")
        A("L_nopub:")

    def c_mlpoll():
        A("; fetch the 32 (max, sum) records of this head")
        A(f"s_lshl_b32 {sT[8]}, {sH}, 10")
        A(f"s_add_u32 {sT[8]}, {sT[8]}, {WS_ML}")
        A(f"v_lshlrev_b32 v{vT+8}, 4, {vL}")
        st["ml"] = VM(f"buffer_load_dwordx4 v[{vT+12}:{vT+15}], v{vT+8}, {SRD_WS}, {sT[8]} offen sc1")

    def c_mlcheck():
        A("; head-wide max; same-die check")
        G = vT + 12
        wait_vm(st["ml"])
        A(f"s_mov_b32 {sT[0]}, {spin}")
        A("L_mlchk:")
        A(f"v_xor_b32 v{vT+9}, {sTAG}, v{G+1}")
        A(f"v_xor_b32 v{vT+10}, {sTAG}, v{G+3}")
        A(f"v_and_or_b32 v{vT+9}, v{vT+10}, -16, v{vT+9}")
        A(f"v_cmp_ne_u32 vcc, 0, v{vT+9}")
        A("s_cbranch_vccz L_mlok")
        A(f"s_sub_u32 {sT[0]}, {sT[0]}, 1")
        A("s_cbranch_scc1 L_mlok")
        A(f"buffer_load_dwordx4 v[{G}:{G+3}], v{vT+8}, {SRD_WS}, {sT[8]} offen sc1")
        A("s_waitcnt vmcnt(0)")
        A("s_branch L_mlchk")
        A("L_mlok:")
        st["mlok"] = True
        A(f"v_cmp_ne_u32 vcc, {sXCC}, v{vT+10}")
        A("s_cmp_eq_u64 vcc, 0")
        A(f"s_cselect_b32 {sLOC}, {1 if local else 0}, 0")
        A(f"v_mov_b32 v{vT+9}, v{G}")
        allreduce("v_max_f32", [vT + 9], vT + 10, [2, 4, 8, 16, 32])

    def c_mlscale():
        A("; head-wide sum -> global exponent offset")
        G = vT + 12
        A(f"v_sub_f32 v{G}, v{G}, v{vT+9}")
        A(f"v_exp_f32 v{G}, v{G}")
        A("s_nop 0")
        A(f"v_mul_f32 v{G+2}, v{G+2}, v{G}")
        allreduce("v_add_f32", [G + 2], vT + 10, [2, 4, 8, 16, 32])
        A(f"v_log_f32 v{G+2}, v{G+2}")
        A("s_nop 0")
        A(f"v_add_f32 v{vT+9}, v{vT+9}, v{G+2}")
        A(f"v_sub_f32 v{vT+10}, v{vMS}, v{vT+9}")
        A(f"v_exp_f32 v{vT+10}, v{vT+10}")

    def c_rescale():
        A("; move the accumulators to the global normalisation")
        A(f"v_mov_b32 v{vMS}, v{vT+9}")
        A("s_nop 0")
        A(f"v_mov_b32_dpp v{vT+2}, v{vT+10} quad_perm:[0,0,0,0] row_mask:0xf bank_mask:0xf")
        A(f"v_mov_b32_dpp v{vT+3}, v{vT+10} quad_perm:[1,1,1,1] row_mask:0xf bank_mask:0xf")
        A("s_nop 4")
        for t in range(4):
            A(f"v_pk_mul_f32 v[{vACC+4*t}:{vACC+4*t+1}], v[{vACC+4*t}:{vACC+4*t+1}], v[{vT+2}:{vT+3}]")

    vWO, vW2 = vSC + 4, vSC + 36

    def issue_weights():
        A("; wo / w2 rows, two columns per thread")
        assert st["pdone"] >= 12 and st.get("tail1")
        for i in range(16):
            hd, k = divmod(i, 8)
            if i % 4 == 0 and i:
                A(f"s_add_u32 {sT[0]}, {sT[0]}, {(252 if i == 8 else 4)*896}")
            VM(f"buffer_load_dword v{vWO+2*k+hd}, v{vT+16}, {SRD_WO}, {sT[0]} offen offset:{(i%4)*896} {wflags}")
        for i in range(8):
            if i % 4 == 0 and i:
                A(f"s_add_u32 {sT[1]}, {sT[1]}, {4*896}")
            st["w"] = VM(f"buffer_load_dword v{vWO+16+i}, v{vT+16}, {SRD_W2}, {sT[1]} offen offset:{(i%4)*896} {wflags}")

    E2 = 144

    def c_w2issue():
        A(f"v_subrev_u32 v{vT}, 128, v0")
        A(f"v_cmp_gt_u32 vcc, 112, v{vT}")
        A(f"v_lshlrev_b32 v{vT+1}, 3, v{vT}")
        A(f"v_bfrev_b32 v{vT+2}, 2")
        A(f"s_mul_i32 {sT[1]}, {sF}, {8*896}")
        A(f"v_cndmask_b32 v11, v{vT+2}, v{vT+1}, vcc")
        for i in range(8):
            if i == 4:
                A(f"s_add_u32 {sT[1]}, {sT[1]}, {4*896}")
            st["w2"] = VM(f"buffer_load_dwordx2 v[{E2+2*i}:{E2+2*i+1}], v11, {SRD_W2}, {sT[1]} offen offset:{(i%4)*896} {wflags}")

    def c_w2use():
        wait_vm(st["w2"])
        A(f"s_mov_b32 {sT[6]}, 0x05040100")
        A(f"s_mov_b32 {sT[7]}, 0x07060302")
        for k in range(4):
            for cp in range(2):
                A(f"v_perm_b32 v{80+4*k+2*cp}, v{E2+4*k+2+cp}, v{E2+4*k+cp}, {sT[6]}")
                A(f"v_perm_b32 v{80+4*k+2*cp+1}, v{E2+4*k+2+cp}, v{E2+4*k+cp}, {sT[7]}")
        for c in range(4):
            A(f"v_mov_b32 v{E2+2*c}, 0")
            A(f"v_mov_b32 v{E2+2*c+1}, {sTAG}")
        A("s_cmp_lt_u32 s2, 224")
        A("s_cbranch_scc0 L_now2")
        for k in range(4):
            for c in range(4):
                A(f"v_dot2_f32_bf16 v{E2+2*c}, v{vH+2*k}, v{80+4*k+c}, v{E2+2*c}")
        A("L_now2:")

    def issue_wdma(k):
        assert st.get("mlok")
        if k == 0:
            A(f"v_lshlrev_b32 v{vMAX}, 4, {vL}")
            A(f"s_lshl_b32 s10, {sH}, 5")
            A(f"s_add_u32 s10, s10, {sP}")
            A(f"s_mul_i32 s10, s10, {16*896}")
            A(f"s_mul_i32 s11, {sF}, {8*896}")
        wo = k < 4
        A(f"s_add_u32 s12, {sW}, {4*k if wo else 4*(k-4)}")
        A(f"s_min_u32 s12, s12, {13 if wo else 6}")
        A("s_lshl_b32 s12, s12, 10")
        A(f"s_add_u32 m0, s12, {STG if wo else STG + 14336}")
        A(f"s_add_u32 s12, s12, {'s10' if wo else 's11'}")
        idx = VM(f"buffer_load_dwordx4 v{vMAX}, {SRD_WO if wo else SRD_W2}, s12 offen {wflags} lds")
        m0bad["v"] = True
        st["w"] = idx
        return idx

    MO = ((2 * S) % R) * tb
    vMW, vMR, vO1, vH1, vH2, vXR, vOO = 6, 8, vT + 4, vT + 5, vT + 6, vT + 7, vT + 11
    sH2 = [f"s{4+k}" for k in range(16)]
    sP1, sP2, sCONS = "s68", "s69", "s70"

    def c_tail1():
        A("; addresses for the end phase")
        st["tail1"] = True
        A(f"s_add_u32 {sT[2]}, {sRING}, {MO}")
        A(f"v_lshlrev_b32 v{vMW}, 4, {vL}")
        A(f"v_add_u32 v{vMW}, {sT[2]}, v{vMW}")
        A(f"v_lshlrev_b32 v{vMR}, 4, {vL}")
        A(f"v_add_u32 v{vMR}, {MO}, v{vMR}")
        if msplit == 2:
            A(f"s_lshl_b32 {sT[2]}, {sW}, 10")
            A(f"v_add_u32 v{vMR}, {sT[2]}, v{vMR}")
        elif msplit == 4:
            A(f"s_lshr_b32 {sT[2]}, {sW}, 1")
            A(f"s_lshl_b32 {sT[2]}, {sT[2]}, 7")
            A(f"s_and_b32 {sT[3]}, {sW}, 1")
            A(f"s_add_u32 {sT[2]}, {sT[2]}, {sT[3]}")
            A(f"s_lshl_b32 {sT[2]}, {sT[2]}, 3")
            A(f"v_add_u32 v{vMR}, {sT[2]}, v{vMR}")
        A(f"v_add_u32 v{vMR+1}, {2*R*tb}, v{vMR}")
        A(f"s_lshl_b32 {sP1}, {sH}, 5")
        A(f"s_add_u32 {sP1}, {sP1}, {sP}")
        A(f"s_lshl_b32 {sT[0]}, {sH}, 6")
        A(f"s_add_u32 {sT[0]}, {sT[0]}, {sP}")
        A(f"s_mul_i32 {sT[0]}, {sT[0]}, {8*896}")
        A(f"s_mul_i32 {sT[1]}, {sF}, {8*896}")
        A(f"s_lshl_b32 {sP1}, {sP1}, 12")
        A(f"s_add_u32 {sP1}, {sP1}, {WS_P1O}")
        if msplit > 1:
            A(f"s_lshl_b32 s27, {sW}, {11 if msplit == 2 else 10}")
            A(f"s_add_u32 s27, s27, {sP1}")
        A(f"v_lshlrev_b32 v{vO1}, 4, {vL}")
        for k in (1, 5, 7):
            A(f"v_mov_b32 v{64+k}, {sTAG}")
        A(f"v_cmp_gt_u32 vcc, 224, v0")
        A(f"v_lshlrev_b32 v{vT+1}, 2, v0")
        A(f"v_lshrrev_b32 v{vOO}, 3, v0")
        A(f"v_and_b32 v{vT+2}, 7, v0")
        A(f"v_lshlrev_b32 v{vT+2}, 4, v{vT+2}")
        A(f"v_lshl_add_u32 v{vOO}, v{vOO}, 12, v{vT+2}")
        A(f"s_add_u32 s71, {sTAG}, 2")
        A(f"v_bfrev_b32 v{vT+2}, 2")
        A(f"v_cndmask_b32 v{vT+16}, v{vT+2}, v{vT+1}, vcc")
        A(f"v_cndmask_b32 v{vOO}, v{vT+2}, v{vOO}, vcc")

    def c_tail2():
        A(f"v_lshrrev_b32 v{vT}, 3, {vL}")
        A(f"v_and_b32 v{vT+1}, 7, {vL}")
        A(f"v_lshlrev_b32 v{vT+1}, 4, v{vT+1}")
        A(f"v_lshl_add_u32 v{vH1}, v{vT}, 12, v{vT+1}")
        A(f"s_lshl_b32 {sT[2]}, {sH}, 17")
        A(f"s_lshl_b32 {sT[3]}, {sP}, 7")
        A(f"s_add_u32 {sT[2]}, {sT[2]}, {sT[3]}")
        A(f"s_add_u32 {sT[2]}, {sT[2]}, {WS_P1O}")
        for k in range(1, 4):
            A(f"s_add_u32 {sT[2+k]}, {sT[2]}, {k*32768}")
        for k in range(4):
            A(f"s_add_u32 {sH2[k]}, {sP1}, {k*1024}")
        A(f"s_lshl_b32 {sH2[4]}, s2, 7")
        A(f"s_add_u32 {sH2[4]}, {sH2[4]}, {WS_P3}")
        A(f"s_sub_u32 {sT[6]}, s2, 224")
        A(f"s_cmp_lt_u32 {sT[6]}, 28")
        A(f"s_cselect_b32 {sCONS}, 1, 0")
        A(f"s_cselect_b32 {sT[6]}, {sT[6]}, 0")
        A(f"s_lshl_b32 {sH2[5]}, {sT[6]}, 10")
        A(f"s_add_u32 {sH2[5]}, {sH2[5]}, {WS_P3}")
        A(f"s_lshl_b32 {sT[6]}, {sT[6]}, 5")
        A(f"v_lshrrev_b32 v{vT+9}, 5, {vL}")
        A(f"v_lshl_add_u32 v{vT+8}, v{vT+9}, 3, v{vT+1}")
        A(f"v_lshrrev_b32 v{vT+17}, 2, v{vT+8}")
        A(f"v_add_u32 v{vT+17}, {sT[6]}, v{vT+17}")
        A(f"v_and_b32 v{vT+14}, 1, {vL}")
        A(f"v_mul_u32_u24 v{vT+14}, {WS_EP2}, v{vT+14}")
        A("s_movk_i32 s20, 0xff")
        A("s_movk_i32 s21, 0xff")

    PW, PW2, Y = 128, 144, 152

    def c_wprep():
        A(f"s_waitcnt vmcnt({4 if wg_ == 5 else 5})")
        A(f"s_mov_b32 {sT[6]}, 0x05040100")
        A(f"s_mov_b32 {sT[7]}, 0x07060302")
        for k in range(12):
            A(f"v_perm_b32 v{PW+2*k}, v{vWO+2*k+1}, v{vWO+2*k}, {sT[6]}")
            A(f"v_perm_b32 v{PW+2*k+1}, v{vWO+2*k+1}, v{vWO+2*k}, {sT[7]}")
        for c in range(2):
            A(f"v_mov_b32 v{Y+2*c}, 0")
            A(f"v_mov_b32 v{Y+2*c+1}, s71")
        A("s_cmp_lt_u32 s2, 224")
        A("s_cbranch_scc0 L_noprep")
        for k in range(4):
            for c in range(2):
                A(f"v_dot2_f32_bf16 v{Y+2*c}, v{vH+2*k}, v{PW2+2*k+c}, v{Y+2*c}")
        A("L_noprep:")

    def do_touch():
        A("; bring the inbox lines of the final hand-offs into L2")
        A(f"s_lshl_b32 {sT[8]}, {sW}, 15")
        A(f"s_add_u32 {sT[8]}, {sT[8]}, {sT[2]}")
        if touch == "sc1":
            VM(f"buffer_load_dword v{vT+12}, v{vH1}, {SRD_WS}, {sT[8]} offen sc1")
        elif touch == "one":
            VM(f"buffer_load_dword v{vT+12}, off, {SRD_WS}, {sT[2]} sc1")
        else:
            A(f"s_cmp_eq_u32 {sLOC}, 1")
            A("s_cbranch_scc0 L_tfar")
            A(f"buffer_load_dword v{vT+12}, v{vH1}, {SRD_WS}, {sT[8]} offen")
            A("s_branch L_tdone")
            A("L_tfar:")
            VM(f"buffer_load_dword v{vT+12}, v{vH1}, {SRD_WS}, {sT[8]} offen sc1")
            A("L_tdone:")
        if touch2 and not reuse:
            A(f"s_mul_i32 {sT[8]}, {sW}, {8*3584}")
            A(f"s_add_u32 {sT[8]}, {sT[8]}, {sH2[0]}")
            VM(f"buffer_load_dword v{vT+13}, v{vH2}, {SRD_WS}, {sT[8]} offen sc1")

    def do_wtlb():
        VM(f"buffer_load_dword v{vT+14}, off, {SRD_WO}, {sT[0]} nt")
        VM(f"buffer_load_dword v{vT+15}, off, {SRD_W2}, {sT[1]} nt")

    def c_rkprobe(c):
        A(f"s_cmp_eq_u32 {sW}, {rkw}")
        A(f"s_cbranch_scc0 L_rkp{c}")
        A(f"s_lshl_b32 s18, {sH}, 7")
        A(f"s_add_u32 s18, s18, {WS_RK + c*1024}")
        A(f"s_lshl_b32 s19, {sP}, 2")
        A(f"s_add_u32 s19, s19, s18")
        A(f"v_lshlrev_b32 v{vT+18}, 2, {vL}")
        A(f"v_mov_b32 v{vT+19}, {sTAG}")
        A("s_mov_b32 exec_hi, 0")
        A(f"buffer_load_dword v255, v{vT+18}, {SRD_WS}, s18 offen sc1")
        A("s_mov_b32 exec_lo, 1")
        A(f"buffer_store_dword v{vT+19}, off, {SRD_WS}, s19")
        A("s_mov_b64 exec, -1")
        A(f"L_rkp{c}:")
        st["rk_n"] = vm["n"]

    def c_rkdecide(c, L, k=None):
        _, hi, gh, lo, gl = ctl[c]
        if k is None:
            A(f"s_cmp_eq_u32 {sW}, {rkw}")
            A(f"s_cbranch_scc0 L_rkd{c}")
            A(f"v_cmp_eq_u32 vcc, {sTAG}, v255")
            A("s_bcnt1_i32_b32 s18, vcc_lo")
        else:
            A(f"s_cmp_eq_u32 s14, {k}")
            c = f"{c}_{k}"
            A(f"s_cbranch_scc0 L_rkd{c}")
        A(f"s_sub_u32 {sWE}, s18, {hi}")
        A(f"s_mul_i32 {sWE}, {sWE}, {gh}")
        A(f"s_add_u32 {sWE}, {sWE}, {L + 5}")
        A(f"s_cmp_gt_u32 s18, {hi}")
        A(f"s_cselect_b32 {sWE}, {sWE}, 0")
        if N2:
            A(f"s_sub_u32 {sNE}, s18, {lo}")
            A(f"s_mul_i32 {sNE}, {sNE}, {gl}")
            A(f"s_add_u32 {sNE}, {sNE}, {L + 5}")
            A(f"s_cmp_gt_u32 s18, {lo}")
            A(f"s_cselect_b32 {sNE}, {sNE}, 0")
        elif lo:
            A(f"s_min_u32 {sNE}, s18, {lo}")
            A(f"s_sub_u32 {sNE}, {lo}, {sNE}")
            A(f"s_mul_i32 {sNE}, {sNE}, {gl}")
            A(f"s_add_u32 {sNE}, {sNE}, {L + 5}")
            A(f"s_cmp_lt_u32 s18, {lo}")
            A(f"s_cselect_b32 {sNE}, {sNE}, 0")
        else:
            A(f"s_mov_b32 {sNE}, 0")
        A(f"v_mov_b32 v{vT+18}, {sWE}")
        A(f"v_mov_b32 v{vT+19}, {sNE}")
        A(f"ds_write_b64 v254, v[{vT+18}:{vT+19}]")
        A(f"L_rkd{c}:")
        st["rk_on"] = True

    def c_last():
        A("; last V tile, four keys at a time")
        slot = ((2 * S - 1) % R) * tb
        tile_stamp_a()
        for g in range(4):
            wait_vm(lidx[NL - T + 2 * g + 1])
            read_vg(slot, g)
            if wg_ == g:
                issue_weights()
            if g:
                A("s_waitcnt lgkmcnt(4)")
                pvg(S - 1, g - 1)
        A("s_waitcnt lgkmcnt(0)")
        pvg(S - 1, 3)
        if stamps:
            lds_wait(True)
        stamp()
        A("s_nop 1")
        A("s_nop 0")
        for hf in range(2):
            r = vACC + 8 * hf
            A(f"ds_write2_b64 v{vMW}, v[{r}:{r+1}], v[{r+4}:{r+5}] offset0:{128*hf} offset1:{128*hf+1}")
            if hf == 0:
                A("s_nop 0")

    chunks = []
    C = lambda fn, need=None, free=None: chunks.append((need, free, fn))
    backlog = list(range(NB))
    for n in range(S):
        slot = (n % R) * tb
        if n < NB:
            C(lambda n=n, slot=slot: read_k(32 * n, slot, True), need=n)
            C(lambda: lds_wait(True), free=n)
            if n == NP:
                C(c_qpoll)
            if n == NB - 1:
                C(c_qcheck)
                C(c_qread)
        else:
            C(lambda slot=slot: read_k(vTL, slot), need=n)
            C(lambda: (lds_wait(True), qk_mfma(vTL, False)), free=n)
            C(lambda n=n: qk_post(vSC + 4 * n))
            for _ in range(2):
                if backlog:
                    m = backlog.pop(0)
                    C(lambda m=m: qk_mfma(32 * m, True))
                    C(lambda m=m: qk_post(vSC + 4 * m))
    assert not backlog
    C(c_kmax)
    lq = list(range(S))
    assert vgat % 2 == 1 and vpub % 2 == 1
    for n in range(S):
        j = S + n
        slot = (j % R) * tb
        if n == vgat + 3:
            C(c_rescale)
        if n == S - 2:
            C(lambda: make_p(S - 2))
            C(lambda: make_p(S - 1))
            if not lateprep:
                C(c_wprep)
        elif n < S - 2:
            C(lambda n=n: make_p(n))
        if n < S - 1:
            C(lambda slot=slot, n=n: read_v(slot, n & 1), need=j)
        if tat == j:
            C(do_touch)
        if wat == j and wg_ is None:
            C(issue_weights)
        if n == S - 1:
            C(c_last, need="issued")
        else:
            C(lambda n=n: (lds_wait(True), pv(n)), free=j)
        for _ in range(3 if n % 2 == 0 else 2):
            if lq:
                m0, m1 = lq.pop(0), lq.pop(0)
                C(lambda m0=m0, m1=m1: (lsum(vSC + 4 * m0), lsum(vSC + 4 * m1)))
                if not lq:
                    C(c_lwrite)
        if w2at == j:
            C(c_w2issue)
        if w2at is not None and w2at + 2 == j:
            C(c_w2use)
        if n == vpub:
            assert not lq
            C(c_mlpub)
        if n == vgat:
            C(c_mlpoll)
        if n == vgat + 1:
            C(c_mlcheck)
            C(c_mlscale)
        if n == vgat + 3:
            C(c_tail1)
            C(c_tail2)

    freed = set()

    def emit_chunk(q, block):
        need, free, fn = q[0]
        if need == "issued":
            if not block:
                return False
        elif need is not None:
            last = need * T + T - 1
            if last not in lidx:
                assert not block
                return False
            if lidx[last] > vm["known"]:
                if not block:
                    return False
                wait_vm(lidx[last])
        q.pop(0)
        fn()
        if free is not None:
            freed.add(free)
        return True

    def tagfix():
        A("s_waitcnt lgkmcnt(0)")
        mk_tag(f"{sTAG}")

    def stream(L0, L1, win, q, paced):
        for L in range(L0, L1):
            j, i = divmod(L, T)
            st["L"] = L
            Nw = win(L)
            if ext and X * T <= L < ext[0] and Nw < ext[1]:
                wait_vm(paced[-ext[1]])
                A(f"s_cmp_lt_u32 {sZ}, 92")
                A(f"s_cbranch_scc1 L_x{L}")
                A(f"s_waitcnt vmcnt({vm['n'] - paced[-Nw]})")
                A(f"L_x{L}:")
            elif st.get("rk_on") and Nw <= N + 1:
                if N2:
                    wait_vm(paced[-(Nw + N2 - N)])
                    A(f"s_cmp_gt_u32 {sNE}, {L}")
                    A(f"s_cbranch_scc1 L_x{L}")
                    A(f"s_waitcnt vmcnt({vm['n'] - paced[-(Nw + Nhi - N)]})")
                else:
                    wait_vm(paced[-(Nw + Nhi - N)])
                A(f"s_cmp_gt_u32 {sWE}, {L}")
                A(f"s_cbranch_scc1 L_x{L}")
                A(f"s_waitcnt vmcnt({vm['n'] - paced[-Nw]})")
                if not N2 and (any(r[3] for r in ctl) or (iw and iw[2])):
                    A(f"s_cmp_gt_u32 {sNE}, {L}")
                    A(f"s_cbranch_scc0 L_x{L}")
                    A(f"s_waitcnt vmcnt({vm['n'] - paced[-Nlo]})")
                A(f"L_x{L}:")
            elif len(paced) >= Nw:
                wait_vm(paced[-Nw])
            if L == NL - tail - T:
                st["rk_off"] = True
            if i == 0 and j >= R:
                while (j - R) not in freed:
                    emit_chunk(q, True)
            issue_load(L)
            paced.append(lidx[L])
            if iw and "tc" in st and not st.get("rk_off") and not st.get("rk_rd"):
                A(f"v_mov_b32 v{vPD}, {L}")
                A(f"ds_write_b32 v{vPW}, v{vPD}")
                st["iw_last"] = L
            if L == NL - 1 - tpos and touch is not None and tat is None:
                do_touch()
                if wtlb:
                    do_wtlb()
            if L == NL - 1 - wpos and not now and not wearly and not wafter and wat is None and not wdma and wlate is None and wg_ is None:
                issue_weights()
            if wdma and L >= wdma[0] and (L - wdma[0]) % wdma[1] == 0 and (L - wdma[0]) // wdma[1] < 6:
                if wdma[2]:
                    wait_vm(paced[-Nw])
                    paced.append(issue_wdma((L - wdma[0]) // wdma[1]))
                else:
                    issue_wdma((L - wdma[0]) // wdma[1])
            did = False
            for c, r_ in enumerate(rk):
                if L == r_[0] and not st.get("rk_rd"):
                    c_rkprobe(c)
                    st["rk_pend"] = c
                    did = True
                elif L == r_[0]:
                    raise AssertionError("probe between a tile read and its wait")
            if st.get("rk_pend") is not None and vm["known"] > st["rk_n"] and not st.get("rk_rd") and not did:
                c_rkdecide(st["rk_pend"], L)
                st["rk_pend"] = None
                did = True
            if q and not did and (L < NL - tail or Nend <= N + 2):
                emit_chunk(q, False)

    def win_main(L):
        Nw = Nend if L >= NL - tail else N
        if kopen and NL // 2 - kopen[0] <= L < NL // 2:
            Nw = kopen[1]
        for b_ in bump:
            if b_[0] <= L < b_[1]:
                Nw = b_[2]
        if alt and Nw == N and (L // alt[1]) % alt[2] == (alt[3] if len(alt) > 3 else 0):
            Nw = alt[0]
        return Nw

    split = next(k for k, ch in enumerate(chunks) if ch[0] == X - 1)
    head_chunks, rest = chunks[:split], chunks[split:]
    assert X - 1 <= NP
    ends = []
    for path in ("n", "p"):
        vm.update(n=0, known=0)
        lidx.clear()
        freed.clear()
        paced = []
        stg = {"i": 0}

        def issue_stg():
            i = stg["i"]
            if rot:
                if i == 0:
                    A(f"s_mul_i32 {sT[3]}, {sZ}, 4682")
                    A(f"s_lshr_b32 {sT[3]}, {sT[3]}, 16")
                    A(f"s_mul_i32 {sT[3]}, {sT[3]}, 14")
                    A(f"s_sub_u32 {sT[3]}, {sZ}, {sT[3]}")
                else:
                    A(f"s_add_u32 {sT[3]}, {sT[3]}, 1")
                    A(f"s_cmp_eq_u32 {sT[3]}, 14")
                    A(f"s_cselect_b32 {sT[3]}, 0, {sT[3]}")
                A(f"s_lshl_b32 {sT[9]}, {sT[3]}, 10")
                A(f"s_add_u32 m0, {sT[6]}, {sT[9]}")
                A(f"s_mul_i32 {sT[9]}, {sT[3]}, {sT[4]}")
                A(f"s_add_u32 {sT[9]}, {sT[9]}, {sT[5]}")
                st["stg"] = VM(f"buffer_load_dwordx4 v21, {SRD_W}, {sT[9]} offen {wflags} lds")
            else:
                A(f"s_add_u32 m0, {sT[6]}, {i*1024}")
                if i:
                    A(f"s_add_u32 {sT[5]}, {sT[5]}, {sT[4]}")
                else:
                    A("s_nop 0")
                st["stg"] = VM(f"buffer_load_dwordx4 v21, {SRD_W}, {sT[5]} offen {wflags} lds")
            paced.append(st["stg"])
            stg["i"] += 1
            m0bad["v"] = True
        if path == "n":
            common0()
            A("s_waitcnt lgkmcnt(0)")
            if diag == 6:
                A("s_memrealtime s[86:87]")
            for L in range(N0):
                issue_load(L)
                paced.append(lidx[L])
            srd(52, 4, 896)
            common1()
            setup()
            if wearly:
                issue_weights()
            if ra:
                A(f"s_lshl_b32 {sT[2]}, s2, 2")
                A(f"s_add_u32 {sT[2]}, {sT[2]}, {sW}")
                A(f"s_cmp_eq_u32 {sT[2]}, 1023")
                A("s_cbranch_scc0 L_noclear")
                A(f"v_mul_u32_u24 v29, 4352, {vL}")
                A("v_mov_b32 v30, 0")
                A(f"s_mov_b32 {sT[2]}, {WS_CNT}")
                A(f"buffer_store_dword v30, v29, {SRD_WS}, {sT[2]} offen sc0 sc1")
                if len(ra) * ng > 64:
                    A(f"s_add_u32 {sT[2]}, {sT[2]}, {64*4352}")
                    A(f"buffer_store_dword v30, v29, {SRD_WS}, {sT[2]} offen sc0 sc1")
                A("s_waitcnt vmcnt(0) lgkmcnt(0)")
                mk_tag(f"{sT[2]}")
                A(f"v_mov_b32 v30, {sT[2]}")
                A(f"s_mov_b32 {sT[2]}, {WS_RDY}")
                A("s_mov_b64 exec, 1")
                A(f"buffer_store_dword v30, off, {SRD_WS}, {sT[2]} sc1")
                A("s_mov_b64 exec, -1")
                A("L_noclear:")
            if diag == 5:
                A(f"s_waitcnt vmcnt({N0-1})")
                A("s_memrealtime s[86:87]")
            q = list(head_chunks) + [(None, None, tagfix)]
            stream(N0, X * T, (lambda L: nn[1] if nn and L < nn[0] else win_main(L)), q, paced)
        else:
            A("; ---- workgroups 0..91: stage 448 x 64 weights, layer norm, publish q / h, then catch up")
            A("L_producer:")
            common0()
            producer0()
            st["x"] = VM(f"buffer_load_dwordx4 v[{vT}:{vT+3}], v29, {SRD_X}, 0 offen")
            A(f"s_mov_b32 m0, {sT[6]}")
            A("L_stg:")
            A(f"s_sub_u32 {sT[3]}, {sT[3]}, 1")
            A(f"buffer_load_dwordx4 v21, {SRD_W}, {sT[5]} offen {wflags} lds")
            A(f"s_add_u32 {sT[5]}, {sT[5]}, {sT[4]}")
            A("s_add_u32 m0, m0, 1024")
            A(f"s_cmp_lg_u32 {sT[3]}, 0")
            A("s_cbranch_scc1 L_stg")
            for _ in range(14):
                vm["n"] += 1
                st["stg"] = vm["n"]
                paced.append(vm["n"])
            for L in range(B0):
                issue_load(L)
                paced.append(lidx[L])
                if il and L % il == il - 1:
                    issue_stg()
            common1()
            setup()
            if wearly == 1:
                issue_weights()
            if not il:
                for fn in side_chunks[:4]:
                    fn()
                q = [(None, None, fn) for fn in side_chunks[4:]] + list(head_chunks) + [(None, None, tagfix)]
                stream(B0, X * T, lambda L: Np if L < Xp else N, q, paced)
            else:
                Ls = 14 * il
                q = [(None, None, fn) for fn in side_chunks[:5]] + list(head_chunks)
                for L in range(B0, Ls):
                    stream(L, L + 1, lambda L: Np, q, paced)
                    if L % il == il - 1:
                        if len(paced) >= Np:
                            wait_vm(paced[-Np])
                        issue_stg()
                w2 = Np2 or N
                L = Ls
                while st["stg"] > vm["known"]:
                    stream(L, L + 1, lambda L: w2, q, paced)
                    L += 1
                assert all(ch[2] not in side_chunks for ch in q)
                if q and q[0][1] is not None:
                    emit_chunk(q, True)
                q = [(None, None, fn) for fn in side_chunks[5:]] + ([(None, None, issue_weights)] if wearly == 2 else []) + q + [(None, None, tagfix)]
                stream(L, X * T, lambda L: w2 if L < Xp else N, q, paced)
        while q:
            emit_chunk(q, True)
        known_L = max([L for L in lidx if lidx[L] <= vm["known"]] + [-1])
        ends.append(({L: vm["n"] - lidx[L] for L in range(X * T - 16, X * T)}, known_L, set(freed)))
        if path == "n":
            A("s_branch L_join")
            for _ in range(dead // 4):
                A("s_nop 0")
    for _ in range(pad):
        A("s_nop 0")
    A("L_join:")
    if jit:
        A(f"s_lshl_b32 {sT[0]}, s2, 2")
        A(f"s_add_u32 {sT[0]}, {sT[0]}, {sW}")
        A(f"s_xor_b32 {sT[0]}, {sT[0]}, {sTAG}")
        A(f"s_mul_i32 {sT[0]}, {sT[0]}, 0x9E3779B1")
        A(f"s_lshr_b32 {sT[0]}, {sT[0]}, 26")
        A(f"s_cmp_lg_u32 {sT[0]}, 0")
        A("s_cbranch_scc1 L_nojit")
        for _ in range(jit):
            A("s_sleep 127")
        A("L_nojit:")
    if diag == 2:
        A("s_memrealtime s[86:87]")
    st["tc"] = X - 1
    if iw:
        assert not rk
        st["rk_on"] = True
    stamp(1)
    assert ends[0][0] == ends[1][0] and ends[0][2] == ends[1][2], ends
    vm["known"] = lidx[min(ends[0][1], ends[1][1])]
    stream(X * T, NL, win_main, rest, [lidx[L] for L in range(X * T - 16, X * T)])
    while rest:
        emit_chunk(rest, True)

    def gather4(lbl, base, voff, soffs, d0, d1, first_issued, slp, tg=sTAG):
        def loads(set_):
            for k in range(4):
                r = base + 16 * set_ + 4 * k
                A(f"buffer_load_dwordx4 v[{r}:{r+3}], v{voff}, {SRD_WS}, {soffs[k]} offen sc1")

        def sums(r):
            A(f"v_add_f32 v{d0}, v{r}, v{r+4}")
            A(f"v_add_f32 v{d1}, v{r+2}, v{r+6}")
            A(f"v_add_f32 v{r+8}, v{r+8}, v{r+12}")
            A(f"v_add_f32 v{r+10}, v{r+10}, v{r+14}")
            A(f"v_add_f32 v{d0}, v{d0}, v{r+8}")
            A(f"v_add_f32 v{d1}, v{d1}, v{r+10}")
        if not first_issued:
            loads(0)
        if dry == 1:
            A("s_mov_b64 exec, 0")
            A(f"s_branch L_{lbl}ok")
        if dry:
            A(f"L_{lbl}back:")
            A("s_mov_b64 exec, -1")
        if fast:
            t0 = vT + 2
            two = lbl in deep
            bases = (base, 80) if two else (base,)

            def ld(b_):
                for k in range(4):
                    A(f"buffer_load_dwordx4 v[{b_+4*k}:{b_+4*k+3}], v{voff}, {SRD_WS}, {soffs[k]} offen sc1")
            A(f"L_{lbl}:")
            for n_, b_ in enumerate(bases):
                if two:
                    ld(bases[1 - n_])
                for k in range(4):
                    r = b_ + 4 * k
                    A(f"s_waitcnt vmcnt({3 - k + (4 if two else 0)})")
                    if k == 0:
                        A(f"v_xor_b32 v{t0}, {tg}, v{r+1}")
                    else:
                        A(f"v_bitop3_b32 v{t0}, v{t0}, v{r+1}, {tg} bitop3:0xf6")
                    A(f"v_bitop3_b32 v{t0}, v{t0}, v{r+3}, {tg} bitop3:0xf6")
                    if k == 3:
                        A(f"v_cmp_ne_u32 vcc, 0, v{t0}")
                    if k == 1:
                        A(f"v_add_f32 v{d0}, v{b_}, v{r}")
                        A(f"v_add_f32 v{d1}, v{b_+2}, v{r+2}")
                    elif k > 1:
                        A(f"v_add_f32 v{d0}, v{d0}, v{r}")
                        A(f"v_add_f32 v{d1}, v{d1}, v{r+2}")
                A(f"s_cbranch_vccz L_{lbl}ok")
            A(f"s_sub_u32 {sT[9]}, {sT[9]}, 1")
            if two:
                A(f"s_cbranch_scc0 L_{lbl}")
            else:
                A(f"s_cbranch_scc1 L_{lbl}ok")
                ld(base)
                A(f"s_branch L_{lbl}")
            A(f"L_{lbl}ok:")
            return
        A(f"L_{lbl}:")
        nset = 2 if pipe else 1
        for set_ in range(nset):
            r = base + 16 * set_
            if pipe:
                loads(1 - set_)
                A("s_waitcnt vmcnt(4)")
            else:
                A("s_waitcnt vmcnt(0)")
            tagcheck([r + 1 + 2 * i for i in range(8)], vT + 2, vT + 3, tg)
            if pipe:
                sums(r)
            A(f"s_cbranch_vccz L_{lbl}ok")
        A(f"s_sub_u32 {sT[9]}, {sT[9]}, 1")
        if pipe:
            A(f"s_cbranch_scc0 L_{lbl}")
        else:
            A(f"s_cbranch_scc1 L_{lbl}ok")
            if slp:
                A(f"s_sleep {slp}")
            loads(0)
            if dry > 1:
                A(f"s_cmp_eq_u32 {sT[9]}, {spin - dry}")
                A(f"s_cbranch_scc0 L_{lbl}")
                A("s_mov_b64 exec, 0")
            else:
                A(f"s_branch L_{lbl}")
        A(f"L_{lbl}ok:")
        if not pipe:
            sums(base)

    def reduce2(a_, b_, tmp):
        A("s_nop 0")
        A(f"v_permlane32_swap_b32 v{a_}, v{b_}")
        A("s_nop 0")
        A(f"v_add_f32 v{a_}, v{a_}, v{b_}")
        A("s_nop 1")
        A(f"v_add_f32_dpp v{a_}, v{a_}, v{a_} row_ror:8 row_mask:0xf bank_mask:0xf")
        A(f"v_mov_b32 v{tmp}, v{a_}")
        A("s_nop 1")
        A(f"v_permlane16_swap_b32 v{a_}, v{tmp}")
        A("s_nop 0")
        A(f"v_add_f32 v{a_}, v{a_}, v{tmp}")

    O4, G, OG = 32, 64, 112
    endi = "s_branch L_done" if stamps else "s_endpgm"
    A("; ---- every wave adds one quarter over the four waves and sends it (hand-off 1)")
    if wg_ == 4:
        issue_weights()
    A("s_waitcnt lgkmcnt(0)")
    A("s_barrier")
    for w in range(4):
        A(f"ds_read_b64 v[{O4+2*w}:{O4+2*w+1}], v{vMR+w//2} offset:{(w%2)*R*tb}")
    A(f"s_cmp_eq_u32 {sLOC}, 1")
    A("s_waitcnt lgkmcnt(2)")
    A(f"v_pk_add_f32 v[{O4}:{O4+1}], v[{O4}:{O4+1}], v[{O4+2}:{O4+3}]")
    A("s_waitcnt lgkmcnt(0)")
    A(f"v_pk_add_f32 v[{O4+4}:{O4+5}], v[{O4+4}:{O4+5}], v[{O4+6}:{O4+7}]")
    A(f"v_add_f32 v{G+4}, v{O4}, v{O4+4}")
    A(f"v_add_f32 v{G+6}, v{O4+1}, v{O4+5}")
    A("s_cbranch_scc0 L_far1")
    A(f"buffer_store_dwordx4 v[{G+4}:{G+7}], v{vO1}, {SRD_WS}, s27 offen")
    A("L_sent1:")
    stamp()
    if wg_ == 5:
        issue_weights()
    for k in range(4):
        A(f"buffer_load_dwordx4 v[{OG+4*k}:{OG+4*k+3}], v{vH1}, {SRD_WS}, {sT[2+k]} offen sc1")
    c_wprep()
    A(f"s_mov_b32 {sT[9]}, {spin}")
    oa, ob = vT, vT + 1
    gather4("h1", OG, vH1, sT[2:6], oa, ob, True, 0)
    stamp()
    allreduce("v_add_f32", [oa, ob], vT + 2, [8, 16, 32])
    A(f"v_cvt_pk_bf16_f32 v{oa}, v{oa}, v{ob}")
    A(f"s_cmp_eq_u32 {sLOC}, 1")
    for k in range(8):
        A(f"v_readlane_b32 s{10+k}, v{oa}, {k}")
    for k in range(8):
        for c in range(2):
            A(f"v_dot2_f32_bf16 v{Y+2*c}, s{10+k}, v{PW+2*k+c}, v{Y+2*c}")
    A("s_barrier")
    A("s_nop 0")
    A("s_cbranch_scc0 L_far2")
    A(f"buffer_store_dwordx4 v[{Y}:{Y+3}], v{vOO}, {SRD_WS}, {sT[2]} offen")
    A("L_sent2:")
    stamp()
    A(f"s_cmp_eq_u32 {sW}, 0")
    A("s_cbranch_scc0 L_stop")
    A(f"s_mov_b32 {sT[9]}, {spin}")
    A(f"s_cmp_lt_u32 {sP}, 28")
    A("s_cbranch_scc0 L_final")
    A("; ---- wave 0, p < 28: sum one 16-column line over the 32 workgroups of this head, send it on")
    gather4("h2", OG, vO1, sH2, G, G + 2, False, 0, "s71")
    if stamps:
        A("s_memrealtime s[96:97]")
    reduce2(G, G + 2, vT)
    A("s_mov_b64 exec, s[20:21]")
    A(f"buffer_store_dwordx2 v[{G}:{G+1}], v{vT+8}, {SRD_WS}, {sH2[4]} offen sc1")
    A("L_stop:")
    A(endi)
    A("L_final:")
    A(f"s_cmp_eq_u32 {sCONS}, 1")
    A("s_cbranch_scc0 L_stop")
    A(f"v_mov_b32 v{vXR}, 0")
    A(f"buffer_load_short_d16_hi v{vXR}, v{vT+17}, {SRD_X}, 0 offen")
    A(f"buffer_load_ushort v{vT+12}, v{vT+17}, {SRD_OUT}, 0 offen")
    A(f"buffer_load_dword v{vT+13}, v{vT+14}, {SRD_WS}, 0 offen")
    YG = OG
    for d in range(depth3 - 1):
        A(f"buffer_load_dwordx4 v[{YG+4*d}:{YG+4*d+3}], v{vO1}, {SRD_WS}, {sH2[5]} offen sc1")
    A("L_h3:")
    for d in range(depth3):
        n = (d + depth3 - 1) % depth3
        A(f"buffer_load_dwordx4 v[{YG+4*n}:{YG+4*n+3}], v{vO1}, {SRD_WS}, {sH2[5]} offen sc1")
        A(f"s_waitcnt vmcnt({depth3 - 1})")
        A(f"v_xor_b32 v{vT}, {sTAG}, v{YG+4*d+1}")
        A(f"v_bitop3_b32 v{vT}, v{vT}, v{YG+4*d+3}, {sTAG} bitop3:0xf6")
        A(f"v_cmp_ne_u32 vcc, 0, v{vT}")
        A(f"v_mov_b32 v{G}, v{YG+4*d}")
        A(f"v_mov_b32 v{G+2}, v{YG+4*d+2}")
        A("s_cbranch_vccz L_h3ok")
    A(f"s_sub_u32 {sT[9]}, {sT[9]}, 1")
    A("s_cbranch_scc0 L_h3")
    A("L_h3ok:")
    if stamps:
        A("s_memrealtime s[98:99]")
    reduce2(G, G + 2, vT)
    A(f"v_add_f32 v{G}, v{G}, v{vXR}")
    A("s_mov_b64 exec, s[20:21]")
    A(f"v_cvt_pk_bf16_f32 v{G}, v{G}, v{G}")
    A(f"buffer_store_short v{G}, v{vT+17}, {SRD_OUT}, 0 offen")
    if diag == 1:
        A("s_memrealtime s[86:87]")
        A("s_memrealtime s[88:89]")
        A("s_waitcnt lgkmcnt(0)")
        A("s_sub_u32 s86, s86, s84")
        A(f"s_mul_i32 s86, s86, {dmul}")
        A("s_add_u32 s86, s86, s88")
        A("L_diag:")
        A("s_memrealtime s[88:89]")
        A("s_waitcnt lgkmcnt(0)")
        A("s_sub_u32 s90, s88, s86")
        A("s_cmp_lt_i32 s90, 0")
        A("s_cbranch_scc1 L_diag")
    A("s_cmp_eq_u32 s2, 224")
    A("s_cbranch_scc0 L_fin_end")
    A("s_mov_b64 exec, 3")
    A(f"buffer_store_dword v{G+1}, v{vT+14}, {SRD_WS}, 0 offen")
    A("L_fin_end:")
    A(endi)
    A("; ---- workgroups of this head are not all on one die: write-through stores")
    A("L_far1:")
    A(f"buffer_store_dwordx4 v[{G+4}:{G+7}], v{vO1}, {SRD_WS}, s27 offen sc1")
    A("s_branch L_sent1")
    A("L_far2:")
    A(f"buffer_store_dwordx4 v[{Y}:{Y+3}], v{vOO}, {SRD_WS}, {sT[2]} offen sc1")
    A("s_branch L_sent2")
    A("L_done:")
    if diag == 7:
        A("s_cmp_lt_u32 s2, 92")
        A("s_cbranch_scc0 L_end")
        A("s_memrealtime s[88:89]")
        A("s_waitcnt lgkmcnt(0)")
        A("s_sub_u32 s86, s86, s84")
        A(f"s_mul_i32 s86, s86, {dmul}")
        A("s_add_u32 s86, s86, s88")
        A("L_diag7:")
        A("s_memrealtime s[88:89]")
        A("s_waitcnt lgkmcnt(0)")
        A("s_sub_u32 s90, s88, s86")
        A("s_cmp_lt_i32 s90, 0")
        A("s_cbranch_scc1 L_diag7")
    if stamps:
        A("s_mov_b64 exec, -1")
        A("s_memrealtime s[100:101]")
        A("s_waitcnt lgkmcnt(0)")
        A(f"s_lshl_b32 {sT[0]}, s2, 2")
        A(f"s_add_u32 {sT[0]}, {sT[0]}, {sW}")
        A(f"s_lshl_b32 {sT[1]}, {sT[0]}, 8")
        A(f"s_lshl_b32 {sT[0]}, {sT[0]}, 6")
        A(f"s_add_u32 {sT[0]}, {sT[0]}, {WS_STAMP}")
        A(f"s_add_u32 {sT[1]}, {sT[1]}, {WS_STAMP + 0x10000}")
        A(f"v_lshlrev_b32 v2, 2, {vL}")
        A(f"buffer_store_dword v252, v2, {SRD_WS}, {sT[1]} offen")
        A("v_mov_b32 v2, 0")
        A("s_mov_b64 exec, 1")
        A("v_mov_b32 v3, s26")
        A(f"buffer_store_dword v3, v2, {SRD_WS}, {sT[0]} offen offset:44")
        for k in range(9):
            A(f"v_mov_b32 v3, s{84+2*k}")
            A(f"buffer_store_dword v3, v2, {SRD_WS}, {sT[0]} offen offset:{4*k}")
        A("s_getreg_b32 s84, hwreg(HW_REG_XCC_ID)")
        A("v_mov_b32 v3, s84")
        A(f"buffer_store_dword v3, v2, {SRD_WS}, {sT[0]} offen offset:36")
        A(f"v_mov_b32 v3, {sT[9]}")
        A(f"buffer_store_dword v3, v2, {SRD_WS}, {sT[0]} offen offset:40")
    A("L_end:")
    A("s_endpgm")
    body = "\n".join(("" if l.endswith(":") else "    ") + l for l in o)
    head = HEADER.format(lds=LDS, k=kern).replace("; One launch, 256 workgroups (one per CU), 4 waves each.  Generated by dev/gen.py.\n", DOC)
    if al12:
        head = head.replace(".p2align 8\n", ".p2align 12\n.p2align 8\n")
    return head + body + FOOTER.format(k=kern)


if __name__ == "__main__":
    out = sys.argv[1]
    kw = json.loads(sys.argv[2]) if len(sys.argv) > 2 else {}
    open(out, "w").write(gen(**kw))
```
